```python
import torch

def _softmax(x, axis=-1):
    return torch.softmax(x, dim=axis)
def _gelu(x):
    return torch.nn.functional.gelu(x, approximate="tanh")
def _silu(x):
    return torch.nn.functional.silu(x)
def _sigmoid(x):
    return torch.sigmoid(x)
def _layernorm(x, axis=-1, eps=1e-5):
    m = x.mean(dim=axis, keepdim=True)
    v = x.var(dim=axis, keepdim=True, unbiased=False)
    return (x - m) / torch.sqrt(v + eps)
def _scatter_add(tgt, idx, src, axis=0):
    return tgt.clone().index_add_(axis, idx, src)
def _segment_sum(src, seg, n):
    out = torch.zeros((n,) + src.shape[1:], dtype=src.dtype)
    return out.index_add_(0, seg, src)
def _pad(x, pw):
    flat = tuple(v for pair in reversed(pw) for v in pair)
    return torch.nn.functional.pad(x, flat)

kernel_name = 'concat_heads__mha_block_cached__gqa_block_cached__near_ridge'

def setup_inputs():

    _w = (lambda a: (lambda t: t.to(torch.bfloat16) if t.is_floating_point() else t)(torch.as_tensor(a)))
    def _A_setup():
        B, Sq, D = 8, 128, 448
        H, Sk, Dh = 16, 512, 256
        return {
            "x": _w((lambda *s: torch.randn(*s, dtype=torch.bfloat16) * 0.8)(B, Sq, D)),
            "k_cache": _w((lambda *s: torch.randn(*s, dtype=torch.bfloat16) * 0.8)(B, H, Sk, Dh)),
            "v_cache": _w((lambda *s: torch.randn(*s, dtype=torch.bfloat16) * 0.05)(B, H, Sk, Dh)),
            "wq": _w((lambda *s: torch.randn(*s, dtype=torch.bfloat16) * 0.8)(D, H * Dh) * (D ** -0.5)),
            "wo": _w((lambda *s: torch.randn(*s, dtype=torch.bfloat16) * 0.05)(H * Dh, D) * ((H * Dh) ** -0.5)),
        }
    _A_in = _A_setup()

    def _B_setup():
        B, Sq, D = 8, 128, 448
        Hq, Hkv, Sk, Dh = 16, 16, 512, 256
        assert Hq % Hkv == 0, (Hq, Hkv)
        return {
            "x": _w((lambda *s: torch.randn(*s, dtype=torch.bfloat16) * 0.8)(B, Sq, D)),
            "k_cache": _w((lambda *s: torch.randn(*s, dtype=torch.bfloat16) * 0.8)(B, Hkv, Sk, Dh)),
            "v_cache": _w((lambda *s: torch.randn(*s, dtype=torch.bfloat16) * 0.05)(B, Hkv, Sk, Dh)),
            "wq": _w((lambda *s: torch.randn(*s, dtype=torch.bfloat16) * 0.8)(D, Hq * Dh) * (D ** -0.5)),
            "wo": _w((lambda *s: torch.randn(*s, dtype=torch.bfloat16) * 0.05)(Hq * Dh, D) * ((Hq * Dh) ** -0.5)),
        }
    _B_in = _B_setup()

    return {
        "A_x": _A_in["x"],
        "A_k_cache": _A_in["k_cache"],
        "A_v_cache": _A_in["v_cache"],
        "A_wq": _A_in["wq"],
        "A_wo": _A_in["wo"],
        "B_x": _B_in["x"],
        "B_k_cache": _B_in["k_cache"],
        "B_v_cache": _B_in["v_cache"],
        "B_wq": _B_in["wq"],
        "B_wo": _B_in["wo"],
    }

def reference(A_x, A_k_cache, A_v_cache, A_wq, A_wo, B_x, B_k_cache, B_v_cache, B_wq, B_wo):
    def _A_ref(x, k_cache, v_cache, wq, wo):
        B, Sq, D = x.shape
        H, Dh = 16, 256
        q = (lambda x, *d: x.permute(*d))((x @ wq).reshape(B, Sq, H, Dh), 0, 2, 1, 3)
        scores = torch.einsum("bhqd,bhkd->bhqk", q, k_cache) * (Dh ** -0.5)
        p = _softmax(scores, axis=-1)
        o = torch.einsum("bhqk,bhkd->bhqd", p, v_cache)
        return (lambda x, *d: x.permute(*d))(o, 0, 2, 1, 3).reshape(B, Sq, H * Dh) @ wo

    def _B_ref(x, k_cache, v_cache, wq, wo):
        B, Sq, D = x.shape
        Hq, Dh = 16, 256
        Hkv = k_cache.shape[1]
        rep = Hq // Hkv
        q = (lambda x, *d: x.permute(*d))((x @ wq).reshape(B, Sq, Hq, Dh), 0, 2, 1, 3)
        k = (lambda x, n, axis: torch.repeat_interleave(x, n, dim=axis))(k_cache, rep, axis=1)
        v = (lambda x, n, axis: torch.repeat_interleave(x, n, dim=axis))(v_cache, rep, axis=1)
        scores = torch.einsum("bhqd,bhkd->bhqk", q, k) * (Dh ** -0.5)
        p = _softmax(scores, axis=-1)
        o = torch.einsum("bhqk,bhkd->bhqd", p, v)
        return (lambda x, *d: x.permute(*d))(o, 0, 2, 1, 3).reshape(B, Sq, Hq * Dh) @ wo

    a = _A_ref(A_x, A_k_cache, A_v_cache, A_wq, A_wo)
    b = _B_ref(B_x, B_k_cache, B_v_cache, B_wq, B_wo)
    return torch.concatenate([a, b], axis=-1)
```

```python
import sys, math

NAME = "concat_heads__mha_block_cached__gqa_block_cached__near_ridge"
K1 = NAME + "_kernel"
K2 = "reduce_heads_kernel"

class A:
    def __init__(self):
        self.L = []
        self.lds_q = []
    def e(self, s):
        self.L.append("    " + s)
    def lab(self, s):
        self.L.append(s + ":")
    def c(self, s):
        self.L.append("    ; " + s)
    def text(self):
        return "\n".join(self.L) + "\n"

OPT = dict(stamps=False, st_pol="", kv_pol="nt", w_pol="nt", x_pol="nt", k2_pol="nt")
for a in sys.argv[2:]:
    k, v = a.split("=")
    OPT[k] = (v == "1") if k == "stamps" else v.replace("+", " ")

sW, sH, sB, sBLK = 4, 5, 6, 7
sK, sV, sWq, sWo, sX, sWs = 8, 12, 16, 20, 24, 28
sWoff = 48
sT = 49
sOffA, sOffB, sStep = 50, 51, 52
sLd = 53
sDelta = 54
sC, sThr = 55, 56
sRd = 57
sSt0, sSt1 = 58, 59
sDA, sDB = 60, 64
sTmp = 68
s32k = 69
sStamp = 72

vKr = 10
vVr = 18
vWqr = 22
vWor = 26
vD = 28
vWqd = 36
vWod = 40
vXo = 44
vSt = 45
vM, vNmc, vThr, vL, vAl = 46, 47, 48, 49, 50
vT0 = 51
vP = 56
vS = 64
vAcc0, vAcc1 = 64, 80
vPk = 96
vO = 128
aQ = 0
aX = 64
aF = 176
NB = 16

SCALE = math.log2(math.e) / 16.0
def f32hex(x):
    import struct
    return "0x%08x" % struct.unpack("<I", struct.pack("<f", x))[0]

def stamp(a, idx):
    if OPT["stamps"]:
        a.e(f"s_memrealtime s[{sStamp+2*idx}:{sStamp+2*idx+1}]")

def mfma_stream(a, items, depth, fillers=None, pre=None):
    fillers = fillers or {}
    n = len(items)
    q = []
    def issue(i):
        b = aF + 4 * (i % NB)
        for r in items[i][0]:
            a.e(r.format(b=b, b1=b + 1, b2=b + 2, b3=b + 3))
            q.append(i)
    for i in range(min(depth, n)):
        issue(i)
    if pre:
        for s in pre: a.e(s)
    for i in range(n):
        after = sum(1 for x in q if x > i)
        if any(x <= i for x in q):
            assert after <= 15
            a.e(f"s_waitcnt lgkmcnt({after})")
            q[:] = [x for x in q if x > i]
        b = aF + 4 * (i % NB)
        a.e(items[i][1].format(b0=b, b1=b + 3))
        if i + depth < n:
            issue(i + depth)
        for s in fillers.get(i, []):
            a.e(s)

def spread(instr_groups, n, start=0):
    f = {}
    m = len(instr_groups)
    span = n - start
    for k, g in enumerate(instr_groups):
        i = start + (k * span) // m
        f.setdefault(i, []).extend(g)
    return f

def merge(f1, f2):
    f = {k: list(v) for k, v in f1.items()}
    for k, v in f2.items():
        f.setdefault(k, []).extend(v)
    return f

def dma_generic(pol):
    g = []
    for half in range(2):
        srd = sDA if half == 0 else sDB
        so = sOffA if half == 0 else sOffB
        for jj in range(4):
            ins = []
            if jj == 0:
                if half == 0:
                    ins.append(f"s_add_u32 m0, s{sLd}, s{sWoff}")
                else:
                    ins.append(f"s_add_u32 m0, m0, 16384")
                ins.append("s_nop 0")
            off = f" offset:{jj*1024}" if jj else ""
            ins.append(f"buffer_load_dwordx4 v{vD+4*half+jj}, s[{srd}:{srd+3}], s{so} offen{off} {pol} lds")
            g.append(ins)
    return g

def dma_advance():
    return [f"s_add_u32 s{sOffA}, s{sOffA}, s{sStep}",
            f"s_add_u32 s{sOffB}, s{sOffB}, s{sStep}",
            f"s_add_u32 s{sLd}, s{sLd}, 32768",
            f"s_cmp_eq_u32 s{sLd}, 163840",
            f"s_cselect_b32 s{sLd}, 0, s{sLd}"]

def dma_wq(c, slot):
    g = []
    for hu in range(2):
        for jj in range(4):
            ins = []
            if jj == 0:
                ins.append(f"s_add_u32 m0, s{sWoff}, {slot*32768 + hu*16384}")
                ins.append(f"s_mov_b32 s{sTmp}, {(64*c + 32*hu)*8192}")
            off = f" offset:{jj*1024}" if jj else ""
            ins.append(f"buffer_load_dwordx4 v{vWqd+jj}, s[{sWq}:{sWq+3}], s{sTmp} offen{off} {OPT['w_pol']} lds")
            g.append(ins)
    return g

def gen_k1():
    a = A()
    e = a.e
    a.L.append(f".globl {K1}\n.p2align 8\n.type {K1},@function\n{K1}:")
    e("s_cmp_ge_u32 s2, 256")
    e("s_cbranch_scc1 L_k1_done")
    stamp(a, 0)
    e("s_and_b32 s3, s2, 7")
    e(f"s_lshr_b32 s{sBLK}, s3, 2")
    e("s_and_b32 s3, s3, 3")
    e("s_lshl_b32 s3, s3, 2")
    e(f"s_lshr_b32 s{sB}, s2, 3")
    e(f"s_and_b32 s{sH}, s{sB}, 3")
    e(f"s_add_u32 s{sH}, s{sH}, s3")
    e(f"s_lshr_b32 s{sB}, s{sB}, 2")
    e(f"s_mul_i32 s3, s{sBLK}, 40")
    e("s_add_u32 s32, s0, s3")
    e("s_addc_u32 s33, s1, 0")
    e("s_load_dwordx2 s[34:35], s[32:33], 0")
    e("s_load_dwordx4 s[36:39], s[32:33], 8")
    e("s_load_dwordx4 s[40:43], s[32:33], 24")
    e("s_load_dwordx2 s[44:45], s[0:1], 96")
    e("v_lshrrev_b32 v1, 6, v0")
    e("v_and_b32 v2, 63, v0")
    e(f"v_readfirstlane_b32 s{sW}, v1")
    e("v_and_b32 v3, 31, v2")
    e("v_lshrrev_b32 v4, 5, v2")
    e(f"s_lshl_b32 s{sWoff}, s{sW}, 12")
    e(f"s_lshl_b32 s3, s{sW}, 16")
    e(f"s_lshl_b32 s{sTmp}, s{sH}, 9")
    e(f"s_add_u32 s3, s3, s{sTmp}")
    e("v_lshlrev_b32 v5, 13, v4")
    e("v_add_u32 v5, s3, v5")
    e("v_lshlrev_b32 v6, 2, v4")
    e("v_xor_b32 v6, v6, v3")
    e("v_xor_b32 v7, 8, v6")
    e("v_lshlrev_b32 v6, 4, v6")
    e("v_lshlrev_b32 v7, 4, v7")
    for jj in range(4):
        src = 6 if jj % 2 == 0 else 7
        e(f"v_add_u32 v{vWqd+jj}, v5, v{src}")
        if jj:
            e(f"v_add_u32 v{vWqd+jj}, {jj*(16384-1024)}, v{vWqd+jj}")
    e(f"s_mul_i32 s3, s{sW}, {32*896}")
    e("v_mul_u32_u24 v8, 896, v3")
    e("v_lshlrev_b32 v9, 4, v4")
    e("v_add_u32 v8, v8, v9")
    e(f"v_add_u32 v{vXo}, s3, v8")
    e("s_waitcnt lgkmcnt(0)")
    e(f"s_mov_b32 s{sWq}, s40"); e(f"s_mov_b32 s{sWq+1}, s41"); e(f"s_mov_b32 s{sWq+2}, {448*8192}"); e(f"s_mov_b32 s{sWq+3}, 0x00020000")
    e(f"s_mul_i32 s3, s{sB}, 114688")
    e(f"s_add_u32 s{sX}, s34, s3"); e(f"s_addc_u32 s{sX+1}, s35, 0"); e(f"s_mov_b32 s{sX+2}, 114688"); e(f"s_mov_b32 s{sX+3}, 0x00020000")
    vm = []
    def emit_groups(gs, tag):
        for g in gs:
            for s in g: e(s)
            vm.append(tag)
    def xload(ks):
        return [f"buffer_load_dwordx4 a[{aX+4*ks}:{aX+4*ks+3}], v{vXo}, s[{sX}:{sX+3}], 0 offen offset:{ks*32} {OPT['x_pol']}"]
    WQSLOT = [4, 2, 3, 4, 2, 3, 4]
    emit_groups(dma_wq(0, WQSLOT[0]), "wq0")
    emit_groups([xload(k) for k in range(0, 4)], "wq0")
    emit_groups(dma_wq(1, WQSLOT[1]), "wq1")
    emit_groups([xload(k) for k in range(4, 8)], "wq1")
    e(f"s_lshl_b32 s3, s{sB}, 4")
    e(f"s_add_u32 s3, s3, s{sH}")
    e(f"s_lshl_b32 s3, s3, 18")
    e(f"s_add_u32 s{sDA}, s36, s3"); e(f"s_addc_u32 s{sDA+1}, s37, 0"); e(f"s_mov_b32 s{sDA+2}, 262144"); e(f"s_mov_b32 s{sDA+3}, 0x00020000")
    e(f"s_add_u32 s{sDB}, s38, s3"); e(f"s_addc_u32 s{sDB+1}, s39, 0"); e(f"s_mov_b32 s{sDB+2}, 262144"); e(f"s_mov_b32 s{sDB+3}, 0x00020000")
    e(f"s_mul_i32 s3, s{sH}, 229376")
    e(f"s_add_u32 s{sWo}, s42, s3"); e(f"s_addc_u32 s{sWo+1}, s43, 0"); e(f"s_mov_b32 s{sWo+2}, 229376"); e(f"s_mov_b32 s{sWo+3}, 0x00020000")
    e(f"s_lshl_b32 s3, s{sBLK}, 3")
    e(f"s_add_u32 s3, s3, s{sB}")
    e(f"s_lshl_b32 s3, s3, 4")
    e(f"s_add_u32 s3, s3, s{sH}")
    e(f"s_mul_i32 s3, s3, 114688")
    e(f"s_add_u32 s{sWs}, s44, s3"); e(f"s_addc_u32 s{sWs+1}, s45, 0"); e(f"s_mov_b32 s{sWs+2}, 114688"); e(f"s_mov_b32 s{sWs+3}, 0x00020000")
    e(f"s_and_b32 s3, s{sW}, 1")
    e("s_lshl_b32 s3, s3, 3")
    e("v_xor_b32 v5, v3, v4")
    e("v_xor_b32 v5, s3, v5")
    e("v_lshlrev_b32 v8, 9, v4")
    e(f"v_add_u32 v8, s{sWoff}, v8")
    for jj in range(4):
        e(f"v_xor_b32 v9, {2*jj}, v5")
        e("v_lshlrev_b32 v9, 4, v9")
        e(f"v_add_u32 v{vD+jj}, v8, v9")
    for jj in range(4):
        src = 6 if jj % 2 == 0 else 7
        e(f"v_add_u32 v{vD+4+jj}, v8, v{src}")
    e(f"s_mov_b32 s{sOffA}, 0"); e(f"s_mov_b32 s{sOffB}, 0"); e(f"s_mov_b32 s{sStep}, 16384"); e(f"s_mov_b32 s{sLd}, 0")
    emit_groups(dma_generic(OPT["kv_pol"]), "kv0")
    for s in dma_advance(): e(s)
    emit_groups(dma_wq(2, WQSLOT[2]), "wq2")
    emit_groups([xload(k) for k in range(8, 12)], "wq2")
    emit_groups(dma_generic(OPT["kv_pol"]), "kv1")
    for s in dma_advance(): e(s)
    emit_groups([xload(k) for k in range(12, 20)], "x34")
    e("v_lshrrev_b32 v5, 3, v2")
    e("v_mul_u32_u24 v8, 896, v5")
    e("v_lshrrev_b32 v5, 4, v2")
    e("v_and_b32 v5, 1, v5")
    e("v_lshlrev_b32 v5, 2, v5")
    e("v_and_b32 v9, 7, v2")
    e("v_xor_b32 v5, v5, v9")
    e("v_lshlrev_b32 v5, 4, v5")
    e("v_add_u32 v8, v8, v5")
    e(f"s_mul_i32 s3, s{sW}, {32*896}")
    e("v_add_u32 v8, s3, v8")
    for jj in range(4):
        e(f"v_add_u32 v{vWod+jj}, {jj*(7168-1024)}, v8")
    e("v_and_b32 v5, 15, v3")
    e("v_xor_b32 v5, v5, v4")
    e("v_lshlrev_b32 v5, 4, v5")
    e("v_lshlrev_b32 v8, 9, v3")
    e("v_add_u32 v5, v5, v8")
    for s in range(8):
        e(f"v_xor_b32 v{vKr+s}, {s<<5}, v5")
    e("v_lshrrev_b32 v5, 4, v2"); e("v_and_b32 v5, 1, v5")
    e("v_lshrrev_b32 v6, 2, v2"); e("v_and_b32 v6, 3, v6")
    e("v_and_b32 v7, 3, v2")
    e("v_lshlrev_b32 v8, 2, v4"); e("v_add_u32 v8, v8, v6")
    e("v_lshlrev_b32 v9, 9, v8")
    e(f"v_lshlrev_b32 v{vT0}, 5, v5")
    e(f"v_lshlrev_b32 v{vT0+1}, 3, v7")
    e(f"v_add_u32 v{vT0}, v{vT0}, v{vT0+1}")
    e(f"v_add_u32 v9, v9, v{vT0}")
    e(f"v_lshlrev_b32 v{vT0+2}, 6, v6")
    e(f"v_add_u32 v9, v9, v{vT0+2}")
    e("v_add_u32 v9, 16384, v9")
    for t in range(4):
        e(f"v_xor_b32 v{vVr+t}, {t<<6}, v9")
    e(f"v_and_b32 v{vT0+1}, 1, v7"); e(f"v_lshlrev_b32 v{vT0+1}, 4, v{vT0+1}")
    e(f"v_lshrrev_b32 v{vT0+3}, 1, v7"); e(f"v_lshlrev_b32 v{vT0+3}, 3, v{vT0+3}")
    e(f"v_lshlrev_b32 v{vT0}, 5, v5")
    e(f"v_add_u32 v{vT0}, v{vT0}, v{vT0+1}")
    e(f"v_add_u32 v{vT0}, v{vT0}, v{vT0+3}")
    e("v_lshlrev_b32 v9, 3, v4"); e("v_add_u32 v9, v9, v6"); e("v_lshlrev_b32 v9, 9, v9")
    e(f"v_add_u32 v9, v9, v{vT0}")
    e(f"v_add_u32 v9, v9, v{vT0+2}")
    e(f"v_add_u32 v9, {WQSLOT[0]*32768}, v9")
    for t in range(4):
        e(f"v_xor_b32 v{vWqr+t}, {t<<6}, v9")
    e("v_lshlrev_b32 v9, 7, v8")
    e(f"v_add_u32 v9, v9, v{vT0}")
    e(f"v_lshrrev_b32 v{vT0+1}, 1, v6"); e(f"v_lshlrev_b32 v{vT0+1}, 6, v{vT0+1}")
    e(f"v_add_u32 v9, v9, v{vT0+1}")
    e("v_add_u32 v9, 32768, v9")
    e(f"v_mov_b32 v{vWor}, v9")
    e(f"v_xor_b32 v{vWor+1}, 64, v9")
    e(f"s_mul_i32 s3, s{sW}, 28672")
    e(f"v_lshlrev_b32 v{vSt}, 4, v2")
    e(f"v_add_u32 v{vSt}, s3, v{vSt}")
    e(f"s_mov_b32 s{sC}, {f32hex(SCALE)}")
    e(f"s_mov_b32 s{s32k}, 32768")
    e(f"s_mov_b32 s{sThr}, {f32hex(8.0/SCALE)}")
    e(f"v_mov_b32 v{vM}, {f32hex(-1e30)}")
    e(f"v_mov_b32 v{vThr}, {f32hex(-1e30)}")
    e(f"v_mov_b32 v{vL}, 0")
    stamp(a, 1)

    def vmwait(tags):
        last = max(i for i, t in enumerate(vm) if t in tags)
        n = len(vm) - 1 - last
        e(f"s_waitcnt vmcnt({n})")

    NEXT = {1: ("wq", 3), 2: ("wq", 4), 3: ("wq", 5), 4: ("wq", 6), 5: ("kv", 2), 6: ("kv", 3)}
    for c in range(7):
        a.c(f"phase1 step {c}")
        need = {f"wq{c}"}
        if c in (3, 4): need.add("x34")
        if c in (5, 6): need.add("x56")
        vmwait(need)
        e("s_barrier")
        groups = []
        tags = []
        if c in NEXT:
            kind, idx = NEXT[c]
            if kind == "wq":
                gs = dma_wq(idx, WQSLOT[idx]); groups += gs; tags += [f"wq{idx}"] * len(gs)
            else:
                gs = dma_generic(OPT["kv_pol"]); gs[-1] = gs[-1] + dma_advance(); groups += gs; tags += [f"kv{idx}"] * len(gs)
        if c == 0:
            gs = [xload(k) for k in range(20, 28)]; groups += gs; tags += ["x56"] * len(gs)
        vm.extend(tags)
        items = []
        for tp in range(4):
            ks = 4 * c + tp
            for tau in range(8):
                rd = []
                for hh in range(2):
                    off = (tau >> 2) * 256 + (16 * tp + 4 * hh) * 512
                    lo = "{b}:{b1}" if hh == 0 else "{b2}:{b3}"
                    rd.append(f"ds_read_b64_tr_b16 a[{lo}], v{vWqr + (tau & 3)} offset:{off}")
                acc = vO + 16 * tau
                cin = "0" if ks == 0 else f"v[{acc}:{acc+15}]"
                items.append((rd, f"v_mfma_f32_32x32x16_bf16 v[{acc}:{acc+15}], a[{{b0}}:{{b1}}], a[{aX+4*ks}:{aX+4*ks+3}], {cin}"))
        fl = spread(groups, 24, 1) if groups else {}
        if c < 6:
            d = (WQSLOT[c + 1] - WQSLOT[c]) * 32768
            upd = [f"v_add_u32 v{vWqr+t}, {d & 0xffffffff}, v{vWqr+t}" for t in range(4)]
            fl = merge(fl, {28: upd})
        mfma_stream(a, items, 6, fl)
    stamp(a, 2)
    a.c("Q -> bf16 -> AGPR ; zero O")
    e("s_nop 7"); e("s_nop 7")
    for tau in range(8):
        for j in range(8):
            r = vO + 16 * tau + 2 * j
            e(f"v_cvt_pk_bf16_f32 v{vS + j}, v{r}, v{r+1}")
        for j in range(8):
            e(f"v_accvgpr_write_b32 a{aQ + 8*tau + j}, v{vS + j}")
    for r in range(128):
        e(f"v_mov_b32 v{vO + r}, 0")
    e(f"s_mov_b32 s{sT}, 0")
    e(f"s_mov_b32 s{sRd}, 0")
    a.lab("L_flash")
    e("s_waitcnt vmcnt(24)")
    e("s_barrier")
    e(f"s_cmp_lg_u32 s{sT}, 12")
    e("s_cbranch_scc1 L_noswitch")
    for k in range(4):
        e(f"s_mov_b32 s{sDA+k}, s{sWo+k}")
        e(f"s_mov_b32 s{sDB+k}, s{sWo+k}")
        e(f"v_mov_b32 v{vD+k}, v{vWod+k}")
        e(f"v_mov_b32 v{vD+4+k}, v{vWod+k}")
    e(f"s_mov_b32 s{sOffA}, 0")
    e(f"s_mov_b32 s{sOffB}, {128*896}")
    e(f"s_mov_b32 s{sStep}, 128")
    a.lab("L_noswitch")
    gs = dma_generic(OPT["kv_pol"]); gs[-1] = gs[-1] + dma_advance()
    items = []
    for s in range(16):
        off = (s >> 3) * 256
        rd = [f"ds_read_b128 a[{{b}}:{{b3}}], v{vKr + (s & 7)} offset:{off}"]
        cin = "0" if s == 0 else f"v[{vS}:{vS+15}]"
        items.append((rd, f"v_mfma_f32_32x32x16_bf16 v[{vS}:{vS+15}], a[{{b0}}:{{b1}}], a[{aQ+4*s}:{aQ+4*s+3}], {cin}"))
    mfma_stream(a, items, 8, spread(gs, 16, 0))
    e(f"s_add_u32 s{sRd}, s{sRd}, 32768")
    e(f"s_cmp_eq_u32 s{sRd}, 163840")
    e(f"s_cselect_b32 s{sDelta}, {(-131072) & 0xffffffff}, s{s32k}")
    e(f"s_cselect_b32 s{sRd}, 0, s{sRd}")
    for s in range(8):
        e(f"v_add_u32 v{vKr+s}, s{sDelta}, v{vKr+s}")
    e("s_nop 3")
    e(f"v_max3_f32 v{vT0}, v{vS}, v{vS+1}, v{vS+2}")
    e(f"v_max3_f32 v{vT0+1}, v{vS+3}, v{vS+4}, v{vS+5}")
    e(f"v_max3_f32 v{vT0}, v{vT0}, v{vS+6}, v{vS+7}")
    e(f"v_max3_f32 v{vT0+1}, v{vT0+1}, v{vS+8}, v{vS+9}")
    e(f"v_max3_f32 v{vT0}, v{vT0}, v{vS+10}, v{vS+11}")
    e(f"v_max3_f32 v{vT0+1}, v{vT0+1}, v{vS+12}, v{vS+13}")
    e(f"v_max3_f32 v{vT0}, v{vT0}, v{vS+14}, v{vS+15}")
    e(f"v_max_f32 v{vT0}, v{vT0}, v{vT0+1}")
    e(f"v_mov_b32 v{vT0+1}, v{vT0}")
    e("s_nop 1")
    e(f"v_permlane32_swap_b32 v{vT0}, v{vT0+1}")
    e("s_nop 1")
    e(f"v_max_f32 v{vT0}, v{vT0}, v{vT0+1}")
    e(f"v_cmp_gt_f32 vcc, v{vT0}, v{vThr}")
    e("s_cbranch_vccnz L_rescale")
    a.lab("L_resc_done")
    for r in range(16):
        e(f"v_fma_f32 v{vS+r}, v{vS+r}, s{sC}, v{vNmc}")
    for r in range(16):
        e(f"v_exp_f32 v{vS+r}, v{vS+r}")
    e("s_nop 0")
    for r in range(0, 16, 2):
        e(f"v_add_f32 v{vT0}, v{vS+r}, v{vS+r+1}")
        e(f"v_cvt_pk_bf16_f32 v{vP + r//2}, v{vS+r}, v{vS+r+1}")
        e(f"v_add_f32 v{vL}, v{vL}, v{vT0}")
    items = []
    for t in range(2):
        for tau in range(8):
            rd = []
            for hh in range(2):
                off = (tau >> 2) * 256 + (16 * t + 8 * hh) * 512
                lo = "{b}:{b1}" if hh == 0 else "{b2}:{b3}"
                rd.append(f"ds_read_b64_tr_b16 a[{lo}], v{vVr + (tau & 3)} offset:{off}")
            acc = vO + 16 * tau
            items.append((rd, f"v_mfma_f32_32x32x16_bf16 v[{acc}:{acc+15}], a[{{b0}}:{{b1}}], v[{vP+4*t}:{vP+4*t+3}], v[{acc}:{acc+15}]"))
    upd = [f"v_add_u32 v{vVr+t}, s{sDelta}, v{vVr+t}" for t in range(4)]
    mfma_stream(a, items, 6, {12: upd})
    e(f"s_add_u32 s{sT}, s{sT}, 1")
    e(f"s_cmp_lt_u32 s{sT}, 16")
    e("s_cbranch_scc1 L_flash")
    e("s_branch L_flash_end")
    a.lab("L_rescale")
    e(f"v_max_f32 v{vT0}, v{vT0}, v{vM}")
    e(f"v_sub_f32 v{vT0+1}, v{vM}, v{vT0}")
    e(f"v_mul_f32 v{vT0+1}, s{sC}, v{vT0+1}")
    e(f"v_exp_f32 v{vAl}, v{vT0+1}")
    e(f"v_mov_b32 v{vM}, v{vT0}")
    e(f"v_mul_f32 v{vNmc}, s{sC}, v{vT0}")
    e(f"v_sub_f32 v{vNmc}, 0, v{vNmc}")
    e(f"v_add_f32 v{vThr}, s{sThr}, v{vT0}")
    e(f"v_mul_f32 v{vL}, v{vL}, v{vAl}")
    for r in range(128):
        e(f"v_mul_f32 v{vO+r}, v{vO+r}, v{vAl}")
    e("s_branch L_resc_done")
    a.lab("L_flash_end")
    stamp(a, 3)
    e(f"v_mov_b32 v{vT0}, v{vL}")
    e("s_nop 1")
    e(f"v_permlane32_swap_b32 v{vL}, v{vT0}")
    e("s_nop 1")
    e(f"v_add_f32 v{vL}, v{vL}, v{vT0}")
    e(f"v_rcp_f32 v{vAl}, v{vL}")
    e("s_nop 7"); e("s_nop 3")
    for tau in range(8):
        for j in range(8):
            r = vO + 16 * tau
            e(f"v_cvt_pk_bf16_f32 v{r + j}, v{r + 2*j}, v{r + 2*j + 1}")
    e(f"s_mov_b32 s{sT}, 0")
    e(f"s_mov_b32 s{sSt0}, 0")
    e(f"s_mov_b32 s{sSt1}, {13*2048}")
    e(f"s_mov_b32 s{sRd}, 32768")
    def epilogue(acc, pk, so):
        g = []
        for half in range(2):
            for j in range(4):
                r = acc + 8 * half + 2 * j
                g.append([f"v_mul_f32 v{r}, v{r}, v{vAl}", f"v_mul_f32 v{r+1}, v{r+1}, v{vAl}"])
                g.append([f"v_cvt_pk_bf16_f32 v{pk + 4*half + j}, v{r}, v{r+1}"])
            off = " offset:1024" if half else ""
            g.append([f"buffer_store_dwordx4 v[{pk+4*half}:{pk+4*half+3}], v{vSt}, s[{sWs}:{sWs+3}], s{so} offen{off} {OPT['st_pol']}"])
        return g
    a.lab("L_p4")
    e("s_waitcnt vmcnt(16)")
    e("s_barrier")
    e(f"s_cmp_ge_u32 s{sT}, 3")
    e("s_cbranch_scc1 L_p4_nodma")
    for g in dma_generic(OPT["w_pol"]):
        for s in g: e(s)
    for s in dma_advance(): e(s)
    a.lab("L_p4_nodma")
    items = []
    for nu in range(2):
        acc = vAcc0 if nu == 0 else vAcc1
        for s in range(16):
            rd = []
            for hh in range(2):
                off = (16 * s + 8 * hh) * 128
                lo = "{b}:{b1}" if hh == 0 else "{b2}:{b3}"
                rd.append(f"ds_read_b64_tr_b16 a[{lo}], v{vWor + nu} offset:{off}")
            ob = vO + 16 * (s >> 1) + 4 * (s & 1)
            cin = "0" if s == 0 else f"v[{acc}:{acc+15}]"
            items.append((rd, f"v_mfma_f32_32x32x16_bf16 v[{acc}:{acc+15}], a[{{b0}}:{{b1}}], v[{ob}:{ob+3}], {cin}"))
    f1 = spread(epilogue(vAcc1, vPk + 8, sSt1), 15, 4)
    f0 = {k + 16: v for k, v in spread(epilogue(vAcc0, vPk, sSt0), 15, 4).items()}
    fl = merge(f1, f0)
    upd = [f"s_add_u32 s{sRd}, s{sRd}, 32768",
           f"s_cmp_eq_u32 s{sRd}, 163840",
           f"s_cselect_b32 s{sDelta}, {(-131072) & 0xffffffff}, s{s32k}",
           f"s_cselect_b32 s{sRd}, 0, s{sRd}",
           f"v_add_u32 v{vWor}, s{sDelta}, v{vWor}",
           f"v_add_u32 v{vWor+1}, s{sDelta}, v{vWor+1}"]
    fl = merge(fl, {27: upd})
    mfma_stream(a, items, 6, fl)
    e(f"s_add_u32 s{sSt1}, s{sSt0}, 2048")
    e(f"s_add_u32 s{sSt0}, s{sSt0}, 4096")
    e(f"s_add_u32 s{sT}, s{sT}, 1")
    e(f"s_cmp_lt_u32 s{sT}, 7")
    e("s_cbranch_scc1 L_p4")
    e("s_nop 7"); e("s_nop 7")
    for g in epilogue(vAcc1, vPk + 8, sSt1):
        for s in g: e(s)
    stamp(a, 4)
    if OPT["stamps"]:
        e("s_waitcnt vmcnt(0)")
        stamp(a, 5)
        e("s_waitcnt lgkmcnt(0)")
        e("s_add_u32 s32, s44, 0x4000000"); e("s_addc_u32 s33, s45, 0"); e("s_mov_b32 s34, 0x100000"); e("s_mov_b32 s35, 0x00020000")
        e("s_lshl_b32 s3, s2, 6")
        e("v_mov_b32 v1, s3")
        for k in range(6):
            e(f"v_mov_b32 v{2+k}, s{sStamp+2*k}")
        e("v_cmp_eq_u32 vcc, 0, v0")
        e("s_and_saveexec_b64 s[36:37], vcc")
        e("s_cbranch_execz L_k1_done")
        e("buffer_store_dwordx4 v[2:5], v1, s[32:35], 0 offen")
        e("buffer_store_dwordx2 v[6:7], v1, s[32:35], 0 offen offset:16")
        e("s_waitcnt vmcnt(0)")
    a.lab("L_k1_done")
    e("s_endpgm")
    return a.text()

def gen_k2():
    a = A()
    e = a.e
    a.L.append(f".globl {K2}\n.p2align 8\n.type {K2},@function\n{K2}:")
    e("s_cmp_ge_u32 s2, 448")
    e("s_cbranch_scc1 L_k2_done")
    e("s_load_dwordx2 s[4:5], s[0:1], 80")
    e("s_load_dwordx2 s[6:7], s[0:1], 96")
    e(f"s_mov_b32 s3, {(2**32 + 27) // 28}")
    e("s_mul_hi_u32 s16, s2, s3")
    e("s_mul_i32 s17, s16, 28")
    e("s_sub_u32 s17, s2, s17")
    e("v_lshrrev_b32 v1, 6, v0")
    e("v_and_b32 v2, 63, v0")
    e("v_readfirstlane_b32 s18, v1")
    e("s_lshl_b32 s19, s17, 12")
    e("v_lshlrev_b32 v3, 4, v0")
    e("v_add_u32 v3, s19, v3")
    e("s_mul_i32 s20, s16, 1835008")
    e("s_waitcnt lgkmcnt(0)")
    e("s_add_u32 s8, s6, s20"); e("s_addc_u32 s9, s7, 0"); e("s_mov_b32 s10, 1835008"); e("s_mov_b32 s11, 0x00020000")
    e("s_mov_b32 s12, s4"); e("s_mov_b32 s13, s5"); e(f"s_mov_b32 s14, {8*128*896*2}"); e("s_mov_b32 s15, 0x00020000")
    for h in range(16):
        e(f"s_mov_b32 s21, {h*114688}")
        e(f"buffer_load_dwordx4 v[{16+4*h}:{16+4*h+3}], v3, s[8:11], s21 offen {OPT['k2_pol']}")
    e("s_lshl_b32 s22, s17, 2")
    e("s_add_u32 s22, s22, s18")
    e("s_mul_hi_u32 s23, s22, s3")
    e("s_mul_i32 s24, s23, 28")
    e("s_sub_u32 s24, s22, s24")
    e("s_and_b32 s25, s16, 7")
    e("s_lshr_b32 s26, s16, 3")
    e("s_lshl_b32 s27, s25, 7")
    e("s_lshl_b32 s28, s23, 5")
    e("s_add_u32 s27, s27, s28")
    e("s_mul_i32 s27, s27, 1792")
    e("s_mul_i32 s28, s26, 896")
    e("s_add_u32 s27, s27, s28")
    e("s_lshl_b32 s28, s24, 5")
    e("s_add_u32 s27, s27, s28")
    e("v_and_b32 v4, 31, v2")
    e("v_mul_u32_u24 v4, 1792, v4")
    e("v_lshrrev_b32 v5, 5, v2")
    e("v_lshlrev_b32 v5, 4, v5")
    e("v_add_u32 v4, v4, v5")
    e("v_add_u32 v4, s27, v4")
    e("s_mov_b32 s29, 0xffff0000")
    for h in range(16):
        e(f"s_waitcnt vmcnt({15-h})")
        for j in range(4):
            r = 16 + 4 * h + j
            if h == 0:
                e(f"v_lshlrev_b32 v{8+2*j}, 16, v{r}")
                e(f"v_and_b32 v{8+2*j+1}, s29, v{r}")
            else:
                e(f"v_lshlrev_b32 v6, 16, v{r}")
                e(f"v_and_b32 v7, s29, v{r}")
                e(f"v_add_f32 v{8+2*j}, v{8+2*j}, v6")
                e(f"v_add_f32 v{8+2*j+1}, v{8+2*j+1}, v7")
    for j in range(4):
        e(f"v_cvt_pk_bf16_f32 v{16+j}, v{8+2*j}, v{8+2*j+1}")
    e("buffer_store_dwordx4 v[16:19], v4, s[12:15], 0 offen")
    e("s_waitcnt vmcnt(0)")
    a.lab("L_k2_done")
    e("s_endpgm")
    return a.text()

def desc(name, vgpr, acc, sgpr=102):
    return f""".p2align 6
.amdhsa_kernel {name}
  .amdhsa_next_free_vgpr {vgpr}
  .amdhsa_next_free_sgpr {sgpr}
  .amdhsa_accum_offset {acc}
  .amdhsa_group_segment_fixed_size 0
  .amdhsa_kernarg_size 104
  .amdhsa_user_sgpr_count 2
  .amdhsa_user_sgpr_kernarg_segment_ptr 1
  .amdhsa_system_sgpr_workgroup_id_x 1
.end_amdhsa_kernel
"""

def main():
    ref = open(f"cdna_kernels/{NAME}.s.ref").read().splitlines()
    hdr = [l for l in ref if l.startswith(";") and "@launch" not in l and "Override launch" not in l and "grid=ceil" not in l]
    out = "\n".join(hdr) + "\n"
    out += f"; @launch kernel={K1} grid=(256,1,1) block=(256,1,1) lds=163840\n"
    out += f"; @launch kernel={K2} grid=(448,1,1) block=(256,1,1) lds=0\n"
    out += '.amdgcn_target "amdgcn-amd-amdhsa--gfx950"\n.text\n'
    out += gen_k1() + gen_k2()
    out += '.section .rodata,"a"\n'
    out += desc(K1, 512, 256) + desc(K2, 80, 80, 40)
    open(sys.argv[1], "w").write(out)

main()
```

```python
import re

def regs_of(tok):
    tok = tok.strip()
    m = re.fullmatch(r"([vas])\[(\d+):(\d+)\]", tok)
    if m:
        return [(m.group(1), i) for i in range(int(m.group(2)), int(m.group(3)) + 1)]
    m = re.fullmatch(r"([vas])(\d+)", tok)
    if m:
        return [(m.group(1), int(m.group(2)))]
    if tok in ("vcc", "vcc_lo", "vcc_hi"):
        return [("vcc", 0)]
    if tok == "m0":
        return [("m0", 0)]
    if tok in ("exec", "exec_lo", "exec_hi"):
        return [("exec", 0)]
    return []

TRANS = ("v_exp_f32", "v_log_f32", "v_rcp_f32", "v_rsq_f32", "v_sqrt_f32", "v_sin_f32", "v_cos_f32")

class Ins:
    __slots__ = ("text", "op", "cls", "wr", "rd", "srcc", "ab", "data", "lds", "states")
    def __init__(self, text):
        self.text = text
        t = text.split(";")[0].strip()
        parts = t.split(None, 1)
        self.op = parts[0] if parts else ""
        ops = []
        if len(parts) > 1:
            ops = [o.strip() for o in parts[1].split(",")]
            if ops:
                last = ops[-1].split()
                ops[-1] = last[0] if last else ""
        op = self.op
        self.wr, self.rd, self.srcc, self.ab, self.data = [], [], [], [], []
        self.lds = bool(re.search(r"\blds\b", t)) and op.startswith("buffer_load")
        self.states = 1
        R = [regs_of(o) for o in ops]
        if op.endswith(":") or op.startswith(".") or op == "":
            self.cls = "label"; self.states = 0
        elif op.startswith("v_mfma"):
            self.cls = "mfma"
            self.wr = R[0]; self.ab = R[1] + R[2]; self.srcc = R[3]; self.rd = self.ab + self.srcc
        elif op.startswith("v_permlane"):
            self.cls = "valu"
            self.wr = R[0] + R[1]; self.rd = R[0] + R[1]
        elif op.startswith("v_"):
            self.cls = "valu"
            self.wr = R[0]; self.rd = [r for x in R[1:] for r in x]
            if op.startswith("v_cndmask") and len(ops) == 3: self.rd.append(("vcc", 0))
            if op in ("v_fmac_f32", "v_mac_f32", "v_dot2c_f32_bf16"): self.rd += R[0]
        elif op.startswith("ds_read"):
            self.cls = "ds"; self.wr = R[0]; self.rd = R[1]
        elif op.startswith("ds_write"):
            self.cls = "ds"; self.rd = [r for x in R for r in x]
        elif op.startswith("buffer_load"):
            self.cls = "vmem"
            if self.lds:
                self.rd = [r for x in R for r in x] + [("m0", 0)]
            else:
                self.wr = R[0]; self.rd = [r for x in R[1:] for r in x]
        elif op.startswith("buffer_store") or op.startswith("buffer_atomic"):
            self.cls = "vmem"; self.rd = [r for x in R for r in x]
            if "x4" in op or "x3" in op: self.data = R[0]
            if op.startswith("buffer_atomic") and re.search(r"\bsc0\b", t): self.wr = R[0]
        elif op.startswith("global_load"):
            self.cls = "vmem"; self.wr = R[0]; self.rd = [r for x in R[1:] for r in x]
        elif op.startswith("global_store") or op.startswith("global_atomic"):
            self.cls = "vmem"; self.rd = [r for x in R for r in x]
            if "x4" in op or "x3" in op: self.data = R[1]
        elif op == "s_nop":
            self.cls = "nop"; self.states = int(ops[0]) + 1
        elif op.startswith("s_"):
            self.cls = "salu"
            if op.startswith(("s_cmp", "s_cbranch", "s_branch", "s_waitcnt", "s_barrier", "s_endpgm", "s_setpc", "s_sleep", "s_setprio", "s_bitcmp")):
                self.rd = [r for x in R for r in x]
            else:
                self.wr = R[0] if R else []; self.rd = [r for x in R[1:] for r in x]
                if "saveexec" in op: self.wr = self.wr + [("exec", 0)]
        else:
            raise ValueError("unknown instr: " + text)

def need(prev, cur):
    n = 0
    pw = set(prev.wr)
    if prev.cls == "mfma":
        if cur.cls == "mfma":
            if pw & set(cur.ab): n = max(n, 12)
            if pw & set(cur.srcc) and list(cur.srcc) != list(prev.wr): n = max(n, 10)
            if pw & set(cur.wr) and list(cur.wr) != list(prev.wr): n = max(n, 10)
        elif cur.cls in ("valu", "ds", "vmem"):
            if pw & (set(cur.rd) | set(cur.wr)): n = max(n, 12)
            if cur.cls == "valu" and set(prev.srcc) & set(cur.wr): n = max(n, 7)
    elif prev.cls == "valu":
        if cur.cls == "mfma" and pw & set(cur.rd): n = max(n, 2)
        if cur.cls == "valu":
            if prev.op in TRANS and cur.op not in TRANS and pw & set(cur.rd): n = max(n, 1)
            if prev.op in TRANS and pw & set(cur.rd): n = max(n, 1)
            if cur.op.startswith("v_permlane") and pw & set(cur.rd): n = max(n, 2)
            if prev.op.startswith("v_permlane") and pw & set(cur.rd): n = max(n, 2)
            if cur.op.startswith(("v_readfirstlane", "v_readlane")) and pw & set(cur.rd): n = max(n, 1)
            sw = {r for r in pw if r[0] in ("s", "vcc")}
            if sw & set(cur.rd): n = max(n, 2)
        if cur.cls == "vmem":
            sw = {r for r in pw if r[0] in ("s", "vcc")}
            if sw & set(cur.rd): n = max(n, 5)
        if cur.cls == "salu":
            sw = {r for r in pw if r[0] in ("s",)}
            if sw & set(cur.rd): n = max(n, 1)
    elif prev.cls == "salu":
        if ("m0", 0) in pw and cur.lds: n = max(n, 1)
    elif prev.cls == "vmem":
        if prev.data and set(prev.data) & set(cur.wr): n = max(n, 2)
    return n

def pad_hazards(lines):
    out = []
    res = []
    npad = 0
    for ln in lines:
        s = ln.strip()
        if not s or s.startswith(";"):
            res.append(ln); continue
        cur = Ins(s)
        if cur.cls != "label":
            dist = 0
            req = 0
            for p in reversed(out):
                if dist >= 13: break
                r = need(p, cur) - dist
                if r > req: req = r
                dist += p.states
            if req > 0:
                npad += 1
                while req > 0:
                    k = min(req, 8)
                    res.append(f"    s_nop {k-1}")
                    out.append(Ins(f"s_nop {k-1}"))
                    req -= k
        out.append(cur)
        if len(out) > 40: out = out[-20:]
        res.append(ln)
    return res, npad
```

```python
import sys, math, struct
from collections import defaultdict
sys.path.insert(0, "gen")
from asmlib import pad_hazards

NAME = "concat_heads__mha_block_cached__gqa_block_cached__near_ridge"
K1 = NAME + "_kernel"
K2 = "reduce_heads_kernel"

OPT = dict(stamps=0, st_pol="sc1", kv_pol="nt", w_pol="", x_pol="", k2_pol="nt", LP=3, LW=5, LKV=5, LWO=5, D=6,
           rot=1, wowarm=30, codepf=1, dmagap=1)
for a in sys.argv[2:]:
    k, v = a.split("=")
    OPT[k] = int(v) if isinstance(OPT[k], int) else v.replace("+", " ")

sW, sH, sB, sBLK = 4, 5, 6, 7
sK, sV, sWq, sWo, sX, sWs = 8, 12, 16, 20, 24, 28
sWoff = 48
sXoff, sWqoff, sWooff = 49, 50, 51
sStA, sStB = 52, 53
sC, sNC, sThr = 54, 55, 56
sPend = 57
sRet = 58
sTmp, sTmp2 = 60, 61
sStamp = 72

vKr, vVr, vWqr, vXr, vWor = 10, 18, 22, 26, 30
vKd, vVd, vWqd, vXd, vWod = 32, 34, 36, 40, 44
vSt = 48
vM, vNmc, vThr, vL, vAl = 49, 50, 51, 52, 53
vT0 = 54
vS, vE, vP, vS0 = 64, 80, 96, 104
vXf = 64
vAcc = 64
vO = 128
aQ = 160
aF = 224
NB = 8
aDummy = 0

SCALE = math.log2(math.e) / 16.0
def f32hex(x):
    return "0x%08x" % struct.unpack("<I", struct.pack("<f", x))[0]

class Em:
    def __init__(self):
        self.L = []
        self.vmq = []
        self.ldsq = []
    def e(self, s, vm=None, lds=None):
        if isinstance(s, tuple):
            return self.e(*s)
        if callable(s):
            return s(self)
        self.L.append("    " + s)
        if vm is not None: self.vmq.append(vm)
        if lds is not None: self.ldsq.append(lds)
    def lab(self, s): self.L.append(s + ":")
    def c(self, s): self.L.append("    ; " + s)
    def wait_vm(self, tags):
        idx = [i for i, t in enumerate(self.vmq) if t in tags]
        if not idx: return
        n = len(self.vmq) - 1 - max(idx)
        self.e(f"s_waitcnt vmcnt({min(n, 63)})")
        self.vmq = self.vmq[max(idx) + 1:] if n <= 63 else self.vmq[-63:]
    def wait_lds(self, tags):
        idx = [i for i, t in enumerate(self.ldsq) if t in tags]
        if not idx: return
        n = len(self.ldsq) - 1 - max(idx)
        self.e(f"s_waitcnt lgkmcnt({min(n, 15)})")
        self.ldsq = self.ldsq[max(idx) + 1:] if n <= 15 else self.ldsq[-15:]

def stamp(a, idx):
    if OPT["stamps"]:
        a.e(f"s_memrealtime s[{sStamp+2*idx}:{sStamp+2*idx+1}]")

units = []
for c in range(7):
    units += [("X", c), ("W", 2*c), ("W", 2*c+1)]
kv = [("K", 0), ("K", 1)]
for t in range(0, 14):
    kv += [("V", t), ("K", t + 2)]
kv += [("V", 14), ("V", 15)]
assert len(kv) == 32
units += kv
units += [("O", k) for k in range(14)]
NU = len(units)
uidx = {u: n for n, u in enumerate(units)}
HS = []
for c in range(7):
    HS.append([3*c, 3*c+1]); HS.append([3*c+2])
for n in range(21, NU):
    HS.append([n])
consumed = {}
for H, us in enumerate(HS):
    for n in us: consumed[n] = H
def LA(m):
    t = units[m][0]
    return {"X": OPT["LW"], "W": OPT["LW"], "K": OPT["LKV"], "V": OPT["LKV"], "O": OPT["LWO"]}[t]
plan = defaultdict(list)
nxt = 0
for H in range(-1, len(HS)):
    nH = HS[max(H, 0)][0]
    while nxt < NU:
        m = nxt
        la = OPT["LP"] if H < 0 else LA(m)
        if m - la > nH: break
        if m >= 10 and consumed[m - 10] > H - 2: break
        plan[H].append(m); nxt += 1
issued_at = {m: H for H, ms in plan.items() for m in ms}
for m in range(NU):
    assert issued_at[m] < consumed[m], (m, issued_at[m], consumed[m])

def dma(n):
    t, i = units[n]
    slot = n % 10
    g = []
    for jj in range(4):
        ins = []
        if jj == 0:
            ins.append(f"s_add_u32 m0, s{sWoff}, {slot*16384}")
            if t in "KV": ins.append(f"s_mov_b32 s{sTmp}, {i*16384}")
            elif t == "O" and (i & 1): ins.append(f"s_add_u32 s{sTmp}, s{sWooff}, {128*896}")
        off = f" offset:{jj*1024}" if jj else ""
        if t == "K": ld = f"buffer_load_dwordx4 v{vKd+(jj&1)}, s[{sK}:{sK+3}], s{sTmp} offen{off} {OPT['kv_pol']} lds"
        elif t == "V": ld = f"buffer_load_dwordx4 v{vVd+(jj&1)}, s[{sV}:{sV+3}], s{sTmp} offen{off} {OPT['kv_pol']} lds"
        elif t == "W": ld = f"buffer_load_dwordx4 v{vWqd+jj}, s[{sWq}:{sWq+3}], s{sWqoff} offen{off} {OPT['w_pol']} lds"
        elif t == "X": ld = f"buffer_load_dwordx4 v{vXd+jj}, s[{sX}:{sX+3}], s{sXoff} offen{off} {OPT['x_pol']} lds"
        elif t == "O":
            so = sTmp if (i & 1) else sWooff
            ld = f"buffer_load_dwordx4 v{vWod+jj}, s[{sWo}:{sWo+3}], s{so} offen{off} {OPT['w_pol']} lds"
        ins.append((ld, f"u{n}"))
        if jj == 3:
            if t == "W": ins += [f"s_add_u32 s{sWqoff}, s{sWqoff}, {32*8192}", f"s_cmp_eq_u32 s{sWqoff}, {448*8192}", f"s_cselect_b32 s{sWqoff}, 0, s{sWqoff}"]
            if t == "X": ins += [f"s_add_u32 s{sXoff}, s{sXoff}, 128", f"s_cmp_eq_u32 s{sXoff}, 896", f"s_cselect_b32 s{sXoff}, 0, s{sXoff}"]
            if t == "O" and (i & 1): ins += [f"s_add_u32 s{sWooff}, s{sWooff}, 128", f"s_cmp_eq_u32 s{sWooff}, 896", f"s_cselect_b32 s{sWooff}, 0, s{sWooff}"]
        g.append(ins)
    return g

GROUPS = {"K": (vKr, 8), "V": (vVr, 4), "W": (vWqr, 4), "X": (vXr, 4), "O": (vWor, 2)}

class Item:
    def __init__(self, H, mf, reads, extra=None):
        self.H = H; self.mf = mf; self.reads = reads
        self.first = False; self.late = False
        self.extra = extra or []

def tr_reads(grp, ridx, n, off0, off1):
    return [("ds_read_b64_tr_b16", "a[{b}:{b1}]", grp, ridx, n, off0), ("ds_read_b64_tr_b16", "a[{b2}:{b3}]", grp, ridx, n, off1)]

def gen_k1():
    a = Em()
    e = a.e
    a.L.append(f".globl {K1}\n.p2align 8\n.type {K1},@function\n{K1}:")
    e("s_cmp_ge_u32 s2, 256")
    e("s_cbranch_scc1 L_k1_done")
    stamp(a, 0)
    e("s_and_b32 s3, s2, 7")
    e(f"s_lshr_b32 s{sBLK}, s3, 2")
    e(f"s_mul_i32 s{sTmp}, s{sBLK}, 40")
    e(f"s_add_u32 s32, s0, s{sTmp}")
    e("s_addc_u32 s33, s1, 0")
    e("s_load_dwordx2 s[34:35], s[32:33], 0")
    e("s_load_dwordx4 s[40:43], s[32:33], 24")
    e("s_load_dwordx4 s[36:39], s[32:33], 8")
    e("s_load_dwordx2 s[44:45], s[0:1], 96")
    e("s_and_b32 s3, s3, 3")
    e("s_lshl_b32 s3, s3, 2")
    e(f"s_lshr_b32 s{sB}, s2, 3")
    e(f"s_and_b32 s{sH}, s{sB}, 3")
    e(f"s_lshl_b32 s{sTmp}, s{sH}, 1")
    e(f"s_add_u32 s{sH}, s{sH}, s3")
    e(f"s_lshr_b32 s{sB}, s{sB}, 2")
    if OPT["rot"]:
        e(f"s_add_u32 s{sTmp}, s{sTmp}, s{sB}")
        for _ in range(2):
            e(f"s_cmp_ge_u32 s{sTmp}, 7"); e(f"s_cselect_b32 s3, 7, 0"); e(f"s_sub_u32 s{sTmp}, s{sTmp}, s3")
        e(f"s_lshl_b32 s{sXoff}, s{sTmp}, 7")
        e(f"s_lshl_b32 s{sWqoff}, s{sTmp}, 19")
        e(f"s_cmp_eq_u32 s{sB}, 7"); e(f"s_cselect_b32 s3, 0, s{sB}")
        e(f"s_lshl_b32 s{sWooff}, s3, 7")
        e(f"s_lshl_b32 s{sStA}, s3, 12")
    else:
        for r in (sXoff, sWqoff, sWooff, sStA): e(f"s_mov_b32 s{r}, 0")
    e("v_lshrrev_b32 v1, 6, v0")
    e("v_and_b32 v2, 63, v0")
    e(f"v_readfirstlane_b32 s{sW}, v1")
    e("v_and_b32 v3, 31, v2")
    e("v_lshrrev_b32 v4, 5, v2")
    e(f"s_lshl_b32 s{sWoff}, s{sW}, 12")
    e("v_lshrrev_b32 v5, 3, v2")
    e("v_mul_u32_u24 v8, 896, v5")
    e(f"s_mul_i32 s3, s{sW}, {32*896}")
    e("v_add_u32 v8, s3, v8")
    e("v_lshrrev_b32 v5, 4, v2")
    e("v_and_b32 v9, 7, v2")
    e("v_xor_b32 v6, v5, v9")
    e("v_xor_b32 v7, 4, v6")
    e("v_lshlrev_b32 v6, 4, v6")
    e("v_lshlrev_b32 v7, 4, v7")
    for jj in range(4):
        e(f"v_add_u32 v{vXd+jj}, v8, v{6 if jj % 2 == 0 else 7}")
        if jj: e(f"v_add_u32 v{vXd+jj}, {jj*(7168-1024)}, v{vXd+jj}")
    e("v_and_b32 v5, 1, v5")
    e("v_lshlrev_b32 v5, 2, v5")
    e("v_xor_b32 v5, v5, v9")
    e("v_lshlrev_b32 v5, 4, v5")
    e("v_add_u32 v8, v8, v5")
    for jj in range(4):
        e(f"v_add_u32 v{vWod+jj}, {jj*(7168-1024)}, v8")
    e(f"s_lshl_b32 s3, s{sW}, 16")
    e(f"s_lshl_b32 s{sTmp}, s{sH}, 9")
    e(f"s_add_u32 s3, s3, s{sTmp}")
    e("v_lshlrev_b32 v5, 13, v4")
    e("v_add_u32 v5, s3, v5")
    e("v_lshlrev_b32 v6, 2, v4")
    e("v_xor_b32 v6, v6, v3")
    e("v_xor_b32 v7, 8, v6")
    e("v_lshlrev_b32 v6, 4, v6")
    e("v_lshlrev_b32 v7, 4, v7")
    for jj in range(4):
        e(f"v_add_u32 v{vWqd+jj}, v5, v{6 if jj % 2 == 0 else 7}")
        if jj: e(f"v_add_u32 v{vWqd+jj}, {jj*(16384-1024)}, v{vWqd+jj}")
    e("v_lshlrev_b32 v8, 9, v4")
    e(f"v_add_u32 v8, s{sWoff}, v8")
    e(f"v_add_u32 v{vVd}, v8, v6")
    e(f"v_add_u32 v{vVd+1}, v8, v7")
    e(f"s_lshl_b32 s3, s{sW}, 2")
    e("v_xor_b32 v5, v3, v4")
    e("v_xor_b32 v5, s3, v5")
    e("v_xor_b32 v9, 2, v5")
    e("v_lshlrev_b32 v5, 4, v5")
    e("v_lshlrev_b32 v9, 4, v9")
    e(f"v_add_u32 v{vKd}, v8, v5")
    e(f"v_add_u32 v{vKd+1}, v8, v9")
    e("s_waitcnt lgkmcnt(0)")
    e(f"s_mul_i32 s3, s{sB}, 114688")
    e(f"s_add_u32 s{sX}, s34, s3"); e(f"s_addc_u32 s{sX+1}, s35, 0"); e(f"s_mov_b32 s{sX+2}, 114688"); e(f"s_mov_b32 s{sX+3}, 0x00020000")
    e(f"s_mov_b32 s{sWq}, s40"); e(f"s_mov_b32 s{sWq+1}, s41"); e(f"s_mov_b32 s{sWq+2}, {448*8192}"); e(f"s_mov_b32 s{sWq+3}, 0x00020000")
    for m in plan[-1]:
        assert units[m][0] in "XW"
        for g in dma(m):
            for s in g: e(s)
    e(f"s_lshl_b32 s3, s{sB}, 4")
    e(f"s_add_u32 s3, s3, s{sH}")
    e(f"s_lshl_b32 s3, s3, 18")
    e(f"s_add_u32 s{sK}, s36, s3"); e(f"s_addc_u32 s{sK+1}, s37, 0"); e(f"s_mov_b32 s{sK+2}, 262144"); e(f"s_mov_b32 s{sK+3}, 0x00020000")
    e(f"s_add_u32 s{sV}, s38, s3"); e(f"s_addc_u32 s{sV+1}, s39, 0"); e(f"s_mov_b32 s{sV+2}, 262144"); e(f"s_mov_b32 s{sV+3}, 0x00020000")
    e(f"s_mul_i32 s3, s{sH}, 229376")
    e(f"s_add_u32 s{sWo}, s42, s3"); e(f"s_addc_u32 s{sWo+1}, s43, 0"); e(f"s_mov_b32 s{sWo+2}, 229376"); e(f"s_mov_b32 s{sWo+3}, 0x00020000")
    e(f"s_lshl_b32 s3, s{sBLK}, 3")
    e(f"s_add_u32 s3, s3, s{sB}")
    e(f"s_lshl_b32 s3, s3, 4")
    e(f"s_add_u32 s3, s3, s{sH}")
    e(f"s_mul_i32 s3, s3, 114688")
    e(f"s_add_u32 s{sWs}, s44, s3"); e(f"s_addc_u32 s{sWs+1}, s45, 0"); e(f"s_mov_b32 s{sWs+2}, 114688"); e(f"s_mov_b32 s{sWs+3}, 0x00020000")
    if OPT["codepf"]:
        e("s_getpc_b64 s[62:63]")
        a.lab("L_pc")
        e("s_lshr_b32 s3, s2, 3")
        e("s_lshl_b32 s3, s3, 11")
        e("v_lshlrev_b32 v5, 3, v0")
        e("v_add_u32 v5, s3, v5")
        e("v_min_u32 v5, L_k1_end-L_pc-8, v5")
        e(f"global_load_dwordx2 a[{aDummy}:{aDummy+1}], v5, s[62:63]", "pf")
    e("v_lshrrev_b32 v5, 3, v3"); e("v_lshlrev_b32 v5, 2, v5")
    e("v_and_b32 v6, 3, v3"); e("v_or_b32 v5, v5, v6")
    e("v_xor_b32 v5, v5, v4")
    e("v_lshlrev_b32 v5, 4, v5")
    e("v_lshlrev_b32 v8, 9, v3")
    e("v_add_u32 v5, v5, v8")
    for s in range(8):
        e(f"v_xor_b32 v{vKr+s}, {s<<5}, v5")
    e("v_lshrrev_b32 v5, 1, v3"); e("v_and_b32 v5, 7, v5"); e("v_xor_b32 v5, v5, v4"); e("v_lshlrev_b32 v5, 4, v5")
    e("v_lshlrev_b32 v8, 7, v3"); e("v_add_u32 v5, v5, v8"); e(f"v_add_u32 v5, s{sWoff}, v5")
    for s in range(4):
        e(f"v_xor_b32 v{vXr+s}, {s<<5}, v5")
    e("v_lshrrev_b32 v5, 4, v2"); e("v_and_b32 v5, 1, v5")
    e("v_lshrrev_b32 v6, 2, v2"); e("v_and_b32 v6, 3, v6")
    e("v_and_b32 v7, 3, v2")
    e("v_lshlrev_b32 v8, 2, v4"); e("v_add_u32 v8, v8, v6")
    e("v_lshlrev_b32 v9, 9, v8")
    e(f"v_lshlrev_b32 v{vT0}, 5, v5")
    e(f"v_lshlrev_b32 v{vT0+1}, 3, v7")
    e(f"v_add_u32 v{vT0}, v{vT0}, v{vT0+1}")
    e(f"v_add_u32 v9, v9, v{vT0}")
    e(f"v_lshlrev_b32 v{vT0+2}, 6, v6")
    e(f"v_add_u32 v9, v9, v{vT0+2}")
    for t in range(4):
        e(f"v_xor_b32 v{vVr+t}, {t<<6}, v9")
    e(f"v_and_b32 v{vT0+1}, 1, v7"); e(f"v_lshlrev_b32 v{vT0+1}, 4, v{vT0+1}")
    e(f"v_lshrrev_b32 v{vT0+3}, 1, v7"); e(f"v_lshlrev_b32 v{vT0+3}, 3, v{vT0+3}")
    e(f"v_lshlrev_b32 v{vT0}, 5, v5")
    e(f"v_add_u32 v{vT0}, v{vT0}, v{vT0+1}")
    e(f"v_add_u32 v{vT0}, v{vT0}, v{vT0+3}")
    e("v_lshlrev_b32 v9, 3, v4"); e("v_add_u32 v9, v9, v6"); e("v_lshlrev_b32 v9, 9, v9")
    e(f"v_add_u32 v9, v9, v{vT0}")
    e(f"v_add_u32 v9, v9, v{vT0+2}")
    for t in range(4):
        e(f"v_xor_b32 v{vWqr+t}, {t<<6}, v9")
    e("v_lshlrev_b32 v9, 7, v8")
    e(f"v_add_u32 v9, v9, v{vT0}")
    e(f"v_lshrrev_b32 v{vT0+1}, 1, v6"); e(f"v_lshlrev_b32 v{vT0+1}, 6, v{vT0+1}")
    e(f"v_add_u32 v{vWor}, v9, v{vT0+1}")
    e(f"v_xor_b32 v{vWor+1}, 64, v{vWor}")
    e(f"s_mul_i32 s3, s{sW}, 28672")
    e(f"v_lshlrev_b32 v{vSt}, 4, v2")
    e(f"v_add_u32 v{vSt}, s3, v{vSt}")
    e(f"s_mov_b32 s{sC}, {f32hex(SCALE)}")
    e(f"s_mov_b32 s{sNC}, {f32hex(-SCALE)}")
    e(f"s_mov_b32 s{sThr}, {f32hex(8.0/SCALE)}")
    e(f"s_mov_b32 s{sPend}, 0")
    e(f"v_mov_b32 v{vL}, 0")
    stamp(a, 1)

    items = []
    fill = defaultdict(list)
    def add(p, ins):
        fill[p].extend(ins if isinstance(ins, list) else [ins])
    MF = "v_mfma_f32_32x32x16_bf16"
    for H in range(14):
        c, hb = H >> 1, H & 1
        n = 3*c + 1 + hb
        order = [(tp, tau) for tp in range(2) for tau in range(8)]
        if H == 13: order = [(tp, tau) for tau in range(8) for tp in range(2)]
        for k, (tp, tau) in enumerate(order):
            acc = vO + 16*tau
            xr = vXf + 16*(c & 1) + 4*(2*hb + tp)
            cin = "0" if (H == 0 and tp == 0) else f"v[{acc}:{acc+15}]"
            rd = []
            if hb == 0 and k % 4 == 0:
                t4 = k // 4
                xd = vXf + 16*(c & 1) + 4*t4
                rd.append(("ds_read_b128", f"v[{xd}:{xd+3}]", "X", t4, 3*c, 0))
            o = (tau >> 2)*256 + 16*tp*512
            rd += tr_reads("W", tau & 3, n, o, o + 4*512)
            items.append(Item(H, f"{MF} v[{acc}:{acc+15}], a[{{b}}:{{b3}}], v[{xr}:{xr+3}], {cin}", rd))
    conv = []
    for tau in range(8):
        r = vO + 16*tau
        t = []
        for j in range(8): t.append(f"v_cvt_pk_bf16_f32 v{r+j}, v{r+2*j}, v{r+2*j+1}")
        for j in range(8): t.append(f"v_accvgpr_write_b32 a{aQ+8*tau+j}, v{r+j}")
        conv.append(t)
    p = 13*16 + 3
    for tau in range(8):
        p = max(p, 13*16 + 2*tau + 3)
        t = conv[tau]
        t = t[0:4] + t[8:12] + t[4:8] + t[12:16]
        for k in range(0, 16, 6):
            add(p, t[k:k+6]); p += 1
        assert p - 1 < 14*16 + 2*tau - 1 or True
    qconv_end = p
    def qk(H, n, S):
        for s in range(16):
            cin = "0" if s == 0 else f"v[{S}:{S+15}]"
            rd = [("ds_read_b128", "a[{b}:{b3}]", "K", s & 7, n, (s >> 3)*256)]
            items.append(Item(H, f"{MF} v[{S}:{S+15}], a[{{b}}:{{b3}}], a[{aQ+4*s}:{aQ+4*s+3}], {cin}", rd))
    def pv(H, n, first, taumajor):
        order = [(t, tau) for t in range(2) for tau in range(8)]
        if taumajor: order = [(t, tau) for tau in range(8) for t in range(2)]
        for (t, tau) in order:
            acc = vO + 16*tau
            cin = "0" if (first and t == 0) else f"v[{acc}:{acc+15}]"
            o = (tau >> 2)*256 + 16*t*512
            rd = tr_reads("V", tau & 3, n, o, o + 8*512)
            items.append(Item(H, f"{MF} v[{acc}:{acc+15}], a[{{b}}:{{b3}}], v[{vP+4*t}:{vP+4*t+3}], {cin}", rd))
    def maxtree(S):
        T = vT0
        return [f"v_max3_f32 v{T}, v{S}, v{S+1}, v{S+2}", f"v_max3_f32 v{T+1}, v{S+3}, v{S+4}, v{S+5}",
                f"v_max3_f32 v{T}, v{T}, v{S+6}, v{S+7}", f"v_max3_f32 v{T+1}, v{T+1}, v{S+8}, v{S+9}",
                f"v_max3_f32 v{T}, v{T}, v{S+10}, v{S+11}", f"v_max3_f32 v{T+1}, v{T+1}, v{S+12}, v{S+13}",
                f"v_max3_f32 v{T}, v{T}, v{S+14}, v{S+15}", f"v_max_f32 v{T}, v{T}, v{T+1}", f"v_mov_b32 v{T+1}, v{T}"]
    fmas = lambda S: [f"v_fma_f32 v{vE+r}, v{S+r}, s{sC}, v{vNmc}" for r in range(16)]
    exps = [f"v_exp_f32 v{vE+r}, v{vE+r}" for r in range(16)]
    cvts = [f"v_cvt_pk_bf16_f32 v{vP+j}, v{vE+2*j}, v{vE+2*j+1}" for j in range(8)]
    adds = [f"v_add_f32 v{vL}, v{vL}, v{vE+r}" for r in range(16)]
    lblc = [0]
    def part1(p0, S):
        mt = maxtree(S)
        add(p0+2, mt[0:3]); add(p0+3, mt[3:6]); add(p0+4, mt[6:9])
        lblc[0] += 1
        k = lblc[0]
        add(p0+5, [f"v_permlane32_swap_b32 v{vT0}, v{vT0+1}"])
        add(p0+6, [f"v_max_f32 v{vT0}, v{vT0}, v{vT0+1}",
                   f"v_cmp_gt_f32 vcc, v{vT0}, v{vThr}",
                   f"s_cbranch_vccz L_nm{k}",
                   f"s_call_b64 s[{sRet}:{sRet+1}], L_newmax",
                   lambda a, k=k: a.lab(f"L_nm{k}")])
        f = fmas(S)
        for j in range(8): add(p0+7+j, f[2*j:2*j+2])
        add(p0+15, [f"s_cmp_eq_u32 s{sPend}, 0",
                    f"s_cbranch_scc1 L_rs{k}",
                    f"s_call_b64 s[{sRet}:{sRet+1}], L_rescale",
                    lambda a, k=k: a.lab(f"L_rs{k}")])
    def part2(q0):
        for k in range(16):
            add(q0+k, exps[k])
            if k >= 1: add(q0+k, adds[k-1])
            if k >= 2 and k % 2 == 0: add(q0+k, cvts[(k-2)//2])
        add(q0+16, [adds[15], cvts[7]])
    H = 14
    qk(H, 21, vS0); H += 1
    qk(H, 22, vS)
    q0 = 15*16
    mt = maxtree(vS0)
    add(q0+2, mt[0:5]); add(q0+3, mt[5:9])
    add(q0+4, [f"v_permlane32_swap_b32 v{vT0}, v{vT0+1}"])
    add(q0+5, [f"v_max_f32 v{vM}, v{vT0}, v{vT0+1}", f"v_mul_f32 v{vNmc}, s{sNC}, v{vM}", f"v_add_f32 v{vThr}, s{sThr}, v{vM}"])
    f = fmas(vS0)
    for j in range(4): add(q0+6+j, f[4*j:4*j+4])
    for j in range(8):
        add(q0+8+j, exps[2*j:2*j+2])
        if j >= 1: add(q0+8+j, adds[2*j-2:2*j] + [cvts[j-1]])
    add(q0+16, adds[14:16] + [cvts[7]])
    H += 1
    for t in range(1, 16):
        n = uidx[("V", t-1)]
        assert consumed[n] == H
        pv(H, n, t == 1, False)
        part1(16*H, vS)
        H += 1
        if t <= 14:
            n = uidx[("K", t+1)]
            assert consumed[n] == H
            qk(H, n, vS)
            part2(16*H)
            H += 1
    pl = 16*H - 1
    tail = []
    for k in range(16):
        tail.append(exps[k])
        if k >= 1: tail.append(adds[k-1])
        if k >= 2 and k % 2 == 0: tail.append(cvts[(k-2)//2])
    tail += [adds[15], cvts[7]]
    tail += [f"v_mov_b32 v{vT0}, v{vL}", f"v_permlane32_swap_b32 v{vL}, v{vT0}", f"v_add_f32 v{vL}, v{vL}, v{vT0}", f"v_rcp_f32 v{vAl}, v{vL}"]
    add(pl, tail)
    n = uidx[("V", 15)]
    assert consumed[n] == H and H == 45
    pv(H, n, False, True)
    lateH = H
    for tau in range(8):
        r = vO + 16*tau
        t = [f"v_cvt_pk_bf16_f32 v{r+j}, v{r+2*j}, v{r+2*j+1}" for j in range(8)]
        p = 16*H + 2*tau + 3
        add(p, t[0:3]); add(p+1, t[3:6]); add(p+2, t[6:8])
    H += 1
    def epilogue(acc, so, nu):
        g = []
        for half in range(2):
            for j in range(4):
                r = acc + 8*half + 2*j
                g.append([f"v_mul_f32 v{r}, v{r}, v{vAl}", f"v_mul_f32 v{r+1}, v{r+1}, v{vAl}"])
                g.append([f"v_cvt_pk_bf16_f32 v{acc+4*half+j}, v{r}, v{r+1}"])
            off = nu*2048 + half*1024
            offs = f" offset:{off}" if off else ""
            g.append([(f"buffer_store_dwordx4 v[{acc+4*half}:{acc+4*half+3}], v{vSt}, s[{sWs}:{sWs+3}], s{so} offen{offs} {OPT['st_pol']}", "st")])
        return g
    for j in range(7):
        so = sStA if j % 2 == 0 else sStB
        so2 = sStB if j % 2 == 0 else sStA
        for hf in range(2):
            n = uidx[("O", 2*j+hf)]
            assert consumed[n] == H
            for nu in range(2):
                acc = vAcc + 32*(j & 1) + 16*nu
                for s8 in range(8):
                    s = 8*hf + s8
                    ob = vO + 16*(s >> 1) + 4*(s & 1)
                    cin = "0" if s == 0 else f"v[{acc}:{acc+15}]"
                    rd = tr_reads("O", nu, n, 16*s8*128, (16*s8+8)*128)
                    items.append(Item(H, f"{MF} v[{acc}:{acc+15}], a[{{b}}:{{b3}}], v[{ob}:{ob+3}], {cin}", rd))
            H += 1
        pend = 16*H
        g0 = epilogue(vAcc + 32*(j & 1), so, 0)
        g1 = epilogue(vAcc + 32*(j & 1) + 16, so, 1)
        if j < 6:
            for k, g in enumerate(g0): add(pend - 5 + (k*14)//18, g)
            for k, g in enumerate(g1): add(pend + 9 + (k*14)//18, g)
            add(pend + 24, [])
            add(pend - 6, [f"s_add_u32 s{so2}, s{so}, 4096", f"s_cmp_eq_u32 s{so2}, 28672", f"s_cselect_b32 s{so2}, 0, s{so2}"])
        else:
            for k, g in enumerate(g0): add(pend - 5 + (k*5)//18, g)
            for k, g in enumerate(g1): add(pend - 1, g)
    N = len(items)
    assert N == 960
    for p in range(N):
        if p % 16 == 0: items[p].first = True
    items[16*lateH].late = True
    if OPT["wowarm"]:
        p = 16*OPT["wowarm"] + 8
        for jj in range(4):
            add(p + jj, [(f"buffer_load_dwordx4 a[{aDummy+4*jj}:{aDummy+4*jj+3}], v{vWod+jj}, s[{sWo}:{sWo+3}], s{sWooff} offen offset:{jj*1024} {OPT['w_pol']}", "warm")])
        add(p + 4, [f"s_add_u32 s{sTmp2}, s{sWooff}, {128*896}"])
        for jj in range(4):
            add(p + 16 + jj, [(f"buffer_load_dwordx4 a[{aDummy+16+4*jj}:{aDummy+16+4*jj+3}], v{vWod+jj}, s[{sWo}:{sWo+3}], s{sTmp2} offen offset:{jj*1024} {OPT['w_pol']}", "warm")])
    if OPT["stamps"]:
        add(14*16 - 1, [lambda a: stamp(a, 3)])
        add(46*16 - 1, [lambda a: stamp(a, 4)])

    D = OPT["D"]
    window = {g: 0 for g in GROUPS}
    uses = defaultdict(list)
    for i, it in enumerate(items):
        for r in it.reads: uses[r[2]].append((i, r[4]))
    soft_dma = []
    soft_adr = []
    def set_window(g, w, now):
        if window[g] == w: return
        base, cnt = GROUPS[g]
        d = (w - window[g]) * 65536
        window[g] = w
        ins = [f"v_add_u32 v{base+k}, {d & 0xffffffff}, v{base+k}" for k in range(cnt)]
        if now:
            for s in ins: e(s)
        else:
            soft_adr.extend((g, s) for s in ins)
    def flush_adr(g):
        rest = []
        for (gg, s) in soft_adr:
            if gg == g: e(s)
            else: rest.append((gg, s))
        soft_adr[:] = rest
    upos = {g: 0 for g in GROUPS}
    rp = [0]
    def issue(i):
        it = items[i]
        if it.first:
            Hh = it.H
            a.c(f"event H={Hh} needs {[units[n] for n in HS[Hh]]} loads {[units[m] for m in plan[Hh]]}")
            for g in soft_dma:
                for s in g: e(s)
            soft_dma.clear()
            a.wait_vm({f"u{n}" for n in HS[Hh]})
            e("s_barrier")
            if Hh == 0: stamp(a, 2)
            for m in plan[Hh]:
                soft_dma.extend(dma(m))
        b = aF + 4*(i % NB)
        for (op, dst, g, ridx, n, inoff) in it.reads:
            slot = n % 10
            flush_adr(g)
            set_window(g, slot // 4, True)
            imm = (slot % 4)*16384 + inoff
            e(f"{op} {dst.format(b=b, b1=b+1, b2=b+2, b3=b+3)}, v{GROUPS[g][0]+ridx} offset:{imm}", lds=i)
            upos[g] += 1
            if upos[g] < len(uses[g]):
                ni, nn = uses[g][upos[g]]
                if nn != n:
                    set_window(g, (nn % 10)//4, False)
    def adv(limit, block_late):
        while rp[0] < N and rp[0] <= limit:
            if block_late and items[rp[0]].late: break
            issue(rp[0]); rp[0] += 1
    adv(D - 1, True)
    for p in range(N):
        a.wait_lds({p})
        b = aF + 4*(p % NB)
        e(items[p].mf.format(b=b, b3=b+3))
        adv(p + D, True)
        for s in fill.get(p, []): e(s)
        for _ in range(OPT["dmagap"]):
            if soft_dma:
                for s in soft_dma.pop(0): e(s)
        for _ in range(2):
            if soft_adr: e(soft_adr.pop(0)[1])
        if p + 1 < N and items[p+1].late:
            items[p+1].late = False
            adv(p + D, True)
    assert not soft_dma
    stamp(a, 5)
    if OPT["stamps"]:
        e("s_waitcnt vmcnt(0)")
        stamp(a, 6)
        e("s_waitcnt lgkmcnt(0)")
        e("s_add_u32 s32, s44, 0x4000000"); e("s_addc_u32 s33, s45, 0"); e("s_mov_b32 s34, 0x100000"); e("s_mov_b32 s35, 0x00020000")
        e("s_lshl_b32 s3, s2, 6")
        e("v_mov_b32 v1, s3")
        for k in range(8):
            e(f"v_mov_b32 v{2+k}, s{sStamp+2*k}" if k < 7 else f"v_mov_b32 v{2+k}, 0")
        e("v_cmp_eq_u32 vcc, 0, v0")
        e("s_and_saveexec_b64 s[36:37], vcc")
        e("s_cbranch_execz L_k1_done")
        e("buffer_store_dwordx4 v[2:5], v1, s[32:35], 0 offen")
        e("buffer_store_dwordx4 v[6:9], v1, s[32:35], 0 offen offset:16")
        e("s_waitcnt vmcnt(0)")
    a.lab("L_k1_done")
    e("s_endpgm")
    a.lab("L_newmax")
    e("s_nop 1")
    e(f"v_max_f32 v{vT0}, v{vT0}, v{vM}")
    e(f"v_sub_f32 v{vT0+1}, v{vM}, v{vT0}")
    e(f"v_mul_f32 v{vT0+1}, s{sC}, v{vT0+1}")
    e(f"v_exp_f32 v{vAl}, v{vT0+1}")
    e(f"v_mov_b32 v{vM}, v{vT0}")
    e(f"v_mul_f32 v{vNmc}, s{sNC}, v{vT0}")
    e(f"v_add_f32 v{vThr}, s{sThr}, v{vT0}")
    e(f"v_mul_f32 v{vL}, v{vL}, v{vAl}")
    e(f"s_mov_b32 s{sPend}, 1")
    e("s_nop 3")
    e(f"s_setpc_b64 s[{sRet}:{sRet+1}]")
    a.lab("L_rescale")
    e("s_nop 7"); e("s_nop 7")
    for r in range(128):
        e(f"v_mul_f32 v{vO+r}, v{vO+r}, v{vAl}")
    e(f"s_mov_b32 s{sPend}, 0")
    e("s_nop 3")
    e(f"s_setpc_b64 s[{sRet}:{sRet+1}]")
    a.lab("L_k1_end")
    lines = "\n".join(a.L).split("\n")
    lines, npad = pad_hazards(lines)
    sys.stderr.write(f"k1: {len(lines)} lines, {npad} hazard pads\n")
    return "\n".join(lines) + "\n"

def gen_k2():
    L = []
    e = lambda s: L.append("    " + s)
    L.append(f".globl {K2}\n.p2align 8\n.type {K2},@function\n{K2}:")
    e("s_cmp_ge_u32 s2, 448")
    e("s_cbranch_scc1 L_k2_done")
    if OPT["stamps"]: e("s_memrealtime s[32:33]")
    e("s_load_dwordx2 s[4:5], s[0:1], 80")
    e("s_load_dwordx2 s[6:7], s[0:1], 96")
    e(f"s_mov_b32 s3, {(2**32 + 27) // 28}")
    e("s_mul_hi_u32 s16, s2, s3")
    e("s_mul_i32 s17, s16, 28")
    e("s_sub_u32 s17, s2, s17")
    e("v_lshrrev_b32 v1, 6, v0")
    e("v_and_b32 v2, 63, v0")
    e("v_readfirstlane_b32 s18, v1")
    e("s_lshl_b32 s19, s17, 12")
    e("v_lshlrev_b32 v3, 4, v0")
    e("v_add_u32 v3, s19, v3")
    e("s_mul_i32 s20, s16, 1835008")
    e("s_waitcnt lgkmcnt(0)")
    e("s_add_u32 s8, s6, s20"); e("s_addc_u32 s9, s7, 0"); e("s_mov_b32 s10, 1835008"); e("s_mov_b32 s11, 0x00020000")
    e("s_mov_b32 s12, s4"); e("s_mov_b32 s13, s5"); e(f"s_mov_b32 s14, {8*128*896*2}"); e("s_mov_b32 s15, 0x00020000")
    for h in range(16):
        e(f"s_mov_b32 s21, {h*114688}")
        e(f"buffer_load_dwordx4 v[{16+4*h}:{16+4*h+3}], v3, s[8:11], s21 offen {OPT['k2_pol']}")
    e("s_lshl_b32 s22, s17, 2")
    e("s_add_u32 s22, s22, s18")
    e("s_mul_hi_u32 s23, s22, s3")
    e("s_mul_i32 s24, s23, 28")
    e("s_sub_u32 s24, s22, s24")
    e("s_and_b32 s25, s16, 7")
    e("s_lshr_b32 s26, s16, 3")
    e("s_lshl_b32 s27, s25, 7")
    e("s_lshl_b32 s28, s23, 5")
    e("s_add_u32 s27, s27, s28")
    e("s_mul_i32 s27, s27, 1792")
    e("s_mul_i32 s28, s26, 896")
    e("s_add_u32 s27, s27, s28")
    e("s_lshl_b32 s28, s24, 5")
    e("s_add_u32 s27, s27, s28")
    e("v_and_b32 v4, 31, v2")
    e("v_mul_u32_u24 v4, 1792, v4")
    e("v_lshrrev_b32 v5, 5, v2")
    e("v_lshlrev_b32 v5, 4, v5")
    e("v_add_u32 v4, v4, v5")
    e("v_add_u32 v4, s27, v4")
    e("s_mov_b32 s29, 0xffff0000")
    for h in range(16):
        e(f"s_waitcnt vmcnt({15-h})")
        for j in range(4):
            r = 16 + 4 * h + j
            if h == 0:
                e(f"v_lshlrev_b32 v{8+2*j}, 16, v{r}")
                e(f"v_and_b32 v{8+2*j+1}, s29, v{r}")
            else:
                e(f"v_lshlrev_b32 v6, 16, v{r}")
                e(f"v_and_b32 v7, s29, v{r}")
                e(f"v_add_f32 v{8+2*j}, v{8+2*j}, v6")
                e(f"v_add_f32 v{8+2*j+1}, v{8+2*j+1}, v7")
    for j in range(4):
        e(f"v_cvt_pk_bf16_f32 v{16+j}, v{8+2*j}, v{8+2*j+1}")
    e("buffer_store_dwordx4 v[16:19], v4, s[12:15], 0 offen")
    e("s_waitcnt vmcnt(0)")
    if OPT["stamps"]:
        e("s_memrealtime s[34:35]")
        e("s_add_u32 s8, s6, 0x4100000"); e("s_addc_u32 s9, s7, 0"); e("s_mov_b32 s10, 0x100000"); e("s_mov_b32 s11, 0x00020000")
        e("s_lshl_b32 s3, s2, 3")
        e("v_mov_b32 v1, s3")
        e("s_waitcnt lgkmcnt(0)")
        e("v_mov_b32 v2, s32"); e("v_mov_b32 v3, s34")
        e("v_cmp_eq_u32 vcc, 0, v0")
        e("s_and_saveexec_b64 s[36:37], vcc")
        e("s_cbranch_execz L_k2_done")
        e("buffer_store_dwordx2 v[2:3], v1, s[8:11], 0 offen")
        e("s_waitcnt vmcnt(0)")
    L.append("L_k2_done:")
    e("s_endpgm")
    lines, npad = pad_hazards("\n".join(L).split("\n"))
    return "\n".join(lines) + "\n"

def desc(name, vgpr, acc, sgpr=102):
    return f""".p2align 6
.amdhsa_kernel {name}
  .amdhsa_next_free_vgpr {vgpr}
  .amdhsa_next_free_sgpr {sgpr}
  .amdhsa_accum_offset {acc}
  .amdhsa_group_segment_fixed_size 0
  .amdhsa_kernarg_size 104
  .amdhsa_user_sgpr_count 2
  .amdhsa_user_sgpr_kernarg_segment_ptr 1
  .amdhsa_system_sgpr_workgroup_id_x 1
.end_amdhsa_kernel
"""

def main():
    ref = open(f"cdna_kernels/{NAME}.s.ref").read().splitlines()
    hdr = [l for l in ref if l.startswith(";") and "@launch" not in l and "Override launch" not in l and "grid=ceil" not in l]
    out = "\n".join(hdr) + "\n"
    out += f"; @launch kernel={K1} grid=(256,1,1) block=(256,1,1) lds=163840\n"
    out += f"; @launch kernel={K2} grid=(448,1,1) block=(256,1,1) lds=0\n"
    out += '.amdgcn_target "amdgcn-amd-amdhsa--gfx950"\n.text\n'
    out += gen_k1() + gen_k2()
    out += '.section .rodata,"a"\n'
    out += desc(K1, 512, 256) + desc(K2, 80, 80, 40)
    open(sys.argv[1], "w").write(out)

main()
```

```python
import sys, math, struct
from collections import defaultdict
sys.path.insert(0, "gen")
from asmlib import pad_hazards

NAME = "concat_heads__mha_block_cached__gqa_block_cached__near_ridge"
K1 = NAME + "_kernel"

OPT = dict(stamps=0, trace=0, st_pol="sc1", kv_pol="nt", w_pol="", x_pol="", D=6, rot=1, wowarm=30, wowm=1, codepf=1,
           sched="p3,0:p4,1:p3,2:k3,5:p6,7:k3,10:p5", NP=6, KA=11.5, KB=42.0, LWO=5, UP=2, RES=2,
           pub="3,5,7", PUBD=4, early=1, nodma=0, thr=65536.0, verbose=0, sleep=1, lst=1, rotk=0, pace='')
for a in sys.argv[2:]:
    k, v = a.split("=")
    OPT[k] = type(OPT[k])(v) if not isinstance(OPT[k], str) else v.replace("+", " ")

sW, sH, sB, sBLK = 4, 5, 6, 7
sK, sV, sWq, sWo, sX, sG, sFl, sDb, sOut = 8, 12, 16, 20, 24, 28, 32, 36, 40
sWoff = 48
sXoff, sWqoff, sWooff = 49, 50, 51
sStA, sStB = 52, 53
sC, sThr = 54, 55
sNP0, sSpin = 56, 57
sRotK = 98
sRet = 58
sTmp, sTmp2 = 60, 61
sTr = 64
sWsP = 80
sStamp = 82

vKr, vVr, vWqr, vXr, vWor = 10, 18, 22, 26, 30
vKd, vVd, vWqd, vXd, vWod = 32, 34, 36, 40, 44
vSt, vL, vAl = 48, 49, 50
vTs = 51
vT0 = 53
vUp = 57
vTr = 60
vFl, vFp = 62, 63
vOne, vDbA, vDbV, vF, vFv = 5, 6, 7, 8, 9
vSb = (64, 80)
vE, vNM = 96, 112
vXf = 64
vAcc = 64
vO = 128
aQ = 160
aF = 224
NB = 8
vRd, vRo, vSel = 36, 37, 40
FLAGS_OFF = 32 << 20

SCALE = math.log2(math.e) / 16.0
def f32hex(x):
    return "0x%08x" % struct.unpack("<I", struct.pack("<f", x))[0]

class Em:
    def __init__(self):
        self.L = []
        self.vmq = []
        self.ldsq = []
    def e(self, s, vm=None, lds=None):
        if isinstance(s, tuple):
            return self.e(*s)
        if callable(s):
            return s(self)
        self.L.append("    " + s)
        if vm is not None: self.vmq.append(vm)
        if lds is not None: self.ldsq.append(lds)
    def lab(self, s): self.L.append(s + ":")
    def c(self, s): self.L.append("    ; " + s)
    def wait_vm(self, tags):
        idx = [i for i, t in enumerate(self.vmq) if t in tags]
        if not idx: return
        n = len(self.vmq) - 1 - max(idx)
        self.e(f"s_waitcnt vmcnt({min(n, 63)})")
        self.vmq = self.vmq[max(idx) + 1:] if n <= 63 else self.vmq[-63:]
    def wait_lds(self, tags):
        idx = [i for i, t in enumerate(self.ldsq) if t in tags]
        if not idx: return
        n = len(self.ldsq) - 1 - max(idx)
        self.e(f"s_waitcnt lgkmcnt({min(n, 15)})")
        self.ldsq = self.ldsq[max(idx) + 1:] if n <= 15 else self.ldsq[-15:]

def stamp(a, idx):
    if OPT["stamps"]:
        a.e(f"s_memrealtime s[{sStamp+2*idx}:{sStamp+2*idx+1}]")

units = []
for c in range(7):
    units += [("X", c), ("W", 2*c), ("W", 2*c+1)]
kv = [("K", 0), ("K", 1)]
for t in range(0, 14):
    kv += [("V", t), ("K", t + 2)]
kv += [("V", 14), ("V", 15)]
units += kv
units += [("O", k) for k in range(14)]
NU = len(units)
uidx = {u: n for n, u in enumerate(units)}
HS = []
consumed = {}
for c in range(6):
    HS.append([3*c, 3*c+1]); HS.append([3*c+2])
HS.append([18, 19, 20]); HS.append([])
for n in range(21, NU):
    HS.append([n])
needed = {}
for H, us in enumerate(HS):
    for n in us: consumed[n] = H; needed[n] = H
consumed[19] = consumed[20] = 13
NP = OPT["NP"]
parked = {21 + i: 16*i for i in range(NP)}
assert NP <= 10
iss = []
np_, nk_ = 0, 21
for ent in OPT["sched"].split(","):
    pos, w = ent.split(":") if ":" in ent else (None, ent)
    pos = -1 if pos is None else int(round(float(pos)*16))
    for _ in range(int(w[1:])):
        if w[0] == "p": iss.append((pos, np_)); np_ += 1
        else: iss.append((pos, nk_)); nk_ += 1
assert np_ == 21
rem = 53 - nk_
for i in range(rem):
    iss.append((int(round(16*(OPT["KA"] + (OPT["KB"] - OPT["KA"])*i/max(rem-1, 1)))), nk_ + i))
for k in range(14):
    iss.append((16*(46 + k - OPT["LWO"]), 53 + k))

slot_of = {}
def dma(n):
    t, i = units[n]
    g = []
    pk = parked.get(n)
    for jj in range(4):
        ins = []
        if jj == 0:
            if pk is None: ins.append(f"s_add_u32 m0, s{sWoff}, {slot_of[n]*16384}")
            if t in "KV":
                if OPT["rotk"]: ins += [f"s_add_u32 s{sTmp}, s{sRotK}, {i*16384}", f"s_and_b32 s{sTmp}, s{sTmp}, 0x3ffff"]
                else: ins.append(f"s_mov_b32 s{sTmp}, {i*16384}")
            elif t == "O" and (i & 1): ins.append(f"s_add_u32 s{sTmp}, s{sWooff}, {128*896}")
        off = f" offset:{jj*1024}" if jj else ""
        dst = "" if pk is None else f"a[{pk+4*jj}:{pk+4*jj+3}], "
        lds = " lds" if pk is None else ""
        if t == "K": ld = f"buffer_load_dwordx4 {dst}v{vKd+(jj&1)}, s[{sK}:{sK+3}], s{sTmp} offen{off} {OPT['kv_pol']}{lds}"
        elif t == "V": ld = f"buffer_load_dwordx4 {dst}v{vVd+(jj&1)}, s[{sV}:{sV+3}], s{sTmp} offen{off} {OPT['kv_pol']}{lds}"
        elif t == "W": ld = f"buffer_load_dwordx4 v{vWqd+jj}, s[{sWq}:{sWq+3}], s{sWqoff} offen{off} {OPT['w_pol']} lds"
        elif t == "X": ld = f"buffer_load_dwordx4 v{vXd+jj}, s[{sX}:{sX+3}], s{sXoff} offen{off} {OPT['x_pol']} lds"
        elif t == "O":
            so = sTmp if (i & 1) else sWooff
            ld = f"buffer_load_dwordx4 v{vWod+jj}, s[{sWo}:{sWo+3}], s{so} offen{off} {OPT['w_pol']} lds"
        if not OPT["nodma"]: ins.append((ld, f"u{n}"))
        if jj == 3:
            if t == "W": ins += [f"s_add_u32 s{sWqoff}, s{sWqoff}, {32*8192}", f"s_cmp_eq_u32 s{sWqoff}, {448*8192}", f"s_cselect_b32 s{sWqoff}, 0, s{sWqoff}"]
            if t == "X": ins += [f"s_add_u32 s{sXoff}, s{sXoff}, 128", f"s_cmp_eq_u32 s{sXoff}, 896", f"s_cselect_b32 s{sXoff}, 0, s{sXoff}"]
            if t == "O" and (i & 1): ins += [f"s_add_u32 s{sWooff}, s{sWooff}, 128", f"s_cmp_eq_u32 s{sWooff}, 896", f"s_cselect_b32 s{sWooff}, 0, s{sWooff}"]
        g.append(ins)
    return g

GROUPS = {"K": (vKr, 8), "V": (vVr, 4), "W": (vWqr, 4), "X": (vXr, 4), "O": (vWor, 2)}

class Item:
    def __init__(self, H, mf, reads):
        self.H = H; self.mf = mf; self.reads = reads
        self.first = False

def tr_reads(grp, ridx, n, off0, off1):
    return [("ds_read_b64_tr_b16", "a[{b}:{b1}]", grp, ridx, n, off0), ("ds_read_b64_tr_b16", "a[{b2}:{b3}]", grp, ridx, n, off1)]

def srd(e, s, lo, hi, size):
    e(f"s_mov_b32 s{s+2}, {size}"); e(f"s_mov_b32 s{s+3}, 0x00020000")

def gen_k1():
    a = Em()
    e = a.e
    slot_free_at = [-10]*10
    last_slot = {}
    def alloc(n, Hbar, reserve=0):
        fr = [s for s in range(10) if slot_free_at[s] <= Hbar]
        if len(fr) <= reserve: return False
        t = units[n][0]
        w = last_slot.get(t, 0) // 4
        same = [s for s in fr if s // 4 == w]
        s = (same or fr)[0]
        slot_of[n] = s; last_slot[t] = s
        slot_free_at[s] = consumed[n] + 2
        return True

    a.L.append(f".globl {K1}\n.p2align 8\n.type {K1},@function\n{K1}:")
    e("s_cmp_ge_u32 s2, 256")
    e("s_cbranch_scc1 L_k1_done")
    stamp(a, 0)
    e("s_and_b32 s3, s2, 7")
    e(f"s_lshr_b32 s{sBLK}, s3, 2")
    e(f"s_mul_i32 s{sTmp}, s{sBLK}, 40")
    e(f"s_add_u32 s44, s0, s{sTmp}")
    e("s_addc_u32 s45, s1, 0")
    e("s_load_dwordx2 s[64:65], s[44:45], 0")
    e("s_load_dwordx4 s[72:75], s[44:45], 24")
    e("s_load_dwordx4 s[68:71], s[44:45], 8")
    e("s_load_dwordx4 s[76:79], s[0:1], 80")
    e(f"s_load_dwordx2 s[{sWsP}:{sWsP+1}], s[0:1], 96")
    e("s_and_b32 s3, s3, 3")
    e("s_lshl_b32 s3, s3, 2")
    e(f"s_lshr_b32 s{sB}, s2, 3")
    e(f"s_and_b32 s{sH}, s{sB}, 3")
    e(f"s_lshl_b32 s{sTmp}, s{sH}, 1")
    e(f"s_add_u32 s{sH}, s{sH}, s3")
    e(f"s_lshr_b32 s{sB}, s{sB}, 2")
    if OPT["rot"]:
        e(f"s_add_u32 s{sTmp}, s{sTmp}, s{sB}")
        for _ in range(2):
            e(f"s_cmp_ge_u32 s{sTmp}, 7"); e(f"s_cselect_b32 s3, 7, 0"); e(f"s_sub_u32 s{sTmp}, s{sTmp}, s3")
        e(f"s_lshl_b32 s{sXoff}, s{sTmp}, 7")
        e(f"s_lshl_b32 s{sWqoff}, s{sTmp}, 19")
        e(f"s_cmp_eq_u32 s{sB}, 7"); e(f"s_cselect_b32 s3, 0, s{sB}")
        e(f"s_lshl_b32 s{sWooff}, s3, 7")
        e(f"s_lshl_b32 s{sStA}, s3, 12")
    else:
        for r in (sXoff, sWqoff, sWooff, sStA): e(f"s_mov_b32 s{r}, 0")
    e(f"s_mov_b32 s{sNP0}, s{sStA}")
    if OPT["rotk"] == 1:
        e(f"s_lshr_b32 s3, s2, 3"); e(f"s_lshl_b32 s{sRotK}, s3, 14")
    elif OPT["rotk"] == 2:
        e(f"s_lshl_b32 s{sRotK}, s2, 14")
    elif OPT["rotk"] == 3:
        e(f"s_lshr_b32 s3, s2, 4"); e(f"s_add_u32 s3, s3, s2"); e(f"s_lshl_b32 s{sRotK}, s3, 14")
    e("v_lshrrev_b32 v1, 6, v0")
    e("v_and_b32 v2, 63, v0")
    e(f"v_readfirstlane_b32 s{sW}, v1")
    e("v_and_b32 v3, 31, v2")
    e("v_lshrrev_b32 v4, 5, v2")
    e(f"s_lshl_b32 s{sWoff}, s{sW}, 12")
    e("v_lshrrev_b32 v5, 3, v2")
    e("v_mul_u32_u24 v8, 896, v5")
    e(f"s_mul_i32 s3, s{sW}, {32*896}")
    e("v_add_u32 v8, s3, v8")
    e("v_lshrrev_b32 v5, 4, v2")
    e("v_and_b32 v9, 7, v2")
    e("v_xor_b32 v6, v5, v9")
    e("v_xor_b32 v7, 4, v6")
    e("v_lshlrev_b32 v6, 4, v6")
    e("v_lshlrev_b32 v7, 4, v7")
    for jj in range(4):
        e(f"v_add_u32 v{vXd+jj}, v8, v{6 if jj % 2 == 0 else 7}")
        if jj: e(f"v_add_u32 v{vXd+jj}, {jj*(7168-1024)}, v{vXd+jj}")
    e("v_and_b32 v5, 1, v5")
    e("v_lshlrev_b32 v5, 2, v5")
    e("v_xor_b32 v5, v5, v9")
    e("v_lshlrev_b32 v5, 4, v5")
    e("v_add_u32 v8, v8, v5")
    for jj in range(4):
        e(f"v_add_u32 v{vWod+jj}, {jj*(7168-1024)}, v8")
    e(f"s_lshl_b32 s3, s{sW}, 16")
    e(f"s_lshl_b32 s{sTmp}, s{sH}, 9")
    e(f"s_add_u32 s3, s3, s{sTmp}")
    e("v_lshlrev_b32 v5, 13, v4")
    e("v_add_u32 v5, s3, v5")
    e("v_lshlrev_b32 v6, 2, v4")
    e("v_xor_b32 v6, v6, v3")
    e("v_xor_b32 v7, 8, v6")
    e("v_lshlrev_b32 v6, 4, v6")
    e("v_lshlrev_b32 v7, 4, v7")
    for jj in range(4):
        e(f"v_add_u32 v{vWqd+jj}, v5, v{6 if jj % 2 == 0 else 7}")
        if jj: e(f"v_add_u32 v{vWqd+jj}, {jj*(16384-1024)}, v{vWqd+jj}")
    e("v_lshlrev_b32 v8, 9, v4")
    e(f"v_add_u32 v8, s{sWoff}, v8")
    e(f"v_add_u32 v{vVd}, v8, v6")
    e(f"v_add_u32 v{vVd+1}, v8, v7")
    e(f"s_lshl_b32 s3, s{sW}, 2")
    e("v_xor_b32 v5, v3, v4")
    e("v_xor_b32 v5, s3, v5")
    e("v_xor_b32 v9, 2, v5")
    e("v_lshlrev_b32 v5, 4, v5")
    e("v_lshlrev_b32 v9, 4, v9")
    e(f"v_add_u32 v{vKd}, v8, v5")
    e(f"v_add_u32 v{vKd+1}, v8, v9")
    for s, sz in ((sX, 114688), (sWq, 448*8192), (sK, 262144), (sV, 262144), (sWo, 229376), (sG, 16*114688), (sFl, 1024), (sDb, 256), (sOut, 128*1792)):
        srd(e, s, 0, 0, sz)
    e(f"s_mul_i32 s46, s{sB}, 114688")
    e(f"s_lshl_b32 s47, s{sB}, 4")
    e(f"s_add_u32 s47, s47, s{sH}")
    e(f"s_lshl_b32 s47, s47, 18")
    e("s_waitcnt lgkmcnt(0)")
    e(f"s_add_u32 s{sX}, s64, s46"); e(f"s_addc_u32 s{sX+1}, s65, 0")
    e(f"s_mov_b32 s{sWq}, s72"); e(f"s_mov_b32 s{sWq+1}, s73")
    e(f"s_add_u32 s{sK}, s68, s47"); e(f"s_addc_u32 s{sK+1}, s69, 0")
    e(f"s_add_u32 s{sV}, s70, s47"); e(f"s_addc_u32 s{sV+1}, s71, 0")
    ip = [0]
    while iss[ip[0]][0] < 0:
        m = iss[ip[0]][1]; ip[0] += 1
        if m not in parked: assert alloc(m, 0)
        for g in dma(m):
            for s in g: e(s)
    e(f"s_mul_i32 s3, s{sH}, 229376")
    e(f"s_add_u32 s{sWo}, s74, s3"); e(f"s_addc_u32 s{sWo+1}, s75, 0")
    e(f"s_lshl_b32 s46, s{sBLK}, 3")
    e(f"s_add_u32 s46, s46, s{sB}")
    e(f"s_mul_i32 s3, s46, {16*114688}")
    e(f"s_add_u32 s{sG}, s{sWsP}, s3"); e(f"s_addc_u32 s{sG+1}, s{sWsP+1}, 0")
    e(f"s_lshl_b32 s3, s46, 10")
    e(f"s_add_u32 s3, s3, {FLAGS_OFF}")
    e(f"s_add_u32 s{sFl}, s{sWsP}, s3"); e(f"s_addc_u32 s{sFl+1}, s{sWsP+1}, 0")
    e(f"s_mov_b32 s{sDb}, s78"); e(f"s_mov_b32 s{sDb+1}, s79")
    e(f"s_mul_i32 s3, s{sB}, {128*1792}")
    e(f"s_add_u32 s{sOut}, s76, s3"); e(f"s_addc_u32 s{sOut+1}, s77, 0")
    if OPT["codepf"]:
        e("s_getpc_b64 s[62:63]")
        a.lab("L_pc")
        e("s_lshr_b32 s3, s2, 3")
        e("s_lshl_b32 s3, s3, 11")
        e("v_lshlrev_b32 v5, 3, v0")
        e("v_add_u32 v5, s3, v5")
        e("v_min_u32 v5, L_k1_end-L_pc-8, v5")
        e(f"global_load_dwordx2 a[{aQ}:{aQ+1}], v5, s[62:63]", "pf")
    e("v_lshrrev_b32 v5, 3, v3"); e("v_lshlrev_b32 v5, 2, v5")
    e("v_and_b32 v6, 3, v3"); e("v_or_b32 v5, v5, v6")
    e("v_xor_b32 v5, v5, v4")
    e("v_lshlrev_b32 v5, 4, v5")
    e("v_lshlrev_b32 v8, 9, v3")
    e("v_add_u32 v5, v5, v8")
    for s in range(8):
        e(f"v_xor_b32 v{vKr+s}, {s<<5}, v5")
    e("v_lshrrev_b32 v5, 1, v3"); e("v_and_b32 v5, 7, v5"); e("v_xor_b32 v5, v5, v4"); e("v_lshlrev_b32 v5, 4, v5")
    e("v_lshlrev_b32 v8, 7, v3"); e("v_add_u32 v5, v5, v8"); e(f"v_add_u32 v5, s{sWoff}, v5")
    for s in range(4):
        e(f"v_xor_b32 v{vXr+s}, {s<<5}, v5")
    e("v_lshrrev_b32 v5, 4, v2"); e("v_and_b32 v5, 1, v5")
    e("v_lshrrev_b32 v6, 2, v2"); e("v_and_b32 v6, 3, v6")
    e("v_and_b32 v7, 3, v2")
    e("v_lshlrev_b32 v8, 2, v4"); e("v_add_u32 v8, v8, v6")
    e("v_lshlrev_b32 v9, 9, v8")
    e(f"v_lshlrev_b32 v{vT0}, 5, v5")
    e(f"v_lshlrev_b32 v{vT0+1}, 3, v7")
    e(f"v_add_u32 v{vT0}, v{vT0}, v{vT0+1}")
    e(f"v_add_u32 v9, v9, v{vT0}")
    e(f"v_lshlrev_b32 v{vT0+2}, 6, v6")
    e(f"v_add_u32 v9, v9, v{vT0+2}")
    for t in range(4):
        e(f"v_xor_b32 v{vVr+t}, {t<<6}, v9")
    e(f"v_and_b32 v{vT0+1}, 1, v7"); e(f"v_lshlrev_b32 v{vT0+1}, 4, v{vT0+1}")
    e(f"v_lshrrev_b32 v{vT0+3}, 1, v7"); e(f"v_lshlrev_b32 v{vT0+3}, 3, v{vT0+3}")
    e(f"v_lshlrev_b32 v{vT0}, 5, v5")
    e(f"v_add_u32 v{vT0}, v{vT0}, v{vT0+1}")
    e(f"v_add_u32 v{vT0}, v{vT0}, v{vT0+3}")
    e("v_lshlrev_b32 v9, 3, v4"); e("v_add_u32 v9, v9, v6"); e("v_lshlrev_b32 v9, 9, v9")
    e(f"v_add_u32 v9, v9, v{vT0}")
    e(f"v_add_u32 v9, v9, v{vT0+2}")
    for t in range(4):
        e(f"v_xor_b32 v{vWqr+t}, {t<<6}, v9")
    e("v_lshlrev_b32 v9, 7, v8")
    e(f"v_add_u32 v9, v9, v{vT0}")
    e(f"v_lshrrev_b32 v{vT0+1}, 1, v6"); e(f"v_lshlrev_b32 v{vT0+1}, 6, v{vT0+1}")
    e(f"v_add_u32 v{vWor}, v9, v{vT0+1}")
    e(f"v_xor_b32 v{vWor+1}, 64, v{vWor}")
    e(f"s_mul_i32 s3, s{sW}, 28672")
    e(f"s_mul_i32 s{sTmp2}, s{sH}, 114688")
    e(f"s_add_u32 s3, s3, s{sTmp2}")
    e(f"v_lshlrev_b32 v{vUp}, 4, v2")
    e(f"v_add_u32 v{vSt}, s3, v{vUp}")
    e(f"v_add_u32 v{vUp}, s{sWoff}, v{vUp}")
    e(f"v_add_u32 v{vUp+1}, 0x10000, v{vUp}")
    e(f"v_add_u32 v{vUp+2}, 0x20000, v{vUp}")
    e(f"s_mov_b32 s{sC}, {f32hex(SCALE)}")
    e(f"s_mov_b32 s{sThr}, {f32hex(OPT['thr'])}")
    e(f"s_lshl_b32 s3, s{sW}, 8"); e(f"s_lshl_b32 s{sTmp2}, s{sH}, 2"); e(f"s_add_u32 s3, s3, s{sTmp2}")
    e(f"v_lshlrev_b32 v{vFl}, 12, v2")
    e(f"v_add_u32 v{vFl}, s3, v{vFl}")
    e("v_and_b32 v5, 15, v2"); e("v_lshlrev_b32 v5, 2, v5")
    e(f"s_lshr_b32 s3, s{sH}, 2"); e("s_lshl_b32 s3, s3, 8")
    e(f"v_add_u32 v{vFp}, s3, v5")
    e("v_lshrrev_b32 v6, 4, v2"); e("v_lshlrev_b32 v6, 8, v6"); e("v_add_u32 v5, v5, v6")
    e(f"s_or_b32 s3, s{sH}, s{sW}"); e("s_cmp_eq_u32 s3, 0"); e("s_cselect_b32 s3, 0, 0x10000")
    e("v_add_u32 v5, s3, v5")
    e(f"v_mov_b32 v{vL}, 0")
    e(f"buffer_store_dword v{vL}, v5, s[{sFl}:{sFl+3}], 0 offen sc1", "clr")
    e(f"s_lshl_b32 s{sTmp2}, s46, 2")
    e(f"v_lshlrev_b32 v{vDbA}, 12, v2")
    e(f"v_add_u32 v{vDbA}, s3, v{vDbA}")
    e(f"v_add_u32 v{vDbA}, s{sTmp2}, v{vDbA}")
    e(f"v_mov_b32 v{vDbV}, s{sTmp2}")
    e(f"v_mov_b32 v{vFv}, 1")
    e(f"s_mov_b32 s{sSpin}, 0x8000")
    stamp(a, 1)

    items = []
    fill = defaultdict(list)
    def add(p, ins):
        fill[p].extend(ins if isinstance(ins, list) else [ins])
    def spread(p0, p1, ins):
        n = p1 - p0 + 1
        for k, s in enumerate(ins): add(p0 + (k*n)//len(ins), s)
    MF = "v_mfma_f32_32x32x16_bf16"
    for c in range(7):
        if c < 6: order = [(hb, tp, tau) for hb in range(2) for tp in range(2) for tau in range(8)]
        else: order = [(hb, tp, tau) for tau in range(8) for hb in range(2) for tp in range(2)]
        for k, (hb, tp, tau) in enumerate(order):
            n = 3*c + 1 + hb
            acc = vO + 16*tau
            xr = vXf + 16*(c & 1) + 4*(2*hb + tp)
            cin = "0" if (c == 0 and hb == 0 and tp == 0) else f"v[{acc}:{acc+15}]"
            rd = []
            t4 = None
            if c < 6 and k < 16 and k % 4 == 0: t4 = k // 4
            if c == 6 and k < 4: t4 = k
            if t4 is not None:
                xd = vXf + 16*(c & 1) + 4*t4
                rd.append(("ds_read_b128", f"v[{xd}:{xd+3}]", "X", t4, 3*c, 0))
            o = (tau >> 2)*256 + 16*tp*512
            rd += tr_reads("W", tau & 3, n, o, o + 4*512)
            items.append(Item(2*c + k//16, f"{MF} v[{acc}:{acc+15}], a[{{b}}:{{b3}}], v[{xr}:{xr+3}], {cin}", rd))
    p = 0
    QG = 5
    for tau in range(8):
        r = vO + 16*tau
        t = []
        for hf in range(2):
            for j in range(4*hf, 4*hf+4):
                t += [f"v_mul_f32 v{r+2*j}, s{sC}, v{r+2*j}", f"v_mul_f32 v{r+2*j+1}, s{sC}, v{r+2*j+1}"]
            for j in range(4*hf, 4*hf+4): t.append(f"v_cvt_pk_bf16_f32 v{r+2*j}, v{r+2*j}, v{r+2*j+1}")
            for j in range(4*hf, 4*hf+4): t.append(f"v_accvgpr_write_b32 a{aQ+8*tau+j}, v{r+2*j}")
        p = max(p, 192 + 4*tau + 5)
        spread(p, p + QG - 1, t)
        p += QG
        assert p - 1 < 224 + 2*tau, (tau, p)
    def qk(H, n, S, cinit):
        for s in range(16):
            cin = cinit if s == 0 else f"v[{S}:{S+15}]"
            rd = [("ds_read_b128", "a[{b}:{b3}]", "K", s & 7, n, (s >> 3)*256)]
            items.append(Item(H, f"{MF} v[{S}:{S+15}], a[{{b}}:{{b3}}], a[{aQ+4*s}:{aQ+4*s+3}], {cin}", rd))
    def pv(H, n, P, first, taumajor):
        order = [(t, tau) for t in range(2) for tau in range(8)]
        if taumajor: order = [(t, tau) for tau in range(8) for t in range(2)]
        for (t, tau) in order:
            acc = vO + 16*tau
            cin = "0" if (first and t == 0) else f"v[{acc}:{acc+15}]"
            o = (tau >> 2)*256 + 16*t*512
            rd = tr_reads("V", tau & 3, n, o, o + 8*512)
            items.append(Item(H, f"{MF} v[{acc}:{acc+15}], a[{{b}}:{{b3}}], v[{P+4*t}:{P+4*t+3}], {cin}", rd))
    def maxtree(S):
        T = vT0
        return [f"v_max3_f32 v{T}, v{S}, v{S+1}, v{S+2}", f"v_max3_f32 v{T+1}, v{S+3}, v{S+4}, v{S+5}",
                f"v_max3_f32 v{T}, v{T}, v{S+6}, v{S+7}", f"v_max3_f32 v{T+1}, v{T+1}, v{S+8}, v{S+9}",
                f"v_max3_f32 v{T}, v{T}, v{S+10}, v{S+11}", f"v_max3_f32 v{T+1}, v{T+1}, v{S+12}, v{S+13}",
                f"v_max3_f32 v{T}, v{T}, v{S+14}, v{S+15}", f"v_max_f32 v{T}, v{T}, v{T+1}", f"v_mov_b32 v{T+1}, v{T}",
                f"v_permlane32_swap_b32 v{T}, v{T+1}", f"v_max_f32 v{T}, v{T}, v{T+1}"]
    def expsum(S):
        L = []
        for k in range(16):
            L.append(f"v_exp_f32 v{vE+k}, v{S+k}")
            j = k - 2
            if j == 2: L.append(f"v_add_f32 v{vTs}, v{vE}, v{vE+2}")
            elif j == 3: L.append(f"v_add_f32 v{vTs+1}, v{vE+1}, v{vE+3}")
            elif j > 3: L.append(f"v_add_f32 v{vTs+(j&1)}, v{vTs+(j&1)}, v{vE+j}")
        L += [f"v_add_f32 v{vTs}, v{vTs}, v{vE+14}", f"v_add_f32 v{vTs+1}, v{vTs+1}, v{vE+15}", f"v_add_f32 v{vTs}, v{vTs}, v{vTs+1}"]
        return L
    cvts = lambda S: [f"v_cvt_pk_bf16_f32 v{S+j}, v{vE+2*j}, v{vE+2*j+1}" for j in range(8)]
    lblc = [0]
    def check(b):
        lblc[0] += 1
        k = lblc[0]
        return [f"v_cmp_lt_f32 vcc, s{sThr}, v{vTs}",
                f"s_cbranch_vccz L_nm{k}",
                f"s_call_b64 s[{sRet}:{sRet+1}], L_fix{b}",
                lambda a, k=k: a.lab(f"L_nm{k}")]
    NMs = f"v[{vNM}:{vNM+15}]"
    H = 14
    qk(H, 21, vSb[0], "0"); H += 1
    qk(H, 22, vSb[1], "0")
    q0 = 15*16
    S = vSb[0]
    spread(q0+2, q0+4, maxtree(S))
    t = [f"v_sub_f32 v{S+r}, v{S+r}, v{vT0}" for r in range(16)]
    spread(q0+5, q0+8, t)
    es = expsum(S)
    spread(q0+7, q0+15, es[:-3])
    add(q0+15, cvts(S)[0:4])
    add(q0+16, es[-3:] + [f"v_mov_b32 v{vL}, v{vTs}"])
    add(q0+17, cvts(S)[4:8])
    nm = [f"v_sub_f32 v{vNM+r}, 0, v{vT0}" for r in range(16)]
    H += 1
    for t in range(1, 16):
        n = uidx[("V", t-1)]
        assert consumed[n] == H
        pv(H, n, vSb[(t-1) & 1], t == 1, False)
        S = vSb[t & 1]
        p0 = 16*H
        if t == 1:
            sub = [f"v_sub_f32 v{S+r}, v{S+r}, v{vT0}" for r in range(16)]
            spread(p0+2, p0+7, sub)
            spread(p0+4, p0+15, expsum(S))
            spread(p0+8, p0+14, nm)
        else:
            spread(p0+2, p0+15, expsum(S))
        add(p0+15, check(t & 1))
        H += 1
        if t <= 14:
            n = uidx[("K", t+1)]
            assert consumed[n] == H
            qk(H, n, vSb[(t+1) & 1], NMs)
            add(16*H, [f"v_add_f32 v{vL}, v{vL}, v{vTs}"])
            spread(16*H+1, 16*H+12, cvts(S))
            H += 1
        else:
            add(p0+15, cvts(S))
    n = uidx[("V", 15)]
    assert consumed[n] == H and H == 45
    pv(H, n, vSb[1], False, True)
    add(16*H, [f"v_add_f32 v{vL}, v{vL}, v{vTs}"])
    add(16*H+1, [f"v_mov_b32 v{vT0}, v{vL}"])
    add(16*H+2, [f"v_permlane32_swap_b32 v{vL}, v{vT0}"])
    add(16*H+4, [f"v_add_f32 v{vL}, v{vL}, v{vT0}"])
    add(16*H+6, [f"v_rcp_f32 v{vAl}, v{vL}"])
    for tau in range(8):
        r = vO + 16*tau
        t = [f"v_cvt_pk_bf16_f32 v{r+j}, v{r+2*j}, v{r+2*j+1}" for j in range(8)]
        p = 16*H + 2*tau + 3
        add(p, t[0:3]); add(p+1, t[3:6]); add(p+2, t[6:8])
    H += 1
    def epilogue(acc, so, nu, j):
        g = []
        for half in range(2):
            for jj in range(4):
                r = acc + 8*half + 2*jj
                g.append([f"v_mul_f32 v{r}, v{r}, v{vAl}", f"v_mul_f32 v{r+1}, v{r+1}, v{vAl}"])
                g.append([f"v_cvt_pk_bf16_f32 v{acc+4*half+jj}, v{r}, v{r+1}"])
            off = nu*2048 + half*1024
            offs = f" offset:{off}" if off else ""
            g.append([(f"buffer_store_dwordx4 v[{acc+4*half}:{acc+4*half+3}], v{vSt}, s[{sG}:{sG+3}], s{so} offen{offs} {OPT['st_pol']}", f"st{j}")])
        return g
    pubs = [int(x) for x in OPT["pub"].split(",")]
    assert pubs[-1] == 7
    def publish(cnt):
        def f(a):
            a.wait_vm({f"st{j}" for j in range(cnt)})
            a.e(f"v_mov_b32 v{vFv}, {cnt}")
            a.e(f"buffer_store_dword v{vFv}, v{vFl}, s[{sFl}:{sFl+3}], 0 offen sc1", "pub")
        return f
    late_pubs = []
    for j in range(7):
        so = sStA if j % 2 == 0 else sStB
        so2 = sStB if j % 2 == 0 else sStA
        for hf in range(2):
            n = uidx[("O", 2*j+hf)]
            assert consumed[n] == H
            for nu in range(2):
                acc = vAcc + 32*(j & 1) + 16*nu
                for s8 in range(8):
                    s = 8*hf + s8
                    ob = vO + 16*(s >> 1) + 4*(s & 1)
                    cin = "0" if s == 0 else f"v[{acc}:{acc+15}]"
                    rd = tr_reads("O", nu, n, 16*s8*128, (16*s8+8)*128)
                    items.append(Item(H, f"{MF} v[{acc}:{acc+15}], a[{{b}}:{{b3}}], v[{ob}:{ob+3}], {cin}", rd))
            H += 1
        pend = 16*H
        g0 = epilogue(vAcc + 32*(j & 1), so, 0, j)
        g1 = epilogue(vAcc + 32*(j & 1) + 16, so, 1, j)
        if j < 6:
            for k, g in enumerate(g0): add(pend - 5 + (k*9)//18, g)
            for k, g in enumerate(g1): add(pend + 4 + (k*9)//18, g)
            add(pend - 6, [f"s_add_u32 s{so2}, s{so}, 4096", f"s_cmp_eq_u32 s{so2}, 28672", f"s_cselect_b32 s{so2}, 0, s{so2}"])
        else:
            for k, g in enumerate(g0): add(pend - 5 + (k*5)//18, g)
            for k, g in enumerate(g1): add(pend - 1, g)
        if j + 1 in pubs:
            pp = pend + 13 + 16*OPT["PUBD"]
            if pp < 960 - 8: add(pp, [publish(j + 1)])
            else: late_pubs.append(j + 1)
    N = len(items)
    assert N == 960
    for p in range(N):
        if p % 16 == 0: items[p].first = True
    if OPT["wowarm"]:
        p = 16*OPT["wowarm"] + 8
        if OPT["wowm"] == 0:
            for jj in range(4):
                add(p + jj, [(f"buffer_load_dwordx4 a[{4*jj}:{4*jj+3}], v{vWod+jj}, s[{sWo}:{sWo+3}], s{sWooff} offen offset:{jj*1024} {OPT['w_pol']}", "warm")])
            add(p + 4, [f"s_add_u32 s{sTmp2}, s{sWooff}, {128*896}"])
            for jj in range(4):
                add(p + 16 + jj, [(f"buffer_load_dwordx4 a[{16+4*jj}:{16+4*jj+3}], v{vWod+jj}, s[{sWo}:{sWo+3}], s{sTmp2} offen offset:{jj*1024} {OPT['w_pol']}", "warm")])
        else:
            add(p, [f"v_mul_u32_u24 v{vT0+2}, 896, v0"])
            add(p + 1, [(f"buffer_load_dword a0, v{vT0+2}, s[{sWo}:{sWo+3}], s{sWooff} offen {OPT['w_pol']}", "warm")])
            add(p + 2, [(f"buffer_load_dword a1, v{vT0+2}, s[{sWo}:{sWo+3}], s{sWooff} offen offset:64 {OPT['w_pol']}", "warm")])
    def lead(a):
        a.wait_vm({"clr"})
        a.e(f"buffer_store_dword v{vFv}, v{vDbA}, s[{sDb}:{sDb+3}], 0 offen sc1", "sig")
    add(16*17 + 5, [lead])
    add(16*39 + 5, [(f"buffer_load_dword v{vF}, v{vDbV}, s[{sDb}:{sDb+3}], 0 offen sc1", "chk")])
    def chk(a):
        a.wait_vm({"chk"})
        a.e(f"v_cmp_eq_u32 vcc, 0, v{vF}")
        a.e("s_cbranch_vccz L_chk_ok")
        a.e(f"s_call_b64 s[{sRet}:{sRet+1}], L_chk_wait")
        a.lab("L_chk_ok")
    add(16*47 + 3, [chk])
    ra = [f"v_and_b32 v{vT0+2}, 63, v0",
          f"v_lshrrev_b32 v{vT0+3}, 4, v{vT0+2}",
          f"v_mul_u32_u24 v{vRd}, 114688, v{vT0+3}",
          f"v_and_b32 v{vRo}, 7, v{vT0+2}",
          f"s_and_b32 s3, s{sH}, 3", f"s_lshl_b32 s3, s3, 3",
          f"v_add_u32 v{vRo}, s3, v{vRo}",
          f"v_lshlrev_b32 v{vSel}, 4, v{vRo}",
          f"v_add_u32 v{vRd}, v{vRd}, v{vSel}",
          f"v_bfe_u32 v{vSel}, v{vT0+2}, 3, 1",
          f"v_lshlrev_b32 v{vSel+1}, 9, v{vSel}",
          f"v_add_u32 v{vRd}, v{vRd}, v{vSel+1}",
          f"s_lshr_b32 s{sTmp2}, s{sH}, 2",
          f"s_mul_i32 s3, s{sTmp2}, 28672",
          f"s_lshl_b32 s44, s{sW}, 10",
          f"s_add_u32 s3, s3, s44",
          f"v_add_u32 v{vRd}, s3, v{vRd}",
          f"s_lshl_b32 s3, s{sTmp2}, 5",
          f"v_add_u32 v{vRo}, s3, v{vRo}",
          f"v_mul_u32_u24 v{vRo}, 1792, v{vRo}",
          f"v_lshlrev_b32 v{vSel}, 4, v{vSel}",
          f"v_add_u32 v{vRo}, v{vRo}, v{vSel}",
          f"v_and_b32 v{vSel}, 1, v{vT0+3}",
          f"v_lshlrev_b32 v{vSel}, 3, v{vSel}",
          f"v_add_u32 v{vRo}, v{vRo}, v{vSel}",
          f"v_lshrrev_b32 v{vSel}, 1, v{vT0+3}",
          f"v_lshlrev_b32 v{vSel}, 24, v{vSel}",
          f"v_add_u32 v{vRo}, v{vRo}, v{vSel}",
          f"s_mul_i32 s3, s{sBLK}, 896",
          f"s_lshl_b32 s44, s{sW}, 5",
          f"s_add_u32 s3, s3, s44",
          f"v_add_u32 v{vRo}, s3, v{vRo}",
          f"v_and_b32 v{vT0+3}, 1, v{vT0+2}",
          f"v_lshlrev_b32 v{vT0+3}, 4, v{vT0+3}",
          f"v_lshlrev_b32 v{vT0+3}, v{vT0+3}, v{vOne}",
          f"v_bfe_u32 v{vT0+2}, v{vT0+2}, 1, 2"]
    for r in range(4):
        ra += [f"v_cmp_eq_u32 vcc, {r}, v{vT0+2}", f"v_cndmask_b32 v{vSel+r}, 0, v{vT0+3}, vcc"]
    add(16*19, [f"v_mov_b32 v{vOne}, 0x3f80"])
    k = 0
    for Hq in (19, 21, 23, 25):
        for gpos in range(1, 14):
            if k < len(ra):
                if ra[k].startswith("v_cmp"):
                    add(16*Hq + gpos, ra[k:k+2]); k += 2
                else:
                    add(16*Hq + gpos, ra[k]); k += 1
    assert k == len(ra)
    if OPT["early"]:
        add(960 - 40, [(f"buffer_load_dword v{vF}, v{vFp}, s[{sFl}:{sFl+3}], 0 offen sc1", "poll")])
    if OPT["stamps"]:
        add(14*16 - 1, [lambda a: stamp(a, 3)])
        add(46*16 - 1, [lambda a: stamp(a, 4)])

    if OPT["pace"]:
        for ent in OPT["pace"].split(","):
            rng, n = ent.split(":"); h0, h1 = rng.split("-")
            for p in range(16*int(h0), 16*int(h1)):
                add(p, [f"s_nop {int(n)}"])
    D = OPT["D"]
    window = {g: 0 for g in GROUPS}
    uses = defaultdict(list)
    for i, it in enumerate(items):
        for r in it.reads: uses[r[2]].append((i, r[4]))
    soft_dma = []
    soft_up = []
    soft_adr = []
    log = []
    def set_window(g, w, now):
        if window[g] == w: return
        base, cnt = GROUPS[g]
        d = (w - window[g]) * 65536
        window[g] = w
        ins = [f"v_add_u32 v{base+k}, {d & 0xffffffff}, v{base+k}" for k in range(cnt)]
        if now:
            for s in ins: e(s)
        else:
            soft_adr.extend((g, s) for s in ins)
    def flush_adr(g):
        rest = []
        for (gg, s) in soft_adr:
            if gg == g: e(s)
            else: rest.append((gg, s))
        soft_adr[:] = rest
    upos = {g: 0 for g in GROUPS}
    rp = [0]
    hbar = [-1]
    issued = set(m for (pos, m) in iss[:ip[0]])
    upq = sorted(parked)
    unparked = set()
    def next_unit(p, force=False):
        if ip[0] >= len(iss): return False
        pos, m = iss[ip[0]]
        if pos > p and not force: return False
        if m not in parked:
            res = min(OPT["RES"], len(upq)) if units[m][0] in "KV" else 0
            if not alloc(m, hbar[0], 0 if force else res):
                assert not force, ("no slot", m, p)
                return False
        ip[0] += 1
        issued.add(m)
        log.append((p, "iss", units[m], slot_of.get(m)))
        soft_dma.extend(dma(m))
        return True
    def next_unpark(p, force=False):
        if not upq: return False
        m = upq[0]
        if not force and (p < 16*(needed[m] - OPT["UP"]) - D or m not in issued or soft_dma_has(m)): return False
        if not alloc(m, hbar[0]):
            assert not force, ("no slot (unpark)", m, p)
            return False
        upq.pop(0)
        s = slot_of[m]
        log.append((p, "unp", units[m], s))
        for jj in range(4):
            pk = parked[m] + 4*jj
            ins = []
            if jj == 0: ins.append(lambda a, m=m: a.wait_vm({f"u{m}"}))
            ins.append((f"ds_write_b128 v{vUp + s//4}, a[{pk}:{pk+3}] offset:{(s%4)*16384 + jj*1024}", None, f"w{m}"))
            soft_up.append(ins)
        unparked.add(m)
        return True
    def soft_dma_has(m):
        return any(isinstance(s, tuple) and s[1] == f"u{m}" for g in soft_dma for s in g)
    def issue(i, p):
        it = items[i]
        if it.first:
            Hh = it.H
            a.c(f"event H={Hh} needs {[units[n] for n in HS[Hh]]}")
            for n in HS[Hh]:
                while n not in issued: next_unit(p, True)
                if soft_dma_has(n):
                    for g in soft_dma:
                        for s in g: e(s)
                    soft_dma.clear()
                if n in parked:
                    while n not in unparked: next_unpark(p, True)
                    for g in soft_up:
                        for s in g: e(s)
                    soft_up.clear()
            if OPT["trace"]:
                if Hh > 0:
                    e(f"v_writelane_b32 v{vTr}, s{sTr+4*((Hh-1)&1)}, {Hh-1}")
                    e(f"v_writelane_b32 v{vTr+1}, s{sTr+2+4*((Hh-1)&1)}, {Hh-1}")
                e(f"{'s_memtime' if OPT['trace'] == 2 else 's_memrealtime'} s[{sTr+4*(Hh&1)}:{sTr+1+4*(Hh&1)}]")
            a.wait_vm({f"u{n}" for n in HS[Hh] if n not in parked})
            a.wait_lds({f"w{n}" for n in HS[Hh]})
            e("s_barrier")
            hbar[0] = Hh
            if OPT["trace"]:
                e(f"s_memrealtime s[{sTr+2+4*(Hh&1)}:{sTr+3+4*(Hh&1)}]")
            if Hh == 0: stamp(a, 2)
        b = aF + 4*(i % NB)
        for (op, dst, g, ridx, n, inoff) in it.reads:
            slot = slot_of[n]
            flush_adr(g)
            set_window(g, slot // 4, True)
            imm = (slot % 4)*16384 + inoff
            e(f"{op} {dst.format(b=b, b1=b+1, b2=b+2, b3=b+3)}, v{GROUPS[g][0]+ridx} offset:{imm}", lds=i)
            upos[g] += 1
            if upos[g] < len(uses[g]):
                ni, nn = uses[g][upos[g]]
                if nn != n and nn in slot_of and ni > i + 2:
                    set_window(g, slot_of[nn]//4, False)
    def adv(limit, p):
        while rp[0] < N and rp[0] <= limit:
            issue(rp[0], p); rp[0] += 1
    adv(D - 1, -1)
    for p in range(N):
        a.wait_lds({p})
        b = aF + 4*(p % NB)
        e(items[p].mf.format(b=b, b3=b+3))
        adv(p + D, p)
        for s in fill.get(p, []): e(s)
        if not soft_up: next_unpark(p)
        if not soft_dma: next_unit(p)
        if soft_dma:
            for s in soft_dma.pop(0): e(s)
        if soft_up:
            for s in soft_up.pop(0): e(s)
        for _ in range(2):
            if soft_adr: e(soft_adr.pop(0)[1])
    assert not soft_dma and not soft_up and ip[0] == len(iss)
    if OPT["verbose"]:
        for (p, w, u, s) in log:
            sys.stderr.write(f"  {p/16:6.2f} {w} {u} slot {s} (need {needed[uidx[u]]})\n")
    stamp(a, 5)
    vD = vO
    def loads(j):
        e(f"s_add_u32 s{sTmp}, s{sNP0}, {j*4096}")
        e(f"s_cmp_ge_u32 s{sTmp}, 28672"); e(f"s_cselect_b32 s3, 28672, 0"); e(f"s_sub_u32 s{44+0}, s{sTmp}, s3")
        e(f"s_lshr_b32 s{8+j}, s44, 5")
        for k in range(4):
            if k: e(f"s_add_u32 s44, s44, {4*114688}")
            e(f"buffer_load_dwordx4 a[{16*j+4*k}:{16*j+4*k+3}], v{vRd}, s[{sG}:{sG+3}], s44 offen sc1", f"r{j}")
    j0 = 0
    if OPT["early"]:
        a.wait_vm({"poll"})
    else:
        e(f"v_mov_b32 v{vF}, 0")
    stages = []
    prev = 0
    for c in pubs:
        stages.append((prev, c)); prev = c
    lo, hi = stages[0]
    e(f"v_cmp_gt_u32 vcc, {hi}, v{vF}")
    e("s_cbranch_vccnz L_slow0")
    vs = list(a.vmq)
    for j in range(lo, hi): loads(j)
    for c in late_pubs: publish(c)(a)
    e("s_branch L_st1")
    a.lab("L_slow0")
    a.vmq = list(vs)
    for c in late_pubs: publish(c)(a)
    e(f"s_mov_b32 s45, {hi}")
    e(f"s_call_b64 s[{sRet}:{sRet+1}], L_poll")
    for j in range(lo, hi): loads(j)
    a.lab("L_st1")
    stamp(a, 6)
    a.vmq = []
    for (lo, hi) in stages[1:]:
        e(f"v_cmp_gt_u32 vcc, {hi}, v{vF}")
        e(f"s_cbranch_vccz L_go{hi}")
        e(f"s_mov_b32 s45, {hi}")
        e(f"s_call_b64 s[{sRet}:{sRet+1}], L_poll")
        a.lab(f"L_go{hi}")
        for j in range(lo, hi): loads(j)
    M16 = "v_mfma_f32_16x16x32_bf16"
    lo_last = stages[-1][0]
    nlast = 4*(7 - lo_last)
    def red(j):
        d = vD + 4*j
        for k in range(4):
            cin = "0" if k == 0 else f"v[{d}:{d+3}]"
            e(f"{M16} v[{d}:{d+3}], v[{vSel}:{vSel+3}], a[{16*j+4*k}:{16*j+4*k+3}], {cin}")
    def fin(j):
        d = vD + 4*j
        e(f"v_cvt_pk_bf16_f32 v{d}, v{d}, v{d+1}")
        e(f"v_cvt_pk_bf16_f32 v{d+1}, v{d+2}, v{d+3}")
        e(f"buffer_store_dwordx2 v[{d}:{d+1}], v{vRo}, s[{sOut}:{sOut+3}], s{8+j} offen")
    e(f"s_waitcnt vmcnt({nlast})")
    for j in range(lo_last): red(j)
    for j in range(lo_last): fin(j)
    for j in range(lo_last, 7):
        e(f"s_waitcnt vmcnt({lo_last + 4*(6-j)})")
        red(j)
    for j in range(lo_last, 7): fin(j)
    if OPT["stamps"]:
        e("s_waitcnt vmcnt(0)")
        stamp(a, 7)
        e("s_waitcnt lgkmcnt(0)")
        e(f"s_add_u32 s32, s{sWsP}, 0x4000000"); e(f"s_addc_u32 s33, s{sWsP+1}, 0"); e("s_mov_b32 s34, 0x100000"); e("s_mov_b32 s35, 0x00020000")
        e("s_lshl_b32 s3, s2, 6")
        e("v_mov_b32 v1, s3")
        for k in range(8):
            e(f"v_mov_b32 v{2+k}, s{sStamp+2*k}")
        if OPT["trace"]:
            e(f"v_writelane_b32 v{vTr}, s{sTr+4}, 59")
            e(f"v_writelane_b32 v{vTr+1}, s{sTr+6}, 59")
            e("s_lshl_b32 s3, s2, 11")
            e("s_add_u32 s3, s3, 0x10000")
            e("v_lshlrev_b32 v10, 3, v0")
            e("v_add_u32 v10, s3, v10")
            e(f"buffer_store_dwordx2 v[{vTr}:{vTr+1}], v10, s[32:35], 0 offen")
        e("v_cmp_eq_u32 vcc, 0, v0")
        e("s_and_saveexec_b64 s[36:37], vcc")
        e("s_cbranch_execz L_k1_done")
        e("buffer_store_dwordx4 v[2:5], v1, s[32:35], 0 offen")
        e("buffer_store_dwordx4 v[6:9], v1, s[32:35], 0 offen offset:16")
        e("s_waitcnt vmcnt(0)")
    a.lab("L_k1_done")
    e("s_endpgm")
    a.lab("L_poll")
    e(f"buffer_load_dword v{vF}, v{vFp}, s[{sFl}:{sFl+3}], 0 offen sc1")
    e(f"s_sub_u32 s{sSpin}, s{sSpin}, 1")
    e("s_cbranch_scc1 L_poll_to")
    e("s_waitcnt vmcnt(0)")
    e(f"v_cmp_gt_u32 vcc, s45, v{vF}")
    e("s_cbranch_vccz L_poll_ret")
    if OPT["sleep"]: e(f"s_sleep {OPT['sleep']}")
    e("s_branch L_poll")
    a.lab("L_poll_to")
    e(f"s_mov_b32 s{sSpin}, 0")
    e("s_waitcnt vmcnt(0)")
    a.lab("L_poll_ret")
    e(f"s_setpc_b64 s[{sRet}:{sRet+1}]")
    a.lab("L_chk_wait")
    e(f"buffer_load_dword v{vF}, v{vDbV}, s[{sDb}:{sDb+3}], 0 offen sc1")
    e(f"s_sub_u32 s{sSpin}, s{sSpin}, 1")
    e("s_cbranch_scc1 L_poll_to")
    e("s_waitcnt vmcnt(0)")
    e(f"v_cmp_eq_u32 vcc, 0, v{vF}")
    e("s_cbranch_vccz L_poll_ret")
    e("s_sleep 4")
    e("s_branch L_chk_wait")
    for bsel in range(2):
        S = vSb[bsel]
        a.lab(f"L_fix{bsel}")
        e("s_nop 1")
        for s in maxtree(S): e(s)
        e(f"v_max_f32 v{vT0}, 0, v{vT0}")
        e(f"v_exp_f32 v{vAl}, -v{vT0}")
        for r in range(16): e(f"v_sub_f32 v{S+r}, v{S+r}, v{vT0}")
        for r in range(16): e(f"v_sub_f32 v{vNM+r}, v{vNM+r}, v{vT0}")
        for s in expsum(S): e(s)
        e(f"v_mul_f32 v{vL}, v{vL}, v{vAl}")
        for r in range(128):
            e(f"v_mul_f32 v{vO+r}, v{vO+r}, v{vAl}")
        e("s_nop 3")
        e(f"s_setpc_b64 s[{sRet}:{sRet+1}]")
    a.lab("L_k1_end")
    lines = "\n".join(a.L).split("\n")
    lines, npad = pad_hazards(lines)
    sys.stderr.write(f"k1: {len(lines)} lines, {npad} hazard pads\n")
    return "\n".join(lines) + "\n"

def desc(name, vgpr, acc, sgpr=102):
    return f""".p2align 6
.amdhsa_kernel {name}
  .amdhsa_next_free_vgpr {vgpr}
  .amdhsa_next_free_sgpr {sgpr}
  .amdhsa_accum_offset {acc}
  .amdhsa_group_segment_fixed_size 0
  .amdhsa_kernarg_size 104
  .amdhsa_user_sgpr_count 2
  .amdhsa_user_sgpr_kernarg_segment_ptr 1
  .amdhsa_system_sgpr_workgroup_id_x 1
.end_amdhsa_kernel
"""

def main():
    ref = open(f"cdna_kernels/{NAME}.s.ref").read().splitlines()
    hdr = [l for l in ref if l.startswith(";") and "@launch" not in l and "Override launch" not in l and "grid=ceil" not in l]
    out = "\n".join(hdr) + "\n"
    if OPT["lst"]:
        out += f"; @launch kernel={K1} grid=(256,1,1) block=(256,1,1) lds=163840\n"
    else:
        out += f"; @launch grid=(256,1,1) block=(256,1,1) lds=163840\n"
    out += '.amdgcn_target "amdgcn-amd-amdhsa--gfx950"\n.text\n'
    out += gen_k1()
    out += '.section .rodata,"a"\n'
    out += desc(K1, 512, 256)
    open(sys.argv[1], "w").write(out)

main()
```

```python
import re

def regs_of(tok):
    tok = tok.strip()
    m = re.fullmatch(r"([vas])\[(\d+):(\d+)\]", tok)
    if m:
        return [(m.group(1), i) for i in range(int(m.group(2)), int(m.group(3)) + 1)]
    m = re.fullmatch(r"([vas])(\d+)", tok)
    if m:
        return [(m.group(1), int(m.group(2)))]
    if tok in ("vcc", "vcc_lo", "vcc_hi"):
        return [("vcc", 0)]
    if tok == "m0":
        return [("m0", 0)]
    if tok in ("exec", "exec_lo", "exec_hi"):
        return [("exec", 0)]
    return []

TRANS = ("v_exp_f32", "v_log_f32", "v_rcp_f32", "v_rsq_f32", "v_sqrt_f32", "v_sin_f32", "v_cos_f32")

class Ins:
    __slots__ = ("text", "op", "cls", "wr", "rd", "srcc", "ab", "data", "lds", "states")
    def __init__(self, text):
        self.text = text
        t = text.split(";")[0].strip()
        t = t.split(" quad_perm")[0]
        parts = t.split(None, 1)
        self.op = parts[0] if parts else ""
        ops = []
        if len(parts) > 1:
            ops = [o.strip() for o in parts[1].split(",")]
            if ops:
                last = ops[-1].split()
                ops[-1] = last[0] if last else ""
        op = self.op
        self.wr, self.rd, self.srcc, self.ab, self.data = [], [], [], [], []
        self.lds = bool(re.search(r"\blds\b", t)) and op.startswith("buffer_load")
        self.states = 1
        R = [regs_of(o) for o in ops]
        if op.endswith(":") or op.startswith(".") or op == "":
            self.cls = "label"; self.states = 0
        elif op.startswith("v_mfma"):
            self.cls = "mfma"
            self.wr = R[0]; self.ab = R[1] + R[2]; self.srcc = R[3]; self.rd = self.ab + self.srcc
        elif op.startswith("v_permlane"):
            self.cls = "valu"
            self.wr = R[0] + R[1]; self.rd = R[0] + R[1]
        elif op.startswith("v_"):
            self.cls = "valu"
            self.wr = R[0]; self.rd = [r for x in R[1:] for r in x]
            if op.startswith("v_cndmask") and len(ops) == 3: self.rd.append(("vcc", 0))
            if op in ("v_fmac_f32", "v_mac_f32", "v_dot2c_f32_bf16"): self.rd += R[0]
        elif op.startswith("ds_read"):
            self.cls = "ds"; self.wr = R[0]; self.rd = R[1]
        elif op.startswith("ds_write"):
            self.cls = "ds"; self.rd = [r for x in R for r in x]
        elif op.startswith("buffer_load"):
            self.cls = "vmem"
            if self.lds:
                self.rd = [r for x in R for r in x] + [("m0", 0)]
            else:
                self.wr = R[0]; self.rd = [r for x in R[1:] for r in x]
        elif op.startswith("buffer_store") or op.startswith("buffer_atomic"):
            self.cls = "vmem"; self.rd = [r for x in R for r in x]
            if "x4" in op or "x3" in op: self.data = R[0]
            if op.startswith("buffer_atomic") and re.search(r"\bsc0\b", t): self.wr = R[0]
        elif op.startswith("global_load"):
            self.cls = "vmem"; self.wr = R[0]; self.rd = [r for x in R[1:] for r in x]
        elif op.startswith("global_store") or op.startswith("global_atomic"):
            self.cls = "vmem"; self.rd = [r for x in R for r in x]
            if "x4" in op or "x3" in op: self.data = R[1]
        elif op == "s_nop":
            self.cls = "nop"; self.states = int(ops[0]) + 1
        elif op.startswith("s_"):
            self.cls = "salu"
            if op.startswith(("s_cmp", "s_cbranch", "s_branch", "s_waitcnt", "s_barrier", "s_endpgm", "s_setpc", "s_sleep", "s_setprio", "s_bitcmp")):
                self.rd = [r for x in R for r in x]
            else:
                self.wr = R[0] if R else []; self.rd = [r for x in R[1:] for r in x]
                if "saveexec" in op: self.wr = self.wr + [("exec", 0)]
        else:
            raise ValueError("unknown instr: " + text)

def need(prev, cur):
    n = 0
    pw = set(prev.wr)
    if prev.cls == "mfma":
        p4 = "16x16x32" in prev.op
        dAB, dC, dW = (8, 6, 3) if p4 else (12, 10, 7)
        if cur.cls == "mfma":
            if pw & set(cur.ab): n = max(n, dAB)
            if pw & set(cur.srcc) and (list(cur.srcc) != list(prev.wr) or cur.op != prev.op): n = max(n, dC)
            if pw & set(cur.wr) and list(cur.wr) != list(prev.wr): n = max(n, dC)
        elif cur.cls in ("valu", "ds", "vmem"):
            if pw & (set(cur.rd) | set(cur.wr)): n = max(n, dAB)
            if cur.cls == "valu" and set(prev.srcc) & set(cur.wr): n = max(n, dW)
    elif prev.cls == "valu":
        if cur.cls == "mfma" and pw & set(cur.rd): n = max(n, 2)
        if cur.cls == "valu":
            if prev.op in TRANS and cur.op not in TRANS and pw & set(cur.rd): n = max(n, 1)
            if prev.op in TRANS and pw & set(cur.rd): n = max(n, 1)
            if (cur.op.startswith("v_permlane") or cur.op.endswith("_dpp")) and pw & set(cur.rd): n = max(n, 2)
            if prev.op.startswith("v_permlane") and pw & set(cur.rd): n = max(n, 2)
            if cur.op.startswith(("v_readfirstlane", "v_readlane")) and pw & set(cur.rd): n = max(n, 1)
            sw = {r for r in pw if r[0] in ("s", "vcc")}
            if sw & set(cur.rd): n = max(n, 2)
        if cur.cls == "vmem":
            sw = {r for r in pw if r[0] in ("s", "vcc")}
            if sw & set(cur.rd): n = max(n, 5)
        if cur.cls == "salu":
            sw = {r for r in pw if r[0] in ("s",)}
            if sw & set(cur.rd): n = max(n, 1)
    elif prev.cls == "salu":
        if ("m0", 0) in pw and cur.lds: n = max(n, 1)
    elif prev.cls == "vmem":
        if prev.data and set(prev.data) & set(cur.wr): n = max(n, 2)
    return n

def pad_hazards(lines):
    out = []
    res = []
    npad = 0
    for ln in lines:
        s = ln.strip()
        if not s or s.startswith(";"):
            res.append(ln); continue
        cur = Ins(s)
        if cur.cls != "label":
            dist = 0
            req = 0
            for p in reversed(out):
                if dist >= 13: break
                r = need(p, cur) - dist
                if r > req: req = r
                dist += p.states
            if req > 0:
                npad += 1
                while req > 0:
                    k = min(req, 8)
                    res.append(f"    s_nop {k-1}")
                    out.append(Ins(f"s_nop {k-1}"))
                    req -= k
        out.append(cur)
        if len(out) > 40: out = out[-20:]
        res.append(ln)
    return res, npad
```

```python
import sys, math, struct
from collections import defaultdict
sys.path.insert(0, "gen")
from asmlib import pad_hazards

NAME = "concat_heads__mha_block_cached__gqa_block_cached__near_ridge"
K1 = NAME + "_kernel"

OPT = dict(stamps=0, trace=0, st_pol="sc1", kv_pol="nt", w_pol="", x_pol="", out_pol="", D=6, wev=2, codepf=1,
           L1=4, PR=2.0, KA=8.5, KB=40.0, WO0=34.0, LWO=6, spw=1,
           pub="2,4", PUBD=4, NS=3, CLR=41.0, early=1, nodma=0, thr=1048576.0, tlo=2.0**-30, verbose=0, sleep=1, lst=1,
           X1=13, pfn=0, pfbit=3, pf_pol="", NP=0, PK=3.0, UP=2, j2=1, NB=8, wf=1, onorm=1, n0=4,
           p1slots="8,9,1,2,4,3,5,7,6,0,8,1,9,4,2,5,3,6,7,8,9", late=0, CLS=4, wow=-1.0, OS=1.0)
for a in sys.argv[2:]:
    k, v = a.split("=")
    OPT[k] = type(OPT[k])(v) if not isinstance(OPT[k], str) else v.replace("+", " ")

sW, sH, sB, sBLK = 4, 5, 6, 7
sK, sV, sWq, sWo, sX, sG, sFl, sDb, sOut = 8, 12, 16, 20, 24, 28, 32, 36, 40
sWoff = 48
sXoff, sWqoff, sWooff = 49, 50, 51
sStA, sStB = 52, 53
sC, sThr = 54, 55
sNP0, sSpin = 56, 57
sRet = 58
sTmp, sTmp2 = 60, 61
sTr = 64
sWsP = 80
sStamp = 82
sTlo = 98

vKr, vVr, vWor = 10, 14, 22
vKd, vVd, vWod = 26, 28, 30
vSt = 34
vL = 35
vT0 = 39
vAl = 43
vFl, vFp, vDbA, vDbV, vF, vFv = 45, 46, 47, 48, 49, 50
vDV = 51
vSel = 52
vRd, vRo = 56, 57
vUp = 58
vTr = 60
vSb = (64, 80)
vE, vNM, vP = 96, 112, 120
vWqd, vXd = 96, 100
vWr, vXr = 64, 88
vAcc = 64
vO = 128
aX, aPk, aQ = 0, 112, 160
NB = OPT["NB"]
def aFr(i):
    k = i % NB
    return 224 + 4*k if k < 8 else 112 + 4*(k - 8)
aSen = 0
FLAGS_OFF = 32 << 20
MF = "v_mfma_f32_16x16x32_bf16"

SCALE = math.log2(math.e) / 16.0
def f32hex(x):
    return "0x%08x" % struct.unpack("<I", struct.pack("<f", x))[0]

class Em:
    def __init__(self):
        self.L = []
        self.vmq = []
        self.ldsq = []
    def e(self, s, vm=None, lds=None):
        if isinstance(s, tuple):
            return self.e(*s)
        if callable(s):
            return s(self)
        self.L.append("    " + s)
        if vm is not None: self.vmq.append(vm)
        if lds is not None: self.ldsq.append(lds)
    def lab(self, s): self.L.append(s + ":")
    def c(self, s): self.L.append("    ; " + s)
    def wait_vm(self, tags):
        idx = [i for i, t in enumerate(self.vmq) if t in tags]
        if not idx: return
        n = len(self.vmq) - 1 - max(idx)
        self.e(f"s_waitcnt vmcnt({min(n, 63)})")
        self.vmq = self.vmq[max(idx) + 1:] if n <= 63 else self.vmq[-63:]
    def wait_lds(self, tags):
        idx = [i for i, t in enumerate(self.ldsq) if t in tags]
        if not idx: return
        n = len(self.ldsq) - 1 - max(idx)
        self.e(f"s_waitcnt lgkmcnt({min(n, 15)})")
        self.ldsq = self.ldsq[max(idx) + 1:] if n <= 15 else self.ldsq[-15:]

def stamp(a, idx):
    if OPT["stamps"]:
        a.e(f"s_memrealtime s[{sStamp+2*idx}:{sStamp+2*idx+1}]")

units = []
for c in range(7): units += [("X", c), ("W", c)]
units += [("W", c) for c in range(7, 14)]
kv = [("K", 0), ("K", 1)]
for t in range(0, 14):
    kv += [("V", t), ("K", t + 2)]
kv += [("V", 14), ("V", 15)]
units += kv
units += [("O", k) for k in range(14)]
NU = len(units)
uidx = {u: n for n, u in enumerate(units)}
HS = [[2*c, 2*c+1] for c in range(7)] + [[uidx[("W", c)]] for c in range(7, 14)]
if OPT["j2"]:
    HS[12] = [uidx[("W", 12)], uidx[("W", 13)]]; HS[13] = []
for n in range(21, NU): HS.append([n])
needed, consumed = {}, {}
for H, us in enumerate(HS):
    for n in us: consumed[n] = H; needed[n] = H
if OPT["j2"]: consumed[uidx[("W", 12)]] = consumed[uidx[("W", 13)]] = 13
NP = OPT["NP"]
assert NP <= 3
parked = {21 + i: aPk + 16*i for i in range(NP)}
P1SLOT = [int(x) for x in OPT["p1slots"].split(",")]
assert len(P1SLOT) == 21 and (NB <= 8 or NP == 0)
def fixed_slot(n):
    t, i = units[n]
    if t in "XW": return P1SLOT[n]
    if t == "K": return i & 3
    if t == "V": return 4 + (i & 3)
    if t == "O" and i < 2: return 8 + i
    return None
iss = []
for n in range(21):
    iss.append((-1 if n < OPT["n0"] else max(0, int(round(16*(n - OPT["L1"])/OPT["PR"]))), n))
rem = 32 - NP
for i in range(NP): iss.append((int(round(16*OPT["PK"])), 21 + i))
for i in range(rem):
    iss.append((int(round(16*(OPT["KA"] + (OPT["KB"] - OPT["KA"])*i/max(rem-1, 1)))), 21 + NP + i))
for k in range(14):
    pos = max(16*(46 + k - OPT["LWO"]), 16*(OPT["WO0"] + OPT["OS"]*k))
    iss.append((int(pos), 53 + k))
iss.sort(key=lambda x: x[0])

slot_of = {}
def dma(n):
    t, i = units[n]
    g = []
    pk = parked.get(n)
    for jj in range(4):
        ins = []
        if jj == 0:
            if pk is None: ins.append(f"s_add_u32 m0, s{sWoff}, {slot_of[n]*16384}")
            if t in "KV": ins.append(f"s_mov_b32 s{sTmp}, {i*16384}")
            elif t == "O" and (i & 1): ins.append(f"s_add_u32 s{sTmp}, s{sWooff}, {128*896}")
            elif t == "W" and i == 7: ins += [f"s_add_u32 s{sWq}, s{sWq}, 256", f"s_addc_u32 s{sWq+1}, s{sWq+1}, 0"]
        off = f" offset:{jj*1024}" if jj else ""
        dst = "" if pk is None else f"a[{pk+4*jj}:{pk+4*jj+3}], "
        lds = " lds" if pk is None else ""
        if t == "K": ld = f"buffer_load_dwordx4 {dst}v{vKd+(jj&1)}, s[{sK}:{sK+3}], s{sTmp} offen{off} {OPT['kv_pol']}{lds}"
        elif t == "V": ld = f"buffer_load_dwordx4 {dst}v{vVd+(jj&1)}, s[{sV}:{sV+3}], s{sTmp} offen{off} {OPT['kv_pol']}{lds}"
        elif t == "W": ld = f"buffer_load_dwordx4 v{vWqd+jj}, s[{sWq}:{sWq+3}], s{sWqoff} offen{off} {OPT['w_pol']} lds"
        elif t == "X": ld = f"buffer_load_dwordx4 v{vXd+jj}, s[{sX}:{sX+3}], s{sXoff} offen{off} {OPT['x_pol']} lds"
        elif t == "O":
            so = sTmp if (i & 1) else sWooff
            ld = f"buffer_load_dwordx4 v{vWod+jj}, s[{sWo}:{sWo+3}], s{so} offen{off} {OPT['w_pol']} lds"
        if not OPT["nodma"]: ins.append((ld, f"u{n}"))
        if jj == 3:
            if t == "W" and i < 13: ins += [f"s_add_u32 s{sWqoff}, s{sWqoff}, {64*8192}", f"s_cmp_eq_u32 s{sWqoff}, {448*8192}", f"s_cselect_b32 s{sWqoff}, 0, s{sWqoff}"]
            if t == "X" and i < 6: ins += [f"s_add_u32 s{sXoff}, s{sXoff}, 128", f"s_cmp_eq_u32 s{sXoff}, 896", f"s_cselect_b32 s{sXoff}, 0, s{sXoff}"]
            if t == "O" and (i & 1) and i < 13: ins += [f"s_add_u32 s{sWooff}, s{sWooff}, 128", f"s_cmp_eq_u32 s{sWooff}, 896", f"s_cselect_b32 s{sWooff}, 0, s{sWooff}"]
        g.append(ins)
    return g

GROUPS = {"K": (vKr, 4), "V": (vVr, 8), "O": (vWor, 4), "W": (vWr, 8), "X": (vXr, 2)}

class Item:
    def __init__(self, H, mf, reads):
        self.H = H; self.mf = mf; self.reads = reads
        self.first = False

def tr_reads(grp, ridx, n, off0, off1):
    return [("ds_read_b64_tr_b16", "a[{b}:{b1}]", grp, ridx, n, off0), ("ds_read_b64_tr_b16", "a[{b2}:{b3}]", grp, ridx, n, off1)]

def acc_of(base, T, u): return base + 16*(T >> 1) + 8*u + 4*(T & 1)
def q4(r, k="v"): return f"{k}[{r}:{r+3}]"

def cost(s):
    if isinstance(s, list): return sum(cost(x) for x in s)
    if callable(s): return getattr(s, "cost", 2)
    if isinstance(s, tuple): s = s[0]
    return 2 if s.startswith(("v_exp", "v_rcp")) else 1

def gen_k1(BASE):
    a = Em()
    e = a.e
    slot_of.clear()
    slot_free_at = [-10]*10
    slot_free_pos = [-10]*10
    last_slot = {"O": 8}
    def alloc(n, Hbar, p=0):
        t = units[n][0]
        s = fixed_slot(n)
        if s is not None and slot_free_pos[s] > p: return False
        if s is None:
            pend = {fixed_slot(m) for m in range(NU) if m not in slot_of}
            fr = [s for s in range(10) if slot_free_at[s] <= Hbar and s not in pend]
            if not fr: return False
            same = [s for s in fr if s // 4 == last_slot[t] // 4]
            s = (same or fr)[0]
        elif slot_free_at[s] > Hbar: return False
        slot_of[n] = s; last_slot[t] = s
        if t == "X": slot_free_pos[s] = 16*consumed[n] + 2
        else: slot_free_at[s] = consumed[n] + 2
        return True

    a.L.append(f".globl {K1}\n.p2align 8\n.type {K1},@function\n{K1}:")
    e("s_cmp_ge_u32 s2, 256")
    e("s_cbranch_scc1 L_k1_done")
    stamp(a, 0)
    e("s_and_b32 s3, s2, 7")
    e(f"s_lshr_b32 s{sBLK}, s3, 2")
    e(f"s_mul_i32 s{sTmp}, s{sBLK}, 40")
    e(f"s_add_u32 s44, s0, s{sTmp}")
    e("s_addc_u32 s45, s1, 0")
    e("s_load_dwordx2 s[64:65], s[44:45], 0")
    e("s_load_dwordx4 s[72:75], s[44:45], 24")
    e("s_load_dwordx4 s[68:71], s[44:45], 8")
    e("s_load_dwordx4 s[76:79], s[0:1], 80")
    e(f"s_load_dwordx2 s[{sWsP}:{sWsP+1}], s[0:1], 96")
    e("v_lshrrev_b32 v1, 6, v0")
    e("v_and_b32 v2, 63, v0")
    e("s_and_b32 s3, s3, 3")
    e(f"v_readfirstlane_b32 s{sW}, v1")
    e("s_lshl_b32 s3, s3, 2")
    e(f"s_lshr_b32 s{sB}, s2, 3")
    e(f"s_and_b32 s{sH}, s{sB}, 3")
    e(f"s_lshl_b32 s{sTmp}, s{sH}, 1")
    e(f"s_add_u32 s{sH}, s{sH}, s3")
    e(f"s_lshr_b32 s{sB}, s{sB}, 2")
    e(f"s_add_u32 s{sTmp}, s{sTmp}, s{sB}")
    for _ in range(2):
        e(f"s_cmp_ge_u32 s{sTmp}, 7"); e(f"s_cselect_b32 s3, 7, 0"); e(f"s_sub_u32 s{sTmp}, s{sTmp}, s3")
    e(f"s_lshl_b32 s{sXoff}, s{sTmp}, 7")
    e(f"s_lshl_b32 s{sWqoff}, s{sTmp}, 19")
    e("v_and_b32 v3, 15, v2")
    e("v_lshrrev_b32 v4, 4, v2")
    e(f"s_lshl_b32 s{sWoff}, s{sW}, 12")
    e("v_lshrrev_b32 v5, 3, v2")
    e("v_mul_u32_u24 v5, 896, v5")
    e(f"s_mul_i32 s3, s{sW}, {32*896}")
    e("v_and_b32 v6, 7, v2")
    e(f"v_add_u32 v{vWod}, s3, v5")
    e("v_xor_b32 v6, v6, v4")
    e(f"v_lshl_add_u32 v{vXd}, v6, 4, v{vWod}")
    e(f"v_xor_b32 v5, 64, v{vXd}")
    e(f"v_add_u32 v{vXd+1}, 6144, v5")
    e(f"v_add_u32 v{vXd+2}, {2*6144}, v{vXd}")
    e(f"v_add_u32 v{vXd+3}, {3*6144}, v5")
    e(f"s_lshl_b32 s3, s{sW}, 17")
    e(f"s_lshl_b32 s{sTmp}, s{sH}, 9")
    e(f"s_add_u32 s3, s3, s{sTmp}")
    e("v_lshlrev_b32 v6, 1, v4")
    e("v_xor_b32 v6, v6, v3")
    e("v_lshlrev_b32 v6, 4, v6")
    e("v_lshl_add_u32 v6, v4, 13, v6")
    e(f"v_add_u32 v{vWqd}, s3, v6")
    e(f"v_xor_b32 v7, 0x80, v{vWqd}")
    e(f"v_add_u32 v{vWqd+1}, {32768-1024}, v{vWqd}")
    e(f"v_add_u32 v{vWqd+2}, {2*(32768-1024)}, v7")
    e(f"v_add_u32 v{vWqd+3}, {3*(32768-1024)}, v7")
    for s, sz in ((sX, 114688), (sWq, 448*8192), (sK, 262144), (sV, 262144)):
        e(f"s_mov_b32 s{s+2}, {sz}"); e(f"s_mov_b32 s{s+3}, 0x00020000")
    e(f"s_mul_i32 s46, s{sB}, 114688")
    e(f"s_lshl_b32 s47, s{sB}, 4")
    e(f"s_add_u32 s47, s47, s{sH}")
    e(f"s_lshl_b32 s47, s47, 18")
    if OPT["spw"]:
        e("v_lshrrev_b32 v8, 2, v0")
        e("v_lshlrev_b32 v8, 13, v8")
        e("v_and_b32 v9, 3, v0")
        e("v_lshl_add_u32 v8, v9, 6, v8")
        e(f"v_add_u32 v8, s{sTmp}, v8")
    e("s_waitcnt lgkmcnt(0)")
    e(f"s_add_u32 s{sX}, s64, s46"); e(f"s_addc_u32 s{sX+1}, s65, 0")
    e(f"s_mov_b32 s{sWq}, s72"); e(f"s_mov_b32 s{sWq+1}, s73")
    e(f"s_add_u32 s{sK}, s68, s47"); e(f"s_addc_u32 s{sK+1}, s69, 0")
    e(f"s_add_u32 s{sV}, s70, s47"); e(f"s_addc_u32 s{sV+1}, s71, 0")
    if OPT["pfn"]:
        if OPT["pfbit"] >= 0:
            e(f"s_bitcmp1_b32 s2, {OPT['pfbit']}")
            e("s_cbranch_scc0 L_nopf")
        elif OPT["pfbit"] == -2:
            e("s_lshr_b32 s3, s2, 2"); e("s_xor_b32 s3, s3, s2"); e("s_bitcmp1_b32 s3, 3")
            e("s_cbranch_scc0 L_nopf")
        e("v_lshlrev_b32 v5, 7, v2")
        e(f"s_and_b32 s3, s{sW}, 1"); e("s_lshl_b32 s3, s3, 13")
        e("v_add_u32 v5, s3, v5")
        e(f"s_cmp_ge_u32 s{sW}, 2")
        e("s_cbranch_scc1 L_pf_hi")
        for part in range(2):
            for k in range(part, OPT["pfn"], 2):
                t, i = units[21 + k]
                sr = sK if t == "K" else sV
                e(f"s_mov_b32 s{sTmp2}, {i*16384}")
                e(f"buffer_load_dword a{aQ+2+k//2}, v5, s[{sr}:{sr+3}], s{sTmp2} offen {OPT['pf_pol']}")
            if part == 0:
                e("s_branch L_nopf")
                a.lab("L_pf_hi")
        a.lab("L_nopf")
    ip = [0]
    while iss[ip[0]][0] < 0:
        m = iss[ip[0]][1]; ip[0] += 1
        assert alloc(m, 0)
        if m == 1 and OPT["spw"]:
            e(f"buffer_load_dword a{aQ+1}, v8, s[{sWq}:{sWq+3}], s{sWqoff} offen offset:256 {OPT['w_pol']}", "pf")
        for g in dma(m):
            for s in g: e(s)
    if OPT["codepf"]:
        e("s_getpc_b64 s[62:63]")
        a.lab("L_pc")
        e("s_lshr_b32 s3, s2, 3")
        e("s_lshl_b32 s3, s3, 12")
        e("v_lshlrev_b32 v5, 4, v0")
        e("v_add_u32 v5, s3, v5")
        e("v_min_u32 v5, L_k1_end-L_pc-8, v5")
        e(f"global_load_dword a{aQ}, v5, s[62:63]", "pf")
    e("v_bfe_u32 v6, v2, 2, 2")
    e("v_and_b32 v7, 3, v2")
    e("v_bfe_u32 v5, v2, 2, 3")
    e("v_lshl_add_u32 v8, v4, 3, v6")
    e("v_lshlrev_b32 v9, 5, v5")
    e("v_lshl_add_u32 v9, v7, 3, v9")
    e("v_lshl_add_u32 v9, v8, 8, v9")
    e("v_lshl_add_u32 v8, v8, 8, v9")
    e(f"v_add_u32 v{vVr}, 0x10000, v8")
    for w in (2, 0, 1):
        e(f"v_add_u32 v{vWr+8*w}, {w*65536}, v9")
        for T in range(1, 8): e(f"v_xor_b32 v{vWr+8*w+T}, {T<<5}, v{vWr+8*w}")
    e("v_lshrrev_b32 v5, 1, v3"); e("v_xor_b32 v5, v5, v4"); e("v_lshlrev_b32 v5, 4, v5")
    e("v_lshl_add_u32 v5, v3, 7, v5")
    e(f"v_add_u32 v{vXr}, s{sWoff}, v5")
    e(f"v_xor_b32 v{vXr+1}, 64, v{vXr}")
    for w in (2, 1):
        e(f"v_add_u32 v{vXr+2*w}, {w*65536}, v{vXr}"); e(f"v_add_u32 v{vXr+2*w+1}, {w*65536}, v{vXr+1}")
    for s, sz in ((sWo, 229376), (sG, 16*114688), (sFl, 1024), (sDb, 256), (sOut, 128*1792)):
        e(f"s_mov_b32 s{s+2}, {sz}"); e(f"s_mov_b32 s{s+3}, 0x00020000")
    e(f"s_cmp_eq_u32 s{sB}, 7"); e(f"s_cselect_b32 s3, 0, s{sB}")
    e(f"s_lshl_b32 s{sWooff}, s3, 7")
    e(f"s_lshl_b32 s{sStA}, s3, 12")
    e(f"s_mov_b32 s{sNP0}, s{sStA}")
    e(f"s_mul_i32 s3, s{sH}, 229376")
    e(f"s_add_u32 s{sWo}, s74, s3"); e(f"s_addc_u32 s{sWo+1}, s75, 0")
    e(f"s_lshl_b32 s46, s{sBLK}, 3")
    e(f"s_add_u32 s46, s46, s{sB}")
    e(f"s_mul_i32 s3, s46, {16*114688}")
    e(f"s_add_u32 s{sG}, s{sWsP}, s3"); e(f"s_addc_u32 s{sG+1}, s{sWsP+1}, 0")
    e(f"s_lshl_b32 s3, s46, 10")
    e(f"s_add_u32 s3, s3, {FLAGS_OFF}")
    e(f"s_add_u32 s{sFl}, s{sWsP}, s3"); e(f"s_addc_u32 s{sFl+1}, s{sWsP+1}, 0")
    e(f"s_mov_b32 s{sDb}, s78"); e(f"s_mov_b32 s{sDb+1}, s79")
    e(f"s_mul_i32 s3, s{sB}, {128*1792}")
    e(f"s_add_u32 s{sOut}, s76, s3"); e(f"s_addc_u32 s{sOut+1}, s77, 0")
    e(f"s_mov_b32 s{sC}, {f32hex(SCALE)}")
    e(f"s_mov_b32 s{sThr}, {f32hex(OPT['thr'])}")
    e(f"s_mov_b32 s{sTlo}, {f32hex(OPT['tlo'])}")
    e(f"s_mov_b32 s{sSpin}, 0x8000")
    stamp(a, 1)
    late = []
    l = late.append
    l("v_lshrrev_b32 v5, 5, v2"); l("v_and_b32 v9, 31, v2")
    l("v_lshlrev_b32 v8, 9, v5"); l(f"v_add_u32 v8, s{sWoff}, v8")
    l(f"s_lshl_b32 s3, s{sW}, 2")
    l("v_xor_b32 v1, v9, v5"); l("v_xor_b32 v1, s3, v1")
    l(f"v_lshl_add_u32 v{vKd}, v1, 4, v8")
    l(f"v_xor_b32 v{vKd+1}, 32, v{vKd}")
    l(f"s_and_b32 s3, s{sW}, 1"); l("s_lshl_b32 s3, s3, 3")
    l("v_lshlrev_b32 v5, 1, v5"); l("v_xor_b32 v1, v9, v5"); l("v_xor_b32 v1, s3, v1")
    l(f"v_lshl_add_u32 v{vVd}, v1, 4, v8")
    l(f"v_xor_b32 v{vVd+1}, 64, v{vVd}")
    l(f"s_mul_i32 s3, s{sW}, 28672"); l(f"s_mul_i32 s44, s{sH}, 114688"); l("s_add_u32 s3, s3, s44")
    l("v_lshl_add_u32 v5, v3, 2, v4")
    l(f"v_lshl_add_u32 v{vSt}, v5, 4, s3")
    for T in range(1, 8): l(f"v_xor_b32 v{vVr+T}, {T<<5}, v{vVr}")
    if OPT["CLR"] < 14:
        for r in range(4): l(f"v_mov_b32 v{vE+8+r}, -1")
    if OPT["wow"] >= 0:
        l(f"s_mul_i32 s3, s{sB}, 28672"); l(f"v_lshl_add_u32 v{vE+12}, v0, 7, s3")
    l(f"s_lshl_b32 s3, s{sW}, 8"); l(f"s_lshl_b32 s44, s{sH}, 2"); l("s_add_u32 s3, s3, s44")
    l(f"v_lshl_add_u32 v{vFl}, v2, 12, s3")
    l("v_lshlrev_b32 v5, 2, v3")
    l(f"s_lshr_b32 s3, s{sH}, 2"); l("s_lshl_b32 s3, s3, 8")
    l(f"v_add_u32 v{vFp}, s3, v5")
    l("v_lshl_add_u32 v5, v4, 8, v5")
    l([f"s_or_b32 s3, s{sH}, s{sW}", "s_cmp_eq_u32 s3, 0", "s_cselect_b32 s45, 0, 0x10000"])
    l("v_add_u32 v5, s45, v5")
    l(f"v_mov_b32 v{vL}, 0"); l(f"v_mov_b32 v{vL+1}, 0")
    l((f"buffer_store_dword v{vL}, v5, s[{sFl}:{sFl+3}], 0 offen sc1", "clr"))
    l("s_lshl_b32 s44, s46, 2"); l("s_add_u32 s45, s45, s44")
    l(f"v_lshl_add_u32 v{vDbA}, v2, 12, s45")
    l(f"v_mov_b32 v{vDbV}, s44")
    l(f"v_mov_b32 v{vFv}, 1")
    l("v_lshrrev_b32 v5, 1, v4"); l("v_and_b32 v8, 1, v4"); l("v_lshl_add_u32 v5, v8, 1, v5")
    l("v_xor_b32 v5, v5, v3"); l("v_lshlrev_b32 v5, 4, v5")
    l("v_lshl_add_u32 v8, v6, 3, v7")
    l(f"v_lshl_add_u32 v{vKr}, v8, 9, v5")
    for s in range(1, 4): l(f"v_xor_b32 v{vKr+s}, {s<<6}, v{vKr}")
    l("v_lshrrev_b32 v5, 2, v2"); l("v_lshlrev_b32 v5, 7, v5")
    l("v_bfe_u32 v8, v2, 3, 2"); l("v_lshl_add_u32 v5, v8, 5, v5")
    l("v_lshl_add_u32 v5, v7, 3, v5")
    l(f"v_add_u32 v{vWor}, 0x20000, v5")
    for n in range(1, 4): l(f"v_xor_b32 v{vWor+n}, {n<<5}, v{vWor}")
    l("v_and_b32 v8, 7, v2"); l("v_lshlrev_b32 v9, 1, v4"); l("v_xor_b32 v8, v8, v9")
    l(f"v_lshl_add_u32 v{vWod}, v8, 4, v{vWod}")
    for jj in range(1, 4): l(f"v_add_u32 v{vWod+jj}, {jj*(7168-1024)}, v{vWod}")
    for r in range(8): l(f"v_mov_b32 v{vNM+r}, 0")
    if NP:
        l(f"v_lshl_add_u32 v{vUp}, v2, 4, s{sWoff}"); l(f"v_add_u32 v{vUp+1}, 0x10000, v{vUp}")
    l(f"s_lshr_b32 s44, s{sH}, 2"); l("s_mul_i32 s3, s44, 28672")
    l(f"s_and_b32 s45, s{sH}, 3"); l("s_lshl_b32 s45, s45, 10"); l("s_add_u32 s3, s3, s45")
    l(f"s_lshl_b32 s45, s{sW}, 8"); l("s_add_u32 s3, s3, s45")
    l("v_mul_u32_u24 v5, 114688, v4"); l("v_lshl_add_u32 v5, v3, 4, v5")
    l(f"v_add_u32 v{vRd}, s3, v5")
    l("s_lshl_b32 s3, s44, 5"); l(f"s_and_b32 s45, s{sH}, 1"); l("s_lshl_b32 s45, s45, 4"); l("s_add_u32 s3, s3, s45")
    l(f"s_lshl_b32 s45, s{sW}, 2"); l("s_add_u32 s3, s3, s45"); l("s_mul_i32 s3, s3, 1792")
    l(f"s_mul_i32 s45, s{sBLK}, 896"); l("s_add_u32 s3, s3, s45")
    l(f"s_and_b32 s45, s{sH}, 2"); l("s_lshl_b32 s45, s45, 5"); l("s_add_u32 s3, s3, s45")
    l("v_mul_u32_u24 v5, 1792, v6"); l("v_lshl_add_u32 v5, v7, 3, v5")
    l("v_and_b32 v8, 1, v4"); l("v_lshl_add_u32 v5, v8, 5, v5")
    l("v_lshrrev_b32 v8, 1, v4"); l("v_lshl_add_u32 v5, v8, 24, v5")
    l(f"v_add_u32 v{vRo}, s3, v5")
    l("v_and_b32 v5, 1, v2"); l("v_lshlrev_b32 v5, 4, v5"); l("v_mov_b32 v8, 0x3f80"); l("v_lshlrev_b32 v5, v5, v8")
    l("v_bfe_u32 v8, v2, 1, 2")
    for r in range(4):
        l(f"v_cmp_eq_u32 vcc, {r}, v8"); l("s_nop 0"); l(f"v_cndmask_b32 v{vSel+r}, 0, v5, vcc")

    items = []
    fill = defaultdict(list)
    def add(p, ins):
        fill[p].extend(ins if isinstance(ins, list) else [ins])
    load = defaultdict(float, BASE or {})
    def spread(p0, p1, ins):
        n = p1 - p0 + 1
        if not OPT["wf"]:
            for k, s in enumerate(ins): add(p0 + (k*n)//len(ins), [s])
            return
        if BASE is None: return
        tot = cost(ins)
        lo, hi = 0.0, 100.0
        for _ in range(40):
            L = (lo + hi)/2
            if sum(max(0.0, L - load[p]) for p in range(p0, p1 + 1)) >= tot: hi = L
            else: lo = L
        k, bud = 0, 1e-6
        for p in range(p0, p1 + 1):
            bud += max(0.0, hi - load[p])
            while k < len(ins) and (bud >= cost(ins[k])/2 or p == p1):
                add(p, [ins[k]]); load[p] += cost(ins[k]); bud -= cost(ins[k]); k += 1
    if OPT["late"]: spread(0, 16*6, late)
    else:
        for s in late:
            for x in (s if isinstance(s, list) else [s]): e(x)
    def p1item(H, i, T, kap):
        half, c = i // 7, i % 7
        n = uidx[("W", i)]
        mf = []
        for u in range(2):
            acc = acc_of(vO, 8*half + T, u)
            cin = "0" if (c == 0 and kap == 0) else q4(acc)
            mf.append(f"{MF} {q4(acc)}, a[{{b}}:{{b3}}], {q4(aX + 16*c + 8*kap + 4*u, 'a')}, {cin}")
        rd = tr_reads("W", T, n, kap*8192, kap*8192 + 1024)
        if i < 7 and T == 0:
            rd = [("ds_read_b128", q4(aX + 16*c + 8*kap + 4*u, "a"), "X", kap, uidx[("X", c)], u*2048) for u in range(2)] + rd
        items.append(Item(H, mf, rd))
    done_at = {}
    for H in range(14):
        if OPT["j2"] and H >= 12:
            for T in range(4*(H-12), 4*(H-12)+4):
                for i in (12, 13):
                    for kap in range(2): p1item(H, i, T, kap)
                done_at[4 + T//2] = len(items) - 1
        else:
            for T in range(8):
                for kap in range(2): p1item(H, H, T, kap)
                if H % 7 == 6: done_at[4*(H//7) + T//2] = len(items) - 1
    def qconv(s):
        t = []
        R = [vO + 16*s, vO + 16*s + 8]
        for r in R:
            for j in range(8): t.append(f"v_mul_f32 v{r+j}, s{sC}, v{r+j}")
        for r in R:
            for j in range(4): t.append(f"v_cvt_pk_bf16_f32 v{r+j}, v{r+2*j}, v{r+2*j+1}")
        for r in R:
            t += [f"v_permlane16_swap_b32 v{r}, v{r+2}", f"v_permlane16_swap_b32 v{r+1}, v{r+3}"]
        for u, r in enumerate(R):
            for j in range(4): t.append(f"v_accvgpr_write_b32 a{aQ+8*s+4*u+j}, v{r+j}")
        return t
    t = []
    for s in range(4): t += qconv(s)
    spread(7*16 + 2, 12*16 + 6, t)
    if OPT["j2"]:
        lim = [(done_at[4]+2, done_at[4]+12), (done_at[4]+13, done_at[6]+1), (done_at[6]+2, done_at[6]+11), (done_at[6]+12, 14*16+12)]
    else:
        lim = [(13*16+5+6*k, 13*16+10+6*k) for k in range(4)]
    for k, (p0, p1) in enumerate(lim):
        assert p0 >= done_at[4+k] + 2 and p1 < 14*16 + 2*(4+k) - 1, (k, p0, p1)
        spread(p0, p1, qconv(4 + k))

    def qk(H, n, S):
        for f in range(16):
            s, ee = f >> 1, f & 1
            mf = []
            for u in range(2):
                acc = S + 8*u + 4*ee
                cin = q4(vNM + 4*u) if s == 0 else q4(acc)
                mf.append(f"{MF} {q4(acc)}, a[{{b}}:{{b3}}], {q4(aQ + 8*s + 4*u, 'a')}, {cin}")
            items.append(Item(H, mf, [("ds_read_b128", "a[{b}:{b3}]", "K", s & 3, n, (s >> 2)*256 + ee*2048)]))
    def pv(H, n, P, first):
        for T in range(16):
            mf = []
            for u in range(2):
                acc = acc_of(vO, T, u)
                mf.append(f"{MF} {q4(acc)}, a[{{b}}:{{b3}}], {q4(P + 4*u)}, {'0' if first else q4(acc)}")
            o = (T >> 3)*256
            items.append(Item(H, mf, tr_reads("V", T & 7, n, o, o + 2048)))
    EORD = [0, 1, 2, 3, 8, 9, 10, 11, 4, 5, 6, 7, 12, 13, 14, 15]
    Pb = (vP, vE + 8)
    def softmax(S, par):
        Lo, Ln, P = vL + 2*par, vL + 2*(par ^ 1), Pb[par]
        L = []
        seen = set()
        def addk(i):
            u = EORD[i] >> 3
            src = Ln + u if u in seen else Lo + u
            seen.add(u)
            return f"v_add_f32 v{Ln+u}, v{src}, v{vE+(i&7)}"
        cv = lambda i: f"v_cvt_pk_bf16_f32 v{P+EORD[i]//2}, v{vE+(i&7)}, v{vE+((i+1)&7)}"
        for i, k in enumerate(EORD):
            L.append(f"v_exp_f32 v{vE+(i&7)}, v{S+k}")
            if i >= 1: L.append(addk(i-1))
            if i >= 2 and i % 2 == 0: L.append(cv(i-2))
        L += [addk(15), cv(14)]
        return L
    lblc = [0]
    def check(t):
        lblc[0] += 1
        k = lblc[0]
        Ln = vL + 2*((t & 1) ^ 1)
        nm = "L_fix0" if t == 0 else f"L_fixp{t & 1}"
        def f(a):
            a.e(f"v_max_f32 v{vT0}, v{Ln}, v{Ln+1}")
            if t == 0:
                a.e(f"v_min_f32 v{vT0+1}, v{Ln}, v{Ln+1}")
                a.e(f"v_cmp_lt_f32 vcc, s{sThr}, v{vT0}")
                a.e(f"v_cmp_gt_f32 s[44:45], s{sTlo}, v{vT0+1}")
                a.e("s_or_b64 s[44:45], s[44:45], vcc")
                a.e(f"s_cbranch_scc0 L_nm{k}")
            else:
                a.e(f"v_cmp_lt_f32 vcc, s{sThr}, v{vT0}")
                a.e(f"s_cbranch_vccz L_nm{k}")
            a.e(f"s_call_b64 s[{sRet}:{sRet+1}], {nm}")
            a.lab(f"L_nm{k}")
        f.after2 = (t == 15)
        f.cost = 3
        return f
    H = 14
    qk(H, 21, vSb[0]); H += 1
    qk(H, 22, vSb[1])
    add(16*H + 15, [check(0)])
    spread(16*H + 1, 16*H + 14, softmax(vSb[0], 0))
    H += 1
    for t in range(1, 16):
        n = uidx[("V", t-1)]
        assert consumed[n] == H
        pv(H, n, Pb[(t-1) & 1], t == 1)
        p0 = 16*H
        H += 1
        if t <= 14:
            n = uidx[("K", t+1)]
            assert consumed[n] == H
            qk(H, n, vSb[(t+1) & 1])
            H += 1
        add(16*H - 1, [check(t)])
        spread(p0 + 1, 16*H - 2, softmax(vSb[t & 1], t & 1))
    n = uidx[("V", 15)]
    assert consumed[n] == H and H == 45
    pv(H, n, Pb[1], False)
    L0, L1 = vL, vL + 1
    fin = [f"v_permlane32_swap_b32 v{L0}, v{L1}", f"v_add_f32 v{L0}, v{L0}, v{L1}", f"v_mov_b32 v{L1}, v{L0}",
           f"v_permlane16_swap_b32 v{L0}, v{L1}", f"v_add_f32 v{L0}, v{L0}, v{L1}", f"v_rcp_f32 v{vAl}, v{L0}",
           f"v_mov_b32 v{vAl+1}, v{vAl}", f"v_permlane32_swap_b32 v{vAl}, v{vAl+1}"]
    ON = OPT["onorm"]
    for k, s in enumerate(fin): add((45*16 + k//2) if ON else (47*16 - 12 + k), s)
    p = 16*H + (4 if ON else 3)
    for s in range(8):
        t = []
        R = [vO + 16*s, vO + 16*s + 8]
        if ON:
            for u, r in enumerate(R): t += [f"v_mul_f32 v{r+j}, v{r+j}, v{vAl+u}" for j in range(8)]
        for r in R: t += [f"v_cvt_pk_bf16_f32 v{r+j}, v{r+2*j}, v{r+2*j+1}" for j in range(4)]
        w = 5 if ON else 3
        assert p >= 16*H + 2*s + 3 and p + w - 1 <= 16*H + 16 + 4*s - 1
        spread(p, p + w - 1, t)
        p += w
    H += 1
    def epilogue(acc, so, q, j):
        u = q & 1
        g = [] if ON else [f"v_mul_f32 v{acc+r}, v{acc+r}, v{vAl+u}" for r in range(8)]
        g += [f"v_cvt_pk_bf16_f32 v{acc+jj}, v{acc+2*jj}, v{acc+2*jj+1}" for jj in range(4)]
        offs = f" offset:{q*1024}" if q else ""
        g.append((f"buffer_store_dwordx4 {q4(acc)}, v{vSt}, s[{sG}:{sG+3}], s{so} offen{offs} {OPT['st_pol']}", f"st{j}"))
        return g
    NS = OPT["NS"]
    pubs = [int(x) for x in OPT["pub"].split(",")]
    assert pubs[-1] == 7 - NS
    def publish(cnt):
        def f(a):
            a.wait_vm({f"st{j}" for j in range(cnt)} | {"sen"})
            a.e(f"v_mov_b32 v{vFv}, {cnt}")
            a.e(f"buffer_store_dword v{vFv}, v{vFl}, s[{sFl}:{sFl+3}], 0 offen sc1", "pub")
        return f
    late_pubs = []
    for j in range(7):
        so = sStA if j % 2 == 0 else sStB
        so2 = sStB if j % 2 == 0 else sStA
        A = vAcc + 32*(j & 1)
        for hf in range(2):
            n = uidx[("O", 2*j+hf)]
            assert consumed[n] == H
            order = [(nn, s4) for nn in range(4) for s4 in range(4)]
            if j == 0: order = [(nn, s4) for s4 in range(4) for nn in range(4)]
            for (nn, s4) in order:
                s = 4*hf + s4
                mf = []
                for u in range(2):
                    acc = acc_of(A, nn, u)
                    mf.append(f"{MF} {q4(acc)}, a[{{b}}:{{b3}}], {q4(vO + 16*s + 8*u)}, {'0' if s == 0 else q4(acc)}")
                items.append(Item(H, mf, tr_reads("O", nn, n, s4*4096, s4*4096 + 2048)))
            H += 1
        pend = 16*H
        g0 = epilogue(A, so, 0, j) + epilogue(A + 8, so, 1, j)
        g1 = epilogue(A + 16, so, 2, j) + epilogue(A + 24, so, 3, j)
        if j < 6:
            spread(pend - 7 if j else pend + 1, pend + 8, g0)
            spread(pend + 9, pend + 23, g1)
            add(pend - 8, [[f"s_add_u32 s{so2}, s{so}, 4096", f"s_cmp_eq_u32 s{so2}, 28672", f"s_cselect_b32 s{so2}, 0, s{so2}"]])
        else:
            spread(pend - 7, pend - 1, g0)
            tail_epi = g1
        if j + 1 in pubs:
            pp = pend + 25 + 16*OPT["PUBD"]
            if pp < 960 - 2: add(pp, [publish(j + 1)])
            else: late_pubs.append(j + 1)
    N = len(items)
    assert N == 960
    for p in range(N):
        if p % 16 == 0: items[p].first = True
    p = int(16*OPT["CLR"])
    for j in range(7 - NS, 7):
        add(p, [[f"s_add_u32 s44, s{sNP0}, {j*4096}", "s_cmp_ge_u32 s44, 28672", "s_cselect_b32 s45, 28672, 0", "s_sub_u32 s44, s44, s45"]])
        for q in range(4):
            offs = f" offset:{q*1024}" if q else ""
            add(p + 1 + q*OPT["CLS"], [(f"buffer_store_dwordx4 {q4(vE + 8) if OPT['CLR'] < 14 else q4(aSen, 'a')}, v{vSt}, s[{sG}:{sG+3}], s44 offen{offs} {OPT['st_pol']}", "sen")])
        p += 4*OPT["CLS"]
    assert p < 47*16
    if OPT["CLR"] >= 14: spread(14*16 + 12, 15*16, [f"v_accvgpr_write_b32 a{aSen+r}, -1" for r in range(4)])
    else: assert p < 15*16 and not OPT["late"]
    if OPT["wow"] >= 0:
        add(int(16*OPT["wow"]), [(f"buffer_load_dword a{aQ+63}, v{vE+12}, s[{sWo}:{sWo+3}], 0 offen", "pf")])
    def lead(a):
        a.wait_vm({"clr"})
        a.e(f"buffer_store_dword v{vFv}, v{vDbA}, s[{sDb}:{sDb+3}], 0 offen sc1", "sig")
    add(16*13 + 5, [lead])
    add(16*39 + 5, [(f"buffer_load_dword v{vF}, v{vDbV}, s[{sDb}:{sDb+3}], 0 offen sc1", "chk")])
    def chk(a):
        a.wait_vm({"chk"})
        a.e(f"v_cmp_eq_u32 vcc, 0, v{vF}")
        a.e("s_cbranch_vccz L_chk_ok")
        a.e(f"s_call_b64 s[{sRet}:{sRet+1}], L_chk_wait")
        a.lab("L_chk_ok")
    add(16*47 + 3, [chk])
    if OPT["early"]:
        add(960 - 40, [(f"buffer_load_dword v{vF}, v{vFp}, s[{sFl}:{sFl+3}], 0 offen sc1", "poll")])
    if OPT["stamps"]:
        add(14*16 - 1, [lambda a: stamp(a, 3)])
        add(46*16 - 1, [lambda a: stamp(a, 4)])

    D, WEV = OPT["D"], OPT["wev"]
    window = {"K": 0, "V": 1, "O": 2}
    uses = defaultdict(list)
    for i, it in enumerate(items):
        for r in it.reads: uses[r[2]].append((i, r[4]))
    soft_dma = []
    soft_up = []
    soft_adr = []
    log = []
    cur = []
    def put(s): cur.append(s)
    def set_window(g, w):
        if window[g] == w: return
        base, cnt = GROUPS[g]
        d = (w - window[g]) * 65536
        window[g] = w
        soft_adr.extend((g, k, f"v_add_u32 v{base+k}, {d & 0xffffffff}, v{base+k}") for k in range(cnt))
    def flush_adr(g, k):
        rest = []
        for (gg, kk, s) in soft_adr:
            if gg == g and kk == k: put(s)
            else: rest.append((gg, kk, s))
        soft_adr[:] = rest
    upos = {g: 0 for g in GROUPS}
    rp = [0]
    hbar = [-1]
    issued = set(m for (pos, m) in iss[:ip[0]])
    upq = sorted(parked)
    unparked = set()
    def next_unit(p, force=False):
        if ip[0] >= len(iss): return False
        pos, m = iss[ip[0]]
        if pos > p and not force: return False
        if m not in parked:
            if not alloc(m, hbar[0], p):
                assert not force, ("no slot", m, p)
                if ip[0] + 1 >= len(iss): return False
                pos2, m2 = iss[ip[0] + 1]
                if not (units[m][0] in "KV" and units[m2][0] in "KV" and alloc(m2, hbar[0], p)): return False
                iss[ip[0]], iss[ip[0] + 1] = (pos, m2), (pos2, m)
                m = m2
        ip[0] += 1
        issued.add(m)
        log.append((p, "iss", units[m], slot_of.get(m)))
        soft_dma.extend(dma(m))
        return True
    def next_unpark(p, force=False):
        if not upq: return False
        m = upq[0]
        if not force and (p < 16*(needed[m] - OPT["UP"]) - D or m not in issued or soft_dma_has(m)): return False
        if not alloc(m, hbar[0], p):
            assert not force, ("no slot (unpark)", m, p)
            return False
        upq.pop(0)
        s = slot_of[m]
        log.append((p, "unp", units[m], s))
        for jj in range(4):
            pk = parked[m] + 4*jj
            ins = []
            if jj == 0: ins.append(lambda a, m=m: a.wait_vm({f"u{m}"}))
            ins.append((f"ds_write_b128 v{vUp + s//4}, a[{pk}:{pk+3}] offset:{(s%4)*16384 + jj*1024}", None, f"w{m}"))
            soft_up.append(ins)
        unparked.add(m)
        return True
    def soft_dma_has(m):
        return any(isinstance(s, tuple) and s[1] == f"u{m}" for g in soft_dma for s in g)
    def issue(i, p):
        it = items[i]
        if it.first:
            Hh = it.H
            for n in HS[Hh]:
                while n not in issued: next_unit(p, True)
                if soft_dma_has(n):
                    for g in soft_dma: put(g)
                    soft_dma.clear()
                if n in parked:
                    while n not in unparked: next_unpark(p, True)
                    for g in soft_up: put(g)
                    soft_up.clear()
            def ev(a, Hh=Hh):
                a.c(f"event H={Hh} needs {[units[n] for n in HS[Hh]]}")
                if OPT["trace"]:
                    if Hh > 0:
                        a.e(f"v_writelane_b32 v{vTr}, s{sTr+4*((Hh-1)&1)}, {Hh-1}")
                        a.e(f"v_writelane_b32 v{vTr+1}, s{sTr+2+4*((Hh-1)&1)}, {Hh-1}")
                    a.e(f"{'s_memtime' if OPT['trace'] == 2 else 's_memrealtime'} s[{sTr+4*(Hh&1)}:{sTr+1+4*(Hh&1)}]")
                a.wait_vm({f"u{n}" for n in HS[Hh] if n not in parked})
                a.wait_lds({f"w{n}" for n in HS[Hh]})
                a.e("s_barrier")
                if OPT["trace"]:
                    a.e(f"s_memrealtime s[{sTr+2+4*(Hh&1)}:{sTr+3+4*(Hh&1)}]")
                if Hh == 0: stamp(a, 2)
            ev.cost = 2 + (4 if OPT["trace"] else 0)
            put(ev)
            hbar[0] = Hh
        b = aFr(i)
        for (op, dst, g, ridx, n, inoff) in it.reads:
            slot = slot_of[n]
            if g in "WX":
                put((f"{op} {dst.format(b=b, b1=b+1, b2=b+2, b3=b+3)}, v{GROUPS[g][0]+GROUPS[g][1]*(slot//4)+ridx} offset:{(slot % 4)*16384 + inoff}", None, i))
                continue
            set_window(g, slot // 4)
            flush_adr(g, ridx)
            imm = (slot % 4)*16384 + inoff
            put((f"{op} {dst.format(b=b, b1=b+1, b2=b+2, b3=b+3)}, v{GROUPS[g][0]+ridx} offset:{imm}", None, i))
            upos[g] += 1
            if upos[g] < len(uses[g]):
                ni, nn = uses[g][upos[g]]
                if nn != n and nn in slot_of and ni > i + 2:
                    set_window(g, slot_of[nn]//4)
    def adv(limit, p):
        while rp[0] < N and rp[0] <= limit:
            issue(rp[0], p); rp[0] += 1
    def emit(s):
        if isinstance(s, list):
            for x in s: e(x)
        else: e(s)
    loads_out = {}
    est = [0]
    adv(D - 1, -1)
    for s in cur: emit(s)
    for p in range(N):
        cur.clear()
        if p % WEV == 0: a.wait_lds(set(range(p, p + WEV)))
        b = aFr(p)
        adv(p + D, p)
        SR = list(cur); cur.clear()
        SF = list(fill.get(p, []))
        if not soft_up: next_unpark(p)
        if not soft_dma: next_unit(p)
        if soft_dma: put(soft_dma.pop(0))
        if soft_up: put(soft_up.pop(0))
        SM = list(cur)
        if soft_adr: SR.append(soft_adr.pop(0)[2])
        wt = 1 if (p + 1) % WEV == 0 else 0
        tot = cost(SR) + cost(SF) + cost(SM) + wt
        loads_out[p] = tot
        evi = [k for k, x in enumerate(SR) if callable(x)]
        a2 = [k for k, x in enumerate(SF) if getattr(x, "after2", False)]
        best = None
        for kr in range(len(SR) + 1):
            for kf in range((a2[0] if a2 else len(SF)) + 1):
                for km in range(len(SM) + 1):
                    if km and evi and kr <= evi[-1]: continue
                    c1 = cost(SR[:kr]) + cost(SF[:kf]) + cost(SM[:km])
                    key = (max(2, c1) + max(2, tot - c1), abs(2*c1 - tot), -kr)
                    if best is None or key < best[0]: best = (key, kr, kf, km)
        _, kr, kf, km = best
        est[0] += best[0][0]*4 + 16
        if p % 16 == 15: est.append(est[0]); est[0] = 0
        e(items[p].mf[0].format(b=b, b3=b+3))
        for s in SR[:kr] + SF[:kf] + SM[:km]: emit(s)
        e(items[p].mf[1].format(b=b, b3=b+3))
        for s in SR[kr:] + SF[kf:] + SM[km:]: emit(s)
    assert not soft_dma and not soft_up and ip[0] == len(iss)
    if BASE is None: return loads_out
    sys.stderr.write(f"est cycles: {' '.join(map(str, est[1:]))} total {sum(est)}\n")
    for s in tail_epi: e(s)
    if OPT["verbose"]:
        for (p, w, u, s) in log:
            sys.stderr.write(f"  {p/16:6.2f} {w} {u} slot {s} (need {needed[uidx[u]]})\n")
    stamp(a, 5)
    vD = 192
    def dreg(j, k):
        return q4(16*j + 4*k, "a") if j < 7 - NS else q4(vO + 16*(j - (7 - NS)) + 4*k)
    for j in range(7):
        e(f"s_add_u32 s{sTmp}, s{sNP0}, {j*4096}")
        e(f"s_cmp_ge_u32 s{sTmp}, 28672"); e(f"s_cselect_b32 s3, 28672, 0"); e(f"s_sub_u32 s{8+j}, s{sTmp}, s3")
        e(f"s_lshr_b32 s{16+j}, s{8+j}, 5")
    for k in range(1, 4): e(f"v_add_u32 v{vKr+k}, {k*4*114688}, v{vRd}")
    def loads(j):
        for k in range(4):
            e(f"buffer_load_dwordx4 {dreg(j, k)}, v{vKr+k if k else vRd}, s[{sG}:{sG+3}], s{8+j} offen sc1", f"r{j}")
    if OPT["early"]: a.wait_vm({"poll"})
    else: e(f"v_mov_b32 v{vF}, 0")
    for c in late_pubs: publish(c)(a)
    stamp(a, 6)
    prev = 0
    for hi in pubs:
        e(f"v_cmp_gt_u32 vcc, {hi}, v{vF}")
        e(f"s_cbranch_vccz L_go{hi}")
        e(f"s_mov_b32 s45, {hi}")
        e(f"s_call_b64 s[{sRet}:{sRet+1}], L_poll")
        a.lab(f"L_go{hi}")
        for j in range(prev, hi): loads(j)
        prev = hi
    def red(j):
        d = vD + 4*j
        for k in range(4):
            e(f"{MF} {q4(d)}, {q4(vSel)}, {dreg(j, k)}, {'0' if k == 0 else q4(d)}")
    def fin(j):
        d = vD + 4*j
        e(f"v_cvt_pk_bf16_f32 v{d}, v{d}, v{d+1}")
        e(f"v_cvt_pk_bf16_f32 v{d+1}, v{d+2}, v{d+3}")
        e(f"buffer_store_dwordx2 v[{d}:{d+1}], v{vRo}, s[{sOut}:{sOut+3}], s{16+j} offen {OPT['out_pol']}")
    for j in range(7 - NS, 7): loads(j)
    e(f"s_waitcnt vmcnt({4*NS})")
    for j in range(7 - NS): red(j)
    for j in range(7 - NS): fin(j)
    e(f"s_waitcnt vmcnt({7 - NS})")
    for j in range(7 - NS, 7):
        a.lab(f"L_sen{j}")
        r = vO + 16*(j - (7 - NS))
        e(f"v_max3_u32 v{vT0}, v{r}, v{r+1}, v{r+2}")
        e(f"v_max3_u32 v{vT0+1}, v{r+3}, v{r+4}, v{r+5}")
        for k in range(6, 16, 4):
            e(f"v_max3_u32 v{vT0}, v{vT0}, v{r+k}, v{r+k+1}")
            if k + 2 < 16: e(f"v_max3_u32 v{vT0+1}, v{vT0+1}, v{r+k+2}, v{r+k+3}")
        e(f"v_max_u32 v{vT0}, v{vT0}, v{vT0+1}")
        e(f"v_cmp_eq_u32 vcc, -1, v{vT0}")
        e(f"s_cbranch_vccz L_sok{j}")
        e(f"s_sub_u32 s{sSpin}, s{sSpin}, 1")
        e(f"s_cbranch_scc1 L_sto{j}")
        for jj in range(j, 7): loads(jj)
        e("s_waitcnt vmcnt(0)")
        e(f"s_branch L_sen{j}")
        a.lab(f"L_sto{j}")
        e(f"s_mov_b32 s{sSpin}, 0")
        a.lab(f"L_sok{j}")
        red(j); fin(j)
    if OPT["stamps"]:
        e("s_waitcnt vmcnt(0)")
        stamp(a, 7)
        e("s_waitcnt lgkmcnt(0)")
        e(f"s_add_u32 s32, s{sWsP}, 0x4000000"); e(f"s_addc_u32 s33, s{sWsP+1}, 0"); e("s_mov_b32 s34, 0x100000"); e("s_mov_b32 s35, 0x00020000")
        e("s_lshl_b32 s3, s2, 6")
        e("v_mov_b32 v1, s3")
        for k in range(8):
            e(f"v_mov_b32 v{2+k}, s{sStamp+2*k}")
        if OPT["trace"]:
            e(f"v_writelane_b32 v{vTr}, s{sTr+4}, 59")
            e(f"v_writelane_b32 v{vTr+1}, s{sTr+6}, 59")
            e("s_lshl_b32 s3, s2, 11")
            e("s_add_u32 s3, s3, 0x10000")
            e("v_lshlrev_b32 v10, 3, v0")
            e("v_add_u32 v10, s3, v10")
            e(f"buffer_store_dwordx2 v[{vTr}:{vTr+1}], v10, s[32:35], 0 offen")
        e("v_cmp_eq_u32 vcc, 0, v0")
        e("s_and_saveexec_b64 s[36:37], vcc")
        e("s_cbranch_execz L_k1_done")
        e("buffer_store_dwordx4 v[2:5], v1, s[32:35], 0 offen")
        e("buffer_store_dwordx4 v[6:9], v1, s[32:35], 0 offen offset:16")
        e("s_waitcnt vmcnt(0)")
    a.lab("L_k1_done")
    e("s_endpgm")
    a.lab("L_poll")
    e(f"buffer_load_dword v{vF}, v{vFp}, s[{sFl}:{sFl+3}], 0 offen sc1")
    e(f"s_sub_u32 s{sSpin}, s{sSpin}, 1")
    e("s_cbranch_scc1 L_poll_to")
    e("s_waitcnt vmcnt(0)")
    e(f"v_cmp_gt_u32 vcc, s45, v{vF}")
    e("s_cbranch_vccz L_poll_ret")
    if OPT["sleep"]: e(f"s_sleep {OPT['sleep']}")
    e("s_branch L_poll")
    a.lab("L_poll_to")
    e(f"s_mov_b32 s{sSpin}, 0")
    e("s_waitcnt vmcnt(0)")
    a.lab("L_poll_ret")
    e(f"s_setpc_b64 s[{sRet}:{sRet+1}]")
    a.lab("L_chk_wait")
    e(f"buffer_load_dword v{vF}, v{vDbV}, s[{sDb}:{sDb+3}], 0 offen sc1")
    e(f"s_sub_u32 s{sSpin}, s{sSpin}, 1")
    e("s_cbranch_scc1 L_poll_to")
    e("s_waitcnt vmcnt(0)")
    e(f"v_cmp_eq_u32 vcc, 0, v{vF}")
    e("s_cbranch_vccz L_poll_ret")
    e("s_sleep 4")
    e("s_branch L_chk_wait")
    for (nm, par, first) in (("L_fix0", 0, True), ("L_fixp0", 0, False), ("L_fixp1", 1, False)):
        S, S2 = vSb[par], vSb[par ^ 1]
        Lo = vL + 2*par
        a.lab(nm)
        e("s_nop 7")
        for u in range(2):
            T, T2, r = vT0 + u, vT0 + 2, S + 8*u
            e(f"v_max3_f32 v{T}, v{r}, v{r+1}, v{r+2}")
            e(f"v_max3_f32 v{T}, v{T}, v{r+3}, v{r+4}")
            e(f"v_max3_f32 v{T}, v{T}, v{r+5}, v{r+6}")
            e(f"v_max_f32 v{T}, v{T}, v{r+7}")
            e(f"v_mov_b32 v{T2}, v{T}")
            e(f"v_permlane32_swap_b32 v{T}, v{T2}")
            e(f"v_max_f32 v{T}, v{T}, v{T2}")
            e(f"v_mov_b32 v{T2}, v{T}")
            e(f"v_permlane16_swap_b32 v{T}, v{T2}")
            e(f"v_max_f32 v{T}, v{T}, v{T2}")
            if not first:
                e(f"v_max_f32 v{T}, 0, v{T}")
                e(f"v_exp_f32 v{vAl+u}, -v{T}")
            for k in range(8):
                e(f"v_sub_f32 v{r+k}, v{r+k}, v{T}")
                e(f"v_sub_f32 v{S2+8*u+k}, v{S2+8*u+k}, v{T}")
            for k in range(4): e(f"v_sub_f32 v{vNM+4*u+k}, v{vNM+4*u+k}, v{T}")
            if not first: e(f"v_mul_f32 v{Lo+u}, v{Lo+u}, v{vAl+u}")
        for s in softmax(S, par): e(s)
        if not first:
            for r in range(128):
                e(f"v_mul_f32 v{vO+r}, v{vO+r}, v{vAl + ((r >> 3) & 1)}")
        e("s_nop 3")
        e(f"s_setpc_b64 s[{sRet}:{sRet+1}]")
    a.lab("L_k1_end")
    lines = "\n".join(a.L).split("\n")
    lines, npad = pad_hazards(lines)
    sys.stderr.write(f"k1: {len(lines)} lines, {npad} hazard pads\n")
    return "\n".join(lines) + "\n"

def desc(name, vgpr, acc, sgpr=102):
    return f""".p2align 6
.amdhsa_kernel {name}
  .amdhsa_next_free_vgpr {vgpr}
  .amdhsa_next_free_sgpr {sgpr}
  .amdhsa_accum_offset {acc}
  .amdhsa_group_segment_fixed_size 0
  .amdhsa_kernarg_size 104
  .amdhsa_user_sgpr_count 2
  .amdhsa_user_sgpr_kernarg_segment_ptr 1
  .amdhsa_system_sgpr_workgroup_id_x 1
.end_amdhsa_kernel
"""

def main():
    ref = open(f"cdna_kernels/{NAME}.s.ref").read().splitlines()
    hdr = [l for l in ref if l.startswith(";") and "@launch" not in l and "Override launch" not in l and "grid=ceil" not in l]
    out = "\n".join(hdr) + "\n"
    if OPT["lst"]:
        out += f"; @launch kernel={K1} grid=(256,1,1) block=(256,1,1) lds=163840\n"
    else:
        out += f"; @launch grid=(256,1,1) block=(256,1,1) lds=163840\n"
    out += '.amdgcn_target "amdgcn-amd-amdhsa--gfx950"\n.text\n'
    out += gen_k1(gen_k1(None))
    out += '.section .rodata,"a"\n'
    out += desc(K1, 512, 256)
    open(sys.argv[1], "w").write(out)

main()
```

```python
import sys, math, struct
from collections import defaultdict
sys.path.insert(0, "gen")
from asmlib import pad_hazards

NAME = "concat_heads__mha_block_cached__gqa_block_cached__near_ridge"
K1 = NAME + "_kernel"

OPT = dict(stamps=0, trace=0, st_pol="sc1", kv_pol="nt", w_pol="", x_pol="", out_pol="", D=6, wev=2, codepf=1,
           L1=4, PR=2.0, KA=8.5, KB=40.0, WO0=34.0, LWO=6, spw=1,
           pub="2,4", PUBD=4, NS=3, CLR=41.0, early=1, nodma=0, thr=1048576.0, tlo=2.0**-30, verbose=0, sleep=1, lst=1,
           X1=13, pfn=0, pfbit=3, pf_pol="", NP=0, PK=3.0, UP=2, j2=1, NB=8, wf=1, onorm=1, n0=4,
           p1slots="8,9,1,2,4,3,5,7,6,0,8,1,9,4,2,5,3,6,7,8,9", late=0, CLS=4, wow=-1.0, OS=1.0, OI=-1, o_pol="", o0_pol="", MF=0, MFE=1, dsp=1, dsp1=1, dph=0)
for a in sys.argv[2:]:
    k, v = a.split("=")
    OPT[k] = type(OPT[k])(v) if not isinstance(OPT[k], str) else v.replace("+", " ")

sW, sH, sB, sBLK = 4, 5, 6, 7
sK, sV, sWq, sWo, sX, sG, sFl, sDb, sOut = 8, 12, 16, 20, 24, 28, 32, 36, 40
sWoff = 48
sXoff, sWqoff, sWooff = 49, 50, 51
sStA, sStB = 52, 53
sC, sThr = 54, 55
sNP0, sSpin = 56, 57
sRet = 58
sTmp, sTmp2 = 60, 61
sTr = 64
sWsP = 80
sStamp = 82
sTlo = 98

vKr, vVr, vWor = 10, 14, 22
vKd, vVd, vWod = 26, 28, 30
vSt = 34
vL = 35
vT0 = 39
vAl = 43
vFl, vFp, vDbA, vDbV, vF, vFv = 45, 46, 47, 48, 49, 50
vDV = 51
vSel = 52
vRd, vRo = 56, 57
vUp = 58
vTr = 60
vSb = (64, 80)
vE, vNM, vP = 96, 112, 120
vWqd, vXd = 96, 100
vWr, vXr = 64, 88
vAcc = 64
vO = 128
aX, aPk, aQ = 0, 112, 160
NB = OPT["NB"]
def aFr(i):
    k = i % NB
    return 224 + 4*k if k < 8 else 112 + 4*(k - 8)
aSen = 0
FLAGS_OFF = 32 << 20
MF = "v_mfma_f32_16x16x32_bf16"

SCALE = math.log2(math.e) / 16.0
def f32hex(x):
    return "0x%08x" % struct.unpack("<I", struct.pack("<f", x))[0]

class Em:
    def __init__(self):
        self.L = []
        self.vmq = []
        self.ldsq = []
    def e(self, s, vm=None, lds=None):
        if isinstance(s, tuple):
            return self.e(*s)
        if callable(s):
            return s(self)
        self.L.append("    " + s)
        if vm is not None: self.vmq.append(vm)
        if lds is not None: self.ldsq.append(lds)
    def lab(self, s): self.L.append(s + ":")
    def c(self, s): self.L.append("    ; " + s)
    def wait_vm(self, tags):
        idx = [i for i, t in enumerate(self.vmq) if t in tags]
        if not idx: return
        n = len(self.vmq) - 1 - max(idx)
        self.e(f"s_waitcnt vmcnt({min(n, 63)})")
        self.vmq = self.vmq[max(idx) + 1:] if n <= 63 else self.vmq[-63:]
    def wait_lds(self, tags):
        idx = [i for i, t in enumerate(self.ldsq) if t in tags]
        if not idx: return
        n = len(self.ldsq) - 1 - max(idx)
        self.e(f"s_waitcnt lgkmcnt({min(n, 15)})")
        self.ldsq = self.ldsq[max(idx) + 1:] if n <= 15 else self.ldsq[-15:]

def stamp(a, idx):
    if OPT["stamps"]:
        a.e(f"s_memrealtime s[{sStamp+2*idx}:{sStamp+2*idx+1}]")

units = []
for c in range(7): units += [("X", c), ("W", c)]
units += [("W", c) for c in range(7, 14)]
kv = [("K", 0), ("K", 1)]
for t in range(0, 14):
    kv += [("V", t), ("K", t + 2)]
kv += [("V", 14), ("V", 15)]
units += kv
units += [("O", k) for k in range(14)]
NU = len(units)
uidx = {u: n for n, u in enumerate(units)}
HS = [[2*c, 2*c+1] for c in range(7)] + [[uidx[("W", c)]] for c in range(7, 14)]
if OPT["j2"]:
    HS[12] = [uidx[("W", 12)], uidx[("W", 13)]]; HS[13] = []
for n in range(21, NU): HS.append([n])
needed, consumed = {}, {}
for H, us in enumerate(HS):
    for n in us: consumed[n] = H; needed[n] = H
if OPT["j2"]: consumed[uidx[("W", 12)]] = consumed[uidx[("W", 13)]] = 13
NP = OPT["NP"]
assert NP <= 3
parked = {21 + i: aPk + 16*i for i in range(NP)}
P1SLOT = [int(x) for x in OPT["p1slots"].split(",")]
assert len(P1SLOT) == 21 and (NB <= 8 or NP == 0)
def fixed_slot(n):
    t, i = units[n]
    if t in "XW": return P1SLOT[n]
    if t == "K": return i & 3
    if t == "V": return 4 + (i & 3)
    if t == "O" and i < 2: return 8 + i
    return None
iss = []
for n in range(21):
    iss.append((-1 if n < OPT["n0"] else max(0, int(round(16*(n - OPT["L1"])/OPT["PR"]))), n))
for i in range(NP): iss.append((int(round(16*OPT["PK"])), 21 + i))
stream = list(range(21 + NP, 53))
if OPT["OI"] >= 0:
    stream.insert(OPT["OI"], 53); stream.insert(OPT["OI"] + 2, 54)
for i, n in enumerate(stream):
    iss.append((int(round(16*(OPT["KA"] + (OPT["KB"] - OPT["KA"])*i/(len(stream) - 1)))), n))
for k in range(2 if OPT["OI"] >= 0 else 0, 14):
    pos = max(16*(46 + k - OPT["LWO"]), 16*(OPT["WO0"] + OPT["OS"]*k))
    iss.append((int(pos), 53 + k))
iss.sort(key=lambda x: x[0])

slot_of = {}
def dma(n):
    t, i = units[n]
    g = []
    pk = parked.get(n)
    for jj in range(4):
        ins = []
        if jj == 0:
            if pk is None: ins.append(f"s_add_u32 m0, s{sWoff}, {slot_of[n]*16384}")
            if t in "KV": ins.append(f"s_mov_b32 s{sTmp}, {i*16384}")
            elif t == "O" and (i & 1): ins.append(f"s_add_u32 s{sTmp}, s{sWooff}, {128*896}")
            elif t == "W" and i == 7: ins += [f"s_add_u32 s{sWq}, s{sWq}, 256", f"s_addc_u32 s{sWq+1}, s{sWq+1}, 0"]
        off = f" offset:{jj*1024}" if jj else ""
        dst = "" if pk is None else f"a[{pk+4*jj}:{pk+4*jj+3}], "
        lds = " lds" if pk is None else ""
        if t == "K": ld = f"buffer_load_dwordx4 {dst}v{vKd+(jj&1)}, s[{sK}:{sK+3}], s{sTmp} offen{off} {OPT['kv_pol']}{lds}"
        elif t == "V": ld = f"buffer_load_dwordx4 {dst}v{vVd+(jj&1)}, s[{sV}:{sV+3}], s{sTmp} offen{off} {OPT['kv_pol']}{lds}"
        elif t == "W": ld = f"buffer_load_dwordx4 v{vWqd+jj}, s[{sWq}:{sWq+3}], s{sWqoff} offen{off} {OPT['w_pol']} lds"
        elif t == "X": ld = f"buffer_load_dwordx4 v{vXd+jj}, s[{sX}:{sX+3}], s{sXoff} offen{off} {OPT['x_pol']} lds"
        elif t == "O":
            so = sTmp if (i & 1) else sWooff
            ld = f"buffer_load_dwordx4 v{vWod+jj}, s[{sWo}:{sWo+3}], s{so} offen{off} {OPT['o0_pol'] if i < 2 else OPT['o_pol']} lds"
        if OPT["MF"] and t in "KV" and jj % OPT["MFE"] == 0:
            def lim(a):
                k = OPT["MF"] - OPT["MFE"]
                if len(a.vmq) > k:
                    a.e(f"s_waitcnt vmcnt({k})")
                    a.vmq = a.vmq[len(a.vmq) - k:]
            lim.cost = 1
            ins.append(lim)
        if not OPT["nodma"]: ins.append((ld, f"u{n}"))
        if jj == 3:
            if t == "W" and i < 13: ins += [f"s_add_u32 s{sWqoff}, s{sWqoff}, {64*8192}", f"s_cmp_eq_u32 s{sWqoff}, {448*8192}", f"s_cselect_b32 s{sWqoff}, 0, s{sWqoff}"]
            if t == "X" and i < 6: ins += [f"s_add_u32 s{sXoff}, s{sXoff}, 128", f"s_cmp_eq_u32 s{sXoff}, 896", f"s_cselect_b32 s{sXoff}, 0, s{sXoff}"]
            if t == "O" and (i & 1) and i < 13: ins += [f"s_add_u32 s{sWooff}, s{sWooff}, 128", f"s_cmp_eq_u32 s{sWooff}, 896", f"s_cselect_b32 s{sWooff}, 0, s{sWooff}"]
        g.append(ins)
    return g

GROUPS = {"K": (vKr, 4), "V": (vVr, 8), "O": (vWor, 4), "W": (vWr, 8), "X": (vXr, 2)}

class Item:
    def __init__(self, H, mf, reads):
        self.H = H; self.mf = mf; self.reads = reads
        self.first = False

def tr_reads(grp, ridx, n, off0, off1):
    return [("ds_read_b64_tr_b16", "a[{b}:{b1}]", grp, ridx, n, off0), ("ds_read_b64_tr_b16", "a[{b2}:{b3}]", grp, ridx, n, off1)]

def acc_of(base, T, u): return base + 16*(T >> 1) + 8*u + 4*(T & 1)
def q4(r, k="v"): return f"{k}[{r}:{r+3}]"

def cost(s):
    if isinstance(s, list): return sum(cost(x) for x in s)
    if callable(s): return getattr(s, "cost", 2)
    if isinstance(s, tuple): s = s[0]
    return 2 if s.startswith(("v_exp", "v_rcp")) else 1

def gen_k1(BASE):
    a = Em()
    e = a.e
    slot_of.clear()
    slot_free_at = [-10]*10
    slot_free_pos = [-10]*10
    last_slot = {"O": 8}
    def alloc(n, Hbar, p=0):
        t = units[n][0]
        s = fixed_slot(n)
        if s is not None and slot_free_pos[s] > p: return False
        if s is None:
            pend = {fixed_slot(m) for m in range(NU) if m not in slot_of}
            fr = [s for s in range(10) if slot_free_at[s] <= Hbar and s not in pend]
            if not fr: return False
            same = [s for s in fr if s // 4 == last_slot[t] // 4]
            s = (same or fr)[0]
        elif slot_free_at[s] > Hbar: return False
        slot_of[n] = s; last_slot[t] = s
        if t == "X": slot_free_pos[s] = 16*consumed[n] + 2
        else: slot_free_at[s] = consumed[n] + 2
        return True

    a.L.append(f".globl {K1}\n.p2align 8\n.type {K1},@function\n{K1}:")
    e("s_cmp_ge_u32 s2, 256")
    e("s_cbranch_scc1 L_k1_done")
    stamp(a, 0)
    e("s_and_b32 s3, s2, 7")
    e(f"s_lshr_b32 s{sBLK}, s3, 2")
    e(f"s_mul_i32 s{sTmp}, s{sBLK}, 40")
    e(f"s_add_u32 s44, s0, s{sTmp}")
    e("s_addc_u32 s45, s1, 0")
    e("s_load_dwordx2 s[64:65], s[44:45], 0")
    e("s_load_dwordx4 s[72:75], s[44:45], 24")
    e("s_load_dwordx4 s[68:71], s[44:45], 8")
    e("s_load_dwordx4 s[76:79], s[0:1], 80")
    e(f"s_load_dwordx2 s[{sWsP}:{sWsP+1}], s[0:1], 96")
    e("v_lshrrev_b32 v1, 6, v0")
    e("v_and_b32 v2, 63, v0")
    e("s_and_b32 s3, s3, 3")
    e(f"v_readfirstlane_b32 s{sW}, v1")
    e("s_lshl_b32 s3, s3, 2")
    e(f"s_lshr_b32 s{sB}, s2, 3")
    e(f"s_and_b32 s{sH}, s{sB}, 3")
    e(f"s_lshl_b32 s{sTmp}, s{sH}, 1")
    e(f"s_add_u32 s{sH}, s{sH}, s3")
    e(f"s_lshr_b32 s{sB}, s{sB}, 2")
    e(f"s_add_u32 s{sTmp}, s{sTmp}, s{sB}")
    for _ in range(2):
        e(f"s_cmp_ge_u32 s{sTmp}, 7"); e(f"s_cselect_b32 s3, 7, 0"); e(f"s_sub_u32 s{sTmp}, s{sTmp}, s3")
    e(f"s_lshl_b32 s{sXoff}, s{sTmp}, 7")
    e(f"s_lshl_b32 s{sWqoff}, s{sTmp}, 19")
    e("v_and_b32 v3, 15, v2")
    e("v_lshrrev_b32 v4, 4, v2")
    e(f"s_lshl_b32 s{sWoff}, s{sW}, 12")
    e("v_lshrrev_b32 v5, 3, v2")
    e("v_mul_u32_u24 v5, 896, v5")
    e(f"s_mul_i32 s3, s{sW}, {32*896}")
    e("v_and_b32 v6, 7, v2")
    e(f"v_add_u32 v{vWod}, s3, v5")
    e("v_xor_b32 v6, v6, v4")
    e(f"v_lshl_add_u32 v{vXd}, v6, 4, v{vWod}")
    e(f"v_xor_b32 v5, 64, v{vXd}")
    e(f"v_add_u32 v{vXd+1}, 6144, v5")
    e(f"v_add_u32 v{vXd+2}, {2*6144}, v{vXd}")
    e(f"v_add_u32 v{vXd+3}, {3*6144}, v5")
    e(f"s_lshl_b32 s3, s{sW}, 17")
    e(f"s_lshl_b32 s{sTmp}, s{sH}, 9")
    e(f"s_add_u32 s3, s3, s{sTmp}")
    e("v_lshlrev_b32 v6, 1, v4")
    e("v_xor_b32 v6, v6, v3")
    e("v_lshlrev_b32 v6, 4, v6")
    e("v_lshl_add_u32 v6, v4, 13, v6")
    e(f"v_add_u32 v{vWqd}, s3, v6")
    e(f"v_xor_b32 v7, 0x80, v{vWqd}")
    e(f"v_add_u32 v{vWqd+1}, {32768-1024}, v{vWqd}")
    e(f"v_add_u32 v{vWqd+2}, {2*(32768-1024)}, v7")
    e(f"v_add_u32 v{vWqd+3}, {3*(32768-1024)}, v7")
    for s, sz in ((sX, 114688), (sWq, 448*8192), (sK, 262144), (sV, 262144)):
        e(f"s_mov_b32 s{s+2}, {sz}"); e(f"s_mov_b32 s{s+3}, 0x00020000")
    e(f"s_mul_i32 s46, s{sB}, 114688")
    e(f"s_lshl_b32 s47, s{sB}, 4")
    e(f"s_add_u32 s47, s47, s{sH}")
    e(f"s_lshl_b32 s47, s47, 18")
    if OPT["spw"]:
        e("v_lshrrev_b32 v8, 2, v0")
        e("v_lshlrev_b32 v8, 13, v8")
        e("v_and_b32 v9, 3, v0")
        e("v_lshl_add_u32 v8, v9, 6, v8")
        e(f"v_add_u32 v8, s{sTmp}, v8")
    e("s_waitcnt lgkmcnt(0)")
    e(f"s_add_u32 s{sX}, s64, s46"); e(f"s_addc_u32 s{sX+1}, s65, 0")
    e(f"s_mov_b32 s{sWq}, s72"); e(f"s_mov_b32 s{sWq+1}, s73")
    e(f"s_add_u32 s{sK}, s68, s47"); e(f"s_addc_u32 s{sK+1}, s69, 0")
    e(f"s_add_u32 s{sV}, s70, s47"); e(f"s_addc_u32 s{sV+1}, s71, 0")
    if OPT["pfn"]:
        if OPT["pfbit"] >= 0:
            e(f"s_bitcmp1_b32 s2, {OPT['pfbit']}")
            e("s_cbranch_scc0 L_nopf")
        elif OPT["pfbit"] == -2:
            e("s_lshr_b32 s3, s2, 2"); e("s_xor_b32 s3, s3, s2"); e("s_bitcmp1_b32 s3, 3")
            e("s_cbranch_scc0 L_nopf")
        e("v_lshlrev_b32 v5, 7, v2")
        e(f"s_and_b32 s3, s{sW}, 1"); e("s_lshl_b32 s3, s3, 13")
        e("v_add_u32 v5, s3, v5")
        e(f"s_cmp_ge_u32 s{sW}, 2")
        e("s_cbranch_scc1 L_pf_hi")
        for part in range(2):
            for k in range(part, OPT["pfn"], 2):
                t, i = units[21 + k]
                sr = sK if t == "K" else sV
                e(f"s_mov_b32 s{sTmp2}, {i*16384}")
                e(f"buffer_load_dword a{aQ+2+k//2}, v5, s[{sr}:{sr+3}], s{sTmp2} offen {OPT['pf_pol']}")
            if part == 0:
                e("s_branch L_nopf")
                a.lab("L_pf_hi")
        a.lab("L_nopf")
    ip = [0]
    while iss[ip[0]][0] < 0:
        m = iss[ip[0]][1]; ip[0] += 1
        assert alloc(m, 0)
        if m == 1 and OPT["spw"]:
            e(f"buffer_load_dword a{aQ+1}, v8, s[{sWq}:{sWq+3}], s{sWqoff} offen offset:256 {OPT['w_pol']}", "pf")
        for g in dma(m):
            for s in g: e(s)
    if OPT["codepf"]:
        e("s_getpc_b64 s[62:63]")
        a.lab("L_pc")
        e("s_lshr_b32 s3, s2, 3")
        e("s_lshl_b32 s3, s3, 12")
        e("v_lshlrev_b32 v5, 4, v0")
        e("v_add_u32 v5, s3, v5")
        e("v_min_u32 v5, L_k1_end-L_pc-8, v5")
        e(f"global_load_dword a{aQ}, v5, s[62:63]", "pf")
    e("v_bfe_u32 v6, v2, 2, 2")
    e("v_and_b32 v7, 3, v2")
    e("v_bfe_u32 v5, v2, 2, 3")
    e("v_lshl_add_u32 v8, v4, 3, v6")
    e("v_lshlrev_b32 v9, 5, v5")
    e("v_lshl_add_u32 v9, v7, 3, v9")
    e("v_lshl_add_u32 v9, v8, 8, v9")
    e("v_lshl_add_u32 v8, v8, 8, v9")
    e(f"v_add_u32 v{vVr}, 0x10000, v8")
    for w in (2, 0, 1):
        e(f"v_add_u32 v{vWr+8*w}, {w*65536}, v9")
        for T in range(1, 8): e(f"v_xor_b32 v{vWr+8*w+T}, {T<<5}, v{vWr+8*w}")
    e("v_lshrrev_b32 v5, 1, v3"); e("v_xor_b32 v5, v5, v4"); e("v_lshlrev_b32 v5, 4, v5")
    e("v_lshl_add_u32 v5, v3, 7, v5")
    e(f"v_add_u32 v{vXr}, s{sWoff}, v5")
    e(f"v_xor_b32 v{vXr+1}, 64, v{vXr}")
    for w in (2, 1):
        e(f"v_add_u32 v{vXr+2*w}, {w*65536}, v{vXr}"); e(f"v_add_u32 v{vXr+2*w+1}, {w*65536}, v{vXr+1}")
    for s, sz in ((sWo, 229376), (sG, 16*114688), (sFl, 1024), (sDb, 256), (sOut, 128*1792)):
        e(f"s_mov_b32 s{s+2}, {sz}"); e(f"s_mov_b32 s{s+3}, 0x00020000")
    e(f"s_cmp_eq_u32 s{sB}, 7"); e(f"s_cselect_b32 s3, 0, s{sB}")
    e(f"s_lshl_b32 s{sWooff}, s3, 7")
    e(f"s_lshl_b32 s{sStA}, s3, 12")
    e(f"s_mov_b32 s{sNP0}, s{sStA}")
    e(f"s_mul_i32 s3, s{sH}, 229376")
    e(f"s_add_u32 s{sWo}, s74, s3"); e(f"s_addc_u32 s{sWo+1}, s75, 0")
    e(f"s_lshl_b32 s46, s{sBLK}, 3")
    e(f"s_add_u32 s46, s46, s{sB}")
    e(f"s_mul_i32 s3, s46, {16*114688}")
    e(f"s_add_u32 s{sG}, s{sWsP}, s3"); e(f"s_addc_u32 s{sG+1}, s{sWsP+1}, 0")
    e(f"s_lshl_b32 s3, s46, 10")
    e(f"s_add_u32 s3, s3, {FLAGS_OFF}")
    e(f"s_add_u32 s{sFl}, s{sWsP}, s3"); e(f"s_addc_u32 s{sFl+1}, s{sWsP+1}, 0")
    e(f"s_mov_b32 s{sDb}, s78"); e(f"s_mov_b32 s{sDb+1}, s79")
    e(f"s_mul_i32 s3, s{sB}, {128*1792}")
    e(f"s_add_u32 s{sOut}, s76, s3"); e(f"s_addc_u32 s{sOut+1}, s77, 0")
    e(f"s_mov_b32 s{sC}, {f32hex(SCALE)}")
    e(f"s_mov_b32 s{sThr}, {f32hex(OPT['thr'])}")
    e(f"s_mov_b32 s{sTlo}, {f32hex(OPT['tlo'])}")
    e(f"s_mov_b32 s{sSpin}, 0x8000")
    stamp(a, 1)
    late = []
    l = late.append
    l("v_lshrrev_b32 v5, 5, v2"); l("v_and_b32 v9, 31, v2")
    l("v_lshlrev_b32 v8, 9, v5"); l(f"v_add_u32 v8, s{sWoff}, v8")
    l(f"s_lshl_b32 s3, s{sW}, 2")
    l("v_xor_b32 v1, v9, v5"); l("v_xor_b32 v1, s3, v1")
    l(f"v_lshl_add_u32 v{vKd}, v1, 4, v8")
    l(f"v_xor_b32 v{vKd+1}, 32, v{vKd}")
    l(f"s_and_b32 s3, s{sW}, 1"); l("s_lshl_b32 s3, s3, 3")
    l("v_lshlrev_b32 v5, 1, v5"); l("v_xor_b32 v1, v9, v5"); l("v_xor_b32 v1, s3, v1")
    l(f"v_lshl_add_u32 v{vVd}, v1, 4, v8")
    l(f"v_xor_b32 v{vVd+1}, 64, v{vVd}")
    l(f"s_mul_i32 s3, s{sW}, 28672"); l(f"s_mul_i32 s44, s{sH}, 114688"); l("s_add_u32 s3, s3, s44")
    l("v_lshl_add_u32 v5, v3, 2, v4")
    l(f"v_lshl_add_u32 v{vSt}, v5, 4, s3")
    for T in range(1, 8): l(f"v_xor_b32 v{vVr+T}, {T<<5}, v{vVr}")
    if OPT["CLR"] < 14:
        for r in range(4): l(f"v_mov_b32 v{vE+8+r}, -1")
    if OPT["wow"] >= 0:
        l(f"s_mul_i32 s3, s{sB}, 28672"); l(f"v_lshl_add_u32 v{vE+12}, v0, 7, s3")
    l(f"s_lshl_b32 s3, s{sW}, 8"); l(f"s_lshl_b32 s44, s{sH}, 2"); l("s_add_u32 s3, s3, s44")
    l(f"v_lshl_add_u32 v{vFl}, v2, 12, s3")
    l("v_lshlrev_b32 v5, 2, v3")
    l(f"s_lshr_b32 s3, s{sH}, 2"); l("s_lshl_b32 s3, s3, 8")
    l(f"v_add_u32 v{vFp}, s3, v5")
    l("v_lshl_add_u32 v5, v4, 8, v5")
    l([f"s_or_b32 s3, s{sH}, s{sW}", "s_cmp_eq_u32 s3, 0", "s_cselect_b32 s45, 0, 0x10000"])
    l("v_add_u32 v5, s45, v5")
    l(f"v_mov_b32 v{vL}, 0"); l(f"v_mov_b32 v{vL+1}, 0")
    l((f"buffer_store_dword v{vL}, v5, s[{sFl}:{sFl+3}], 0 offen sc1", "clr"))
    l("s_lshl_b32 s44, s46, 2"); l("s_add_u32 s45, s45, s44")
    l(f"v_lshl_add_u32 v{vDbA}, v2, 12, s45")
    l(f"v_mov_b32 v{vDbV}, s44")
    l(f"v_mov_b32 v{vFv}, 1")
    l("v_lshrrev_b32 v5, 1, v4"); l("v_and_b32 v8, 1, v4"); l("v_lshl_add_u32 v5, v8, 1, v5")
    l("v_xor_b32 v5, v5, v3"); l("v_lshlrev_b32 v5, 4, v5")
    l("v_lshl_add_u32 v8, v6, 3, v7")
    l(f"v_lshl_add_u32 v{vKr}, v8, 9, v5")
    for s in range(1, 4): l(f"v_xor_b32 v{vKr+s}, {s<<6}, v{vKr}")
    l("v_lshrrev_b32 v5, 2, v2"); l("v_lshlrev_b32 v5, 7, v5")
    l("v_bfe_u32 v8, v2, 3, 2"); l("v_lshl_add_u32 v5, v8, 5, v5")
    l("v_lshl_add_u32 v5, v7, 3, v5")
    l(f"v_add_u32 v{vWor}, 0x20000, v5")
    for n in range(1, 4): l(f"v_xor_b32 v{vWor+n}, {n<<5}, v{vWor}")
    l("v_and_b32 v8, 7, v2"); l("v_lshlrev_b32 v9, 1, v4"); l("v_xor_b32 v8, v8, v9")
    l(f"v_lshl_add_u32 v{vWod}, v8, 4, v{vWod}")
    for jj in range(1, 4): l(f"v_add_u32 v{vWod+jj}, {jj*(7168-1024)}, v{vWod}")
    for r in range(8): l(f"v_mov_b32 v{vNM+r}, 0")
    if NP:
        l(f"v_lshl_add_u32 v{vUp}, v2, 4, s{sWoff}"); l(f"v_add_u32 v{vUp+1}, 0x10000, v{vUp}")
    l(f"s_lshr_b32 s44, s{sH}, 2"); l("s_mul_i32 s3, s44, 28672")
    l(f"s_and_b32 s45, s{sH}, 3"); l("s_lshl_b32 s45, s45, 10"); l("s_add_u32 s3, s3, s45")
    l(f"s_lshl_b32 s45, s{sW}, 8"); l("s_add_u32 s3, s3, s45")
    l("v_mul_u32_u24 v5, 114688, v4"); l("v_lshl_add_u32 v5, v3, 4, v5")
    l(f"v_add_u32 v{vRd}, s3, v5")
    l("s_lshl_b32 s3, s44, 5"); l(f"s_and_b32 s45, s{sH}, 1"); l("s_lshl_b32 s45, s45, 4"); l("s_add_u32 s3, s3, s45")
    l(f"s_lshl_b32 s45, s{sW}, 2"); l("s_add_u32 s3, s3, s45"); l("s_mul_i32 s3, s3, 1792")
    l(f"s_mul_i32 s45, s{sBLK}, 896"); l("s_add_u32 s3, s3, s45")
    l(f"s_and_b32 s45, s{sH}, 2"); l("s_lshl_b32 s45, s45, 5"); l("s_add_u32 s3, s3, s45")
    l("v_mul_u32_u24 v5, 1792, v6"); l("v_lshl_add_u32 v5, v7, 3, v5")
    l("v_and_b32 v8, 1, v4"); l("v_lshl_add_u32 v5, v8, 5, v5")
    l("v_lshrrev_b32 v8, 1, v4"); l("v_lshl_add_u32 v5, v8, 24, v5")
    l(f"v_add_u32 v{vRo}, s3, v5")
    l("v_and_b32 v5, 1, v2"); l("v_lshlrev_b32 v5, 4, v5"); l("v_mov_b32 v8, 0x3f80"); l("v_lshlrev_b32 v5, v5, v8")
    l("v_bfe_u32 v8, v2, 1, 2")
    for r in range(4):
        l(f"v_cmp_eq_u32 vcc, {r}, v8"); l("s_nop 0"); l(f"v_cndmask_b32 v{vSel+r}, 0, v5, vcc")

    items = []
    fill = defaultdict(list)
    def add(p, ins):
        fill[p].extend(ins if isinstance(ins, list) else [ins])
    load = defaultdict(float, BASE or {})
    def spread(p0, p1, ins):
        n = p1 - p0 + 1
        if not OPT["wf"]:
            for k, s in enumerate(ins): add(p0 + (k*n)//len(ins), [s])
            return
        if BASE is None: return
        tot = cost(ins)
        lo, hi = 0.0, 100.0
        for _ in range(40):
            L = (lo + hi)/2
            if sum(max(0.0, L - load[p]) for p in range(p0, p1 + 1)) >= tot: hi = L
            else: lo = L
        k, bud = 0, 1e-6
        for p in range(p0, p1 + 1):
            bud += max(0.0, hi - load[p])
            while k < len(ins) and (bud >= cost(ins[k])/2 or p == p1):
                add(p, [ins[k]]); load[p] += cost(ins[k]); bud -= cost(ins[k]); k += 1
    if OPT["late"]: spread(0, 16*6, late)
    else:
        for s in late:
            for x in (s if isinstance(s, list) else [s]): e(x)
    def p1item(H, i, T, kap):
        half, c = i // 7, i % 7
        n = uidx[("W", i)]
        mf = []
        for u in range(2):
            acc = acc_of(vO, 8*half + T, u)
            cin = "0" if (c == 0 and kap == 0) else q4(acc)
            mf.append(f"{MF} {q4(acc)}, a[{{b}}:{{b3}}], {q4(aX + 16*c + 8*kap + 4*u, 'a')}, {cin}")
        rd = tr_reads("W", T, n, kap*8192, kap*8192 + 1024)
        if i < 7 and T == 0:
            rd = [("ds_read_b128", q4(aX + 16*c + 8*kap + 4*u, "a"), "X", kap, uidx[("X", c)], u*2048) for u in range(2)] + rd
        items.append(Item(H, mf, rd))
    done_at = {}
    for H in range(14):
        if OPT["j2"] and H >= 12:
            for T in range(4*(H-12), 4*(H-12)+4):
                for i in (12, 13):
                    for kap in range(2): p1item(H, i, T, kap)
                done_at[4 + T//2] = len(items) - 1
        else:
            for T in range(8):
                for kap in range(2): p1item(H, H, T, kap)
                if H % 7 == 6: done_at[4*(H//7) + T//2] = len(items) - 1
    def qconv(s):
        t = []
        R = [vO + 16*s, vO + 16*s + 8]
        for r in R:
            for j in range(8): t.append(f"v_mul_f32 v{r+j}, s{sC}, v{r+j}")
        for r in R:
            for j in range(4): t.append(f"v_cvt_pk_bf16_f32 v{r+j}, v{r+2*j}, v{r+2*j+1}")
        for r in R:
            t += [f"v_permlane16_swap_b32 v{r}, v{r+2}", f"v_permlane16_swap_b32 v{r+1}, v{r+3}"]
        for u, r in enumerate(R):
            for j in range(4): t.append(f"v_accvgpr_write_b32 a{aQ+8*s+4*u+j}, v{r+j}")
        return t
    t = []
    for s in range(4): t += qconv(s)
    spread(7*16 + 2, 12*16 + 6, t)
    if OPT["j2"]:
        lim = [(done_at[4]+2, done_at[4]+12), (done_at[4]+13, done_at[6]+1), (done_at[6]+2, done_at[6]+11), (done_at[6]+12, 14*16+12)]
    else:
        lim = [(13*16+5+6*k, 13*16+10+6*k) for k in range(4)]
    for k, (p0, p1) in enumerate(lim):
        assert p0 >= done_at[4+k] + 2 and p1 < 14*16 + 2*(4+k) - 1, (k, p0, p1)
        spread(p0, p1, qconv(4 + k))

    def qk(H, n, S):
        for f in range(16):
            s, ee = f >> 1, f & 1
            mf = []
            for u in range(2):
                acc = S + 8*u + 4*ee
                cin = q4(vNM + 4*u) if s == 0 else q4(acc)
                mf.append(f"{MF} {q4(acc)}, a[{{b}}:{{b3}}], {q4(aQ + 8*s + 4*u, 'a')}, {cin}")
            items.append(Item(H, mf, [("ds_read_b128", "a[{b}:{b3}]", "K", s & 3, n, (s >> 2)*256 + ee*2048)]))
    def pv(H, n, P, first):
        for T in range(16):
            mf = []
            for u in range(2):
                acc = acc_of(vO, T, u)
                mf.append(f"{MF} {q4(acc)}, a[{{b}}:{{b3}}], {q4(P + 4*u)}, {'0' if first else q4(acc)}")
            o = (T >> 3)*256
            items.append(Item(H, mf, tr_reads("V", T & 7, n, o, o + 2048)))
    EORD = [0, 1, 2, 3, 8, 9, 10, 11, 4, 5, 6, 7, 12, 13, 14, 15]
    Pb = (vP, vE + 8)
    def softmax(S, par):
        Lo, Ln, P = vL + 2*par, vL + 2*(par ^ 1), Pb[par]
        L = []
        seen = set()
        def addk(i):
            u = EORD[i] >> 3
            src = Ln + u if u in seen else Lo + u
            seen.add(u)
            return f"v_add_f32 v{Ln+u}, v{src}, v{vE+(i&7)}"
        cv = lambda i: f"v_cvt_pk_bf16_f32 v{P+EORD[i]//2}, v{vE+(i&7)}, v{vE+((i+1)&7)}"
        for i, k in enumerate(EORD):
            L.append(f"v_exp_f32 v{vE+(i&7)}, v{S+k}")
            if i >= 1: L.append(addk(i-1))
            if i >= 2 and i % 2 == 0: L.append(cv(i-2))
        L += [addk(15), cv(14)]
        return L
    lblc = [0]
    def check(t):
        lblc[0] += 1
        k = lblc[0]
        Ln = vL + 2*((t & 1) ^ 1)
        nm = "L_fix0" if t == 0 else f"L_fixp{t & 1}"
        def f(a):
            a.e(f"v_max_f32 v{vT0}, v{Ln}, v{Ln+1}")
            if t == 0:
                a.e(f"v_min_f32 v{vT0+1}, v{Ln}, v{Ln+1}")
                a.e(f"v_cmp_lt_f32 vcc, s{sThr}, v{vT0}")
                a.e(f"v_cmp_gt_f32 s[44:45], s{sTlo}, v{vT0+1}")
                a.e("s_or_b64 s[44:45], s[44:45], vcc")
                a.e(f"s_cbranch_scc0 L_nm{k}")
            else:
                a.e(f"v_cmp_lt_f32 vcc, s{sThr}, v{vT0}")
                a.e(f"s_cbranch_vccz L_nm{k}")
            a.e(f"s_call_b64 s[{sRet}:{sRet+1}], {nm}")
            a.lab(f"L_nm{k}")
        f.after2 = (t == 15)
        f.cost = 3
        return f
    H = 14
    qk(H, 21, vSb[0]); H += 1
    qk(H, 22, vSb[1])
    add(16*H + 15, [check(0)])
    spread(16*H + 1, 16*H + 14, softmax(vSb[0], 0))
    H += 1
    for t in range(1, 16):
        n = uidx[("V", t-1)]
        assert consumed[n] == H
        pv(H, n, Pb[(t-1) & 1], t == 1)
        p0 = 16*H
        H += 1
        if t <= 14:
            n = uidx[("K", t+1)]
            assert consumed[n] == H
            qk(H, n, vSb[(t+1) & 1])
            H += 1
        add(16*H - 1, [check(t)])
        spread(p0 + 1, 16*H - 2, softmax(vSb[t & 1], t & 1))
    n = uidx[("V", 15)]
    assert consumed[n] == H and H == 45
    pv(H, n, Pb[1], False)
    L0, L1 = vL, vL + 1
    fin = [f"v_permlane32_swap_b32 v{L0}, v{L1}", f"v_add_f32 v{L0}, v{L0}, v{L1}", f"v_mov_b32 v{L1}, v{L0}",
           f"v_permlane16_swap_b32 v{L0}, v{L1}", f"v_add_f32 v{L0}, v{L0}, v{L1}", f"v_rcp_f32 v{vAl}, v{L0}",
           f"v_mov_b32 v{vAl+1}, v{vAl}", f"v_permlane32_swap_b32 v{vAl}, v{vAl+1}"]
    ON = OPT["onorm"]
    for k, s in enumerate(fin): add((45*16 + k//2) if ON else (47*16 - 12 + k), s)
    p = 16*H + (4 if ON else 3)
    for s in range(8):
        t = []
        R = [vO + 16*s, vO + 16*s + 8]
        if ON:
            for u, r in enumerate(R): t += [f"v_mul_f32 v{r+j}, v{r+j}, v{vAl+u}" for j in range(8)]
        for r in R: t += [f"v_cvt_pk_bf16_f32 v{r+j}, v{r+2*j}, v{r+2*j+1}" for j in range(4)]
        w = 5 if ON else 3
        assert p >= 16*H + 2*s + 3 and p + w - 1 <= 16*H + 16 + 4*s - 1
        spread(p, p + w - 1, t)
        p += w
    H += 1
    def epilogue(acc, so, q, j):
        u = q & 1
        g = [] if ON else [f"v_mul_f32 v{acc+r}, v{acc+r}, v{vAl+u}" for r in range(8)]
        g += [f"v_cvt_pk_bf16_f32 v{acc+jj}, v{acc+2*jj}, v{acc+2*jj+1}" for jj in range(4)]
        offs = f" offset:{q*1024}" if q else ""
        g.append((f"buffer_store_dwordx4 {q4(acc)}, v{vSt}, s[{sG}:{sG+3}], s{so} offen{offs} {OPT['st_pol']}", f"st{j}"))
        return g
    NS = OPT["NS"]
    pubs = [int(x) for x in OPT["pub"].split(",")]
    assert pubs[-1] == 7 - NS
    def publish(cnt):
        def f(a):
            a.wait_vm({f"st{j}" for j in range(cnt)} | {"sen"})
            a.e(f"v_mov_b32 v{vFv}, {cnt}")
            a.e(f"buffer_store_dword v{vFv}, v{vFl}, s[{sFl}:{sFl+3}], 0 offen sc1", "pub")
        return f
    late_pubs = []
    for j in range(7):
        so = sStA if j % 2 == 0 else sStB
        so2 = sStB if j % 2 == 0 else sStA
        A = vAcc + 32*(j & 1)
        for hf in range(2):
            n = uidx[("O", 2*j+hf)]
            assert consumed[n] == H
            order = [(nn, s4) for nn in range(4) for s4 in range(4)]
            if j == 0: order = [(nn, s4) for s4 in range(4) for nn in range(4)]
            for (nn, s4) in order:
                s = 4*hf + s4
                mf = []
                for u in range(2):
                    acc = acc_of(A, nn, u)
                    mf.append(f"{MF} {q4(acc)}, a[{{b}}:{{b3}}], {q4(vO + 16*s + 8*u)}, {'0' if s == 0 else q4(acc)}")
                items.append(Item(H, mf, tr_reads("O", nn, n, s4*4096, s4*4096 + 2048)))
            H += 1
        pend = 16*H
        g0 = epilogue(A, so, 0, j) + epilogue(A + 8, so, 1, j)
        g1 = epilogue(A + 16, so, 2, j) + epilogue(A + 24, so, 3, j)
        if j < 6:
            spread(pend - 7 if j else pend + 1, pend + 8, g0)
            spread(pend + 9, pend + 23, g1)
            add(pend - 8, [[f"s_add_u32 s{so2}, s{so}, 4096", f"s_cmp_eq_u32 s{so2}, 28672", f"s_cselect_b32 s{so2}, 0, s{so2}"]])
        else:
            spread(pend - 7, pend - 1, g0)
            tail_epi = g1
        if j + 1 in pubs:
            pp = pend + 25 + 16*OPT["PUBD"]
            if pp < 960 - 2: add(pp, [publish(j + 1)])
            else: late_pubs.append(j + 1)
    N = len(items)
    assert N == 960
    for p in range(N):
        if p % 16 == 0: items[p].first = True
    p = int(16*OPT["CLR"])
    for j in range(7 - NS, 7):
        add(p, [[f"s_add_u32 s44, s{sNP0}, {j*4096}", "s_cmp_ge_u32 s44, 28672", "s_cselect_b32 s45, 28672, 0", "s_sub_u32 s44, s44, s45"]])
        for q in range(4):
            offs = f" offset:{q*1024}" if q else ""
            add(p + 1 + q*OPT["CLS"], [(f"buffer_store_dwordx4 {q4(vE + 8) if OPT['CLR'] < 14 else q4(aSen, 'a')}, v{vSt}, s[{sG}:{sG+3}], s44 offen{offs} {OPT['st_pol']}", "sen")])
        p += 4*OPT["CLS"]
    assert p < 47*16
    if OPT["CLR"] >= 14: spread(14*16 + 12, 15*16, [f"v_accvgpr_write_b32 a{aSen+r}, -1" for r in range(4)])
    else: assert p < 15*16 and not OPT["late"]
    if OPT["wow"] >= 0:
        add(int(16*OPT["wow"]), [(f"buffer_load_dword a{aQ+63}, v{vE+12}, s[{sWo}:{sWo+3}], 0 offen", "pf")])
    def lead(a):
        a.wait_vm({"clr"})
        a.e(f"buffer_store_dword v{vFv}, v{vDbA}, s[{sDb}:{sDb+3}], 0 offen sc1", "sig")
    add(16*13 + 5, [lead])
    add(16*39 + 5, [(f"buffer_load_dword v{vF}, v{vDbV}, s[{sDb}:{sDb+3}], 0 offen sc1", "chk")])
    def chk(a):
        a.wait_vm({"chk"})
        a.e(f"v_cmp_eq_u32 vcc, 0, v{vF}")
        a.e("s_cbranch_vccz L_chk_ok")
        a.e(f"s_call_b64 s[{sRet}:{sRet+1}], L_chk_wait")
        a.lab("L_chk_ok")
    add(16*47 + 3, [chk])
    if OPT["early"]:
        add(960 - 40, [(f"buffer_load_dword v{vF}, v{vFp}, s[{sFl}:{sFl+3}], 0 offen sc1", "poll")])
    if OPT["stamps"]:
        add(14*16 - 1, [lambda a: stamp(a, 3)])
        add(46*16 - 1, [lambda a: stamp(a, 4)])

    D, WEV = OPT["D"], OPT["wev"]
    window = {"K": 0, "V": 1, "O": 2}
    uses = defaultdict(list)
    for i, it in enumerate(items):
        for r in it.reads: uses[r[2]].append((i, r[4]))
    soft_dma = []
    soft_up = []
    soft_adr = []
    log = []
    cur = []
    def put(s): cur.append(s)
    def set_window(g, w):
        if window[g] == w: return
        base, cnt = GROUPS[g]
        d = (w - window[g]) * 65536
        window[g] = w
        soft_adr.extend((g, k, f"v_add_u32 v{base+k}, {d & 0xffffffff}, v{base+k}") for k in range(cnt))
    def flush_adr(g, k):
        rest = []
        for (gg, kk, s) in soft_adr:
            if gg == g and kk == k: put(s)
            else: rest.append((gg, kk, s))
        soft_adr[:] = rest
    upos = {g: 0 for g in GROUPS}
    rp = [0]
    hbar = [-1]
    issued = set(m for (pos, m) in iss[:ip[0]])
    upq = sorted(parked)
    unparked = set()
    def next_unit(p, force=False):
        if ip[0] >= len(iss): return False
        pos, m = iss[ip[0]]
        if pos > p and not force: return False
        if m not in parked:
            if not alloc(m, hbar[0], p):
                assert not force, ("no slot", m, p)
                if ip[0] + 1 >= len(iss): return False
                pos2, m2 = iss[ip[0] + 1]
                if not (units[m][0] in "KV" and units[m2][0] in "KV" and alloc(m2, hbar[0], p)): return False
                iss[ip[0]], iss[ip[0] + 1] = (pos, m2), (pos2, m)
                m = m2
        ip[0] += 1
        issued.add(m)
        log.append((p, "iss", units[m], slot_of.get(m)))
        soft_dma.extend(dma(m))
        return True
    def next_unpark(p, force=False):
        if not upq: return False
        m = upq[0]
        if not force and (p < 16*(needed[m] - OPT["UP"]) - D or m not in issued or soft_dma_has(m)): return False
        if not alloc(m, hbar[0], p):
            assert not force, ("no slot (unpark)", m, p)
            return False
        upq.pop(0)
        s = slot_of[m]
        log.append((p, "unp", units[m], s))
        for jj in range(4):
            pk = parked[m] + 4*jj
            ins = []
            if jj == 0: ins.append(lambda a, m=m: a.wait_vm({f"u{m}"}))
            ins.append((f"ds_write_b128 v{vUp + s//4}, a[{pk}:{pk+3}] offset:{(s%4)*16384 + jj*1024}", None, f"w{m}"))
            soft_up.append(ins)
        unparked.add(m)
        return True
    def soft_dma_has(m):
        return any(isinstance(s, tuple) and s[1] == f"u{m}" for g in soft_dma for s in g)
    def issue(i, p):
        it = items[i]
        if it.first:
            Hh = it.H
            for n in HS[Hh]:
                while n not in issued: next_unit(p, True)
                if soft_dma_has(n):
                    for g in soft_dma: put(g)
                    soft_dma.clear()
                if n in parked:
                    while n not in unparked: next_unpark(p, True)
                    for g in soft_up: put(g)
                    soft_up.clear()
            def ev(a, Hh=Hh):
                a.c(f"event H={Hh} needs {[units[n] for n in HS[Hh]]}")
                if OPT["trace"]:
                    if Hh > 0:
                        a.e(f"v_writelane_b32 v{vTr}, s{sTr+4*((Hh-1)&1)}, {Hh-1}")
                        a.e(f"v_writelane_b32 v{vTr+1}, s{sTr+2+4*((Hh-1)&1)}, {Hh-1}")
                    a.e(f"{'s_memtime' if OPT['trace'] == 2 else 's_memrealtime'} s[{sTr+4*(Hh&1)}:{sTr+1+4*(Hh&1)}]")
                a.wait_vm({f"u{n}" for n in HS[Hh] if n not in parked})
                a.wait_lds({f"w{n}" for n in HS[Hh]})
                a.e("s_barrier")
                if OPT["trace"]:
                    a.e(f"s_memrealtime s[{sTr+2+4*(Hh&1)}:{sTr+3+4*(Hh&1)}]")
                if Hh == 0: stamp(a, 2)
            ev.cost = 2 + (4 if OPT["trace"] else 0)
            put(ev)
            hbar[0] = Hh
        b = aFr(i)
        for (op, dst, g, ridx, n, inoff) in it.reads:
            slot = slot_of[n]
            if g in "WX":
                put((f"{op} {dst.format(b=b, b1=b+1, b2=b+2, b3=b+3)}, v{GROUPS[g][0]+GROUPS[g][1]*(slot//4)+ridx} offset:{(slot % 4)*16384 + inoff}", None, i))
                continue
            set_window(g, slot // 4)
            flush_adr(g, ridx)
            imm = (slot % 4)*16384 + inoff
            put((f"{op} {dst.format(b=b, b1=b+1, b2=b+2, b3=b+3)}, v{GROUPS[g][0]+ridx} offset:{imm}", None, i))
            upos[g] += 1
            if upos[g] < len(uses[g]):
                ni, nn = uses[g][upos[g]]
                if nn != n and nn in slot_of and ni > i + 2:
                    set_window(g, slot_of[nn]//4)
    def adv(limit, p):
        while rp[0] < N and rp[0] <= limit:
            issue(rp[0], p); rp[0] += 1
    def emit(s):
        if isinstance(s, list):
            for x in s: e(x)
        else: e(s)
    loads_out = {}
    est = [0]
    adv(D - 1, -1)
    for s in cur: emit(s)
    for p in range(N):
        cur.clear()
        if p % WEV == 0: a.wait_lds(set(range(p, p + WEV)))
        b = aFr(p)
        adv(p + D, p)
        SR = list(cur); cur.clear()
        SF = list(fill.get(p, []))
        if not soft_up: next_unpark(p)
        if not soft_dma: next_unit(p)
        sp = OPT["dsp1"] if p < 14*16 else OPT["dsp"]
        if soft_dma and (p - OPT["dph"]) % sp == 0: put(soft_dma.pop(0))
        if soft_up: put(soft_up.pop(0))
        SM = list(cur)
        if soft_adr: SR.append(soft_adr.pop(0)[2])
        wt = 1 if (p + 1) % WEV == 0 else 0
        tot = cost(SR) + cost(SF) + cost(SM) + wt
        loads_out[p] = tot
        evi = [k for k, x in enumerate(SR) if callable(x)]
        a2 = [k for k, x in enumerate(SF) if getattr(x, "after2", False)]
        best = None
        for kr in range(len(SR) + 1):
            for kf in range((a2[0] if a2 else len(SF)) + 1):
                for km in range(len(SM) + 1):
                    if km and evi and kr <= evi[-1]: continue
                    c1 = cost(SR[:kr]) + cost(SF[:kf]) + cost(SM[:km])
                    key = (max(2, c1) + max(2, tot - c1), abs(2*c1 - tot), -kr)
                    if best is None or key < best[0]: best = (key, kr, kf, km)
        _, kr, kf, km = best
        est[0] += best[0][0]*4 + 16
        if p % 16 == 15: est.append(est[0]); est[0] = 0
        e(items[p].mf[0].format(b=b, b3=b+3))
        for s in SR[:kr] + SF[:kf] + SM[:km]: emit(s)
        e(items[p].mf[1].format(b=b, b3=b+3))
        for s in SR[kr:] + SF[kf:] + SM[km:]: emit(s)
    assert not soft_dma and not soft_up and ip[0] == len(iss)
    if BASE is None: return loads_out
    sys.stderr.write(f"est cycles: {' '.join(map(str, est[1:]))} total {sum(est)}\n")
    for s in tail_epi: e(s)
    if OPT["verbose"]:
        for (p, w, u, s) in log:
            sys.stderr.write(f"  {p/16:6.2f} {w} {u} slot {s} (need {needed[uidx[u]]})\n")
    stamp(a, 5)
    vD = 192
    def dreg(j, k):
        return q4(16*j + 4*k, "a") if j < 7 - NS else q4(vO + 16*(j - (7 - NS)) + 4*k)
    for j in range(7):
        e(f"s_add_u32 s{sTmp}, s{sNP0}, {j*4096}")
        e(f"s_cmp_ge_u32 s{sTmp}, 28672"); e(f"s_cselect_b32 s3, 28672, 0"); e(f"s_sub_u32 s{8+j}, s{sTmp}, s3")
        e(f"s_lshr_b32 s{16+j}, s{8+j}, 5")
    for k in range(1, 4): e(f"v_add_u32 v{vKr+k}, {k*4*114688}, v{vRd}")
    def loads(j):
        for k in range(4):
            e(f"buffer_load_dwordx4 {dreg(j, k)}, v{vKr+k if k else vRd}, s[{sG}:{sG+3}], s{8+j} offen sc1", f"r{j}")
    if OPT["early"]: a.wait_vm({"poll"})
    else: e(f"v_mov_b32 v{vF}, 0")
    for c in late_pubs: publish(c)(a)
    stamp(a, 6)
    prev = 0
    for hi in pubs:
        e(f"v_cmp_gt_u32 vcc, {hi}, v{vF}")
        e(f"s_cbranch_vccz L_go{hi}")
        e(f"s_mov_b32 s45, {hi}")
        e(f"s_call_b64 s[{sRet}:{sRet+1}], L_poll")
        a.lab(f"L_go{hi}")
        for j in range(prev, hi): loads(j)
        prev = hi
    def red(j):
        d = vD + 4*j
        for k in range(4):
            e(f"{MF} {q4(d)}, {q4(vSel)}, {dreg(j, k)}, {'0' if k == 0 else q4(d)}")
    def fin(j):
        d = vD + 4*j
        e(f"v_cvt_pk_bf16_f32 v{d}, v{d}, v{d+1}")
        e(f"v_cvt_pk_bf16_f32 v{d+1}, v{d+2}, v{d+3}")
        e(f"buffer_store_dwordx2 v[{d}:{d+1}], v{vRo}, s[{sOut}:{sOut+3}], s{16+j} offen {OPT['out_pol']}")
    for j in range(7 - NS, 7): loads(j)
    e(f"s_waitcnt vmcnt({4*NS})")
    for j in range(7 - NS): red(j)
    for j in range(7 - NS): fin(j)
    e(f"s_waitcnt vmcnt({7 - NS})")
    for j in range(7 - NS, 7):
        a.lab(f"L_sen{j}")
        r = vO + 16*(j - (7 - NS))
        e(f"v_max3_u32 v{vT0}, v{r}, v{r+1}, v{r+2}")
        e(f"v_max3_u32 v{vT0+1}, v{r+3}, v{r+4}, v{r+5}")
        for k in range(6, 16, 4):
            e(f"v_max3_u32 v{vT0}, v{vT0}, v{r+k}, v{r+k+1}")
            if k + 2 < 16: e(f"v_max3_u32 v{vT0+1}, v{vT0+1}, v{r+k+2}, v{r+k+3}")
        e(f"v_max_u32 v{vT0}, v{vT0}, v{vT0+1}")
        e(f"v_cmp_eq_u32 vcc, -1, v{vT0}")
        e(f"s_cbranch_vccz L_sok{j}")
        e(f"s_sub_u32 s{sSpin}, s{sSpin}, 1")
        e(f"s_cbranch_scc1 L_sto{j}")
        for jj in range(j, 7): loads(jj)
        e("s_waitcnt vmcnt(0)")
        e(f"s_branch L_sen{j}")
        a.lab(f"L_sto{j}")
        e(f"s_mov_b32 s{sSpin}, 0")
        a.lab(f"L_sok{j}")
        red(j); fin(j)
    if OPT["stamps"]:
        e("s_waitcnt vmcnt(0)")
        stamp(a, 7)
        e("s_waitcnt lgkmcnt(0)")
        e(f"s_add_u32 s32, s{sWsP}, 0x4000000"); e(f"s_addc_u32 s33, s{sWsP+1}, 0"); e("s_mov_b32 s34, 0x100000"); e("s_mov_b32 s35, 0x00020000")
        e("s_lshl_b32 s3, s2, 6")
        e("v_mov_b32 v1, s3")
        for k in range(8):
            e(f"v_mov_b32 v{2+k}, s{sStamp+2*k}")
        if OPT["trace"]:
            e(f"v_writelane_b32 v{vTr}, s{sTr+4}, 59")
            e(f"v_writelane_b32 v{vTr+1}, s{sTr+6}, 59")
            e("s_lshl_b32 s3, s2, 11")
            e("s_add_u32 s3, s3, 0x10000")
            e("v_lshlrev_b32 v10, 3, v0")
            e("v_add_u32 v10, s3, v10")
            e(f"buffer_store_dwordx2 v[{vTr}:{vTr+1}], v10, s[32:35], 0 offen")
        e("v_cmp_eq_u32 vcc, 0, v0")
        e("s_and_saveexec_b64 s[36:37], vcc")
        e("s_cbranch_execz L_k1_done")
        e("buffer_store_dwordx4 v[2:5], v1, s[32:35], 0 offen")
        e("buffer_store_dwordx4 v[6:9], v1, s[32:35], 0 offen offset:16")
        e("s_waitcnt vmcnt(0)")
    a.lab("L_k1_done")
    e("s_endpgm")
    a.lab("L_poll")
    e(f"buffer_load_dword v{vF}, v{vFp}, s[{sFl}:{sFl+3}], 0 offen sc1")
    e(f"s_sub_u32 s{sSpin}, s{sSpin}, 1")
    e("s_cbranch_scc1 L_poll_to")
    e("s_waitcnt vmcnt(0)")
    e(f"v_cmp_gt_u32 vcc, s45, v{vF}")
    e("s_cbranch_vccz L_poll_ret")
    if OPT["sleep"]: e(f"s_sleep {OPT['sleep']}")
    e("s_branch L_poll")
    a.lab("L_poll_to")
    e(f"s_mov_b32 s{sSpin}, 0")
    e("s_waitcnt vmcnt(0)")
    a.lab("L_poll_ret")
    e(f"s_setpc_b64 s[{sRet}:{sRet+1}]")
    a.lab("L_chk_wait")
    e(f"buffer_load_dword v{vF}, v{vDbV}, s[{sDb}:{sDb+3}], 0 offen sc1")
    e(f"s_sub_u32 s{sSpin}, s{sSpin}, 1")
    e("s_cbranch_scc1 L_poll_to")
    e("s_waitcnt vmcnt(0)")
    e(f"v_cmp_eq_u32 vcc, 0, v{vF}")
    e("s_cbranch_vccz L_poll_ret")
    e("s_sleep 4")
    e("s_branch L_chk_wait")
    for (nm, par, first) in (("L_fix0", 0, True), ("L_fixp0", 0, False), ("L_fixp1", 1, False)):
        S, S2 = vSb[par], vSb[par ^ 1]
        Lo = vL + 2*par
        a.lab(nm)
        e("s_nop 7")
        for u in range(2):
            T, T2, r = vT0 + u, vT0 + 2, S + 8*u
            e(f"v_max3_f32 v{T}, v{r}, v{r+1}, v{r+2}")
            e(f"v_max3_f32 v{T}, v{T}, v{r+3}, v{r+4}")
            e(f"v_max3_f32 v{T}, v{T}, v{r+5}, v{r+6}")
            e(f"v_max_f32 v{T}, v{T}, v{r+7}")
            e(f"v_mov_b32 v{T2}, v{T}")
            e(f"v_permlane32_swap_b32 v{T}, v{T2}")
            e(f"v_max_f32 v{T}, v{T}, v{T2}")
            e(f"v_mov_b32 v{T2}, v{T}")
            e(f"v_permlane16_swap_b32 v{T}, v{T2}")
            e(f"v_max_f32 v{T}, v{T}, v{T2}")
            if not first:
                e(f"v_max_f32 v{T}, 0, v{T}")
                e(f"v_exp_f32 v{vAl+u}, -v{T}")
            for k in range(8):
                e(f"v_sub_f32 v{r+k}, v{r+k}, v{T}")
                e(f"v_sub_f32 v{S2+8*u+k}, v{S2+8*u+k}, v{T}")
            for k in range(4): e(f"v_sub_f32 v{vNM+4*u+k}, v{vNM+4*u+k}, v{T}")
            if not first: e(f"v_mul_f32 v{Lo+u}, v{Lo+u}, v{vAl+u}")
        for s in softmax(S, par): e(s)
        if not first:
            for r in range(128):
                e(f"v_mul_f32 v{vO+r}, v{vO+r}, v{vAl + ((r >> 3) & 1)}")
        e("s_nop 3")
        e(f"s_setpc_b64 s[{sRet}:{sRet+1}]")
    a.lab("L_k1_end")
    lines = "\n".join(a.L).split("\n")
    lines, npad = pad_hazards(lines)
    sys.stderr.write(f"k1: {len(lines)} lines, {npad} hazard pads\n")
    return "\n".join(lines) + "\n"

def desc(name, vgpr, acc, sgpr=102):
    return f""".p2align 6
.amdhsa_kernel {name}
  .amdhsa_next_free_vgpr {vgpr}
  .amdhsa_next_free_sgpr {sgpr}
  .amdhsa_accum_offset {acc}
  .amdhsa_group_segment_fixed_size 0
  .amdhsa_kernarg_size 104
  .amdhsa_user_sgpr_count 2
  .amdhsa_user_sgpr_kernarg_segment_ptr 1
  .amdhsa_system_sgpr_workgroup_id_x 1
.end_amdhsa_kernel
"""

def main():
    ref = open(f"cdna_kernels/{NAME}.s.ref").read().splitlines()
    hdr = [l for l in ref if l.startswith(";") and "@launch" not in l and "Override launch" not in l and "grid=ceil" not in l]
    out = "\n".join(hdr) + "\n"
    if OPT["lst"]:
        out += f"; @launch kernel={K1} grid=(256,1,1) block=(256,1,1) lds=163840\n"
    else:
        out += f"; @launch grid=(256,1,1) block=(256,1,1) lds=163840\n"
    out += '.amdgcn_target "amdgcn-amd-amdhsa--gfx950"\n.text\n'
    out += gen_k1(gen_k1(None))
    out += '.section .rodata,"a"\n'
    out += desc(K1, 512, 256)
    open(sys.argv[1], "w").write(out)

main()
```

```python
import sys, math, struct
from collections import defaultdict
sys.path.insert(0, "gen")
from asmlib import pad_hazards

NAME = "concat_heads__mha_block_cached__gqa_block_cached__near_ridge"
K1 = NAME + "_kernel"

OPT = dict(stamps=0, trace=0, st_pol="sc1", kv_pol="nt", w_pol="", x_pol="", out_pol="", D=6, wev=2, codepf=1,
           L1=4, PR=2.0, KA=8.5, KB=40.0, WO0=34.0, LWO=6, spw=1,
           pub="2,4", PUBD=4, NS=3, CLR=41.0, early=1, nodma=0, thr=1048576.0, tlo=2.0**-30, verbose=0, sleep=1, lst=1,
           X1=13, pfn=0, pfbit=3, pf_pol="", NP=0, PK=3.0, UP=2, j2=1, NB=8, wf=1, onorm=1, n0=4,
           p1slots="8,9,1,2,4,3,5,7,6,0,8,1,9,4,2,5,3,6,7,8,9", late=0, CLS=4, wow=-1.0, OS=1.0, OI=-1, o_pol="", o0_pol="", MF=0, MFE=1, dsp=1, dsp1=1, dph=0, diag=0)
for a in sys.argv[2:]:
    k, v = a.split("=")
    OPT[k] = type(OPT[k])(v) if not isinstance(OPT[k], str) else v.replace("+", " ")

sW, sH, sB, sBLK = 4, 5, 6, 7
sK, sV, sWq, sWo, sX, sG, sFl, sDb, sOut = 8, 12, 16, 20, 24, 28, 32, 36, 40
sWoff = 48
sXoff, sWqoff, sWooff = 49, 50, 51
sStA, sStB = 52, 53
sC, sThr = 54, 55
sNP0, sSpin = 56, 57
sRet = 58
sTmp, sTmp2 = 60, 61
sTr = 64
sWsP = 80
sStamp = 82
sTlo = 98

vKr, vVr, vWor = 10, 14, 22
vKd, vVd, vWod = 26, 28, 30
vSt = 34
vL = 35
vT0 = 39
vAl = 43
vFl, vFp, vDbA, vDbV, vF, vFv = 45, 46, 47, 48, 49, 50
vDV = 51
vSel = 52
vRd, vRo = 56, 57
vUp = 58
vTr = 60
vSb = (64, 80)
vE, vNM, vP = 96, 112, 120
vWqd, vXd = 96, 100
vWr, vXr = 64, 88
vAcc = 64
vO = 128
aX, aPk, aQ = 0, 112, 160
NB = OPT["NB"]
def aFr(i):
    k = i % NB
    return 224 + 4*k if k < 8 else 112 + 4*(k - 8)
aSen = 0
FLAGS_OFF = 32 << 20
MF = "v_mfma_f32_16x16x32_bf16"

SCALE = math.log2(math.e) / 16.0
def f32hex(x):
    return "0x%08x" % struct.unpack("<I", struct.pack("<f", x))[0]

class Em:
    def __init__(self):
        self.L = []
        self.vmq = []
        self.ldsq = []
    def e(self, s, vm=None, lds=None):
        if isinstance(s, tuple):
            return self.e(*s)
        if callable(s):
            return s(self)
        self.L.append("    " + s)
        if vm is not None: self.vmq.append(vm)
        if lds is not None: self.ldsq.append(lds)
    def lab(self, s): self.L.append(s + ":")
    def c(self, s): self.L.append("    ; " + s)
    def wait_vm(self, tags):
        idx = [i for i, t in enumerate(self.vmq) if t in tags]
        if not idx: return
        n = len(self.vmq) - 1 - max(idx)
        self.e(f"s_waitcnt vmcnt({min(n, 63)})")
        self.vmq = self.vmq[max(idx) + 1:] if n <= 63 else self.vmq[-63:]
    def wait_lds(self, tags):
        idx = [i for i, t in enumerate(self.ldsq) if t in tags]
        if not idx: return
        n = len(self.ldsq) - 1 - max(idx)
        self.e(f"s_waitcnt lgkmcnt({min(n, 15)})")
        self.ldsq = self.ldsq[max(idx) + 1:] if n <= 15 else self.ldsq[-15:]

def stamp(a, idx):
    if OPT["stamps"]:
        a.e(f"s_memrealtime s[{sStamp+2*idx}:{sStamp+2*idx+1}]")

units = []
for c in range(7): units += [("X", c), ("W", c)]
units += [("W", c) for c in range(7, 14)]
kv = [("K", 0), ("K", 1)]
for t in range(0, 14):
    kv += [("V", t), ("K", t + 2)]
kv += [("V", 14), ("V", 15)]
units += kv
units += [("O", k) for k in range(14)]
NU = len(units)
uidx = {u: n for n, u in enumerate(units)}
HS = [[2*c, 2*c+1] for c in range(7)] + [[uidx[("W", c)]] for c in range(7, 14)]
if OPT["j2"]:
    HS[12] = [uidx[("W", 12)], uidx[("W", 13)]]; HS[13] = []
for n in range(21, NU): HS.append([n])
needed, consumed = {}, {}
for H, us in enumerate(HS):
    for n in us: consumed[n] = H; needed[n] = H
if OPT["j2"]: consumed[uidx[("W", 12)]] = consumed[uidx[("W", 13)]] = 13
NP = OPT["NP"]
assert NP <= 3
parked = {21 + i: aPk + 16*i for i in range(NP)}
P1SLOT = [int(x) for x in OPT["p1slots"].split(",")]
assert len(P1SLOT) == 21 and (NB <= 8 or NP == 0)
def fixed_slot(n):
    t, i = units[n]
    if t in "XW": return P1SLOT[n]
    if t == "K": return i & 3
    if t == "V": return 4 + (i & 3)
    if t == "O" and i < 2: return 8 + i
    return None
iss = []
for n in range(21):
    iss.append((-1 if n < OPT["n0"] else max(0, int(round(16*(n - OPT["L1"])/OPT["PR"]))), n))
for i in range(NP): iss.append((int(round(16*OPT["PK"])), 21 + i))
stream = list(range(21 + NP, 53))
if OPT["OI"] >= 0:
    stream.insert(OPT["OI"], 53); stream.insert(OPT["OI"] + 2, 54)
for i, n in enumerate(stream):
    iss.append((int(round(16*(OPT["KA"] + (OPT["KB"] - OPT["KA"])*i/(len(stream) - 1)))), n))
for k in range(2 if OPT["OI"] >= 0 else 0, 14):
    pos = max(16*(46 + k - OPT["LWO"]), 16*(OPT["WO0"] + OPT["OS"]*k))
    iss.append((int(pos), 53 + k))
iss.sort(key=lambda x: x[0])

slot_of = {}
def dma(n):
    t, i = units[n]
    g = []
    pk = parked.get(n)
    for jj in range(4):
        ins = []
        if jj == 0:
            if pk is None: ins.append(f"s_add_u32 m0, s{sWoff}, {slot_of[n]*16384}")
            if t in "KV": ins.append(f"s_mov_b32 s{sTmp}, {i*16384}")
            elif t == "O" and (i & 1): ins.append(f"s_add_u32 s{sTmp}, s{sWooff}, {128*896}")
            elif t == "W" and i == 7: ins += [f"s_add_u32 s{sWq}, s{sWq}, 256", f"s_addc_u32 s{sWq+1}, s{sWq+1}, 0"]
        off = f" offset:{jj*1024}" if jj else ""
        dst = "" if pk is None else f"a[{pk+4*jj}:{pk+4*jj+3}], "
        lds = " lds" if pk is None else ""
        if t == "K": ld = f"buffer_load_dwordx4 {dst}v{vKd+(jj&1)}, s[{sK}:{sK+3}], s{sTmp} offen{off} {OPT['kv_pol']}{lds}"
        elif t == "V": ld = f"buffer_load_dwordx4 {dst}v{vVd+(jj&1)}, s[{sV}:{sV+3}], s{sTmp} offen{off} {OPT['kv_pol']}{lds}"
        elif t == "W": ld = f"buffer_load_dwordx4 v{vWqd+jj}, s[{sWq}:{sWq+3}], s{sWqoff} offen{off} {OPT['w_pol']} lds"
        elif t == "X": ld = f"buffer_load_dwordx4 v{vXd+jj}, s[{sX}:{sX+3}], s{sXoff} offen{off} {OPT['x_pol']} lds"
        elif t == "O":
            so = sTmp if (i & 1) else sWooff
            ld = f"buffer_load_dwordx4 v{vWod+jj}, s[{sWo}:{sWo+3}], s{so} offen{off} {OPT['o0_pol'] if i < 2 else OPT['o_pol']} lds"
        if OPT["MF"] and t in "KV" and jj % OPT["MFE"] == 0:
            def lim(a):
                k = OPT["MF"] - OPT["MFE"]
                if len(a.vmq) > k:
                    a.e(f"s_waitcnt vmcnt({k})")
                    a.vmq = a.vmq[len(a.vmq) - k:]
            lim.cost = 1
            ins.append(lim)
        if not OPT["nodma"]: ins.append((ld, f"u{n}"))
        if jj == 3:
            if t == "W" and i < 13: ins += [f"s_add_u32 s{sWqoff}, s{sWqoff}, {64*8192}", f"s_cmp_eq_u32 s{sWqoff}, {448*8192}", f"s_cselect_b32 s{sWqoff}, 0, s{sWqoff}"]
            if t == "X" and i < 6: ins += [f"s_add_u32 s{sXoff}, s{sXoff}, 128", f"s_cmp_eq_u32 s{sXoff}, 896", f"s_cselect_b32 s{sXoff}, 0, s{sXoff}"]
            if t == "O" and (i & 1) and i < 13: ins += [f"s_add_u32 s{sWooff}, s{sWooff}, 128", f"s_cmp_eq_u32 s{sWooff}, 896", f"s_cselect_b32 s{sWooff}, 0, s{sWooff}"]
        g.append(ins)
    return g

GROUPS = {"K": (vKr, 4), "V": (vVr, 8), "O": (vWor, 4), "W": (vWr, 8), "X": (vXr, 2)}

class Item:
    def __init__(self, H, mf, reads):
        self.H = H; self.mf = mf; self.reads = reads
        self.first = False

def tr_reads(grp, ridx, n, off0, off1):
    return [("ds_read_b64_tr_b16", "a[{b}:{b1}]", grp, ridx, n, off0), ("ds_read_b64_tr_b16", "a[{b2}:{b3}]", grp, ridx, n, off1)]

def acc_of(base, T, u): return base + 16*(T >> 1) + 8*u + 4*(T & 1)
def q4(r, k="v"): return f"{k}[{r}:{r+3}]"

def cost(s):
    if isinstance(s, list): return sum(cost(x) for x in s)
    if callable(s): return getattr(s, "cost", 2)
    if isinstance(s, tuple): s = s[0]
    return 2 if s.startswith(("v_exp", "v_rcp")) else 1

def gen_k1(BASE):
    a = Em()
    e = a.e
    slot_of.clear()
    slot_free_at = [-10]*10
    slot_free_pos = [-10]*10
    last_slot = {"O": 8}
    def alloc(n, Hbar, p=0):
        t = units[n][0]
        s = fixed_slot(n)
        if s is not None and slot_free_pos[s] > p: return False
        if s is None:
            pend = {fixed_slot(m) for m in range(NU) if m not in slot_of}
            fr = [s for s in range(10) if slot_free_at[s] <= Hbar and s not in pend]
            if not fr: return False
            same = [s for s in fr if s // 4 == last_slot[t] // 4]
            s = (same or fr)[0]
        elif slot_free_at[s] > Hbar: return False
        slot_of[n] = s; last_slot[t] = s
        if t == "X": slot_free_pos[s] = 16*consumed[n] + 2
        else: slot_free_at[s] = consumed[n] + 2
        return True

    a.L.append(f".globl {K1}\n.p2align 8\n.type {K1},@function\n{K1}:")
    e("s_cmp_ge_u32 s2, 256")
    e("s_cbranch_scc1 L_k1_done")
    stamp(a, 0)
    e("s_and_b32 s3, s2, 7")
    e(f"s_lshr_b32 s{sBLK}, s3, 2")
    e(f"s_mul_i32 s{sTmp}, s{sBLK}, 40")
    e(f"s_add_u32 s44, s0, s{sTmp}")
    e("s_addc_u32 s45, s1, 0")
    e("s_load_dwordx2 s[64:65], s[44:45], 0")
    e("s_load_dwordx4 s[72:75], s[44:45], 24")
    e("s_load_dwordx4 s[68:71], s[44:45], 8")
    e("s_load_dwordx4 s[76:79], s[0:1], 80")
    e(f"s_load_dwordx2 s[{sWsP}:{sWsP+1}], s[0:1], 96")
    e("v_lshrrev_b32 v1, 6, v0")
    e("v_and_b32 v2, 63, v0")
    e("s_and_b32 s3, s3, 3")
    e(f"v_readfirstlane_b32 s{sW}, v1")
    e("s_lshl_b32 s3, s3, 2")
    e(f"s_lshr_b32 s{sB}, s2, 3")
    e(f"s_and_b32 s{sH}, s{sB}, 3")
    e(f"s_lshl_b32 s{sTmp}, s{sH}, 1")
    e(f"s_add_u32 s{sH}, s{sH}, s3")
    e(f"s_lshr_b32 s{sB}, s{sB}, 2")
    e(f"s_add_u32 s{sTmp}, s{sTmp}, s{sB}")
    for _ in range(2):
        e(f"s_cmp_ge_u32 s{sTmp}, 7"); e(f"s_cselect_b32 s3, 7, 0"); e(f"s_sub_u32 s{sTmp}, s{sTmp}, s3")
    e(f"s_lshl_b32 s{sXoff}, s{sTmp}, 7")
    e(f"s_lshl_b32 s{sWqoff}, s{sTmp}, 19")
    e("v_and_b32 v3, 15, v2")
    e("v_lshrrev_b32 v4, 4, v2")
    e(f"s_lshl_b32 s{sWoff}, s{sW}, 12")
    e("v_lshrrev_b32 v5, 3, v2")
    e("v_mul_u32_u24 v5, 896, v5")
    e(f"s_mul_i32 s3, s{sW}, {32*896}")
    e("v_and_b32 v6, 7, v2")
    e(f"v_add_u32 v{vWod}, s3, v5")
    e("v_xor_b32 v6, v6, v4")
    e(f"v_lshl_add_u32 v{vXd}, v6, 4, v{vWod}")
    e(f"v_xor_b32 v5, 64, v{vXd}")
    e(f"v_add_u32 v{vXd+1}, 6144, v5")
    e(f"v_add_u32 v{vXd+2}, {2*6144}, v{vXd}")
    e(f"v_add_u32 v{vXd+3}, {3*6144}, v5")
    e(f"s_lshl_b32 s3, s{sW}, 17")
    e(f"s_lshl_b32 s{sTmp}, s{sH}, 9")
    e(f"s_add_u32 s3, s3, s{sTmp}")
    e("v_lshlrev_b32 v6, 1, v4")
    e("v_xor_b32 v6, v6, v3")
    e("v_lshlrev_b32 v6, 4, v6")
    e("v_lshl_add_u32 v6, v4, 13, v6")
    e(f"v_add_u32 v{vWqd}, s3, v6")
    e(f"v_xor_b32 v7, 0x80, v{vWqd}")
    e(f"v_add_u32 v{vWqd+1}, {32768-1024}, v{vWqd}")
    e(f"v_add_u32 v{vWqd+2}, {2*(32768-1024)}, v7")
    e(f"v_add_u32 v{vWqd+3}, {3*(32768-1024)}, v7")
    for s, sz in ((sX, 114688), (sWq, 448*8192), (sK, 262144), (sV, 262144)):
        e(f"s_mov_b32 s{s+2}, {sz}"); e(f"s_mov_b32 s{s+3}, 0x00020000")
    e(f"s_mul_i32 s46, s{sB}, 114688")
    e(f"s_lshl_b32 s47, s{sB}, 4")
    e(f"s_add_u32 s47, s47, s{sH}")
    e(f"s_lshl_b32 s47, s47, 18")
    if OPT["spw"]:
        e("v_lshrrev_b32 v8, 2, v0")
        e("v_lshlrev_b32 v8, 13, v8")
        e("v_and_b32 v9, 3, v0")
        e("v_lshl_add_u32 v8, v9, 6, v8")
        e(f"v_add_u32 v8, s{sTmp}, v8")
    e("s_waitcnt lgkmcnt(0)")
    e(f"s_add_u32 s{sX}, s64, s46"); e(f"s_addc_u32 s{sX+1}, s65, 0")
    e(f"s_mov_b32 s{sWq}, s72"); e(f"s_mov_b32 s{sWq+1}, s73")
    e(f"s_add_u32 s{sK}, s68, s47"); e(f"s_addc_u32 s{sK+1}, s69, 0")
    e(f"s_add_u32 s{sV}, s70, s47"); e(f"s_addc_u32 s{sV+1}, s71, 0")
    if OPT["pfn"]:
        if OPT["pfbit"] >= 0:
            e(f"s_bitcmp1_b32 s2, {OPT['pfbit']}")
            e("s_cbranch_scc0 L_nopf")
        elif OPT["pfbit"] == -2:
            e("s_lshr_b32 s3, s2, 2"); e("s_xor_b32 s3, s3, s2"); e("s_bitcmp1_b32 s3, 3")
            e("s_cbranch_scc0 L_nopf")
        e("v_lshlrev_b32 v5, 7, v2")
        e(f"s_and_b32 s3, s{sW}, 1"); e("s_lshl_b32 s3, s3, 13")
        e("v_add_u32 v5, s3, v5")
        e(f"s_cmp_ge_u32 s{sW}, 2")
        e("s_cbranch_scc1 L_pf_hi")
        for part in range(2):
            for k in range(part, OPT["pfn"], 2):
                t, i = units[21 + k]
                sr = sK if t == "K" else sV
                e(f"s_mov_b32 s{sTmp2}, {i*16384}")
                e(f"buffer_load_dword a{aQ+2+k//2}, v5, s[{sr}:{sr+3}], s{sTmp2} offen {OPT['pf_pol']}")
            if part == 0:
                e("s_branch L_nopf")
                a.lab("L_pf_hi")
        a.lab("L_nopf")
    ip = [0]
    while iss[ip[0]][0] < 0:
        m = iss[ip[0]][1]; ip[0] += 1
        assert alloc(m, 0)
        if m == 1 and OPT["spw"]:
            e(f"buffer_load_dword a{aQ+1}, v8, s[{sWq}:{sWq+3}], s{sWqoff} offen offset:256 {OPT['w_pol']}", "pf")
        for g in dma(m):
            for s in g: e(s)
    if OPT["codepf"]:
        e("s_getpc_b64 s[62:63]")
        a.lab("L_pc")
        e("s_lshr_b32 s3, s2, 3")
        e("s_lshl_b32 s3, s3, 12")
        e("v_lshlrev_b32 v5, 4, v0")
        e("v_add_u32 v5, s3, v5")
        e("v_min_u32 v5, L_k1_end-L_pc-8, v5")
        e(f"global_load_dword a{aQ}, v5, s[62:63]", "pf")
    e("v_bfe_u32 v6, v2, 2, 2")
    e("v_and_b32 v7, 3, v2")
    e("v_bfe_u32 v5, v2, 2, 3")
    e("v_lshl_add_u32 v8, v4, 3, v6")
    e("v_lshlrev_b32 v9, 5, v5")
    e("v_lshl_add_u32 v9, v7, 3, v9")
    e("v_lshl_add_u32 v9, v8, 8, v9")
    e("v_lshl_add_u32 v8, v8, 8, v9")
    e(f"v_add_u32 v{vVr}, 0x10000, v8")
    for w in (2, 0, 1):
        e(f"v_add_u32 v{vWr+8*w}, {w*65536}, v9")
        for T in range(1, 8): e(f"v_xor_b32 v{vWr+8*w+T}, {T<<5}, v{vWr+8*w}")
    e("v_lshrrev_b32 v5, 1, v3"); e("v_xor_b32 v5, v5, v4"); e("v_lshlrev_b32 v5, 4, v5")
    e("v_lshl_add_u32 v5, v3, 7, v5")
    e(f"v_add_u32 v{vXr}, s{sWoff}, v5")
    e(f"v_xor_b32 v{vXr+1}, 64, v{vXr}")
    for w in (2, 1):
        e(f"v_add_u32 v{vXr+2*w}, {w*65536}, v{vXr}"); e(f"v_add_u32 v{vXr+2*w+1}, {w*65536}, v{vXr+1}")
    for s, sz in ((sWo, 229376), (sG, 16*114688), (sFl, 1024), (sDb, 256), (sOut, 128*1792)):
        e(f"s_mov_b32 s{s+2}, {sz}"); e(f"s_mov_b32 s{s+3}, 0x00020000")
    e(f"s_cmp_eq_u32 s{sB}, 7"); e(f"s_cselect_b32 s3, 0, s{sB}")
    e(f"s_lshl_b32 s{sWooff}, s3, 7")
    e(f"s_lshl_b32 s{sStA}, s3, 12")
    e(f"s_mov_b32 s{sNP0}, s{sStA}")
    e(f"s_mul_i32 s3, s{sH}, 229376")
    e(f"s_add_u32 s{sWo}, s74, s3"); e(f"s_addc_u32 s{sWo+1}, s75, 0")
    e(f"s_lshl_b32 s46, s{sBLK}, 3")
    e(f"s_add_u32 s46, s46, s{sB}")
    e(f"s_mul_i32 s3, s46, {16*114688}")
    e(f"s_add_u32 s{sG}, s{sWsP}, s3"); e(f"s_addc_u32 s{sG+1}, s{sWsP+1}, 0")
    e(f"s_lshl_b32 s3, s46, 10")
    e(f"s_add_u32 s3, s3, {FLAGS_OFF}")
    e(f"s_add_u32 s{sFl}, s{sWsP}, s3"); e(f"s_addc_u32 s{sFl+1}, s{sWsP+1}, 0")
    e(f"s_mov_b32 s{sDb}, s78"); e(f"s_mov_b32 s{sDb+1}, s79")
    e(f"s_mul_i32 s3, s{sB}, {128*1792}")
    e(f"s_add_u32 s{sOut}, s76, s3"); e(f"s_addc_u32 s{sOut+1}, s77, 0")
    e(f"s_mov_b32 s{sC}, {f32hex(SCALE)}")
    e(f"s_mov_b32 s{sThr}, {f32hex(OPT['thr'])}")
    e(f"s_mov_b32 s{sTlo}, {f32hex(OPT['tlo'])}")
    e(f"s_mov_b32 s{sSpin}, 0x8000")
    if OPT["diag"]:
        e("s_getreg_b32 s3, hwreg(HW_REG_XCC_ID, 0, 4)")
        e("s_sub_u32 s3, s3, s2"); e("s_and_b32 s3, s3, 7"); e("s_lshl_b32 s3, 1, s3")
        e("v_mov_b32 v5, s3"); e("v_lshlrev_b32 v8, 12, v0"); e("v_add_u32 v8, 128, v8")
        e(f"buffer_atomic_or v5, v8, s[{sDb}:{sDb+3}], 0 offen sc1", "pf")
    stamp(a, 1)
    late = []
    l = late.append
    l("v_lshrrev_b32 v5, 5, v2"); l("v_and_b32 v9, 31, v2")
    l("v_lshlrev_b32 v8, 9, v5"); l(f"v_add_u32 v8, s{sWoff}, v8")
    l(f"s_lshl_b32 s3, s{sW}, 2")
    l("v_xor_b32 v1, v9, v5"); l("v_xor_b32 v1, s3, v1")
    l(f"v_lshl_add_u32 v{vKd}, v1, 4, v8")
    l(f"v_xor_b32 v{vKd+1}, 32, v{vKd}")
    l(f"s_and_b32 s3, s{sW}, 1"); l("s_lshl_b32 s3, s3, 3")
    l("v_lshlrev_b32 v5, 1, v5"); l("v_xor_b32 v1, v9, v5"); l("v_xor_b32 v1, s3, v1")
    l(f"v_lshl_add_u32 v{vVd}, v1, 4, v8")
    l(f"v_xor_b32 v{vVd+1}, 64, v{vVd}")
    l(f"s_mul_i32 s3, s{sW}, 28672"); l(f"s_mul_i32 s44, s{sH}, 114688"); l("s_add_u32 s3, s3, s44")
    l("v_lshl_add_u32 v5, v3, 2, v4")
    l(f"v_lshl_add_u32 v{vSt}, v5, 4, s3")
    for T in range(1, 8): l(f"v_xor_b32 v{vVr+T}, {T<<5}, v{vVr}")
    if OPT["CLR"] < 14:
        for r in range(4): l(f"v_mov_b32 v{vE+8+r}, -1")
    if OPT["wow"] >= 0:
        l(f"s_mul_i32 s3, s{sB}, 28672"); l(f"v_lshl_add_u32 v{vE+12}, v0, 7, s3")
    l(f"s_lshl_b32 s3, s{sW}, 8"); l(f"s_lshl_b32 s44, s{sH}, 2"); l("s_add_u32 s3, s3, s44")
    l(f"v_lshl_add_u32 v{vFl}, v2, 12, s3")
    l("v_lshlrev_b32 v5, 2, v3")
    l(f"s_lshr_b32 s3, s{sH}, 2"); l("s_lshl_b32 s3, s3, 8")
    l(f"v_add_u32 v{vFp}, s3, v5")
    l("v_lshl_add_u32 v5, v4, 8, v5")
    l([f"s_or_b32 s3, s{sH}, s{sW}", "s_cmp_eq_u32 s3, 0", "s_cselect_b32 s45, 0, 0x10000"])
    l("v_add_u32 v5, s45, v5")
    l(f"v_mov_b32 v{vL}, 0"); l(f"v_mov_b32 v{vL+1}, 0")
    l((f"buffer_store_dword v{vL}, v5, s[{sFl}:{sFl+3}], 0 offen sc1", "clr"))
    l("s_lshl_b32 s44, s46, 2"); l("s_add_u32 s45, s45, s44")
    l(f"v_lshl_add_u32 v{vDbA}, v2, 12, s45")
    l(f"v_mov_b32 v{vDbV}, s44")
    l(f"v_mov_b32 v{vFv}, 1")
    l("v_lshrrev_b32 v5, 1, v4"); l("v_and_b32 v8, 1, v4"); l("v_lshl_add_u32 v5, v8, 1, v5")
    l("v_xor_b32 v5, v5, v3"); l("v_lshlrev_b32 v5, 4, v5")
    l("v_lshl_add_u32 v8, v6, 3, v7")
    l(f"v_lshl_add_u32 v{vKr}, v8, 9, v5")
    for s in range(1, 4): l(f"v_xor_b32 v{vKr+s}, {s<<6}, v{vKr}")
    l("v_lshrrev_b32 v5, 2, v2"); l("v_lshlrev_b32 v5, 7, v5")
    l("v_bfe_u32 v8, v2, 3, 2"); l("v_lshl_add_u32 v5, v8, 5, v5")
    l("v_lshl_add_u32 v5, v7, 3, v5")
    l(f"v_add_u32 v{vWor}, 0x20000, v5")
    for n in range(1, 4): l(f"v_xor_b32 v{vWor+n}, {n<<5}, v{vWor}")
    l("v_and_b32 v8, 7, v2"); l("v_lshlrev_b32 v9, 1, v4"); l("v_xor_b32 v8, v8, v9")
    l(f"v_lshl_add_u32 v{vWod}, v8, 4, v{vWod}")
    for jj in range(1, 4): l(f"v_add_u32 v{vWod+jj}, {jj*(7168-1024)}, v{vWod}")
    for r in range(8): l(f"v_mov_b32 v{vNM+r}, 0")
    if NP:
        l(f"v_lshl_add_u32 v{vUp}, v2, 4, s{sWoff}"); l(f"v_add_u32 v{vUp+1}, 0x10000, v{vUp}")
    l(f"s_lshr_b32 s44, s{sH}, 2"); l("s_mul_i32 s3, s44, 28672")
    l(f"s_and_b32 s45, s{sH}, 3"); l("s_lshl_b32 s45, s45, 10"); l("s_add_u32 s3, s3, s45")
    l(f"s_lshl_b32 s45, s{sW}, 8"); l("s_add_u32 s3, s3, s45")
    l("v_mul_u32_u24 v5, 114688, v4"); l("v_lshl_add_u32 v5, v3, 4, v5")
    l(f"v_add_u32 v{vRd}, s3, v5")
    l("s_lshl_b32 s3, s44, 5"); l(f"s_and_b32 s45, s{sH}, 1"); l("s_lshl_b32 s45, s45, 4"); l("s_add_u32 s3, s3, s45")
    l(f"s_lshl_b32 s45, s{sW}, 2"); l("s_add_u32 s3, s3, s45"); l("s_mul_i32 s3, s3, 1792")
    l(f"s_mul_i32 s45, s{sBLK}, 896"); l("s_add_u32 s3, s3, s45")
    l(f"s_and_b32 s45, s{sH}, 2"); l("s_lshl_b32 s45, s45, 5"); l("s_add_u32 s3, s3, s45")
    l("v_mul_u32_u24 v5, 1792, v6"); l("v_lshl_add_u32 v5, v7, 3, v5")
    l("v_and_b32 v8, 1, v4"); l("v_lshl_add_u32 v5, v8, 5, v5")
    l("v_lshrrev_b32 v8, 1, v4"); l("v_lshl_add_u32 v5, v8, 24, v5")
    l(f"v_add_u32 v{vRo}, s3, v5")
    l("v_and_b32 v5, 1, v2"); l("v_lshlrev_b32 v5, 4, v5"); l("v_mov_b32 v8, 0x3f80"); l("v_lshlrev_b32 v5, v5, v8")
    l("v_bfe_u32 v8, v2, 1, 2")
    for r in range(4):
        l(f"v_cmp_eq_u32 vcc, {r}, v8"); l("s_nop 0"); l(f"v_cndmask_b32 v{vSel+r}, 0, v5, vcc")

    items = []
    fill = defaultdict(list)
    def add(p, ins):
        fill[p].extend(ins if isinstance(ins, list) else [ins])
    load = defaultdict(float, BASE or {})
    def spread(p0, p1, ins):
        n = p1 - p0 + 1
        if not OPT["wf"]:
            for k, s in enumerate(ins): add(p0 + (k*n)//len(ins), [s])
            return
        if BASE is None: return
        tot = cost(ins)
        lo, hi = 0.0, 100.0
        for _ in range(40):
            L = (lo + hi)/2
            if sum(max(0.0, L - load[p]) for p in range(p0, p1 + 1)) >= tot: hi = L
            else: lo = L
        k, bud = 0, 1e-6
        for p in range(p0, p1 + 1):
            bud += max(0.0, hi - load[p])
            while k < len(ins) and (bud >= cost(ins[k])/2 or p == p1):
                add(p, [ins[k]]); load[p] += cost(ins[k]); bud -= cost(ins[k]); k += 1
    if OPT["late"]: spread(0, 16*6, late)
    else:
        for s in late:
            for x in (s if isinstance(s, list) else [s]): e(x)
    def p1item(H, i, T, kap):
        half, c = i // 7, i % 7
        n = uidx[("W", i)]
        mf = []
        for u in range(2):
            acc = acc_of(vO, 8*half + T, u)
            cin = "0" if (c == 0 and kap == 0) else q4(acc)
            mf.append(f"{MF} {q4(acc)}, a[{{b}}:{{b3}}], {q4(aX + 16*c + 8*kap + 4*u, 'a')}, {cin}")
        rd = tr_reads("W", T, n, kap*8192, kap*8192 + 1024)
        if i < 7 and T == 0:
            rd = [("ds_read_b128", q4(aX + 16*c + 8*kap + 4*u, "a"), "X", kap, uidx[("X", c)], u*2048) for u in range(2)] + rd
        items.append(Item(H, mf, rd))
    done_at = {}
    for H in range(14):
        if OPT["j2"] and H >= 12:
            for T in range(4*(H-12), 4*(H-12)+4):
                for i in (12, 13):
                    for kap in range(2): p1item(H, i, T, kap)
                done_at[4 + T//2] = len(items) - 1
        else:
            for T in range(8):
                for kap in range(2): p1item(H, H, T, kap)
                if H % 7 == 6: done_at[4*(H//7) + T//2] = len(items) - 1
    def qconv(s):
        t = []
        R = [vO + 16*s, vO + 16*s + 8]
        for r in R:
            for j in range(8): t.append(f"v_mul_f32 v{r+j}, s{sC}, v{r+j}")
        for r in R:
            for j in range(4): t.append(f"v_cvt_pk_bf16_f32 v{r+j}, v{r+2*j}, v{r+2*j+1}")
        for r in R:
            t += [f"v_permlane16_swap_b32 v{r}, v{r+2}", f"v_permlane16_swap_b32 v{r+1}, v{r+3}"]
        for u, r in enumerate(R):
            for j in range(4): t.append(f"v_accvgpr_write_b32 a{aQ+8*s+4*u+j}, v{r+j}")
        return t
    t = []
    for s in range(4): t += qconv(s)
    spread(7*16 + 2, 12*16 + 6, t)
    if OPT["j2"]:
        lim = [(done_at[4]+2, done_at[4]+12), (done_at[4]+13, done_at[6]+1), (done_at[6]+2, done_at[6]+11), (done_at[6]+12, 14*16+12)]
    else:
        lim = [(13*16+5+6*k, 13*16+10+6*k) for k in range(4)]
    for k, (p0, p1) in enumerate(lim):
        assert p0 >= done_at[4+k] + 2 and p1 < 14*16 + 2*(4+k) - 1, (k, p0, p1)
        spread(p0, p1, qconv(4 + k))

    def qk(H, n, S):
        for f in range(16):
            s, ee = f >> 1, f & 1
            mf = []
            for u in range(2):
                acc = S + 8*u + 4*ee
                cin = q4(vNM + 4*u) if s == 0 else q4(acc)
                mf.append(f"{MF} {q4(acc)}, a[{{b}}:{{b3}}], {q4(aQ + 8*s + 4*u, 'a')}, {cin}")
            items.append(Item(H, mf, [("ds_read_b128", "a[{b}:{b3}]", "K", s & 3, n, (s >> 2)*256 + ee*2048)]))
    def pv(H, n, P, first):
        for T in range(16):
            mf = []
            for u in range(2):
                acc = acc_of(vO, T, u)
                mf.append(f"{MF} {q4(acc)}, a[{{b}}:{{b3}}], {q4(P + 4*u)}, {'0' if first else q4(acc)}")
            o = (T >> 3)*256
            items.append(Item(H, mf, tr_reads("V", T & 7, n, o, o + 2048)))
    EORD = [0, 1, 2, 3, 8, 9, 10, 11, 4, 5, 6, 7, 12, 13, 14, 15]
    Pb = (vP, vE + 8)
    def softmax(S, par):
        Lo, Ln, P = vL + 2*par, vL + 2*(par ^ 1), Pb[par]
        L = []
        seen = set()
        def addk(i):
            u = EORD[i] >> 3
            src = Ln + u if u in seen else Lo + u
            seen.add(u)
            return f"v_add_f32 v{Ln+u}, v{src}, v{vE+(i&7)}"
        cv = lambda i: f"v_cvt_pk_bf16_f32 v{P+EORD[i]//2}, v{vE+(i&7)}, v{vE+((i+1)&7)}"
        for i, k in enumerate(EORD):
            L.append(f"v_exp_f32 v{vE+(i&7)}, v{S+k}")
            if i >= 1: L.append(addk(i-1))
            if i >= 2 and i % 2 == 0: L.append(cv(i-2))
        L += [addk(15), cv(14)]
        return L
    lblc = [0]
    def check(t):
        lblc[0] += 1
        k = lblc[0]
        Ln = vL + 2*((t & 1) ^ 1)
        nm = "L_fix0" if t == 0 else f"L_fixp{t & 1}"
        def f(a):
            a.e(f"v_max_f32 v{vT0}, v{Ln}, v{Ln+1}")
            if t == 0:
                a.e(f"v_min_f32 v{vT0+1}, v{Ln}, v{Ln+1}")
                a.e(f"v_cmp_lt_f32 vcc, s{sThr}, v{vT0}")
                a.e(f"v_cmp_gt_f32 s[44:45], s{sTlo}, v{vT0+1}")
                a.e("s_or_b64 s[44:45], s[44:45], vcc")
                a.e(f"s_cbranch_scc0 L_nm{k}")
            else:
                a.e(f"v_cmp_lt_f32 vcc, s{sThr}, v{vT0}")
                a.e(f"s_cbranch_vccz L_nm{k}")
            a.e(f"s_call_b64 s[{sRet}:{sRet+1}], {nm}")
            a.lab(f"L_nm{k}")
        f.after2 = (t == 15)
        f.cost = 3
        return f
    H = 14
    qk(H, 21, vSb[0]); H += 1
    qk(H, 22, vSb[1])
    add(16*H + 15, [check(0)])
    spread(16*H + 1, 16*H + 14, softmax(vSb[0], 0))
    H += 1
    for t in range(1, 16):
        n = uidx[("V", t-1)]
        assert consumed[n] == H
        pv(H, n, Pb[(t-1) & 1], t == 1)
        p0 = 16*H
        H += 1
        if t <= 14:
            n = uidx[("K", t+1)]
            assert consumed[n] == H
            qk(H, n, vSb[(t+1) & 1])
            H += 1
        add(16*H - 1, [check(t)])
        spread(p0 + 1, 16*H - 2, softmax(vSb[t & 1], t & 1))
    n = uidx[("V", 15)]
    assert consumed[n] == H and H == 45
    pv(H, n, Pb[1], False)
    L0, L1 = vL, vL + 1
    fin = [f"v_permlane32_swap_b32 v{L0}, v{L1}", f"v_add_f32 v{L0}, v{L0}, v{L1}", f"v_mov_b32 v{L1}, v{L0}",
           f"v_permlane16_swap_b32 v{L0}, v{L1}", f"v_add_f32 v{L0}, v{L0}, v{L1}", f"v_rcp_f32 v{vAl}, v{L0}",
           f"v_mov_b32 v{vAl+1}, v{vAl}", f"v_permlane32_swap_b32 v{vAl}, v{vAl+1}"]
    ON = OPT["onorm"]
    for k, s in enumerate(fin): add((45*16 + k//2) if ON else (47*16 - 12 + k), s)
    p = 16*H + (4 if ON else 3)
    for s in range(8):
        t = []
        R = [vO + 16*s, vO + 16*s + 8]
        if ON:
            for u, r in enumerate(R): t += [f"v_mul_f32 v{r+j}, v{r+j}, v{vAl+u}" for j in range(8)]
        for r in R: t += [f"v_cvt_pk_bf16_f32 v{r+j}, v{r+2*j}, v{r+2*j+1}" for j in range(4)]
        w = 5 if ON else 3
        assert p >= 16*H + 2*s + 3 and p + w - 1 <= 16*H + 16 + 4*s - 1
        spread(p, p + w - 1, t)
        p += w
    H += 1
    def epilogue(acc, so, q, j):
        u = q & 1
        g = [] if ON else [f"v_mul_f32 v{acc+r}, v{acc+r}, v{vAl+u}" for r in range(8)]
        g += [f"v_cvt_pk_bf16_f32 v{acc+jj}, v{acc+2*jj}, v{acc+2*jj+1}" for jj in range(4)]
        offs = f" offset:{q*1024}" if q else ""
        g.append((f"buffer_store_dwordx4 {q4(acc)}, v{vSt}, s[{sG}:{sG+3}], s{so} offen{offs} {OPT['st_pol']}", f"st{j}"))
        return g
    NS = OPT["NS"]
    pubs = [int(x) for x in OPT["pub"].split(",")]
    assert pubs[-1] == 7 - NS
    def publish(cnt):
        def f(a):
            a.wait_vm({f"st{j}" for j in range(cnt)} | {"sen"})
            a.e(f"v_mov_b32 v{vFv}, {cnt}")
            a.e(f"buffer_store_dword v{vFv}, v{vFl}, s[{sFl}:{sFl+3}], 0 offen sc1", "pub")
        return f
    late_pubs = []
    for j in range(7):
        so = sStA if j % 2 == 0 else sStB
        so2 = sStB if j % 2 == 0 else sStA
        A = vAcc + 32*(j & 1)
        for hf in range(2):
            n = uidx[("O", 2*j+hf)]
            assert consumed[n] == H
            order = [(nn, s4) for nn in range(4) for s4 in range(4)]
            if j == 0: order = [(nn, s4) for s4 in range(4) for nn in range(4)]
            for (nn, s4) in order:
                s = 4*hf + s4
                mf = []
                for u in range(2):
                    acc = acc_of(A, nn, u)
                    mf.append(f"{MF} {q4(acc)}, a[{{b}}:{{b3}}], {q4(vO + 16*s + 8*u)}, {'0' if s == 0 else q4(acc)}")
                items.append(Item(H, mf, tr_reads("O", nn, n, s4*4096, s4*4096 + 2048)))
            H += 1
        pend = 16*H
        g0 = epilogue(A, so, 0, j) + epilogue(A + 8, so, 1, j)
        g1 = epilogue(A + 16, so, 2, j) + epilogue(A + 24, so, 3, j)
        if j < 6:
            spread(pend - 7 if j else pend + 1, pend + 8, g0)
            spread(pend + 9, pend + 23, g1)
            add(pend - 8, [[f"s_add_u32 s{so2}, s{so}, 4096", f"s_cmp_eq_u32 s{so2}, 28672", f"s_cselect_b32 s{so2}, 0, s{so2}"]])
        else:
            spread(pend - 7, pend - 1, g0)
            tail_epi = g1
        if j + 1 in pubs:
            pp = pend + 25 + 16*OPT["PUBD"]
            if pp < 960 - 2: add(pp, [publish(j + 1)])
            else: late_pubs.append(j + 1)
    N = len(items)
    assert N == 960
    for p in range(N):
        if p % 16 == 0: items[p].first = True
    p = int(16*OPT["CLR"])
    for j in range(7 - NS, 7):
        add(p, [[f"s_add_u32 s44, s{sNP0}, {j*4096}", "s_cmp_ge_u32 s44, 28672", "s_cselect_b32 s45, 28672, 0", "s_sub_u32 s44, s44, s45"]])
        for q in range(4):
            offs = f" offset:{q*1024}" if q else ""
            add(p + 1 + q*OPT["CLS"], [(f"buffer_store_dwordx4 {q4(vE + 8) if OPT['CLR'] < 14 else q4(aSen, 'a')}, v{vSt}, s[{sG}:{sG+3}], s44 offen{offs} {OPT['st_pol']}", "sen")])
        p += 4*OPT["CLS"]
    assert p < 47*16
    if OPT["CLR"] >= 14: spread(14*16 + 12, 15*16, [f"v_accvgpr_write_b32 a{aSen+r}, -1" for r in range(4)])
    else: assert p < 15*16 and not OPT["late"]
    if OPT["wow"] >= 0:
        add(int(16*OPT["wow"]), [(f"buffer_load_dword a{aQ+63}, v{vE+12}, s[{sWo}:{sWo+3}], 0 offen", "pf")])
    def lead(a):
        a.wait_vm({"clr"})
        a.e(f"buffer_store_dword v{vFv}, v{vDbA}, s[{sDb}:{sDb+3}], 0 offen sc1", "sig")
    add(16*13 + 5, [lead])
    add(16*39 + 5, [(f"buffer_load_dword v{vF}, v{vDbV}, s[{sDb}:{sDb+3}], 0 offen sc1", "chk")])
    def chk(a):
        a.wait_vm({"chk"})
        a.e(f"v_cmp_eq_u32 vcc, 0, v{vF}")
        a.e("s_cbranch_vccz L_chk_ok")
        a.e(f"s_call_b64 s[{sRet}:{sRet+1}], L_chk_wait")
        a.lab("L_chk_ok")
    add(16*47 + 3, [chk])
    if OPT["early"]:
        add(960 - 40, [(f"buffer_load_dword v{vF}, v{vFp}, s[{sFl}:{sFl+3}], 0 offen sc1", "poll")])
    if OPT["stamps"]:
        add(14*16 - 1, [lambda a: stamp(a, 3)])
        add(46*16 - 1, [lambda a: stamp(a, 4)])

    D, WEV = OPT["D"], OPT["wev"]
    window = {"K": 0, "V": 1, "O": 2}
    uses = defaultdict(list)
    for i, it in enumerate(items):
        for r in it.reads: uses[r[2]].append((i, r[4]))
    soft_dma = []
    soft_up = []
    soft_adr = []
    log = []
    cur = []
    def put(s): cur.append(s)
    def set_window(g, w):
        if window[g] == w: return
        base, cnt = GROUPS[g]
        d = (w - window[g]) * 65536
        window[g] = w
        soft_adr.extend((g, k, f"v_add_u32 v{base+k}, {d & 0xffffffff}, v{base+k}") for k in range(cnt))
    def flush_adr(g, k):
        rest = []
        for (gg, kk, s) in soft_adr:
            if gg == g and kk == k: put(s)
            else: rest.append((gg, kk, s))
        soft_adr[:] = rest
    upos = {g: 0 for g in GROUPS}
    rp = [0]
    hbar = [-1]
    issued = set(m for (pos, m) in iss[:ip[0]])
    upq = sorted(parked)
    unparked = set()
    def next_unit(p, force=False):
        if ip[0] >= len(iss): return False
        pos, m = iss[ip[0]]
        if pos > p and not force: return False
        if m not in parked:
            if not alloc(m, hbar[0], p):
                assert not force, ("no slot", m, p)
                if ip[0] + 1 >= len(iss): return False
                pos2, m2 = iss[ip[0] + 1]
                if not (units[m][0] in "KV" and units[m2][0] in "KV" and alloc(m2, hbar[0], p)): return False
                iss[ip[0]], iss[ip[0] + 1] = (pos, m2), (pos2, m)
                m = m2
        ip[0] += 1
        issued.add(m)
        log.append((p, "iss", units[m], slot_of.get(m)))
        soft_dma.extend(dma(m))
        return True
    def next_unpark(p, force=False):
        if not upq: return False
        m = upq[0]
        if not force and (p < 16*(needed[m] - OPT["UP"]) - D or m not in issued or soft_dma_has(m)): return False
        if not alloc(m, hbar[0], p):
            assert not force, ("no slot (unpark)", m, p)
            return False
        upq.pop(0)
        s = slot_of[m]
        log.append((p, "unp", units[m], s))
        for jj in range(4):
            pk = parked[m] + 4*jj
            ins = []
            if jj == 0: ins.append(lambda a, m=m: a.wait_vm({f"u{m}"}))
            ins.append((f"ds_write_b128 v{vUp + s//4}, a[{pk}:{pk+3}] offset:{(s%4)*16384 + jj*1024}", None, f"w{m}"))
            soft_up.append(ins)
        unparked.add(m)
        return True
    def soft_dma_has(m):
        return any(isinstance(s, tuple) and s[1] == f"u{m}" for g in soft_dma for s in g)
    def issue(i, p):
        it = items[i]
        if it.first:
            Hh = it.H
            for n in HS[Hh]:
                while n not in issued: next_unit(p, True)
                if soft_dma_has(n):
                    for g in soft_dma: put(g)
                    soft_dma.clear()
                if n in parked:
                    while n not in unparked: next_unpark(p, True)
                    for g in soft_up: put(g)
                    soft_up.clear()
            def ev(a, Hh=Hh):
                a.c(f"event H={Hh} needs {[units[n] for n in HS[Hh]]}")
                if OPT["trace"]:
                    if Hh > 0:
                        a.e(f"v_writelane_b32 v{vTr}, s{sTr+4*((Hh-1)&1)}, {Hh-1}")
                        a.e(f"v_writelane_b32 v{vTr+1}, s{sTr+2+4*((Hh-1)&1)}, {Hh-1}")
                    a.e(f"{'s_memtime' if OPT['trace'] == 2 else 's_memrealtime'} s[{sTr+4*(Hh&1)}:{sTr+1+4*(Hh&1)}]")
                a.wait_vm({f"u{n}" for n in HS[Hh] if n not in parked})
                a.wait_lds({f"w{n}" for n in HS[Hh]})
                a.e("s_barrier")
                if OPT["trace"]:
                    a.e(f"s_memrealtime s[{sTr+2+4*(Hh&1)}:{sTr+3+4*(Hh&1)}]")
                if Hh == 0: stamp(a, 2)
            ev.cost = 2 + (4 if OPT["trace"] else 0)
            put(ev)
            hbar[0] = Hh
        b = aFr(i)
        for (op, dst, g, ridx, n, inoff) in it.reads:
            slot = slot_of[n]
            if g in "WX":
                put((f"{op} {dst.format(b=b, b1=b+1, b2=b+2, b3=b+3)}, v{GROUPS[g][0]+GROUPS[g][1]*(slot//4)+ridx} offset:{(slot % 4)*16384 + inoff}", None, i))
                continue
            set_window(g, slot // 4)
            flush_adr(g, ridx)
            imm = (slot % 4)*16384 + inoff
            put((f"{op} {dst.format(b=b, b1=b+1, b2=b+2, b3=b+3)}, v{GROUPS[g][0]+ridx} offset:{imm}", None, i))
            upos[g] += 1
            if upos[g] < len(uses[g]):
                ni, nn = uses[g][upos[g]]
                if nn != n and nn in slot_of and ni > i + 2:
                    set_window(g, slot_of[nn]//4)
    def adv(limit, p):
        while rp[0] < N and rp[0] <= limit:
            issue(rp[0], p); rp[0] += 1
    def emit(s):
        if isinstance(s, list):
            for x in s: e(x)
        else: e(s)
    loads_out = {}
    est = [0]
    adv(D - 1, -1)
    for s in cur: emit(s)
    for p in range(N):
        cur.clear()
        if p % WEV == 0: a.wait_lds(set(range(p, p + WEV)))
        b = aFr(p)
        adv(p + D, p)
        SR = list(cur); cur.clear()
        SF = list(fill.get(p, []))
        if not soft_up: next_unpark(p)
        if not soft_dma: next_unit(p)
        sp = OPT["dsp1"] if p < 14*16 else OPT["dsp"]
        if soft_dma and (p - OPT["dph"]) % sp == 0: put(soft_dma.pop(0))
        if soft_up: put(soft_up.pop(0))
        SM = list(cur)
        if soft_adr: SR.append(soft_adr.pop(0)[2])
        wt = 1 if (p + 1) % WEV == 0 else 0
        tot = cost(SR) + cost(SF) + cost(SM) + wt
        loads_out[p] = tot
        evi = [k for k, x in enumerate(SR) if callable(x)]
        a2 = [k for k, x in enumerate(SF) if getattr(x, "after2", False)]
        best = None
        for kr in range(len(SR) + 1):
            for kf in range((a2[0] if a2 else len(SF)) + 1):
                for km in range(len(SM) + 1):
                    if km and evi and kr <= evi[-1]: continue
                    c1 = cost(SR[:kr]) + cost(SF[:kf]) + cost(SM[:km])
                    key = (max(2, c1) + max(2, tot - c1), abs(2*c1 - tot), -kr)
                    if best is None or key < best[0]: best = (key, kr, kf, km)
        _, kr, kf, km = best
        est[0] += best[0][0]*4 + 16
        if p % 16 == 15: est.append(est[0]); est[0] = 0
        e(items[p].mf[0].format(b=b, b3=b+3))
        for s in SR[:kr] + SF[:kf] + SM[:km]: emit(s)
        e(items[p].mf[1].format(b=b, b3=b+3))
        for s in SR[kr:] + SF[kf:] + SM[km:]: emit(s)
    assert not soft_dma and not soft_up and ip[0] == len(iss)
    if BASE is None: return loads_out
    sys.stderr.write(f"est cycles: {' '.join(map(str, est[1:]))} total {sum(est)}\n")
    for s in tail_epi: e(s)
    if OPT["verbose"]:
        for (p, w, u, s) in log:
            sys.stderr.write(f"  {p/16:6.2f} {w} {u} slot {s} (need {needed[uidx[u]]})\n")
    stamp(a, 5)
    vD = 192
    def dreg(j, k):
        return q4(16*j + 4*k, "a") if j < 7 - NS else q4(vO + 16*(j - (7 - NS)) + 4*k)
    for j in range(7):
        e(f"s_add_u32 s{sTmp}, s{sNP0}, {j*4096}")
        e(f"s_cmp_ge_u32 s{sTmp}, 28672"); e(f"s_cselect_b32 s3, 28672, 0"); e(f"s_sub_u32 s{8+j}, s{sTmp}, s3")
        e(f"s_lshr_b32 s{16+j}, s{8+j}, 5")
    for k in range(1, 4): e(f"v_add_u32 v{vKr+k}, {k*4*114688}, v{vRd}")
    def loads(j):
        for k in range(4):
            e(f"buffer_load_dwordx4 {dreg(j, k)}, v{vKr+k if k else vRd}, s[{sG}:{sG+3}], s{8+j} offen sc1", f"r{j}")
    if OPT["early"]: a.wait_vm({"poll"})
    else: e(f"v_mov_b32 v{vF}, 0")
    for c in late_pubs: publish(c)(a)
    stamp(a, 6)
    prev = 0
    for hi in pubs:
        e(f"v_cmp_gt_u32 vcc, {hi}, v{vF}")
        e(f"s_cbranch_vccz L_go{hi}")
        e(f"s_mov_b32 s45, {hi}")
        e(f"s_call_b64 s[{sRet}:{sRet+1}], L_poll")
        a.lab(f"L_go{hi}")
        for j in range(prev, hi): loads(j)
        prev = hi
    def red(j):
        d = vD + 4*j
        for k in range(4):
            e(f"{MF} {q4(d)}, {q4(vSel)}, {dreg(j, k)}, {'0' if k == 0 else q4(d)}")
    def fin(j):
        d = vD + 4*j
        e(f"v_cvt_pk_bf16_f32 v{d}, v{d}, v{d+1}")
        e(f"v_cvt_pk_bf16_f32 v{d+1}, v{d+2}, v{d+3}")
        e(f"buffer_store_dwordx2 v[{d}:{d+1}], v{vRo}, s[{sOut}:{sOut+3}], s{16+j} offen {OPT['out_pol']}")
    for j in range(7 - NS, 7): loads(j)
    e(f"s_waitcnt vmcnt({4*NS})")
    for j in range(7 - NS): red(j)
    for j in range(7 - NS): fin(j)
    e(f"s_waitcnt vmcnt({7 - NS})")
    for j in range(7 - NS, 7):
        a.lab(f"L_sen{j}")
        r = vO + 16*(j - (7 - NS))
        e(f"v_max3_u32 v{vT0}, v{r}, v{r+1}, v{r+2}")
        e(f"v_max3_u32 v{vT0+1}, v{r+3}, v{r+4}, v{r+5}")
        for k in range(6, 16, 4):
            e(f"v_max3_u32 v{vT0}, v{vT0}, v{r+k}, v{r+k+1}")
            if k + 2 < 16: e(f"v_max3_u32 v{vT0+1}, v{vT0+1}, v{r+k+2}, v{r+k+3}")
        e(f"v_max_u32 v{vT0}, v{vT0}, v{vT0+1}")
        e(f"v_cmp_eq_u32 vcc, -1, v{vT0}")
        e(f"s_cbranch_vccz L_sok{j}")
        e(f"s_sub_u32 s{sSpin}, s{sSpin}, 1")
        e(f"s_cbranch_scc1 L_sto{j}")
        for jj in range(j, 7): loads(jj)
        e("s_waitcnt vmcnt(0)")
        e(f"s_branch L_sen{j}")
        a.lab(f"L_sto{j}")
        e(f"s_mov_b32 s{sSpin}, 0")
        a.lab(f"L_sok{j}")
        red(j); fin(j)
    if OPT["diag"]:
        e("v_mov_b32 v8, 128")
        e(f"buffer_load_dword v5, v8, s[{sDb}:{sDb+3}], 0 offen sc1")
        e("s_waitcnt vmcnt(0)")
        e("v_readfirstlane_b32 s3, v5")
        e("s_bcnt1_i32_b32 s3, s3")
        e("s_cmp_le_u32 s3, 1")
        e("s_cbranch_scc1 L_diag_ok")
        e("s_mov_b32 s3, 30")
        a.lab("L_diag_l")
        e("s_sleep 64")
        e("s_sub_u32 s3, s3, 1")
        e("s_cmp_gt_u32 s3, 0")
        e("s_cbranch_scc1 L_diag_l")
        a.lab("L_diag_ok")
    if OPT["stamps"]:
        e("s_waitcnt vmcnt(0)")
        stamp(a, 7)
        e("s_waitcnt lgkmcnt(0)")
        e(f"s_add_u32 s32, s{sWsP}, 0x4000000"); e(f"s_addc_u32 s33, s{sWsP+1}, 0"); e("s_mov_b32 s34, 0x100000"); e("s_mov_b32 s35, 0x00020000")
        e("s_lshl_b32 s3, s2, 6")
        e("v_mov_b32 v1, s3")
        for k in range(8):
            e(f"v_mov_b32 v{2+k}, s{sStamp+2*k}")
        if OPT["trace"]:
            e(f"v_writelane_b32 v{vTr}, s{sTr+4}, 59")
            e(f"v_writelane_b32 v{vTr+1}, s{sTr+6}, 59")
            e("s_lshl_b32 s3, s2, 11")
            e("s_add_u32 s3, s3, 0x10000")
            e("v_lshlrev_b32 v10, 3, v0")
            e("v_add_u32 v10, s3, v10")
            e(f"buffer_store_dwordx2 v[{vTr}:{vTr+1}], v10, s[32:35], 0 offen")
        e("v_cmp_eq_u32 vcc, 0, v0")
        e("s_and_saveexec_b64 s[36:37], vcc")
        e("s_cbranch_execz L_k1_done")
        e("buffer_store_dwordx4 v[2:5], v1, s[32:35], 0 offen")
        e("buffer_store_dwordx4 v[6:9], v1, s[32:35], 0 offen offset:16")
        e("s_waitcnt vmcnt(0)")
    a.lab("L_k1_done")
    e("s_endpgm")
    a.lab("L_poll")
    e(f"buffer_load_dword v{vF}, v{vFp}, s[{sFl}:{sFl+3}], 0 offen sc1")
    e(f"s_sub_u32 s{sSpin}, s{sSpin}, 1")
    e("s_cbranch_scc1 L_poll_to")
    e("s_waitcnt vmcnt(0)")
    e(f"v_cmp_gt_u32 vcc, s45, v{vF}")
    e("s_cbranch_vccz L_poll_ret")
    if OPT["sleep"]: e(f"s_sleep {OPT['sleep']}")
    e("s_branch L_poll")
    a.lab("L_poll_to")
    e(f"s_mov_b32 s{sSpin}, 0")
    e("s_waitcnt vmcnt(0)")
    a.lab("L_poll_ret")
    e(f"s_setpc_b64 s[{sRet}:{sRet+1}]")
    a.lab("L_chk_wait")
    e(f"buffer_load_dword v{vF}, v{vDbV}, s[{sDb}:{sDb+3}], 0 offen sc1")
    e(f"s_sub_u32 s{sSpin}, s{sSpin}, 1")
    e("s_cbranch_scc1 L_poll_to")
    e("s_waitcnt vmcnt(0)")
    e(f"v_cmp_eq_u32 vcc, 0, v{vF}")
    e("s_cbranch_vccz L_poll_ret")
    e("s_sleep 4")
    e("s_branch L_chk_wait")
    for (nm, par, first) in (("L_fix0", 0, True), ("L_fixp0", 0, False), ("L_fixp1", 1, False)):
        S, S2 = vSb[par], vSb[par ^ 1]
        Lo = vL + 2*par
        a.lab(nm)
        e("s_nop 7")
        for u in range(2):
            T, T2, r = vT0 + u, vT0 + 2, S + 8*u
            e(f"v_max3_f32 v{T}, v{r}, v{r+1}, v{r+2}")
            e(f"v_max3_f32 v{T}, v{T}, v{r+3}, v{r+4}")
            e(f"v_max3_f32 v{T}, v{T}, v{r+5}, v{r+6}")
            e(f"v_max_f32 v{T}, v{T}, v{r+7}")
            e(f"v_mov_b32 v{T2}, v{T}")
            e(f"v_permlane32_swap_b32 v{T}, v{T2}")
            e(f"v_max_f32 v{T}, v{T}, v{T2}")
            e(f"v_mov_b32 v{T2}, v{T}")
            e(f"v_permlane16_swap_b32 v{T}, v{T2}")
            e(f"v_max_f32 v{T}, v{T}, v{T2}")
            if not first:
                e(f"v_max_f32 v{T}, 0, v{T}")
                e(f"v_exp_f32 v{vAl+u}, -v{T}")
            for k in range(8):
                e(f"v_sub_f32 v{r+k}, v{r+k}, v{T}")
                e(f"v_sub_f32 v{S2+8*u+k}, v{S2+8*u+k}, v{T}")
            for k in range(4): e(f"v_sub_f32 v{vNM+4*u+k}, v{vNM+4*u+k}, v{T}")
            if not first: e(f"v_mul_f32 v{Lo+u}, v{Lo+u}, v{vAl+u}")
        for s in softmax(S, par): e(s)
        if not first:
            for r in range(128):
                e(f"v_mul_f32 v{vO+r}, v{vO+r}, v{vAl + ((r >> 3) & 1)}")
        e("s_nop 3")
        e(f"s_setpc_b64 s[{sRet}:{sRet+1}]")
    a.lab("L_k1_end")
    lines = "\n".join(a.L).split("\n")
    lines, npad = pad_hazards(lines)
    sys.stderr.write(f"k1: {len(lines)} lines, {npad} hazard pads\n")
    return "\n".join(lines) + "\n"

def desc(name, vgpr, acc, sgpr=102):
    return f""".p2align 6
.amdhsa_kernel {name}
  .amdhsa_next_free_vgpr {vgpr}
  .amdhsa_next_free_sgpr {sgpr}
  .amdhsa_accum_offset {acc}
  .amdhsa_group_segment_fixed_size 0
  .amdhsa_kernarg_size 104
  .amdhsa_user_sgpr_count 2
  .amdhsa_user_sgpr_kernarg_segment_ptr 1
  .amdhsa_system_sgpr_workgroup_id_x 1
.end_amdhsa_kernel
"""

def main():
    ref = open(f"cdna_kernels/{NAME}.s.ref").read().splitlines()
    hdr = [l for l in ref if l.startswith(";") and "@launch" not in l and "Override launch" not in l and "grid=ceil" not in l]
    out = "\n".join(hdr) + "\n"
    if OPT["lst"]:
        out += f"; @launch kernel={K1} grid=(256,1,1) block=(256,1,1) lds=163840\n"
    else:
        out += f"; @launch grid=(256,1,1) block=(256,1,1) lds=163840\n"
    out += '.amdgcn_target "amdgcn-amd-amdhsa--gfx950"\n.text\n'
    out += gen_k1(gen_k1(None))
    out += '.section .rodata,"a"\n'
    out += desc(K1, 512, 256)
    open(sys.argv[1], "w").write(out)

main()
```

```python
import sys, math, struct
from collections import defaultdict
sys.path.insert(0, "gen")
from asmlib import pad_hazards

NAME = "concat_heads__mha_block_cached__gqa_block_cached__near_ridge"
K1 = NAME + "_kernel"

OPT = dict(stamps=0, trace=0, st_pol="sc1", kv_pol="nt", w_pol="", x_pol="", out_pol="", D=6, wev=2, codepf=1,
           L1=4, PR=2.0, KA=8.5, KB=40.0, WO0=34.0, LWO=6, spw=1,
           pub="2,4", PUBD=4, NS=3, CLR=41.0, early=1, nodma=0, thr=1048576.0, tlo=2.0**-30, verbose=0, sleep=1, lst=1,
           X1=13, pfn=0, pfbit=3, pf_pol="", NP=0, PK=3.0, UP=2, j2=1, NB=8, wf=1, onorm=1, n0=4,
           p1slots="8,9,1,2,4,3,5,7,6,0,8,1,9,4,2,5,3,6,7,8,9", late=0, CLS=4, wow=-1.0, OS=1.0, OI=-1, o_pol="", o0_pol="", MF=0, MFE=1, dsp=1, dsp1=1, dph=0, diag=0, TA=-1.0, TB=38.0, T0=0, t_pol="", TS=7, KS="", park=0, pkq=1, UPD=1.0, wcost=2, usp=1)
for a in sys.argv[2:]:
    k, v = a.split("=")
    OPT[k] = type(OPT[k])(v) if not isinstance(OPT[k], str) else v.replace("+", " ")

sW, sH, sB, sBLK = 4, 5, 6, 7
sK, sV, sWq, sWo, sX, sG, sFl, sDb, sOut = 8, 12, 16, 20, 24, 28, 32, 36, 40
sWoff = 48
sXoff, sWqoff, sWooff = 49, 50, 51
sStA, sStB = 52, 53
sC, sThr = 54, 55
sNP0, sSpin = 56, 57
sRet = 58
sTmp, sTmp2 = 60, 61
sTr = 64
sWsP = 80
sStamp = 82
sTlo = 98
sPf, sPfo = 72, 76
vPf = 62

vKr, vVr, vWor = 10, 14, 22
vKd, vVd, vWod = 26, 28, 30
vSt = 34
vL = 35
vT0 = 39
vAl = 43
vFl, vFp, vDbA, vDbV, vF, vFv = 45, 46, 47, 48, 49, 50
vDV = 51
vSel = 52
vRd, vRo = 56, 57
vUp = 58
vTr = 60
vSb = (64, 80)
vE, vNM, vP = 96, 112, 120
vWqd, vXd = 96, 100
vWr, vXr = 64, 88
vAcc = 64
vO = 128
aX, aPk, aQ = 0, 112, 160
NB = OPT["NB"]
def aFr(i):
    k = i % NB
    return 224 + 4*k if k < 8 else 112 + 4*(k - 8)
aSen = 0
FLAGS_OFF = 32 << 20
MF = "v_mfma_f32_16x16x32_bf16"

SCALE = math.log2(math.e) / 16.0
def f32hex(x):
    return "0x%08x" % struct.unpack("<I", struct.pack("<f", x))[0]

class Em:
    def __init__(self):
        self.L = []
        self.vmq = []
        self.ldsq = []
    def e(self, s, vm=None, lds=None):
        if isinstance(s, tuple):
            return self.e(*s)
        if callable(s):
            return s(self)
        self.L.append("    " + s)
        if vm is not None: self.vmq.append(vm)
        if lds is not None: self.ldsq.append(lds)
    def lab(self, s): self.L.append(s + ":")
    def c(self, s): self.L.append("    ; " + s)
    def wait_vm(self, tags):
        idx = [i for i, t in enumerate(self.vmq) if t in tags]
        if not idx: return
        n = len(self.vmq) - 1 - max(idx)
        self.e(f"s_waitcnt vmcnt({min(n, 63)})")
        self.vmq = self.vmq[max(idx) + 1:] if n <= 63 else self.vmq[-63:]
    def wait_lds(self, tags):
        idx = [i for i, t in enumerate(self.ldsq) if t in tags]
        if not idx: return
        n = len(self.ldsq) - 1 - max(idx)
        self.e(f"s_waitcnt lgkmcnt({min(n, 15)})")
        self.ldsq = self.ldsq[max(idx) + 1:] if n <= 15 else self.ldsq[-15:]

def stamp(a, idx):
    if OPT["stamps"]:
        a.e(f"s_memrealtime s[{sStamp+2*idx}:{sStamp+2*idx+1}]")

units = []
for c in range(7): units += [("X", c), ("W", c)]
units += [("W", c) for c in range(7, 14)]
kv = [("K", 0), ("K", 1)]
for t in range(0, 14):
    kv += [("V", t), ("K", t + 2)]
kv += [("V", 14), ("V", 15)]
units += kv
units += [("O", k) for k in range(14)]
NU = len(units)
uidx = {u: n for n, u in enumerate(units)}
HS = [[2*c, 2*c+1] for c in range(7)] + [[uidx[("W", c)]] for c in range(7, 14)]
if OPT["j2"]:
    HS[12] = [uidx[("W", 12)], uidx[("W", 13)]]; HS[13] = []
for n in range(21, NU): HS.append([n])
needed, consumed = {}, {}
for H, us in enumerate(HS):
    for n in us: consumed[n] = H; needed[n] = H
if OPT["j2"]: consumed[uidx[("W", 12)]] = consumed[uidx[("W", 13)]] = 13
parked = {}
NP = OPT["park"]
P1SLOT = [int(x) for x in OPT["p1slots"].split(",")]
assert len(P1SLOT) == 21
def fixed_slot(n):
    t, i = units[n]
    if t in "XW": return P1SLOT[n]
    if t == "K": return i & 3
    if t == "V": return 4 + (i & 3)
    if t == "O" and i < 2: return 8 + i
    return None
iss = []
for n in range(21):
    iss.append((-1 if n < OPT["n0"] else max(0, int(round(16*(n - OPT["L1"])/OPT["PR"]))), n))
stream = list(range(21, 53))
if OPT["OI"] >= 0:
    stream.insert(OPT["OI"], 53); stream.insert(OPT["OI"] + 2, 54)
for i, n in enumerate(stream):
    if OPT["KS"]:
        kn = [tuple(float(y) for y in x.split(":")) for x in OPT["KS"].split(",")]
        for (i0, h0), (i1, h1) in zip(kn, kn[1:]):
            if i0 <= i <= i1: h = h0 + (h1 - h0)*(i - i0)/(i1 - i0)
    else: h = OPT["KA"] + (OPT["KB"] - OPT["KA"])*i/(len(stream) - 1)
    iss.append((int(round(16*h)), n))
for k in range(2 if OPT["OI"] >= 0 else 0, 14):
    pos = max(16*(46 + k - OPT["LWO"]), 16*(OPT["WO0"] + OPT["OS"]*k))
    iss.append((int(pos), 53 + k))
iss.sort(key=lambda x: x[0])

slot_of = {}
def dma(n):
    t, i = units[n]
    g = []
    pk = parked.get(n)
    for jj in range(4):
        ins = []
        if jj == 0:
            if pk is None: ins.append(f"s_add_u32 m0, s{sWoff}, {slot_of[n]*16384}")
            if t in "KV": ins.append(f"s_mov_b32 s{sTmp}, {i*16384}")
            elif t == "O" and (i & 1): ins.append(f"s_add_u32 s{sTmp}, s{sWooff}, {128*896}")
            elif t == "W" and i == 7: ins += [f"s_add_u32 s{sWq}, s{sWq}, 256", f"s_addc_u32 s{sWq+1}, s{sWq+1}, 0"]
        off = f" offset:{jj*1024}" if jj else ""
        dst = "" if pk is None else f"a[{pk+4*jj}:{pk+4*jj+3}], "
        lds = " lds" if pk is None else ""
        if t == "K": ld = f"buffer_load_dwordx4 {dst}v{vKd+(jj&1)}, s[{sK}:{sK+3}], s{sTmp} offen{off} {OPT['kv_pol']}{lds}"
        elif t == "V": ld = f"buffer_load_dwordx4 {dst}v{vVd+(jj&1)}, s[{sV}:{sV+3}], s{sTmp} offen{off} {OPT['kv_pol']}{lds}"
        elif t == "W": ld = f"buffer_load_dwordx4 v{vWqd+jj}, s[{sWq}:{sWq+3}], s{sWqoff} offen{off} {OPT['w_pol']} lds"
        elif t == "X": ld = f"buffer_load_dwordx4 v{vXd+jj}, s[{sX}:{sX+3}], s{sXoff} offen{off} {OPT['x_pol']} lds"
        elif t == "O":
            so = sTmp if (i & 1) else sWooff
            ld = f"buffer_load_dwordx4 v{vWod+jj}, s[{sWo}:{sWo+3}], s{so} offen{off} {OPT['o0_pol'] if i < 2 else OPT['o_pol']} lds"
        if OPT["MF"] and t in "KV" and jj % OPT["MFE"] == 0:
            def lim(a):
                k = OPT["MF"] - OPT["MFE"]
                if len(a.vmq) > k:
                    a.e(f"s_waitcnt vmcnt({k})")
                    a.vmq = a.vmq[len(a.vmq) - k:]
            lim.cost = 1
            ins.append(lim)
        if not OPT["nodma"]: ins.append((ld, f"u{n}"))
        if jj == 3:
            if t == "W" and i < 13: ins += [f"s_add_u32 s{sWqoff}, s{sWqoff}, {64*8192}", f"s_cmp_eq_u32 s{sWqoff}, {448*8192}", f"s_cselect_b32 s{sWqoff}, 0, s{sWqoff}"]
            if t == "X" and i < 6: ins += [f"s_add_u32 s{sXoff}, s{sXoff}, 128", f"s_cmp_eq_u32 s{sXoff}, 896", f"s_cselect_b32 s{sXoff}, 0, s{sXoff}"]
            if t == "O" and (i & 1) and i < 13: ins += [f"s_add_u32 s{sWooff}, s{sWooff}, 128", f"s_cmp_eq_u32 s{sWooff}, 896", f"s_cselect_b32 s{sWooff}, 0, s{sWooff}"]
        g.append(ins)
    return g

GROUPS = {"K": (vKr, 4), "V": (vVr, 8), "O": (vWor, 4), "W": (vWr, 8), "X": (vXr, 2)}

class Item:
    def __init__(self, H, mf, reads):
        self.H = H; self.mf = mf; self.reads = reads
        self.first = False

def tr_reads(grp, ridx, n, off0, off1):
    return [("ds_read_b64_tr_b16", "a[{b}:{b1}]", grp, ridx, n, off0), ("ds_read_b64_tr_b16", "a[{b2}:{b3}]", grp, ridx, n, off1)]

def acc_of(base, T, u): return base + 16*(T >> 1) + 8*u + 4*(T & 1)
def q4(r, k="v"): return f"{k}[{r}:{r+3}]"

def cost(s):
    if isinstance(s, list): return sum(cost(x) for x in s)
    if callable(s): return getattr(s, "cost", 2)
    if isinstance(s, tuple): s = s[0]
    if s.startswith("ds_write"): return OPT["wcost"]
    return 2 if s.startswith(("v_exp", "v_rcp")) else 1

def gen_k1(BASE):
    a = Em()
    e = a.e
    slot_of.clear(); parked.clear()
    slot_free_at = [-10]*10
    slot_free_pos = [-10]*10
    last_slot = {"O": 8}
    def alloc(n, Hbar, p=0):
        t = units[n][0]
        s = fixed_slot(n)
        if s is not None and slot_free_pos[s] > p: return False
        if t in "KV":
            if units[n][1] >= 4 and uidx[(t, units[n][1] - 4)] not in slot_of: return False
            if any(P1SLOT[m] == s and m not in slot_of for m in range(21)): return False
        if s is None:
            pend = {fixed_slot(m) for m in range(NU) if m not in slot_of}
            fr = [s for s in range(10) if slot_free_at[s] <= Hbar and s not in pend]
            if not fr: return False
            same = [s for s in fr if s // 4 == last_slot[t] // 4]
            s = (same or fr)[0]
        elif slot_free_at[s] > Hbar: return False
        slot_of[n] = s; last_slot[t] = s
        if t == "X": slot_free_pos[s] = 16*consumed[n] + 2
        else: slot_free_at[s] = consumed[n] + 2
        return True

    a.L.append(f".globl {K1}\n.p2align 8\n.type {K1},@function\n{K1}:")
    e("s_cmp_ge_u32 s2, 256")
    e("s_cbranch_scc1 L_k1_done")
    stamp(a, 0)
    e("s_and_b32 s3, s2, 7")
    e(f"s_lshr_b32 s{sBLK}, s3, 2")
    e(f"s_mul_i32 s{sTmp}, s{sBLK}, 40")
    e(f"s_add_u32 s44, s0, s{sTmp}")
    e("s_addc_u32 s45, s1, 0")
    e("s_load_dwordx2 s[64:65], s[44:45], 0")
    e("s_load_dwordx4 s[72:75], s[44:45], 24")
    e("s_load_dwordx4 s[68:71], s[44:45], 8")
    e("s_load_dwordx4 s[76:79], s[0:1], 80")
    e(f"s_load_dwordx2 s[{sWsP}:{sWsP+1}], s[0:1], 96")
    e("v_lshrrev_b32 v1, 6, v0")
    e("v_and_b32 v2, 63, v0")
    e("s_and_b32 s3, s3, 3")
    e(f"v_readfirstlane_b32 s{sW}, v1")
    e("s_lshl_b32 s3, s3, 2")
    e(f"s_lshr_b32 s{sB}, s2, 3")
    e(f"s_and_b32 s{sH}, s{sB}, 3")
    e(f"s_lshl_b32 s{sTmp}, s{sH}, 1")
    e(f"s_add_u32 s{sH}, s{sH}, s3")
    e(f"s_lshr_b32 s{sB}, s{sB}, 2")
    e(f"s_add_u32 s{sTmp}, s{sTmp}, s{sB}")
    for _ in range(2):
        e(f"s_cmp_ge_u32 s{sTmp}, 7"); e(f"s_cselect_b32 s3, 7, 0"); e(f"s_sub_u32 s{sTmp}, s{sTmp}, s3")
    e(f"s_lshl_b32 s{sXoff}, s{sTmp}, 7")
    e(f"s_lshl_b32 s{sWqoff}, s{sTmp}, 19")
    e("v_and_b32 v3, 15, v2")
    e("v_lshrrev_b32 v4, 4, v2")
    e(f"s_lshl_b32 s{sWoff}, s{sW}, 12")
    e("v_lshrrev_b32 v5, 3, v2")
    e("v_mul_u32_u24 v5, 896, v5")
    e(f"s_mul_i32 s3, s{sW}, {32*896}")
    e("v_and_b32 v6, 7, v2")
    e(f"v_add_u32 v{vWod}, s3, v5")
    e("v_xor_b32 v6, v6, v4")
    e(f"v_lshl_add_u32 v{vXd}, v6, 4, v{vWod}")
    e(f"v_xor_b32 v5, 64, v{vXd}")
    e(f"v_add_u32 v{vXd+1}, 6144, v5")
    e(f"v_add_u32 v{vXd+2}, {2*6144}, v{vXd}")
    e(f"v_add_u32 v{vXd+3}, {3*6144}, v5")
    e(f"s_lshl_b32 s3, s{sW}, 17")
    e(f"s_lshl_b32 s{sTmp}, s{sH}, 9")
    e(f"s_add_u32 s3, s3, s{sTmp}")
    e("v_lshlrev_b32 v6, 1, v4")
    e("v_xor_b32 v6, v6, v3")
    e("v_lshlrev_b32 v6, 4, v6")
    e("v_lshl_add_u32 v6, v4, 13, v6")
    e(f"v_add_u32 v{vWqd}, s3, v6")
    e(f"v_xor_b32 v7, 0x80, v{vWqd}")
    e(f"v_add_u32 v{vWqd+1}, {32768-1024}, v{vWqd}")
    e(f"v_add_u32 v{vWqd+2}, {2*(32768-1024)}, v7")
    e(f"v_add_u32 v{vWqd+3}, {3*(32768-1024)}, v7")
    for s, sz in ((sX, 114688), (sWq, 448*8192), (sK, 262144), (sV, 262144)):
        e(f"s_mov_b32 s{s+2}, {sz}"); e(f"s_mov_b32 s{s+3}, 0x00020000")
    e(f"s_mul_i32 s46, s{sB}, 114688")
    e(f"s_lshl_b32 s47, s{sB}, 4")
    e(f"s_add_u32 s47, s47, s{sH}")
    e(f"s_lshl_b32 s47, s47, 18")
    if OPT["spw"]:
        e("v_lshrrev_b32 v8, 2, v0")
        e("v_lshlrev_b32 v8, 13, v8")
        e("v_and_b32 v9, 3, v0")
        e("v_lshl_add_u32 v8, v9, 6, v8")
        e(f"v_add_u32 v8, s{sTmp}, v8")
    e("s_waitcnt lgkmcnt(0)")
    e(f"s_add_u32 s{sX}, s64, s46"); e(f"s_addc_u32 s{sX+1}, s65, 0")
    e(f"s_mov_b32 s{sWq}, s72"); e(f"s_mov_b32 s{sWq+1}, s73")
    e(f"s_add_u32 s{sK}, s68, s47"); e(f"s_addc_u32 s{sK+1}, s69, 0")
    e(f"s_add_u32 s{sV}, s70, s47"); e(f"s_addc_u32 s{sV+1}, s71, 0")
    if OPT["pfn"]:
        if OPT["pfbit"] >= 0:
            e(f"s_bitcmp1_b32 s2, {OPT['pfbit']}")
            e("s_cbranch_scc0 L_nopf")
        elif OPT["pfbit"] == -2:
            e("s_lshr_b32 s3, s2, 2"); e("s_xor_b32 s3, s3, s2"); e("s_bitcmp1_b32 s3, 3")
            e("s_cbranch_scc0 L_nopf")
        e("v_lshlrev_b32 v5, 7, v2")
        e(f"s_and_b32 s3, s{sW}, 1"); e("s_lshl_b32 s3, s3, 13")
        e("v_add_u32 v5, s3, v5")
        e(f"s_cmp_ge_u32 s{sW}, 2")
        e("s_cbranch_scc1 L_pf_hi")
        for part in range(2):
            for k in range(part, OPT["pfn"], 2):
                t, i = units[21 + k]
                sr = sK if t == "K" else sV
                e(f"s_mov_b32 s{sTmp2}, {i*16384}")
                e(f"buffer_load_dword a{aQ+2+k//2}, v5, s[{sr}:{sr+3}], s{sTmp2} offen {OPT['pf_pol']}")
            if part == 0:
                e("s_branch L_nopf")
                a.lab("L_pf_hi")
        a.lab("L_nopf")
    ip = [0]
    while iss[ip[0]][0] < 0:
        m = iss[ip[0]][1]; ip[0] += 1
        assert alloc(m, 0)
        if m == 1 and OPT["spw"]:
            e(f"buffer_load_dword a{aQ+1}, v8, s[{sWq}:{sWq+3}], s{sWqoff} offen offset:256 {OPT['w_pol']}", "pf")
        for g in dma(m):
            for s in g: e(s)
    if OPT["codepf"]:
        e("s_getpc_b64 s[62:63]")
        a.lab("L_pc")
        e("s_lshr_b32 s3, s2, 3")
        e("s_lshl_b32 s3, s3, 12")
        e("v_lshlrev_b32 v5, 4, v0")
        e("v_add_u32 v5, s3, v5")
        e("v_min_u32 v5, L_k1_end-L_pc-8, v5")
        e(f"global_load_dword a{aQ}, v5, s[62:63]", "pf")
    e("v_bfe_u32 v6, v2, 2, 2")
    e("v_and_b32 v7, 3, v2")
    e("v_bfe_u32 v5, v2, 2, 3")
    e("v_lshl_add_u32 v8, v4, 3, v6")
    e("v_lshlrev_b32 v9, 5, v5")
    e("v_lshl_add_u32 v9, v7, 3, v9")
    e("v_lshl_add_u32 v9, v8, 8, v9")
    e("v_lshl_add_u32 v8, v8, 8, v9")
    e(f"v_add_u32 v{vVr}, 0x10000, v8")
    for w in (2, 0, 1):
        e(f"v_add_u32 v{vWr+8*w}, {w*65536}, v9")
        for T in range(1, 8): e(f"v_xor_b32 v{vWr+8*w+T}, {T<<5}, v{vWr+8*w}")
    e("v_lshrrev_b32 v5, 1, v3"); e("v_xor_b32 v5, v5, v4"); e("v_lshlrev_b32 v5, 4, v5")
    e("v_lshl_add_u32 v5, v3, 7, v5")
    e(f"v_add_u32 v{vXr}, s{sWoff}, v5")
    e(f"v_xor_b32 v{vXr+1}, 64, v{vXr}")
    for w in (2, 1):
        e(f"v_add_u32 v{vXr+2*w}, {w*65536}, v{vXr}"); e(f"v_add_u32 v{vXr+2*w+1}, {w*65536}, v{vXr+1}")
    for s, sz in ((sWo, 229376), (sG, 16*114688), (sFl, 1024), (sDb, 256), (sOut, 128*1792)):
        e(f"s_mov_b32 s{s+2}, {sz}"); e(f"s_mov_b32 s{s+3}, 0x00020000")
    e(f"s_cmp_eq_u32 s{sB}, 7"); e(f"s_cselect_b32 s3, 0, s{sB}")
    e(f"s_lshl_b32 s{sWooff}, s3, 7")
    e(f"s_lshl_b32 s{sStA}, s3, 12")
    e(f"s_mov_b32 s{sNP0}, s{sStA}")
    e(f"s_mul_i32 s3, s{sH}, 229376")
    e(f"s_add_u32 s{sWo}, s74, s3"); e(f"s_addc_u32 s{sWo+1}, s75, 0")
    e(f"s_lshl_b32 s46, s{sBLK}, 3")
    e(f"s_add_u32 s46, s46, s{sB}")
    e(f"s_mul_i32 s3, s46, {16*114688}")
    e(f"s_add_u32 s{sG}, s{sWsP}, s3"); e(f"s_addc_u32 s{sG+1}, s{sWsP+1}, 0")
    e(f"s_lshl_b32 s3, s46, 10")
    e(f"s_add_u32 s3, s3, {FLAGS_OFF}")
    e(f"s_add_u32 s{sFl}, s{sWsP}, s3"); e(f"s_addc_u32 s{sFl+1}, s{sWsP+1}, 0")
    e(f"s_mov_b32 s{sDb}, s78"); e(f"s_mov_b32 s{sDb+1}, s79")
    e(f"s_mul_i32 s3, s{sB}, {128*1792}")
    e(f"s_add_u32 s{sOut}, s76, s3"); e(f"s_addc_u32 s{sOut+1}, s77, 0")
    e(f"s_mov_b32 s{sC}, {f32hex(SCALE)}")
    e(f"s_mov_b32 s{sThr}, {f32hex(OPT['thr'])}")
    e(f"s_mov_b32 s{sTlo}, {f32hex(OPT['tlo'])}")
    e(f"s_mov_b32 s{sSpin}, 0x8000")
    if OPT["TA"] >= 0:
        e(f"s_cmp_ge_u32 s{sW}, 2")
        e(f"s_cselect_b32 s{sPf}, s{sV}, s{sK}"); e(f"s_cselect_b32 s{sPf+1}, s{sV+1}, s{sK+1}")
        e(f"s_cselect_b32 s{sPfo}, {(OPT['T0']-1)*16384}, {OPT['T0']*16384}")
        e(f"s_mov_b32 s{sPf+2}, 262144"); e(f"s_mov_b32 s{sPf+3}, 0x00020000")
        e(f"s_and_b32 s3, s{sW}, 1"); e("s_lshl_b32 s3, s3, 13")
        e(f"v_lshl_add_u32 v{vPf}, v2, 7, s3")
    if OPT["diag"]:
        e("s_getreg_b32 s3, hwreg(HW_REG_XCC_ID, 0, 4)")
        e("s_sub_u32 s3, s3, s2"); e("s_and_b32 s3, s3, 7"); e("s_lshl_b32 s3, 1, s3")
        e("v_mov_b32 v5, s3"); e("v_lshlrev_b32 v8, 12, v0"); e("v_add_u32 v8, 128, v8")
        e(f"buffer_atomic_or v5, v8, s[{sDb}:{sDb+3}], 0 offen sc1", "pf")
    stamp(a, 1)
    late = []
    l = late.append
    l("v_lshrrev_b32 v5, 5, v2"); l("v_and_b32 v9, 31, v2")
    l("v_lshlrev_b32 v8, 9, v5"); l(f"v_add_u32 v8, s{sWoff}, v8")
    l(f"s_lshl_b32 s3, s{sW}, 2")
    l("v_xor_b32 v1, v9, v5"); l("v_xor_b32 v1, s3, v1")
    l(f"v_lshl_add_u32 v{vKd}, v1, 4, v8")
    l(f"v_xor_b32 v{vKd+1}, 32, v{vKd}")
    l(f"s_and_b32 s3, s{sW}, 1"); l("s_lshl_b32 s3, s3, 3")
    l("v_lshlrev_b32 v5, 1, v5"); l("v_xor_b32 v1, v9, v5"); l("v_xor_b32 v1, s3, v1")
    l(f"v_lshl_add_u32 v{vVd}, v1, 4, v8")
    l(f"v_xor_b32 v{vVd+1}, 64, v{vVd}")
    l(f"s_mul_i32 s3, s{sW}, 28672"); l(f"s_mul_i32 s44, s{sH}, 114688"); l("s_add_u32 s3, s3, s44")
    l("v_lshl_add_u32 v5, v3, 2, v4")
    l(f"v_lshl_add_u32 v{vSt}, v5, 4, s3")
    for T in range(1, 8): l(f"v_xor_b32 v{vVr+T}, {T<<5}, v{vVr}")
    if OPT["CLR"] < 14:
        for r in range(4): l(f"v_mov_b32 v{vE+8+r}, -1")
    if OPT["wow"] >= 0:
        l(f"s_mul_i32 s3, s{sB}, 28672"); l(f"v_lshl_add_u32 v63, v0, 7, s3")
    l(f"s_lshl_b32 s3, s{sW}, 8"); l(f"s_lshl_b32 s44, s{sH}, 2"); l("s_add_u32 s3, s3, s44")
    l(f"v_lshl_add_u32 v{vFl}, v2, 12, s3")
    l("v_lshlrev_b32 v5, 2, v3")
    l(f"s_lshr_b32 s3, s{sH}, 2"); l("s_lshl_b32 s3, s3, 8")
    l(f"v_add_u32 v{vFp}, s3, v5")
    l("v_lshl_add_u32 v5, v4, 8, v5")
    l([f"s_or_b32 s3, s{sH}, s{sW}", "s_cmp_eq_u32 s3, 0", "s_cselect_b32 s45, 0, 0x10000"])
    l("v_add_u32 v5, s45, v5")
    l(f"v_mov_b32 v{vL}, 0"); l(f"v_mov_b32 v{vL+1}, 0")
    l((f"buffer_store_dword v{vL}, v5, s[{sFl}:{sFl+3}], 0 offen sc1", "clr"))
    l("s_lshl_b32 s44, s46, 2"); l("s_add_u32 s45, s45, s44")
    l(f"v_lshl_add_u32 v{vDbA}, v2, 12, s45")
    l(f"v_mov_b32 v{vDbV}, s44")
    l(f"v_mov_b32 v{vFv}, 1")
    l("v_lshrrev_b32 v5, 1, v4"); l("v_and_b32 v8, 1, v4"); l("v_lshl_add_u32 v5, v8, 1, v5")
    l("v_xor_b32 v5, v5, v3"); l("v_lshlrev_b32 v5, 4, v5")
    l("v_lshl_add_u32 v8, v6, 3, v7")
    l(f"v_lshl_add_u32 v{vKr}, v8, 9, v5")
    for s in range(1, 4): l(f"v_xor_b32 v{vKr+s}, {s<<6}, v{vKr}")
    l("v_lshrrev_b32 v5, 2, v2"); l("v_lshlrev_b32 v5, 7, v5")
    l("v_bfe_u32 v8, v2, 3, 2"); l("v_lshl_add_u32 v5, v8, 5, v5")
    l("v_lshl_add_u32 v5, v7, 3, v5")
    l(f"v_add_u32 v{vWor}, 0x20000, v5")
    for n in range(1, 4): l(f"v_xor_b32 v{vWor+n}, {n<<5}, v{vWor}")
    l("v_and_b32 v8, 7, v2"); l("v_lshlrev_b32 v9, 1, v4"); l("v_xor_b32 v8, v8, v9")
    l(f"v_lshl_add_u32 v{vWod}, v8, 4, v{vWod}")
    for jj in range(1, 4): l(f"v_add_u32 v{vWod+jj}, {jj*(7168-1024)}, v{vWod}")
    for r in range(8): l(f"v_mov_b32 v{vNM+r}, 0")
    if NP:
        l(f"v_lshl_add_u32 v{vUp}, v2, 4, s{sWoff}"); l(f"v_add_u32 v{vUp+1}, 0x10000, v{vUp}")
    l(f"s_lshr_b32 s44, s{sH}, 2"); l("s_mul_i32 s3, s44, 28672")
    l(f"s_and_b32 s45, s{sH}, 3"); l("s_lshl_b32 s45, s45, 10"); l("s_add_u32 s3, s3, s45")
    l(f"s_lshl_b32 s45, s{sW}, 8"); l("s_add_u32 s3, s3, s45")
    l("v_mul_u32_u24 v5, 114688, v4"); l("v_lshl_add_u32 v5, v3, 4, v5")
    l(f"v_add_u32 v{vRd}, s3, v5")
    l("s_lshl_b32 s3, s44, 5"); l(f"s_and_b32 s45, s{sH}, 1"); l("s_lshl_b32 s45, s45, 4"); l("s_add_u32 s3, s3, s45")
    l(f"s_lshl_b32 s45, s{sW}, 2"); l("s_add_u32 s3, s3, s45"); l("s_mul_i32 s3, s3, 1792")
    l(f"s_mul_i32 s45, s{sBLK}, 896"); l("s_add_u32 s3, s3, s45")
    l(f"s_and_b32 s45, s{sH}, 2"); l("s_lshl_b32 s45, s45, 5"); l("s_add_u32 s3, s3, s45")
    l("v_mul_u32_u24 v5, 1792, v6"); l("v_lshl_add_u32 v5, v7, 3, v5")
    l("v_and_b32 v8, 1, v4"); l("v_lshl_add_u32 v5, v8, 5, v5")
    l("v_lshrrev_b32 v8, 1, v4"); l("v_lshl_add_u32 v5, v8, 24, v5")
    l(f"v_add_u32 v{vRo}, s3, v5")
    l("v_and_b32 v5, 1, v2"); l("v_lshlrev_b32 v5, 4, v5"); l("v_mov_b32 v8, 0x3f80"); l("v_lshlrev_b32 v5, v5, v8")
    l("v_bfe_u32 v8, v2, 1, 2")
    for r in range(4):
        l(f"v_cmp_eq_u32 vcc, {r}, v8"); l("s_nop 0"); l(f"v_cndmask_b32 v{vSel+r}, 0, v5, vcc")

    items = []
    fill = defaultdict(list)
    def add(p, ins):
        fill[p].extend(ins if isinstance(ins, list) else [ins])
    load = defaultdict(float, BASE or {})
    def spread(p0, p1, ins):
        n = p1 - p0 + 1
        if not OPT["wf"]:
            for k, s in enumerate(ins): add(p0 + (k*n)//len(ins), [s])
            return
        if BASE is None: return
        tot = cost(ins)
        lo, hi = 0.0, 100.0
        for _ in range(40):
            L = (lo + hi)/2
            if sum(max(0.0, L - load[p]) for p in range(p0, p1 + 1)) >= tot: hi = L
            else: lo = L
        k, bud = 0, 1e-6
        for p in range(p0, p1 + 1):
            bud += max(0.0, hi - load[p])
            while k < len(ins) and (bud >= cost(ins[k])/2 or p == p1):
                add(p, [ins[k]]); load[p] += cost(ins[k]); bud -= cost(ins[k]); k += 1
    if OPT["late"]: spread(0, 16*6, late)
    else:
        for s in late:
            for x in (s if isinstance(s, list) else [s]): e(x)
    def p1item(H, i, T, kap):
        half, c = i // 7, i % 7
        n = uidx[("W", i)]
        mf = []
        for u in range(2):
            acc = acc_of(vO, 8*half + T, u)
            cin = "0" if (c == 0 and kap == 0) else q4(acc)
            mf.append(f"{MF} {q4(acc)}, a[{{b}}:{{b3}}], {q4(aX + 16*c + 8*kap + 4*u, 'a')}, {cin}")
        rd = tr_reads("W", T, n, kap*8192, kap*8192 + 1024)
        if i < 7 and T == 0:
            rd = [("ds_read_b128", q4(aX + 16*c + 8*kap + 4*u, "a"), "X", kap, uidx[("X", c)], u*2048) for u in range(2)] + rd
        items.append(Item(H, mf, rd))
    done_at = {}
    for H in range(14):
        if OPT["j2"] and H >= 12:
            for T in range(4*(H-12), 4*(H-12)+4):
                for i in (12, 13):
                    for kap in range(2): p1item(H, i, T, kap)
                done_at[4 + T//2] = len(items) - 1
        else:
            for T in range(8):
                for kap in range(2): p1item(H, H, T, kap)
                if H % 7 == 6: done_at[4*(H//7) + T//2] = len(items) - 1
    def qconv(s):
        t = []
        R = [vO + 16*s, vO + 16*s + 8]
        for r in R:
            for j in range(8): t.append(f"v_mul_f32 v{r+j}, s{sC}, v{r+j}")
        for r in R:
            for j in range(4): t.append(f"v_cvt_pk_bf16_f32 v{r+j}, v{r+2*j}, v{r+2*j+1}")
        for r in R:
            t += [f"v_permlane16_swap_b32 v{r}, v{r+2}", f"v_permlane16_swap_b32 v{r+1}, v{r+3}"]
        for u, r in enumerate(R):
            for j in range(4): t.append(f"v_accvgpr_write_b32 a{aQ+8*s+4*u+j}, v{r+j}")
        return t
    t = []
    for s in range(4): t += qconv(s)
    spread(7*16 + 2, 12*16 + 6, t)
    if OPT["j2"]:
        lim = [(done_at[4]+2, done_at[4]+12), (done_at[4]+13, done_at[6]+1), (done_at[6]+2, done_at[6]+11), (done_at[6]+12, 14*16+12)]
    else:
        lim = [(13*16+5+6*k, 13*16+10+6*k) for k in range(4)]
    for k, (p0, p1) in enumerate(lim):
        assert p0 >= done_at[4+k] + 2 and p1 < 14*16 + 2*(4+k) - 1, (k, p0, p1)
        spread(p0, p1, qconv(4 + k))

    def qk(H, n, S):
        for f in range(16):
            s, ee = f >> 1, f & 1
            mf = []
            for u in range(2):
                acc = S + 8*u + 4*ee
                cin = q4(vNM + 4*u) if s == 0 else q4(acc)
                mf.append(f"{MF} {q4(acc)}, a[{{b}}:{{b3}}], {q4(aQ + 8*s + 4*u, 'a')}, {cin}")
            items.append(Item(H, mf, [("ds_read_b128", "a[{b}:{b3}]", "K", s & 3, n, (s >> 2)*256 + ee*2048)]))
    def pv(H, n, P, first):
        for T in range(16):
            mf = []
            for u in range(2):
                acc = acc_of(vO, T, u)
                mf.append(f"{MF} {q4(acc)}, a[{{b}}:{{b3}}], {q4(P + 4*u)}, {'0' if first else q4(acc)}")
            o = (T >> 3)*256
            items.append(Item(H, mf, tr_reads("V", T & 7, n, o, o + 2048)))
    EORD = [0, 1, 2, 3, 8, 9, 10, 11, 4, 5, 6, 7, 12, 13, 14, 15]
    Pb = (vP, vE + 8)
    def softmax(S, par):
        Lo, Ln, P = vL + 2*par, vL + 2*(par ^ 1), Pb[par]
        L = []
        seen = set()
        def addk(i):
            u = EORD[i] >> 3
            src = Ln + u if u in seen else Lo + u
            seen.add(u)
            return f"v_add_f32 v{Ln+u}, v{src}, v{vE+(i&7)}"
        cv = lambda i: f"v_cvt_pk_bf16_f32 v{P+EORD[i]//2}, v{vE+(i&7)}, v{vE+((i+1)&7)}"
        for i, k in enumerate(EORD):
            L.append(f"v_exp_f32 v{vE+(i&7)}, v{S+k}")
            if i >= 1: L.append(addk(i-1))
            if i >= 2 and i % 2 == 0: L.append(cv(i-2))
        L += [addk(15), cv(14)]
        return L
    lblc = [0]
    def check(t):
        lblc[0] += 1
        k = lblc[0]
        Ln = vL + 2*((t & 1) ^ 1)
        nm = "L_fix0" if t == 0 else f"L_fixp{t & 1}"
        def f(a):
            a.e(f"v_max_f32 v{vT0}, v{Ln}, v{Ln+1}")
            if t == 0:
                a.e(f"v_min_f32 v{vT0+1}, v{Ln}, v{Ln+1}")
                a.e(f"v_cmp_lt_f32 vcc, s{sThr}, v{vT0}")
                a.e(f"v_cmp_gt_f32 s[44:45], s{sTlo}, v{vT0+1}")
                a.e("s_or_b64 s[44:45], s[44:45], vcc")
                a.e(f"s_cbranch_scc0 L_nm{k}")
            else:
                a.e(f"v_cmp_lt_f32 vcc, s{sThr}, v{vT0}")
                a.e(f"s_cbranch_vccz L_nm{k}")
            a.e(f"s_call_b64 s[{sRet}:{sRet+1}], {nm}")
            a.lab(f"L_nm{k}")
        f.after2 = (t == 15)
        f.cost = 3
        return f
    H = 14
    qk(H, 21, vSb[0]); H += 1
    qk(H, 22, vSb[1])
    add(16*H + 15, [check(0)])
    spread(16*H + 1, 16*H + 14, softmax(vSb[0], 0))
    H += 1
    for t in range(1, 16):
        n = uidx[("V", t-1)]
        assert consumed[n] == H
        pv(H, n, Pb[(t-1) & 1], t == 1)
        p0 = 16*H
        H += 1
        if t <= 14:
            n = uidx[("K", t+1)]
            assert consumed[n] == H
            qk(H, n, vSb[(t+1) & 1])
            H += 1
        add(16*H - 1, [check(t)])
        spread(p0 + 1, 16*H - 2, softmax(vSb[t & 1], t & 1))
    n = uidx[("V", 15)]
    assert consumed[n] == H and H == 45
    pv(H, n, Pb[1], False)
    L0, L1 = vL, vL + 1
    fin = [f"v_permlane32_swap_b32 v{L0}, v{L1}", f"v_add_f32 v{L0}, v{L0}, v{L1}", f"v_mov_b32 v{L1}, v{L0}",
           f"v_permlane16_swap_b32 v{L0}, v{L1}", f"v_add_f32 v{L0}, v{L0}, v{L1}", f"v_rcp_f32 v{vAl}, v{L0}",
           f"v_mov_b32 v{vAl+1}, v{vAl}", f"v_permlane32_swap_b32 v{vAl}, v{vAl+1}"]
    ON = OPT["onorm"]
    for k, s in enumerate(fin): add((45*16 + k//2) if ON else (47*16 - 12 + k), s)
    p = 16*H + (4 if ON else 3)
    for s in range(8):
        t = []
        R = [vO + 16*s, vO + 16*s + 8]
        if ON:
            for u, r in enumerate(R): t += [f"v_mul_f32 v{r+j}, v{r+j}, v{vAl+u}" for j in range(8)]
        for r in R: t += [f"v_cvt_pk_bf16_f32 v{r+j}, v{r+2*j}, v{r+2*j+1}" for j in range(4)]
        w = 5 if ON else 3
        assert p >= 16*H + 2*s + 3 and p + w - 1 <= 16*H + 16 + 4*s - 1
        spread(p, p + w - 1, t)
        p += w
    H += 1
    def epilogue(acc, so, q, j):
        u = q & 1
        g = [] if ON else [f"v_mul_f32 v{acc+r}, v{acc+r}, v{vAl+u}" for r in range(8)]
        g += [f"v_cvt_pk_bf16_f32 v{acc+jj}, v{acc+2*jj}, v{acc+2*jj+1}" for jj in range(4)]
        offs = f" offset:{q*1024}" if q else ""
        g.append((f"buffer_store_dwordx4 {q4(acc)}, v{vSt}, s[{sG}:{sG+3}], s{so} offen{offs} {OPT['st_pol']}", f"st{j}"))
        return g
    NS = OPT["NS"]
    pubs = [int(x) for x in OPT["pub"].split(",")]
    assert pubs[-1] == 7 - NS
    def publish(cnt):
        def f(a):
            a.wait_vm({f"st{j}" for j in range(cnt)} | {"sen"})
            a.e(f"v_mov_b32 v{vFv}, {cnt}")
            a.e(f"buffer_store_dword v{vFv}, v{vFl}, s[{sFl}:{sFl+3}], 0 offen sc1", "pub")
        return f
    late_pubs = []
    for j in range(7):
        so = sStA if j % 2 == 0 else sStB
        so2 = sStB if j % 2 == 0 else sStA
        A = vAcc + 32*(j & 1)
        for hf in range(2):
            n = uidx[("O", 2*j+hf)]
            assert consumed[n] == H
            order = [(nn, s4) for nn in range(4) for s4 in range(4)]
            if j == 0: order = [(nn, s4) for s4 in range(4) for nn in range(4)]
            for (nn, s4) in order:
                s = 4*hf + s4
                mf = []
                for u in range(2):
                    acc = acc_of(A, nn, u)
                    mf.append(f"{MF} {q4(acc)}, a[{{b}}:{{b3}}], {q4(vO + 16*s + 8*u)}, {'0' if s == 0 else q4(acc)}")
                items.append(Item(H, mf, tr_reads("O", nn, n, s4*4096, s4*4096 + 2048)))
            H += 1
        pend = 16*H
        g0 = epilogue(A, so, 0, j) + epilogue(A + 8, so, 1, j)
        g1 = epilogue(A + 16, so, 2, j) + epilogue(A + 24, so, 3, j)
        if j < 6:
            spread(pend - 7 if j else pend + 1, pend + 8, g0)
            spread(pend + 9, pend + 23, g1)
            add(pend - 8, [[f"s_add_u32 s{so2}, s{so}, 4096", f"s_cmp_eq_u32 s{so2}, 28672", f"s_cselect_b32 s{so2}, 0, s{so2}"]])
        else:
            spread(pend - 7, pend - 1, g0)
            tail_epi = g1
        if j + 1 in pubs:
            pp = pend + 25 + 16*OPT["PUBD"]
            if pp < 960 - 2: add(pp, [publish(j + 1)])
            else: late_pubs.append(j + 1)
    N = len(items)
    assert N == 960
    for p in range(N):
        if p % 16 == 0: items[p].first = True
    p = int(16*OPT["CLR"])
    for j in range(7 - NS, 7):
        add(p, [[f"s_add_u32 s44, s{sNP0}, {j*4096}", "s_cmp_ge_u32 s44, 28672", "s_cselect_b32 s45, 28672, 0", "s_sub_u32 s44, s44, s45"]])
        for q in range(4):
            offs = f" offset:{q*1024}" if q else ""
            add(p + 1 + q*OPT["CLS"], [(f"buffer_store_dwordx4 {q4(vE + 8) if OPT['CLR'] < 14 else q4(aSen, 'a')}, v{vSt}, s[{sG}:{sG+3}], s44 offen{offs} {OPT['st_pol']}", "sen")])
        p += 4*OPT["CLS"]
    assert p < 47*16
    if NS == 0: pass
    elif OPT["CLR"] >= 14: spread(14*16 + 12, 15*16, [f"v_accvgpr_write_b32 a{aSen+r}, -1" for r in range(4)])
    else: assert p < 15*16 and not OPT["late"]
    if OPT["wow"] >= 0:
        add(int(16*OPT["wow"]), [(f"buffer_load_dword a145, v63, s[{sWo}:{sWo+3}], 0 offen", "pf")])
    if OPT["TA"] >= 0:
        nt = 17 - OPT["T0"]
        for k in range(nt):
            pos = int(round(16*(OPT["TA"] + (OPT["TB"] - OPT["TA"])*k/(nt - 1))))
            add(pos, [[f"s_max_i32 s{sTmp2}, s{sPfo}, 0", f"s_min_i32 s{sTmp2}, s{sTmp2}, {15*16384}",
                       (f"buffer_load_dword a144, v{vPf}, s[{sPf}:{sPf+3}], s{sTmp2} offen {OPT['t_pol']}", "pf"),
                       f"s_add_u32 s{sPfo}, s{sPfo}, 16384"]])
    def lead(a):
        a.wait_vm({"clr"})
        a.e(f"buffer_store_dword v{vFv}, v{vDbA}, s[{sDb}:{sDb+3}], 0 offen sc1", "sig")
    add(16*13 + 5, [lead])
    add(16*39 + 5, [(f"buffer_load_dword v{vF}, v{vDbV}, s[{sDb}:{sDb+3}], 0 offen sc1", "chk")])
    def chk(a):
        a.wait_vm({"chk"})
        a.e(f"v_cmp_eq_u32 vcc, 0, v{vF}")
        a.e("s_cbranch_vccz L_chk_ok")
        a.e(f"s_call_b64 s[{sRet}:{sRet+1}], L_chk_wait")
        a.lab("L_chk_ok")
    add(16*47 + 3, [chk])
    if OPT["early"]:
        add(960 - 40, [(f"buffer_load_dword v{vF}, v{vFp}, s[{sFl}:{sFl+3}], 0 offen sc1", "poll")])
    if OPT["stamps"]:
        add(14*16 - 1, [lambda a: stamp(a, 3)])
        add(46*16 - 1, [lambda a: stamp(a, 4)])

    D, WEV = OPT["D"], OPT["wev"]
    window = {"K": 0, "V": 1, "O": 2}
    uses = defaultdict(list)
    for i, it in enumerate(items):
        for r in it.reads: uses[r[2]].append((i, r[4]))
    soft_dma = []
    soft_up = []
    soft_adr = []
    log = []
    cur = []
    def put(s): cur.append(s)
    def set_window(g, w):
        if window[g] == w: return
        base, cnt = GROUPS[g]
        d = (w - window[g]) * 65536
        window[g] = w
        soft_adr.extend((g, k, f"v_add_u32 v{base+k}, {d & 0xffffffff}, v{base+k}") for k in range(cnt))
    def flush_adr(g, k):
        rest = []
        for (gg, kk, s) in soft_adr:
            if gg == g and kk == k: put(s)
            else: rest.append((gg, kk, s))
        soft_adr[:] = rest
    upos = {g: 0 for g in GROUPS}
    rp = [0]
    hbar = [-1]
    issued = set(m for (pos, m) in iss[:ip[0]])
    pend = list(iss[ip[0]:])
    upq = []
    unparked = set()
    areas = []
    if NP:
        areas.append([144, 0, 10000])
        if OPT["pkq"]: areas += [[aQ + 32, 0, lim[0][0] - 2], [aQ + 48, 0, lim[2][0] - 2]]
        areas += [[aX + 16*c, 16*(min(7 + c, 13) + 1) + 1 if c < 5 else 14*16 + 1, 10000] for c in range(7)]
        areas = areas[:NP]
    area_of = {}
    cls = lambda m: "P" if units[m][0] in "XW" else units[m][0]
    def next_unit(p, force=None):
        seen = set()
        for k, (pos, m) in enumerate(pend):
            c = cls(m)
            if c in seen: continue
            seen.add(c)
            if force is not None:
                if c != cls(force): continue
            elif pos > p: break
            ok = alloc(m, hbar[0], p)
            if not ok and c in "KV":
                fr = [x for x in areas if x[1] <= p and x[2] > p + 64 and (x[2] == 10000 or units[m][1] < 4)]
                if fr:
                    x = min(fr, key=lambda x: x[2])
                    parked[m] = x[0]; area_of[m] = x; x[1] = 10000; upq.append(m); ok = True
            assert ok or force is None, ("no slot", m, p)
            if not ok: continue
            pend.pop(k)
            issued.add(m)
            log.append((p, "iss", units[m], slot_of.get(m, f"a{parked.get(m)}")))
            soft_dma.extend(dma(m))
            return True
        return False
    def next_unpark(p, force=None):
        for m in upq:
            if force is not None and m != force: continue
            due = min(16*(needed[m] - OPT["UPD"]) - D, area_of[m][2] - 10)
            if force is None and (p < due or soft_dma_has(m)): continue
            if not alloc(m, hbar[0], p):
                assert force is None and p < area_of[m][2] - 5, ("no slot (unpark)", m, p)
                continue
            upq.remove(m)
            s = slot_of[m]
            log.append((p, "unp", units[m], s))
            for jj in range(4):
                pk = parked[m] + 4*jj
                ins = []
                if jj == 0: ins.append(lambda a, m=m: a.wait_vm({f"u{m}"}))
                ins.append((f"ds_write_b128 v{vUp + s//4}, a[{pk}:{pk+3}] offset:{(s%4)*16384 + jj*1024}", None, f"w{m}"))
                soft_up.append(ins)
            area_of[m][1] = p + 24
            unparked.add(m)
            return True
        return False
    def soft_dma_has(m):
        return any(isinstance(s, tuple) and s[1] == f"u{m}" for g in soft_dma for s in g)
    def issue(i, p):
        it = items[i]
        if it.first:
            Hh = it.H
            for n in HS[Hh]:
                while n not in issued: next_unit(p, n)
                if soft_dma_has(n):
                    for g in soft_dma: put(g)
                    soft_dma.clear()
                if n in parked:
                    if n not in unparked: next_unpark(p, n)
                    for g in soft_up: put(g)
                    soft_up.clear()
            def ev(a, Hh=Hh):
                a.c(f"event H={Hh} needs {[units[n] for n in HS[Hh]]}")
                if OPT["trace"]:
                    if Hh > 0:
                        a.e(f"v_writelane_b32 v{vTr}, s{sTr+4*((Hh-1)&1)}, {Hh-1}")
                        a.e(f"v_writelane_b32 v{vTr+1}, s{sTr+2+4*((Hh-1)&1)}, {Hh-1}")
                    a.e(f"{'s_memtime' if OPT['trace'] == 2 else 's_memrealtime'} s[{sTr+4*(Hh&1)}:{sTr+1+4*(Hh&1)}]")
                a.wait_vm({f"u{n}" for n in HS[Hh] if n not in parked})
                a.wait_lds({f"w{n}" for n in HS[Hh]})
                a.e("s_barrier")
                if OPT["trace"]:
                    a.e(f"s_memrealtime s[{sTr+2+4*(Hh&1)}:{sTr+3+4*(Hh&1)}]")
                if Hh == 0: stamp(a, 2)
            ev.cost = 2 + (4 if OPT["trace"] else 0)
            put(ev)
            hbar[0] = Hh
        b = aFr(i)
        for (op, dst, g, ridx, n, inoff) in it.reads:
            slot = slot_of[n]
            if g in "WX":
                put((f"{op} {dst.format(b=b, b1=b+1, b2=b+2, b3=b+3)}, v{GROUPS[g][0]+GROUPS[g][1]*(slot//4)+ridx} offset:{(slot % 4)*16384 + inoff}", None, i))
                continue
            set_window(g, slot // 4)
            flush_adr(g, ridx)
            imm = (slot % 4)*16384 + inoff
            put((f"{op} {dst.format(b=b, b1=b+1, b2=b+2, b3=b+3)}, v{GROUPS[g][0]+ridx} offset:{imm}", None, i))
            upos[g] += 1
            if upos[g] < len(uses[g]):
                ni, nn = uses[g][upos[g]]
                if nn != n and nn in slot_of and ni > i + 2:
                    set_window(g, slot_of[nn]//4)
    def adv(limit, p):
        while rp[0] < N and rp[0] <= limit:
            issue(rp[0], p); rp[0] += 1
    def emit(s):
        if isinstance(s, list):
            for x in s: e(x)
        else: e(s)
    loads_out = {}
    est = [0]
    adv(D - 1, -1)
    for s in cur: emit(s)
    for p in range(N):
        cur.clear()
        if p % WEV == 0: a.wait_lds(set(range(p, p + WEV)))
        b = aFr(p)
        adv(p + D, p)
        SR = list(cur); cur.clear()
        SF = list(fill.get(p, []))
        if not soft_up: next_unpark(p)
        if not soft_dma: next_unit(p)
        sp = OPT["dsp1"] if p < 14*16 else OPT["dsp"]
        if soft_dma and (p - OPT["dph"]) % sp == 0: put(soft_dma.pop(0))
        if soft_up and (p % OPT["usp"] == 0 or p < 15*16): put(soft_up.pop(0))
        SM = list(cur)
        if soft_adr: SR.append(soft_adr.pop(0)[2])
        wt = 1 if (p + 1) % WEV == 0 else 0
        tot = cost(SR) + cost(SF) + cost(SM) + wt
        loads_out[p] = tot
        evi = [k for k, x in enumerate(SR) if callable(x)]
        a2 = [k for k, x in enumerate(SF) if getattr(x, "after2", False)]
        best = None
        for kr in range(len(SR) + 1):
            for kf in range((a2[0] if a2 else len(SF)) + 1):
                for km in range(len(SM) + 1):
                    if km and evi and kr <= evi[-1]: continue
                    c1 = cost(SR[:kr]) + cost(SF[:kf]) + cost(SM[:km])
                    key = (max(2, c1) + max(2, tot - c1), abs(2*c1 - tot), -kr)
                    if best is None or key < best[0]: best = (key, kr, kf, km)
        _, kr, kf, km = best
        est[0] += best[0][0]*4 + 16
        if p % 16 == 15: est.append(est[0]); est[0] = 0
        e(items[p].mf[0].format(b=b, b3=b+3))
        for s in SR[:kr] + SF[:kf] + SM[:km]: emit(s)
        e(items[p].mf[1].format(b=b, b3=b+3))
        for s in SR[kr:] + SF[kf:] + SM[km:]: emit(s)
    assert not soft_dma and not soft_up and not pend and not upq
    if BASE is None: return loads_out
    sys.stderr.write(f"est cycles: {' '.join(map(str, est[1:]))} total {sum(est)}\n")
    for s in tail_epi: e(s)
    if OPT["verbose"]:
        for (p, w, u, s) in log:
            sys.stderr.write(f"  {p/16:6.2f} {w} {u} slot {s} (need {needed[uidx[u]]})\n")
    stamp(a, 5)
    vD = 192
    def dreg(j, k):
        return q4(16*j + 4*k, "a") if j < 7 - NS else q4(vO + 16*(j - (7 - NS)) + 4*k)
    for j in range(7):
        e(f"s_add_u32 s{sTmp}, s{sNP0}, {j*4096}")
        e(f"s_cmp_ge_u32 s{sTmp}, 28672"); e(f"s_cselect_b32 s3, 28672, 0"); e(f"s_sub_u32 s{8+j}, s{sTmp}, s3")
        e(f"s_lshr_b32 s{16+j}, s{8+j}, 5")
    for k in range(1, 4): e(f"v_add_u32 v{vKr+k}, {k*4*114688}, v{vRd}")
    def loads(j):
        for k in range(4):
            e(f"buffer_load_dwordx4 {dreg(j, k)}, v{vKr+k if k else vRd}, s[{sG}:{sG+3}], s{8+j} offen sc1", f"r{j}")
    if OPT["early"]: a.wait_vm({"poll"})
    else: e(f"v_mov_b32 v{vF}, 0")
    for c in late_pubs: publish(c)(a)
    stamp(a, 6)
    prev = 0
    for hi in pubs:
        e(f"v_cmp_gt_u32 vcc, {hi}, v{vF}")
        e(f"s_cbranch_vccz L_go{hi}")
        e(f"s_mov_b32 s45, {hi}")
        e(f"s_call_b64 s[{sRet}:{sRet+1}], L_poll")
        a.lab(f"L_go{hi}")
        for j in range(prev, hi): loads(j)
        prev = hi
    def red(j):
        d = vD + 4*j
        for k in range(4):
            e(f"{MF} {q4(d)}, {q4(vSel)}, {dreg(j, k)}, {'0' if k == 0 else q4(d)}")
    def fin(j):
        d = vD + 4*j
        e(f"v_cvt_pk_bf16_f32 v{d}, v{d}, v{d+1}")
        e(f"v_cvt_pk_bf16_f32 v{d+1}, v{d+2}, v{d+3}")
        e(f"buffer_store_dwordx2 v[{d}:{d+1}], v{vRo}, s[{sOut}:{sOut+3}], s{16+j} offen {OPT['out_pol']}")
    for j in range(7 - NS, 7): loads(j)
    e(f"s_waitcnt vmcnt({4*NS})")
    for j in range(7 - NS): red(j)
    for j in range(7 - NS): fin(j)
    e(f"s_waitcnt vmcnt({7 - NS})")
    for j in range(7 - NS, 7):
        a.lab(f"L_sen{j}")
        r = vO + 16*(j - (7 - NS))
        e(f"v_max3_u32 v{vT0}, v{r}, v{r+1}, v{r+2}")
        e(f"v_max3_u32 v{vT0+1}, v{r+3}, v{r+4}, v{r+5}")
        for k in range(6, 16, 4):
            e(f"v_max3_u32 v{vT0}, v{vT0}, v{r+k}, v{r+k+1}")
            if k + 2 < 16: e(f"v_max3_u32 v{vT0+1}, v{vT0+1}, v{r+k+2}, v{r+k+3}")
        e(f"v_max_u32 v{vT0}, v{vT0}, v{vT0+1}")
        e(f"v_cmp_eq_u32 vcc, -1, v{vT0}")
        e(f"s_cbranch_vccz L_sok{j}")
        e(f"s_sub_u32 s{sSpin}, s{sSpin}, 1")
        e(f"s_cbranch_scc1 L_sto{j}")
        for jj in range(j, 7): loads(jj)
        e("s_waitcnt vmcnt(0)")
        e(f"s_branch L_sen{j}")
        a.lab(f"L_sto{j}")
        e(f"s_mov_b32 s{sSpin}, 0")
        a.lab(f"L_sok{j}")
        red(j); fin(j)
    if OPT["diag"]:
        e("v_mov_b32 v8, 128")
        e(f"buffer_load_dword v5, v8, s[{sDb}:{sDb+3}], 0 offen sc1")
        e("s_waitcnt vmcnt(0)")
        e("v_readfirstlane_b32 s3, v5")
        e("s_bcnt1_i32_b32 s3, s3")
        e("s_cmp_le_u32 s3, 1")
        e("s_cbranch_scc1 L_diag_ok")
        e("s_mov_b32 s3, 30")
        a.lab("L_diag_l")
        e("s_sleep 64")
        e("s_sub_u32 s3, s3, 1")
        e("s_cmp_gt_u32 s3, 0")
        e("s_cbranch_scc1 L_diag_l")
        a.lab("L_diag_ok")
    if OPT["stamps"]:
        e("s_waitcnt vmcnt(0)")
        stamp(a, 7)
        e("s_waitcnt lgkmcnt(0)")
        e(f"s_add_u32 s32, s{sWsP}, 0x4000000"); e(f"s_addc_u32 s33, s{sWsP+1}, 0"); e("s_mov_b32 s34, 0x100000"); e("s_mov_b32 s35, 0x00020000")
        e("s_lshl_b32 s3, s2, 6")
        e("v_mov_b32 v1, s3")
        for k in range(8):
            e(f"v_mov_b32 v{2+k}, s{sStamp+2*k}")
        if OPT["trace"]:
            e(f"v_writelane_b32 v{vTr}, s{sTr+4}, 59")
            e(f"v_writelane_b32 v{vTr+1}, s{sTr+6}, 59")
            e("s_lshl_b32 s3, s2, 11")
            e("s_add_u32 s3, s3, 0x10000")
            e("v_lshlrev_b32 v10, 3, v0")
            e("v_add_u32 v10, s3, v10")
            e(f"buffer_store_dwordx2 v[{vTr}:{vTr+1}], v10, s[32:35], 0 offen")
        e("v_cmp_eq_u32 vcc, 0, v0")
        e("s_and_saveexec_b64 s[36:37], vcc")
        e("s_cbranch_execz L_k1_done")
        e("buffer_store_dwordx4 v[2:5], v1, s[32:35], 0 offen")
        e("buffer_store_dwordx4 v[6:9], v1, s[32:35], 0 offen offset:16")
        e("s_waitcnt vmcnt(0)")
    a.lab("L_k1_done")
    e("s_endpgm")
    a.lab("L_poll")
    e(f"buffer_load_dword v{vF}, v{vFp}, s[{sFl}:{sFl+3}], 0 offen sc1")
    e(f"s_sub_u32 s{sSpin}, s{sSpin}, 1")
    e("s_cbranch_scc1 L_poll_to")
    e("s_waitcnt vmcnt(0)")
    e(f"v_cmp_gt_u32 vcc, s45, v{vF}")
    e("s_cbranch_vccz L_poll_ret")
    if OPT["sleep"]: e(f"s_sleep {OPT['sleep']}")
    e("s_branch L_poll")
    a.lab("L_poll_to")
    e(f"s_mov_b32 s{sSpin}, 0")
    e("s_waitcnt vmcnt(0)")
    a.lab("L_poll_ret")
    e(f"s_setpc_b64 s[{sRet}:{sRet+1}]")
    a.lab("L_chk_wait")
    e(f"buffer_load_dword v{vF}, v{vDbV}, s[{sDb}:{sDb+3}], 0 offen sc1")
    e(f"s_sub_u32 s{sSpin}, s{sSpin}, 1")
    e("s_cbranch_scc1 L_poll_to")
    e("s_waitcnt vmcnt(0)")
    e(f"v_cmp_eq_u32 vcc, 0, v{vF}")
    e("s_cbranch_vccz L_poll_ret")
    e("s_sleep 4")
    e("s_branch L_chk_wait")
    for (nm, par, first) in (("L_fix0", 0, True), ("L_fixp0", 0, False), ("L_fixp1", 1, False)):
        S, S2 = vSb[par], vSb[par ^ 1]
        Lo = vL + 2*par
        a.lab(nm)
        e("s_nop 7")
        for u in range(2):
            T, T2, r = vT0 + u, vT0 + 2, S + 8*u
            e(f"v_max3_f32 v{T}, v{r}, v{r+1}, v{r+2}")
            e(f"v_max3_f32 v{T}, v{T}, v{r+3}, v{r+4}")
            e(f"v_max3_f32 v{T}, v{T}, v{r+5}, v{r+6}")
            e(f"v_max_f32 v{T}, v{T}, v{r+7}")
            e(f"v_mov_b32 v{T2}, v{T}")
            e(f"v_permlane32_swap_b32 v{T}, v{T2}")
            e(f"v_max_f32 v{T}, v{T}, v{T2}")
            e(f"v_mov_b32 v{T2}, v{T}")
            e(f"v_permlane16_swap_b32 v{T}, v{T2}")
            e(f"v_max_f32 v{T}, v{T}, v{T2}")
            if not first:
                e(f"v_max_f32 v{T}, 0, v{T}")
                e(f"v_exp_f32 v{vAl+u}, -v{T}")
            for k in range(8):
                e(f"v_sub_f32 v{r+k}, v{r+k}, v{T}")
                e(f"v_sub_f32 v{S2+8*u+k}, v{S2+8*u+k}, v{T}")
            for k in range(4): e(f"v_sub_f32 v{vNM+4*u+k}, v{vNM+4*u+k}, v{T}")
            if not first: e(f"v_mul_f32 v{Lo+u}, v{Lo+u}, v{vAl+u}")
        for s in softmax(S, par): e(s)
        if not first:
            for r in range(128):
                e(f"v_mul_f32 v{vO+r}, v{vO+r}, v{vAl + ((r >> 3) & 1)}")
        e("s_nop 3")
        e(f"s_setpc_b64 s[{sRet}:{sRet+1}]")
    a.lab("L_k1_end")
    lines = "\n".join(a.L).split("\n")
    lines, npad = pad_hazards(lines)
    sys.stderr.write(f"k1: {len(lines)} lines, {npad} hazard pads\n")
    return "\n".join(lines) + "\n"

def desc(name, vgpr, acc, sgpr=102):
    return f""".p2align 6
.amdhsa_kernel {name}
  .amdhsa_next_free_vgpr {vgpr}
  .amdhsa_next_free_sgpr {sgpr}
  .amdhsa_accum_offset {acc}
  .amdhsa_group_segment_fixed_size 0
  .amdhsa_kernarg_size 104
  .amdhsa_user_sgpr_count 2
  .amdhsa_user_sgpr_kernarg_segment_ptr 1
  .amdhsa_system_sgpr_workgroup_id_x 1
.end_amdhsa_kernel
"""

def main():
    ref = open(f"cdna_kernels/{NAME}.s.ref").read().splitlines()
    hdr = [l for l in ref if l.startswith(";") and "@launch" not in l and "Override launch" not in l and "grid=ceil" not in l]
    out = "\n".join(hdr) + "\n"
    if OPT["lst"]:
        out += f"; @launch kernel={K1} grid=(256,1,1) block=(256,1,1) lds=163840\n"
    else:
        out += f"; @launch grid=(256,1,1) block=(256,1,1) lds=163840\n"
    out += '.amdgcn_target "amdgcn-amd-amdhsa--gfx950"\n.text\n'
    out += gen_k1(gen_k1(None))
    out += '.section .rodata,"a"\n'
    out += desc(K1, 512, 256)
    open(sys.argv[1], "w").write(out)

main()
```

```python
import sys, math, struct
from collections import defaultdict
sys.path.insert(0, "gen")
from asmlib import pad_hazards

NAME = "concat_heads__mha_block_cached__gqa_block_cached__near_ridge"
K1 = NAME + "_kernel"

OPT = dict(stamps=0, trace=0, st_pol="sc1", kv_pol="nt", w_pol="", x_pol="", out_pol="", D=6, wev=2, codepf=1,
           L1=4, PR=2.0, KA=8.5, KB=40.0, WO0=34.0, LWO=6, spw=1,
           pub="2,4", PUBD=4, NS=3, CLR=41.0, early=1, nodma=0, thr=1048576.0, tlo=2.0**-30, verbose=0, sleep=1, lst=1,
           X1=13, pfn=0, pfbit=3, pf_pol="", NP=0, PK=3.0, UP=2, j2=1, NB=8, wf=1, onorm=1, n0=4,
           p1slots="8,9,1,2,4,3,5,7,6,0,8,1,9,4,2,5,3,6,7,8,9", late=0, CLS=4, wow=-1.0, OS=1.0, OI=-1, o_pol="", o0_pol="", MF=0, MFE=1, dsp=1, dsp1=1, dph=0, diag=0, TA=-1.0, TB=38.0, T0=0, t_pol="", TS=7, KS="", park=0, pkq=1, UPD=1.0, wcost=2, usp=1, dly=-1, dk=10, dwg=-1)
for a in sys.argv[2:]:
    k, v = a.split("=")
    OPT[k] = type(OPT[k])(v) if not isinstance(OPT[k], str) else v.replace("+", " ")

sW, sH, sB, sBLK = 4, 5, 6, 7
sK, sV, sWq, sWo, sX, sG, sFl, sDb, sOut = 8, 12, 16, 20, 24, 28, 32, 36, 40
sWoff = 48
sXoff, sWqoff, sWooff = 49, 50, 51
sStA, sStB = 52, 53
sC, sThr = 54, 55
sNP0, sSpin = 56, 57
sRet = 58
sTmp, sTmp2 = 60, 61
sTr = 64
sWsP = 80
sStamp = 82
sTlo = 98
sPf, sPfo = 72, 76
vPf = 62

vKr, vVr, vWor = 10, 14, 22
vKd, vVd, vWod = 26, 28, 30
vSt = 34
vL = 35
vT0 = 39
vAl = 43
vFl, vFp, vDbA, vDbV, vF, vFv = 45, 46, 47, 48, 49, 50
vDV = 51
vSel = 52
vRd, vRo = 56, 57
vUp = 58
vTr = 60
vSb = (64, 80)
vE, vNM, vP = 96, 112, 120
vWqd, vXd = 96, 100
vWr, vXr = 64, 88
vAcc = 64
vO = 128
aX, aPk, aQ = 0, 112, 160
NB = OPT["NB"]
def aFr(i):
    k = i % NB
    return 224 + 4*k if k < 8 else 112 + 4*(k - 8)
aSen = 0
FLAGS_OFF = 32 << 20
MF = "v_mfma_f32_16x16x32_bf16"

SCALE = math.log2(math.e) / 16.0
def f32hex(x):
    return "0x%08x" % struct.unpack("<I", struct.pack("<f", x))[0]

class Em:
    def __init__(self):
        self.L = []
        self.vmq = []
        self.ldsq = []
    def e(self, s, vm=None, lds=None):
        if isinstance(s, tuple):
            return self.e(*s)
        if callable(s):
            return s(self)
        self.L.append("    " + s)
        if vm is not None: self.vmq.append(vm)
        if lds is not None: self.ldsq.append(lds)
    def lab(self, s): self.L.append(s + ":")
    def c(self, s): self.L.append("    ; " + s)
    def wait_vm(self, tags):
        idx = [i for i, t in enumerate(self.vmq) if t in tags]
        if not idx: return
        n = len(self.vmq) - 1 - max(idx)
        self.e(f"s_waitcnt vmcnt({min(n, 63)})")
        self.vmq = self.vmq[max(idx) + 1:] if n <= 63 else self.vmq[-63:]
    def wait_lds(self, tags):
        idx = [i for i, t in enumerate(self.ldsq) if t in tags]
        if not idx: return
        n = len(self.ldsq) - 1 - max(idx)
        self.e(f"s_waitcnt lgkmcnt({min(n, 15)})")
        self.ldsq = self.ldsq[max(idx) + 1:] if n <= 15 else self.ldsq[-15:]

def stamp(a, idx):
    if OPT["stamps"]:
        a.e(f"s_memrealtime s[{sStamp+2*idx}:{sStamp+2*idx+1}]")

units = []
for c in range(7): units += [("X", c), ("W", c)]
units += [("W", c) for c in range(7, 14)]
kv = [("K", 0), ("K", 1)]
for t in range(0, 14):
    kv += [("V", t), ("K", t + 2)]
kv += [("V", 14), ("V", 15)]
units += kv
units += [("O", k) for k in range(14)]
NU = len(units)
uidx = {u: n for n, u in enumerate(units)}
HS = [[2*c, 2*c+1] for c in range(7)] + [[uidx[("W", c)]] for c in range(7, 14)]
if OPT["j2"]:
    HS[12] = [uidx[("W", 12)], uidx[("W", 13)]]; HS[13] = []
for n in range(21, NU): HS.append([n])
needed, consumed = {}, {}
for H, us in enumerate(HS):
    for n in us: consumed[n] = H; needed[n] = H
if OPT["j2"]: consumed[uidx[("W", 12)]] = consumed[uidx[("W", 13)]] = 13
parked = {}
NP = OPT["park"]
P1SLOT = [int(x) for x in OPT["p1slots"].split(",")]
assert len(P1SLOT) == 21
def fixed_slot(n):
    t, i = units[n]
    if t in "XW": return P1SLOT[n]
    if t == "K": return i & 3
    if t == "V": return 4 + (i & 3)
    if t == "O" and i < 2: return 8 + i
    return None
iss = []
for n in range(21):
    iss.append((-1 if n < OPT["n0"] else max(0, int(round(16*(n - OPT["L1"])/OPT["PR"]))), n))
stream = list(range(21, 53))
if OPT["OI"] >= 0:
    stream.insert(OPT["OI"], 53); stream.insert(OPT["OI"] + 2, 54)
for i, n in enumerate(stream):
    if OPT["KS"]:
        kn = [tuple(float(y) for y in x.split(":")) for x in OPT["KS"].split(",")]
        for (i0, h0), (i1, h1) in zip(kn, kn[1:]):
            if i0 <= i <= i1: h = h0 + (h1 - h0)*(i - i0)/(i1 - i0)
    else: h = OPT["KA"] + (OPT["KB"] - OPT["KA"])*i/(len(stream) - 1)
    iss.append((int(round(16*h)), n))
for k in range(2 if OPT["OI"] >= 0 else 0, 14):
    pos = max(16*(46 + k - OPT["LWO"]), 16*(OPT["WO0"] + OPT["OS"]*k))
    iss.append((int(pos), 53 + k))
iss.sort(key=lambda x: x[0])

slot_of = {}
def dma(n):
    t, i = units[n]
    g = []
    pk = parked.get(n)
    for jj in range(4):
        ins = []
        if jj == 0:
            if pk is None: ins.append(f"s_add_u32 m0, s{sWoff}, {slot_of[n]*16384}")
            if t in "KV": ins.append(f"s_mov_b32 s{sTmp}, {i*16384}")
            elif t == "O" and (i & 1): ins.append(f"s_add_u32 s{sTmp}, s{sWooff}, {128*896}")
            elif t == "W" and i == 7: ins += [f"s_add_u32 s{sWq}, s{sWq}, 256", f"s_addc_u32 s{sWq+1}, s{sWq+1}, 0"]
        off = f" offset:{jj*1024}" if jj else ""
        dst = "" if pk is None else f"a[{pk+4*jj}:{pk+4*jj+3}], "
        lds = " lds" if pk is None else ""
        if t == "K": ld = f"buffer_load_dwordx4 {dst}v{vKd+(jj&1)}, s[{sK}:{sK+3}], s{sTmp} offen{off} {OPT['kv_pol']}{lds}"
        elif t == "V": ld = f"buffer_load_dwordx4 {dst}v{vVd+(jj&1)}, s[{sV}:{sV+3}], s{sTmp} offen{off} {OPT['kv_pol']}{lds}"
        elif t == "W": ld = f"buffer_load_dwordx4 v{vWqd+jj}, s[{sWq}:{sWq+3}], s{sWqoff} offen{off} {OPT['w_pol']} lds"
        elif t == "X": ld = f"buffer_load_dwordx4 v{vXd+jj}, s[{sX}:{sX+3}], s{sXoff} offen{off} {OPT['x_pol']} lds"
        elif t == "O":
            so = sTmp if (i & 1) else sWooff
            ld = f"buffer_load_dwordx4 v{vWod+jj}, s[{sWo}:{sWo+3}], s{so} offen{off} {OPT['o0_pol'] if i < 2 else OPT['o_pol']} lds"
        if OPT["MF"] and t in "KV" and jj % OPT["MFE"] == 0:
            def lim(a):
                k = OPT["MF"] - OPT["MFE"]
                if len(a.vmq) > k:
                    a.e(f"s_waitcnt vmcnt({k})")
                    a.vmq = a.vmq[len(a.vmq) - k:]
            lim.cost = 1
            ins.append(lim)
        if not OPT["nodma"]: ins.append((ld, f"u{n}"))
        if jj == 3:
            if t == "W" and i < 13: ins += [f"s_add_u32 s{sWqoff}, s{sWqoff}, {64*8192}", f"s_cmp_eq_u32 s{sWqoff}, {448*8192}", f"s_cselect_b32 s{sWqoff}, 0, s{sWqoff}"]
            if t == "X" and i < 6: ins += [f"s_add_u32 s{sXoff}, s{sXoff}, 128", f"s_cmp_eq_u32 s{sXoff}, 896", f"s_cselect_b32 s{sXoff}, 0, s{sXoff}"]
            if t == "O" and (i & 1) and i < 13: ins += [f"s_add_u32 s{sWooff}, s{sWooff}, 128", f"s_cmp_eq_u32 s{sWooff}, 896", f"s_cselect_b32 s{sWooff}, 0, s{sWooff}"]
        g.append(ins)
    return g

GROUPS = {"K": (vKr, 4), "V": (vVr, 8), "O": (vWor, 4), "W": (vWr, 8), "X": (vXr, 2)}

class Item:
    def __init__(self, H, mf, reads):
        self.H = H; self.mf = mf; self.reads = reads
        self.first = False

def tr_reads(grp, ridx, n, off0, off1):
    return [("ds_read_b64_tr_b16", "a[{b}:{b1}]", grp, ridx, n, off0), ("ds_read_b64_tr_b16", "a[{b2}:{b3}]", grp, ridx, n, off1)]

def acc_of(base, T, u): return base + 16*(T >> 1) + 8*u + 4*(T & 1)
def q4(r, k="v"): return f"{k}[{r}:{r+3}]"

def cost(s):
    if isinstance(s, list): return sum(cost(x) for x in s)
    if callable(s): return getattr(s, "cost", 2)
    if isinstance(s, tuple): s = s[0]
    if s.startswith("ds_write"): return OPT["wcost"]
    return 2 if s.startswith(("v_exp", "v_rcp")) else 1

def gen_k1(BASE):
    a = Em()
    e = a.e
    slot_of.clear(); parked.clear()
    slot_free_at = [-10]*10
    slot_free_pos = [-10]*10
    last_slot = {"O": 8}
    def alloc(n, Hbar, p=0):
        t = units[n][0]
        s = fixed_slot(n)
        if s is not None and slot_free_pos[s] > p: return False
        if t in "KV":
            if units[n][1] >= 4 and uidx[(t, units[n][1] - 4)] not in slot_of: return False
            if any(P1SLOT[m] == s and m not in slot_of for m in range(21)): return False
        if s is None:
            pend = {fixed_slot(m) for m in range(NU) if m not in slot_of}
            fr = [s for s in range(10) if slot_free_at[s] <= Hbar and s not in pend]
            if not fr: return False
            same = [s for s in fr if s // 4 == last_slot[t] // 4]
            s = (same or fr)[0]
        elif slot_free_at[s] > Hbar: return False
        slot_of[n] = s; last_slot[t] = s
        if t == "X": slot_free_pos[s] = 16*consumed[n] + 2
        else: slot_free_at[s] = consumed[n] + 2
        return True

    a.L.append(f".globl {K1}\n.p2align 8\n.type {K1},@function\n{K1}:")
    e("s_cmp_ge_u32 s2, 256")
    e("s_cbranch_scc1 L_k1_done")
    stamp(a, 0)
    e("s_and_b32 s3, s2, 7")
    e(f"s_lshr_b32 s{sBLK}, s3, 2")
    e(f"s_mul_i32 s{sTmp}, s{sBLK}, 40")
    e(f"s_add_u32 s44, s0, s{sTmp}")
    e("s_addc_u32 s45, s1, 0")
    e("s_load_dwordx2 s[64:65], s[44:45], 0")
    e("s_load_dwordx4 s[72:75], s[44:45], 24")
    e("s_load_dwordx4 s[68:71], s[44:45], 8")
    e("s_load_dwordx4 s[76:79], s[0:1], 80")
    e(f"s_load_dwordx2 s[{sWsP}:{sWsP+1}], s[0:1], 96")
    e("v_lshrrev_b32 v1, 6, v0")
    e("v_and_b32 v2, 63, v0")
    e("s_and_b32 s3, s3, 3")
    e(f"v_readfirstlane_b32 s{sW}, v1")
    e("s_lshl_b32 s3, s3, 2")
    e(f"s_lshr_b32 s{sB}, s2, 3")
    e(f"s_and_b32 s{sH}, s{sB}, 3")
    e(f"s_lshl_b32 s{sTmp}, s{sH}, 1")
    e(f"s_add_u32 s{sH}, s{sH}, s3")
    e(f"s_lshr_b32 s{sB}, s{sB}, 2")
    e(f"s_add_u32 s{sTmp}, s{sTmp}, s{sB}")
    for _ in range(2):
        e(f"s_cmp_ge_u32 s{sTmp}, 7"); e(f"s_cselect_b32 s3, 7, 0"); e(f"s_sub_u32 s{sTmp}, s{sTmp}, s3")
    e(f"s_lshl_b32 s{sXoff}, s{sTmp}, 7")
    e(f"s_lshl_b32 s{sWqoff}, s{sTmp}, 19")
    e("v_and_b32 v3, 15, v2")
    e("v_lshrrev_b32 v4, 4, v2")
    e(f"s_lshl_b32 s{sWoff}, s{sW}, 12")
    e("v_lshrrev_b32 v5, 3, v2")
    e("v_mul_u32_u24 v5, 896, v5")
    e(f"s_mul_i32 s3, s{sW}, {32*896}")
    e("v_and_b32 v6, 7, v2")
    e(f"v_add_u32 v{vWod}, s3, v5")
    e("v_xor_b32 v6, v6, v4")
    e(f"v_lshl_add_u32 v{vXd}, v6, 4, v{vWod}")
    e(f"v_xor_b32 v5, 64, v{vXd}")
    e(f"v_add_u32 v{vXd+1}, 6144, v5")
    e(f"v_add_u32 v{vXd+2}, {2*6144}, v{vXd}")
    e(f"v_add_u32 v{vXd+3}, {3*6144}, v5")
    e(f"s_lshl_b32 s3, s{sW}, 17")
    e(f"s_lshl_b32 s{sTmp}, s{sH}, 9")
    e(f"s_add_u32 s3, s3, s{sTmp}")
    e("v_lshlrev_b32 v6, 1, v4")
    e("v_xor_b32 v6, v6, v3")
    e("v_lshlrev_b32 v6, 4, v6")
    e("v_lshl_add_u32 v6, v4, 13, v6")
    e(f"v_add_u32 v{vWqd}, s3, v6")
    e(f"v_xor_b32 v7, 0x80, v{vWqd}")
    e(f"v_add_u32 v{vWqd+1}, {32768-1024}, v{vWqd}")
    e(f"v_add_u32 v{vWqd+2}, {2*(32768-1024)}, v7")
    e(f"v_add_u32 v{vWqd+3}, {3*(32768-1024)}, v7")
    for s, sz in ((sX, 114688), (sWq, 448*8192), (sK, 262144), (sV, 262144)):
        e(f"s_mov_b32 s{s+2}, {sz}"); e(f"s_mov_b32 s{s+3}, 0x00020000")
    e(f"s_mul_i32 s46, s{sB}, 114688")
    e(f"s_lshl_b32 s47, s{sB}, 4")
    e(f"s_add_u32 s47, s47, s{sH}")
    e(f"s_lshl_b32 s47, s47, 18")
    if OPT["spw"]:
        e("v_lshrrev_b32 v8, 2, v0")
        e("v_lshlrev_b32 v8, 13, v8")
        e("v_and_b32 v9, 3, v0")
        e("v_lshl_add_u32 v8, v9, 6, v8")
        e(f"v_add_u32 v8, s{sTmp}, v8")
    e("s_waitcnt lgkmcnt(0)")
    e(f"s_add_u32 s{sX}, s64, s46"); e(f"s_addc_u32 s{sX+1}, s65, 0")
    e(f"s_mov_b32 s{sWq}, s72"); e(f"s_mov_b32 s{sWq+1}, s73")
    e(f"s_add_u32 s{sK}, s68, s47"); e(f"s_addc_u32 s{sK+1}, s69, 0")
    e(f"s_add_u32 s{sV}, s70, s47"); e(f"s_addc_u32 s{sV+1}, s71, 0")
    if OPT["pfn"]:
        if OPT["pfbit"] >= 0:
            e(f"s_bitcmp1_b32 s2, {OPT['pfbit']}")
            e("s_cbranch_scc0 L_nopf")
        elif OPT["pfbit"] == -2:
            e("s_lshr_b32 s3, s2, 2"); e("s_xor_b32 s3, s3, s2"); e("s_bitcmp1_b32 s3, 3")
            e("s_cbranch_scc0 L_nopf")
        e("v_lshlrev_b32 v5, 7, v2")
        e(f"s_and_b32 s3, s{sW}, 1"); e("s_lshl_b32 s3, s3, 13")
        e("v_add_u32 v5, s3, v5")
        e(f"s_cmp_ge_u32 s{sW}, 2")
        e("s_cbranch_scc1 L_pf_hi")
        for part in range(2):
            for k in range(part, OPT["pfn"], 2):
                t, i = units[21 + k]
                sr = sK if t == "K" else sV
                e(f"s_mov_b32 s{sTmp2}, {i*16384}")
                e(f"buffer_load_dword a{aQ+2+k//2}, v5, s[{sr}:{sr+3}], s{sTmp2} offen {OPT['pf_pol']}")
            if part == 0:
                e("s_branch L_nopf")
                a.lab("L_pf_hi")
        a.lab("L_nopf")
    ip = [0]
    while iss[ip[0]][0] < 0:
        m = iss[ip[0]][1]; ip[0] += 1
        assert alloc(m, 0)
        if m == 1 and OPT["spw"]:
            e(f"buffer_load_dword a{aQ+1}, v8, s[{sWq}:{sWq+3}], s{sWqoff} offen offset:256 {OPT['w_pol']}", "pf")
        for g in dma(m):
            for s in g: e(s)
    if OPT["codepf"]:
        e("s_getpc_b64 s[62:63]")
        a.lab("L_pc")
        e("s_lshr_b32 s3, s2, 3")
        e("s_lshl_b32 s3, s3, 12")
        e("v_lshlrev_b32 v5, 4, v0")
        e("v_add_u32 v5, s3, v5")
        e("v_min_u32 v5, L_k1_end-L_pc-8, v5")
        e(f"global_load_dword a{aQ}, v5, s[62:63]", "pf")
    e("v_bfe_u32 v6, v2, 2, 2")
    e("v_and_b32 v7, 3, v2")
    e("v_bfe_u32 v5, v2, 2, 3")
    e("v_lshl_add_u32 v8, v4, 3, v6")
    e("v_lshlrev_b32 v9, 5, v5")
    e("v_lshl_add_u32 v9, v7, 3, v9")
    e("v_lshl_add_u32 v9, v8, 8, v9")
    e("v_lshl_add_u32 v8, v8, 8, v9")
    e(f"v_add_u32 v{vVr}, 0x10000, v8")
    for w in (2, 0, 1):
        e(f"v_add_u32 v{vWr+8*w}, {w*65536}, v9")
        for T in range(1, 8): e(f"v_xor_b32 v{vWr+8*w+T}, {T<<5}, v{vWr+8*w}")
    e("v_lshrrev_b32 v5, 1, v3"); e("v_xor_b32 v5, v5, v4"); e("v_lshlrev_b32 v5, 4, v5")
    e("v_lshl_add_u32 v5, v3, 7, v5")
    e(f"v_add_u32 v{vXr}, s{sWoff}, v5")
    e(f"v_xor_b32 v{vXr+1}, 64, v{vXr}")
    for w in (2, 1):
        e(f"v_add_u32 v{vXr+2*w}, {w*65536}, v{vXr}"); e(f"v_add_u32 v{vXr+2*w+1}, {w*65536}, v{vXr+1}")
    for s, sz in ((sWo, 229376), (sG, 16*114688), (sFl, 1024), (sDb, 256), (sOut, 128*1792)):
        e(f"s_mov_b32 s{s+2}, {sz}"); e(f"s_mov_b32 s{s+3}, 0x00020000")
    e(f"s_cmp_eq_u32 s{sB}, 7"); e(f"s_cselect_b32 s3, 0, s{sB}")
    e(f"s_lshl_b32 s{sWooff}, s3, 7")
    e(f"s_lshl_b32 s{sStA}, s3, 12")
    e(f"s_mov_b32 s{sNP0}, s{sStA}")
    e(f"s_mul_i32 s3, s{sH}, 229376")
    e(f"s_add_u32 s{sWo}, s74, s3"); e(f"s_addc_u32 s{sWo+1}, s75, 0")
    e(f"s_lshl_b32 s46, s{sBLK}, 3")
    e(f"s_add_u32 s46, s46, s{sB}")
    e(f"s_mul_i32 s3, s46, {16*114688}")
    e(f"s_add_u32 s{sG}, s{sWsP}, s3"); e(f"s_addc_u32 s{sG+1}, s{sWsP+1}, 0")
    e(f"s_lshl_b32 s3, s46, 10")
    e(f"s_add_u32 s3, s3, {FLAGS_OFF}")
    e(f"s_add_u32 s{sFl}, s{sWsP}, s3"); e(f"s_addc_u32 s{sFl+1}, s{sWsP+1}, 0")
    e(f"s_mov_b32 s{sDb}, s78"); e(f"s_mov_b32 s{sDb+1}, s79")
    e(f"s_mul_i32 s3, s{sB}, {128*1792}")
    e(f"s_add_u32 s{sOut}, s76, s3"); e(f"s_addc_u32 s{sOut+1}, s77, 0")
    e(f"s_mov_b32 s{sC}, {f32hex(SCALE)}")
    e(f"s_mov_b32 s{sThr}, {f32hex(OPT['thr'])}")
    e(f"s_mov_b32 s{sTlo}, {f32hex(OPT['tlo'])}")
    e(f"s_mov_b32 s{sSpin}, 0x8000")
    if OPT["TA"] >= 0:
        e(f"s_cmp_ge_u32 s{sW}, 2")
        e(f"s_cselect_b32 s{sPf}, s{sV}, s{sK}"); e(f"s_cselect_b32 s{sPf+1}, s{sV+1}, s{sK+1}")
        e(f"s_cselect_b32 s{sPfo}, {(OPT['T0']-1)*16384}, {OPT['T0']*16384}")
        e(f"s_mov_b32 s{sPf+2}, 262144"); e(f"s_mov_b32 s{sPf+3}, 0x00020000")
        e(f"s_and_b32 s3, s{sW}, 1"); e("s_lshl_b32 s3, s3, 13")
        e(f"v_lshl_add_u32 v{vPf}, v2, 7, s3")
    if OPT["diag"]:
        e("s_getreg_b32 s3, hwreg(HW_REG_XCC_ID, 0, 4)")
        e("s_sub_u32 s3, s3, s2"); e("s_and_b32 s3, s3, 7"); e("s_lshl_b32 s3, 1, s3")
        e("v_mov_b32 v5, s3"); e("v_lshlrev_b32 v8, 12, v0"); e("v_add_u32 v8, 128, v8")
        e(f"buffer_atomic_or v5, v8, s[{sDb}:{sDb+3}], 0 offen sc1", "pf")
    stamp(a, 1)
    late = []
    l = late.append
    l("v_lshrrev_b32 v5, 5, v2"); l("v_and_b32 v9, 31, v2")
    l("v_lshlrev_b32 v8, 9, v5"); l(f"v_add_u32 v8, s{sWoff}, v8")
    l(f"s_lshl_b32 s3, s{sW}, 2")
    l("v_xor_b32 v1, v9, v5"); l("v_xor_b32 v1, s3, v1")
    l(f"v_lshl_add_u32 v{vKd}, v1, 4, v8")
    l(f"v_xor_b32 v{vKd+1}, 32, v{vKd}")
    l(f"s_and_b32 s3, s{sW}, 1"); l("s_lshl_b32 s3, s3, 3")
    l("v_lshlrev_b32 v5, 1, v5"); l("v_xor_b32 v1, v9, v5"); l("v_xor_b32 v1, s3, v1")
    l(f"v_lshl_add_u32 v{vVd}, v1, 4, v8")
    l(f"v_xor_b32 v{vVd+1}, 64, v{vVd}")
    l(f"s_mul_i32 s3, s{sW}, 28672"); l(f"s_mul_i32 s44, s{sH}, 114688"); l("s_add_u32 s3, s3, s44")
    l("v_lshl_add_u32 v5, v3, 2, v4")
    l(f"v_lshl_add_u32 v{vSt}, v5, 4, s3")
    for T in range(1, 8): l(f"v_xor_b32 v{vVr+T}, {T<<5}, v{vVr}")
    if OPT["CLR"] < 14:
        for r in range(4): l(f"v_mov_b32 v{vE+8+r}, -1")
    if OPT["wow"] >= 0:
        l(f"s_mul_i32 s3, s{sB}, 28672"); l(f"v_lshl_add_u32 v63, v0, 7, s3")
    l(f"s_lshl_b32 s3, s{sW}, 8"); l(f"s_lshl_b32 s44, s{sH}, 2"); l("s_add_u32 s3, s3, s44")
    l(f"v_lshl_add_u32 v{vFl}, v2, 12, s3")
    l("v_lshlrev_b32 v5, 2, v3")
    l(f"s_lshr_b32 s3, s{sH}, 2"); l("s_lshl_b32 s3, s3, 8")
    l(f"v_add_u32 v{vFp}, s3, v5")
    l("v_lshl_add_u32 v5, v4, 8, v5")
    l([f"s_or_b32 s3, s{sH}, s{sW}", "s_cmp_eq_u32 s3, 0", "s_cselect_b32 s45, 0, 0x10000"])
    l("v_add_u32 v5, s45, v5")
    l(f"v_mov_b32 v{vL}, 0"); l(f"v_mov_b32 v{vL+1}, 0")
    l((f"buffer_store_dword v{vL}, v5, s[{sFl}:{sFl+3}], 0 offen sc1", "clr"))
    l("s_lshl_b32 s44, s46, 2"); l("s_add_u32 s45, s45, s44")
    l(f"v_lshl_add_u32 v{vDbA}, v2, 12, s45")
    l(f"v_mov_b32 v{vDbV}, s44")
    l(f"v_mov_b32 v{vFv}, 1")
    l("v_lshrrev_b32 v5, 1, v4"); l("v_and_b32 v8, 1, v4"); l("v_lshl_add_u32 v5, v8, 1, v5")
    l("v_xor_b32 v5, v5, v3"); l("v_lshlrev_b32 v5, 4, v5")
    l("v_lshl_add_u32 v8, v6, 3, v7")
    l(f"v_lshl_add_u32 v{vKr}, v8, 9, v5")
    for s in range(1, 4): l(f"v_xor_b32 v{vKr+s}, {s<<6}, v{vKr}")
    l("v_lshrrev_b32 v5, 2, v2"); l("v_lshlrev_b32 v5, 7, v5")
    l("v_bfe_u32 v8, v2, 3, 2"); l("v_lshl_add_u32 v5, v8, 5, v5")
    l("v_lshl_add_u32 v5, v7, 3, v5")
    l(f"v_add_u32 v{vWor}, 0x20000, v5")
    for n in range(1, 4): l(f"v_xor_b32 v{vWor+n}, {n<<5}, v{vWor}")
    l("v_and_b32 v8, 7, v2"); l("v_lshlrev_b32 v9, 1, v4"); l("v_xor_b32 v8, v8, v9")
    l(f"v_lshl_add_u32 v{vWod}, v8, 4, v{vWod}")
    for jj in range(1, 4): l(f"v_add_u32 v{vWod+jj}, {jj*(7168-1024)}, v{vWod}")
    for r in range(8): l(f"v_mov_b32 v{vNM+r}, 0")
    if NP:
        l(f"v_lshl_add_u32 v{vUp}, v2, 4, s{sWoff}"); l(f"v_add_u32 v{vUp+1}, 0x10000, v{vUp}")
    l(f"s_lshr_b32 s44, s{sH}, 2"); l("s_mul_i32 s3, s44, 28672")
    l(f"s_and_b32 s45, s{sH}, 3"); l("s_lshl_b32 s45, s45, 10"); l("s_add_u32 s3, s3, s45")
    l(f"s_lshl_b32 s45, s{sW}, 8"); l("s_add_u32 s3, s3, s45")
    l("v_mul_u32_u24 v5, 114688, v4"); l("v_lshl_add_u32 v5, v3, 4, v5")
    l(f"v_add_u32 v{vRd}, s3, v5")
    l("s_lshl_b32 s3, s44, 5"); l(f"s_and_b32 s45, s{sH}, 1"); l("s_lshl_b32 s45, s45, 4"); l("s_add_u32 s3, s3, s45")
    l(f"s_lshl_b32 s45, s{sW}, 2"); l("s_add_u32 s3, s3, s45"); l("s_mul_i32 s3, s3, 1792")
    l(f"s_mul_i32 s45, s{sBLK}, 896"); l("s_add_u32 s3, s3, s45")
    l(f"s_and_b32 s45, s{sH}, 2"); l("s_lshl_b32 s45, s45, 5"); l("s_add_u32 s3, s3, s45")
    l("v_mul_u32_u24 v5, 1792, v6"); l("v_lshl_add_u32 v5, v7, 3, v5")
    l("v_and_b32 v8, 1, v4"); l("v_lshl_add_u32 v5, v8, 5, v5")
    l("v_lshrrev_b32 v8, 1, v4"); l("v_lshl_add_u32 v5, v8, 24, v5")
    l(f"v_add_u32 v{vRo}, s3, v5")
    l("v_and_b32 v5, 1, v2"); l("v_lshlrev_b32 v5, 4, v5"); l("v_mov_b32 v8, 0x3f80"); l("v_lshlrev_b32 v5, v5, v8")
    l("v_bfe_u32 v8, v2, 1, 2")
    for r in range(4):
        l(f"v_cmp_eq_u32 vcc, {r}, v8"); l("s_nop 0"); l(f"v_cndmask_b32 v{vSel+r}, 0, v5, vcc")

    items = []
    fill = defaultdict(list)
    def add(p, ins):
        fill[p].extend(ins if isinstance(ins, list) else [ins])
    load = defaultdict(float, BASE or {})
    def spread(p0, p1, ins):
        n = p1 - p0 + 1
        if not OPT["wf"]:
            for k, s in enumerate(ins): add(p0 + (k*n)//len(ins), [s])
            return
        if BASE is None: return
        tot = cost(ins)
        lo, hi = 0.0, 100.0
        for _ in range(40):
            L = (lo + hi)/2
            if sum(max(0.0, L - load[p]) for p in range(p0, p1 + 1)) >= tot: hi = L
            else: lo = L
        k, bud = 0, 1e-6
        for p in range(p0, p1 + 1):
            bud += max(0.0, hi - load[p])
            while k < len(ins) and (bud >= cost(ins[k])/2 or p == p1):
                add(p, [ins[k]]); load[p] += cost(ins[k]); bud -= cost(ins[k]); k += 1
    if OPT["late"]: spread(0, 16*6, late)
    else:
        for s in late:
            for x in (s if isinstance(s, list) else [s]): e(x)
    def p1item(H, i, T, kap):
        half, c = i // 7, i % 7
        n = uidx[("W", i)]
        mf = []
        for u in range(2):
            acc = acc_of(vO, 8*half + T, u)
            cin = "0" if (c == 0 and kap == 0) else q4(acc)
            mf.append(f"{MF} {q4(acc)}, a[{{b}}:{{b3}}], {q4(aX + 16*c + 8*kap + 4*u, 'a')}, {cin}")
        rd = tr_reads("W", T, n, kap*8192, kap*8192 + 1024)
        if i < 7 and T == 0:
            rd = [("ds_read_b128", q4(aX + 16*c + 8*kap + 4*u, "a"), "X", kap, uidx[("X", c)], u*2048) for u in range(2)] + rd
        items.append(Item(H, mf, rd))
    done_at = {}
    for H in range(14):
        if OPT["j2"] and H >= 12:
            for T in range(4*(H-12), 4*(H-12)+4):
                for i in (12, 13):
                    for kap in range(2): p1item(H, i, T, kap)
                done_at[4 + T//2] = len(items) - 1
        else:
            for T in range(8):
                for kap in range(2): p1item(H, H, T, kap)
                if H % 7 == 6: done_at[4*(H//7) + T//2] = len(items) - 1
    def qconv(s):
        t = []
        R = [vO + 16*s, vO + 16*s + 8]
        for r in R:
            for j in range(8): t.append(f"v_mul_f32 v{r+j}, s{sC}, v{r+j}")
        for r in R:
            for j in range(4): t.append(f"v_cvt_pk_bf16_f32 v{r+j}, v{r+2*j}, v{r+2*j+1}")
        for r in R:
            t += [f"v_permlane16_swap_b32 v{r}, v{r+2}", f"v_permlane16_swap_b32 v{r+1}, v{r+3}"]
        for u, r in enumerate(R):
            for j in range(4): t.append(f"v_accvgpr_write_b32 a{aQ+8*s+4*u+j}, v{r+j}")
        return t
    t = []
    for s in range(4): t += qconv(s)
    spread(7*16 + 2, 12*16 + 6, t)
    if OPT["j2"]:
        lim = [(done_at[4]+2, done_at[4]+12), (done_at[4]+13, done_at[6]+1), (done_at[6]+2, done_at[6]+11), (done_at[6]+12, 14*16+12)]
    else:
        lim = [(13*16+5+6*k, 13*16+10+6*k) for k in range(4)]
    for k, (p0, p1) in enumerate(lim):
        assert p0 >= done_at[4+k] + 2 and p1 < 14*16 + 2*(4+k) - 1, (k, p0, p1)
        spread(p0, p1, qconv(4 + k))

    def qk(H, n, S):
        for f in range(16):
            s, ee = f >> 1, f & 1
            mf = []
            for u in range(2):
                acc = S + 8*u + 4*ee
                cin = q4(vNM + 4*u) if s == 0 else q4(acc)
                mf.append(f"{MF} {q4(acc)}, a[{{b}}:{{b3}}], {q4(aQ + 8*s + 4*u, 'a')}, {cin}")
            items.append(Item(H, mf, [("ds_read_b128", "a[{b}:{b3}]", "K", s & 3, n, (s >> 2)*256 + ee*2048)]))
    def pv(H, n, P, first):
        for T in range(16):
            mf = []
            for u in range(2):
                acc = acc_of(vO, T, u)
                mf.append(f"{MF} {q4(acc)}, a[{{b}}:{{b3}}], {q4(P + 4*u)}, {'0' if first else q4(acc)}")
            o = (T >> 3)*256
            items.append(Item(H, mf, tr_reads("V", T & 7, n, o, o + 2048)))
    EORD = [0, 1, 2, 3, 8, 9, 10, 11, 4, 5, 6, 7, 12, 13, 14, 15]
    Pb = (vP, vE + 8)
    def softmax(S, par):
        Lo, Ln, P = vL + 2*par, vL + 2*(par ^ 1), Pb[par]
        L = []
        seen = set()
        def addk(i):
            u = EORD[i] >> 3
            src = Ln + u if u in seen else Lo + u
            seen.add(u)
            return f"v_add_f32 v{Ln+u}, v{src}, v{vE+(i&7)}"
        cv = lambda i: f"v_cvt_pk_bf16_f32 v{P+EORD[i]//2}, v{vE+(i&7)}, v{vE+((i+1)&7)}"
        for i, k in enumerate(EORD):
            L.append(f"v_exp_f32 v{vE+(i&7)}, v{S+k}")
            if i >= 1: L.append(addk(i-1))
            if i >= 2 and i % 2 == 0: L.append(cv(i-2))
        L += [addk(15), cv(14)]
        return L
    lblc = [0]
    def check(t):
        lblc[0] += 1
        k = lblc[0]
        Ln = vL + 2*((t & 1) ^ 1)
        nm = "L_fix0" if t == 0 else f"L_fixp{t & 1}"
        def f(a):
            a.e(f"v_max_f32 v{vT0}, v{Ln}, v{Ln+1}")
            if t == 0:
                a.e(f"v_min_f32 v{vT0+1}, v{Ln}, v{Ln+1}")
                a.e(f"v_cmp_lt_f32 vcc, s{sThr}, v{vT0}")
                a.e(f"v_cmp_gt_f32 s[44:45], s{sTlo}, v{vT0+1}")
                a.e("s_or_b64 s[44:45], s[44:45], vcc")
                a.e(f"s_cbranch_scc0 L_nm{k}")
            else:
                a.e(f"v_cmp_lt_f32 vcc, s{sThr}, v{vT0}")
                a.e(f"s_cbranch_vccz L_nm{k}")
            a.e(f"s_call_b64 s[{sRet}:{sRet+1}], {nm}")
            a.lab(f"L_nm{k}")
        f.after2 = (t == 15)
        f.cost = 3
        return f
    H = 14
    qk(H, 21, vSb[0]); H += 1
    qk(H, 22, vSb[1])
    add(16*H + 15, [check(0)])
    spread(16*H + 1, 16*H + 14, softmax(vSb[0], 0))
    H += 1
    for t in range(1, 16):
        n = uidx[("V", t-1)]
        assert consumed[n] == H
        pv(H, n, Pb[(t-1) & 1], t == 1)
        p0 = 16*H
        H += 1
        if t <= 14:
            n = uidx[("K", t+1)]
            assert consumed[n] == H
            qk(H, n, vSb[(t+1) & 1])
            H += 1
        add(16*H - 1, [check(t)])
        spread(p0 + 1, 16*H - 2, softmax(vSb[t & 1], t & 1))
    n = uidx[("V", 15)]
    assert consumed[n] == H and H == 45
    pv(H, n, Pb[1], False)
    L0, L1 = vL, vL + 1
    fin = [f"v_permlane32_swap_b32 v{L0}, v{L1}", f"v_add_f32 v{L0}, v{L0}, v{L1}", f"v_mov_b32 v{L1}, v{L0}",
           f"v_permlane16_swap_b32 v{L0}, v{L1}", f"v_add_f32 v{L0}, v{L0}, v{L1}", f"v_rcp_f32 v{vAl}, v{L0}",
           f"v_mov_b32 v{vAl+1}, v{vAl}", f"v_permlane32_swap_b32 v{vAl}, v{vAl+1}"]
    ON = OPT["onorm"]
    for k, s in enumerate(fin): add((45*16 + k//2) if ON else (47*16 - 12 + k), s)
    p = 16*H + (4 if ON else 3)
    for s in range(8):
        t = []
        R = [vO + 16*s, vO + 16*s + 8]
        if ON:
            for u, r in enumerate(R): t += [f"v_mul_f32 v{r+j}, v{r+j}, v{vAl+u}" for j in range(8)]
        for r in R: t += [f"v_cvt_pk_bf16_f32 v{r+j}, v{r+2*j}, v{r+2*j+1}" for j in range(4)]
        w = 5 if ON else 3
        assert p >= 16*H + 2*s + 3 and p + w - 1 <= 16*H + 16 + 4*s - 1
        spread(p, p + w - 1, t)
        p += w
    H += 1
    def epilogue(acc, so, q, j):
        u = q & 1
        g = [] if ON else [f"v_mul_f32 v{acc+r}, v{acc+r}, v{vAl+u}" for r in range(8)]
        g += [f"v_cvt_pk_bf16_f32 v{acc+jj}, v{acc+2*jj}, v{acc+2*jj+1}" for jj in range(4)]
        offs = f" offset:{q*1024}" if q else ""
        g.append((f"buffer_store_dwordx4 {q4(acc)}, v{vSt}, s[{sG}:{sG+3}], s{so} offen{offs} {OPT['st_pol']}", f"st{j}"))
        return g
    NS = OPT["NS"]
    pubs = [int(x) for x in OPT["pub"].split(",")]
    assert pubs[-1] == 7 - NS
    def publish(cnt):
        def f(a):
            a.wait_vm({f"st{j}" for j in range(cnt)} | {"sen"})
            a.e(f"v_mov_b32 v{vFv}, {cnt}")
            a.e(f"buffer_store_dword v{vFv}, v{vFl}, s[{sFl}:{sFl+3}], 0 offen sc1", "pub")
        return f
    late_pubs = []
    for j in range(7):
        so = sStA if j % 2 == 0 else sStB
        so2 = sStB if j % 2 == 0 else sStA
        A = vAcc + 32*(j & 1)
        for hf in range(2):
            n = uidx[("O", 2*j+hf)]
            assert consumed[n] == H
            order = [(nn, s4) for nn in range(4) for s4 in range(4)]
            if j == 0: order = [(nn, s4) for s4 in range(4) for nn in range(4)]
            for (nn, s4) in order:
                s = 4*hf + s4
                mf = []
                for u in range(2):
                    acc = acc_of(A, nn, u)
                    mf.append(f"{MF} {q4(acc)}, a[{{b}}:{{b3}}], {q4(vO + 16*s + 8*u)}, {'0' if s == 0 else q4(acc)}")
                items.append(Item(H, mf, tr_reads("O", nn, n, s4*4096, s4*4096 + 2048)))
            H += 1
        pend = 16*H
        g0 = epilogue(A, so, 0, j) + epilogue(A + 8, so, 1, j)
        g1 = epilogue(A + 16, so, 2, j) + epilogue(A + 24, so, 3, j)
        if j < 6:
            spread(pend - 7 if j else pend + 1, pend + 8, g0)
            spread(pend + 9, pend + 23, g1)
            add(pend - 8, [[f"s_add_u32 s{so2}, s{so}, 4096", f"s_cmp_eq_u32 s{so2}, 28672", f"s_cselect_b32 s{so2}, 0, s{so2}"]])
        else:
            spread(pend - 7, pend - 1, g0)
            tail_epi = g1
        if j + 1 in pubs:
            pp = pend + 25 + 16*OPT["PUBD"]
            if pp < 960 - 2: add(pp, [publish(j + 1)])
            else: late_pubs.append(j + 1)
    N = len(items)
    assert N == 960
    for p in range(N):
        if p % 16 == 0: items[p].first = True
    p = int(16*OPT["CLR"])
    for j in range(7 - NS, 7):
        add(p, [[f"s_add_u32 s44, s{sNP0}, {j*4096}", "s_cmp_ge_u32 s44, 28672", "s_cselect_b32 s45, 28672, 0", "s_sub_u32 s44, s44, s45"]])
        for q in range(4):
            offs = f" offset:{q*1024}" if q else ""
            add(p + 1 + q*OPT["CLS"], [(f"buffer_store_dwordx4 {q4(vE + 8) if OPT['CLR'] < 14 else q4(aSen, 'a')}, v{vSt}, s[{sG}:{sG+3}], s44 offen{offs} {OPT['st_pol']}", "sen")])
        p += 4*OPT["CLS"]
    assert p < 47*16
    if NS == 0: pass
    elif OPT["CLR"] >= 14: spread(14*16 + 12, 15*16, [f"v_accvgpr_write_b32 a{aSen+r}, -1" for r in range(4)])
    else: assert p < 15*16 and not OPT["late"]
    if OPT["wow"] >= 0:
        add(int(16*OPT["wow"]), [(f"buffer_load_dword a145, v63, s[{sWo}:{sWo+3}], 0 offen", "pf")])
    if OPT["TA"] >= 0:
        nt = 17 - OPT["T0"]
        for k in range(nt):
            pos = int(round(16*(OPT["TA"] + (OPT["TB"] - OPT["TA"])*k/(nt - 1))))
            add(pos, [[f"s_max_i32 s{sTmp2}, s{sPfo}, 0", f"s_min_i32 s{sTmp2}, s{sTmp2}, {15*16384}",
                       (f"buffer_load_dword a144, v{vPf}, s[{sPf}:{sPf+3}], s{sTmp2} offen {OPT['t_pol']}", "pf"),
                       f"s_add_u32 s{sPfo}, s{sPfo}, 16384"]])
    def lead(a):
        a.wait_vm({"clr"})
        a.e(f"buffer_store_dword v{vFv}, v{vDbA}, s[{sDb}:{sDb+3}], 0 offen sc1", "sig")
    add(16*13 + 5, [lead])
    add(16*39 + 5, [(f"buffer_load_dword v{vF}, v{vDbV}, s[{sDb}:{sDb+3}], 0 offen sc1", "chk")])
    def chk(a):
        a.wait_vm({"chk"})
        a.e(f"v_cmp_eq_u32 vcc, 0, v{vF}")
        a.e("s_cbranch_vccz L_chk_ok")
        a.e(f"s_call_b64 s[{sRet}:{sRet+1}], L_chk_wait")
        a.lab("L_chk_ok")
    add(16*47 + 3, [chk])
    if OPT["early"]:
        add(960 - 40, [(f"buffer_load_dword v{vF}, v{vFp}, s[{sFl}:{sFl+3}], 0 offen sc1", "poll")])
    if OPT["stamps"]:
        add(14*16 - 1, [lambda a: stamp(a, 3)])
        add(46*16 - 1, [lambda a: stamp(a, 4)])

    D, WEV = OPT["D"], OPT["wev"]
    window = {"K": 0, "V": 1, "O": 2}
    uses = defaultdict(list)
    for i, it in enumerate(items):
        for r in it.reads: uses[r[2]].append((i, r[4]))
    soft_dma = []
    soft_up = []
    soft_adr = []
    log = []
    cur = []
    def put(s): cur.append(s)
    def set_window(g, w):
        if window[g] == w: return
        base, cnt = GROUPS[g]
        d = (w - window[g]) * 65536
        window[g] = w
        soft_adr.extend((g, k, f"v_add_u32 v{base+k}, {d & 0xffffffff}, v{base+k}") for k in range(cnt))
    def flush_adr(g, k):
        rest = []
        for (gg, kk, s) in soft_adr:
            if gg == g and kk == k: put(s)
            else: rest.append((gg, kk, s))
        soft_adr[:] = rest
    upos = {g: 0 for g in GROUPS}
    rp = [0]
    hbar = [-1]
    issued = set(m for (pos, m) in iss[:ip[0]])
    pend = list(iss[ip[0]:])
    upq = []
    unparked = set()
    areas = []
    if NP:
        areas.append([144, 0, 10000])
        if OPT["pkq"]: areas += [[aQ + 32, 0, lim[0][0] - 2], [aQ + 48, 0, lim[2][0] - 2]]
        areas += [[aX + 16*c, 16*(min(7 + c, 13) + 1) + 1 if c < 5 else 14*16 + 1, 10000] for c in range(7)]
        areas = areas[:NP]
    area_of = {}
    cls = lambda m: "P" if units[m][0] in "XW" else units[m][0]
    def next_unit(p, force=None):
        seen = set()
        for k, (pos, m) in enumerate(pend):
            c = cls(m)
            if c in seen: continue
            seen.add(c)
            if force is not None:
                if c != cls(force): continue
            elif pos > p: break
            ok = alloc(m, hbar[0], p)
            if not ok and c in "KV":
                fr = [x for x in areas if x[1] <= p and x[2] > p + 64 and (x[2] == 10000 or units[m][1] < 4)]
                if fr:
                    x = min(fr, key=lambda x: x[2])
                    parked[m] = x[0]; area_of[m] = x; x[1] = 10000; upq.append(m); ok = True
            assert ok or force is None, ("no slot", m, p)
            if not ok: continue
            pend.pop(k)
            issued.add(m)
            log.append((p, "iss", units[m], slot_of.get(m, f"a{parked.get(m)}")))
            soft_dma.extend(dma(m))
            return True
        return False
    def next_unpark(p, force=None):
        for m in upq:
            if force is not None and m != force: continue
            due = min(16*(needed[m] - OPT["UPD"]) - D, area_of[m][2] - 10)
            if force is None and (p < due or soft_dma_has(m)): continue
            if not alloc(m, hbar[0], p):
                assert force is None and p < area_of[m][2] - 5, ("no slot (unpark)", m, p)
                continue
            upq.remove(m)
            s = slot_of[m]
            log.append((p, "unp", units[m], s))
            for jj in range(4):
                pk = parked[m] + 4*jj
                ins = []
                if jj == 0: ins.append(lambda a, m=m: a.wait_vm({f"u{m}"}))
                ins.append((f"ds_write_b128 v{vUp + s//4}, a[{pk}:{pk+3}] offset:{(s%4)*16384 + jj*1024}", None, f"w{m}"))
                soft_up.append(ins)
            area_of[m][1] = p + 24
            unparked.add(m)
            return True
        return False
    def soft_dma_has(m):
        return any(isinstance(s, tuple) and s[1] == f"u{m}" for g in soft_dma for s in g)
    def issue(i, p):
        it = items[i]
        if it.first:
            Hh = it.H
            for n in HS[Hh]:
                while n not in issued: next_unit(p, n)
                if soft_dma_has(n):
                    for g in soft_dma: put(g)
                    soft_dma.clear()
                if n in parked:
                    if n not in unparked: next_unpark(p, n)
                    for g in soft_up: put(g)
                    soft_up.clear()
            def ev(a, Hh=Hh):
                a.c(f"event H={Hh} needs {[units[n] for n in HS[Hh]]}")
                if OPT["trace"]:
                    if Hh > 0:
                        a.e(f"v_writelane_b32 v{vTr}, s{sTr+4*((Hh-1)&1)}, {Hh-1}")
                        a.e(f"v_writelane_b32 v{vTr+1}, s{sTr+2+4*((Hh-1)&1)}, {Hh-1}")
                    a.e(f"{'s_memtime' if OPT['trace'] == 2 else 's_memrealtime'} s[{sTr+4*(Hh&1)}:{sTr+1+4*(Hh&1)}]")
                a.wait_vm({f"u{n}" for n in HS[Hh] if n not in parked})
                a.wait_lds({f"w{n}" for n in HS[Hh]})
                a.e("s_barrier")
                if OPT["trace"]:
                    a.e(f"s_memrealtime s[{sTr+2+4*(Hh&1)}:{sTr+3+4*(Hh&1)}]")
                if Hh == 0: stamp(a, 2)
            ev.cost = 2 + (4 if OPT["trace"] else 0)
            put(ev)
            hbar[0] = Hh
        b = aFr(i)
        for (op, dst, g, ridx, n, inoff) in it.reads:
            slot = slot_of[n]
            if g in "WX":
                put((f"{op} {dst.format(b=b, b1=b+1, b2=b+2, b3=b+3)}, v{GROUPS[g][0]+GROUPS[g][1]*(slot//4)+ridx} offset:{(slot % 4)*16384 + inoff}", None, i))
                continue
            set_window(g, slot // 4)
            flush_adr(g, ridx)
            imm = (slot % 4)*16384 + inoff
            put((f"{op} {dst.format(b=b, b1=b+1, b2=b+2, b3=b+3)}, v{GROUPS[g][0]+ridx} offset:{imm}", None, i))
            upos[g] += 1
            if upos[g] < len(uses[g]):
                ni, nn = uses[g][upos[g]]
                if nn != n and nn in slot_of and ni > i + 2:
                    set_window(g, slot_of[nn]//4)
    def adv(limit, p):
        while rp[0] < N and rp[0] <= limit:
            issue(rp[0], p); rp[0] += 1
    def emit(s):
        if isinstance(s, list):
            for x in s: e(x)
        else: e(s)
    loads_out = {}
    est = [0]
    adv(D - 1, -1)
    for s in cur: emit(s)
    for p in range(N):
        cur.clear()
        if p % WEV == 0: a.wait_lds(set(range(p, p + WEV)))
        b = aFr(p)
        adv(p + D, p)
        SR = list(cur); cur.clear()
        SF = list(fill.get(p, []))
        if not soft_up: next_unpark(p)
        if not soft_dma: next_unit(p)
        sp = OPT["dsp1"] if p < 14*16 else OPT["dsp"]
        if soft_dma and (p - OPT["dph"]) % sp == 0: put(soft_dma.pop(0))
        if soft_up and (p % OPT["usp"] == 0 or p < 15*16): put(soft_up.pop(0))
        SM = list(cur)
        if soft_adr: SR.append(soft_adr.pop(0)[2])
        wt = 1 if (p + 1) % WEV == 0 else 0
        tot = cost(SR) + cost(SF) + cost(SM) + wt
        loads_out[p] = tot
        evi = [k for k, x in enumerate(SR) if callable(x)]
        a2 = [k for k, x in enumerate(SF) if getattr(x, "after2", False)]
        best = None
        for kr in range(len(SR) + 1):
            for kf in range((a2[0] if a2 else len(SF)) + 1):
                for km in range(len(SM) + 1):
                    if km and evi and kr <= evi[-1]: continue
                    c1 = cost(SR[:kr]) + cost(SF[:kf]) + cost(SM[:km])
                    key = (max(2, c1) + max(2, tot - c1), abs(2*c1 - tot), -kr)
                    if best is None or key < best[0]: best = (key, kr, kf, km)
        _, kr, kf, km = best
        est[0] += best[0][0]*4 + 16
        if p % 16 == 15: est.append(est[0]); est[0] = 0
        e(items[p].mf[0].format(b=b, b3=b+3))
        for s in SR[:kr] + SF[:kf] + SM[:km]: emit(s)
        e(items[p].mf[1].format(b=b, b3=b+3))
        for s in SR[kr:] + SF[kf:] + SM[km:]: emit(s)
    assert not soft_dma and not soft_up and not pend and not upq
    if BASE is None: return loads_out
    sys.stderr.write(f"est cycles: {' '.join(map(str, est[1:]))} total {sum(est)}\n")
    for s in tail_epi: e(s)
    if OPT["verbose"]:
        for (p, w, u, s) in log:
            sys.stderr.write(f"  {p/16:6.2f} {w} {u} slot {s} (need {needed[uidx[u]]})\n")
    stamp(a, 5)
    vD = 192
    def dreg(j, k):
        return q4(16*j + 4*k, "a") if j < 7 - NS else q4(vO + 16*(j - (7 - NS)) + 4*k)
    for j in range(7):
        e(f"s_add_u32 s{sTmp}, s{sNP0}, {j*4096}")
        e(f"s_cmp_ge_u32 s{sTmp}, 28672"); e(f"s_cselect_b32 s3, 28672, 0"); e(f"s_sub_u32 s{8+j}, s{sTmp}, s3")
        e(f"s_lshr_b32 s{16+j}, s{8+j}, 5")
    for k in range(1, 4): e(f"v_add_u32 v{vKr+k}, {k*4*114688}, v{vRd}")
    def loads(j):
        for k in range(4):
            e(f"buffer_load_dwordx4 {dreg(j, k)}, v{vKr+k if k else vRd}, s[{sG}:{sG+3}], s{8+j} offen sc1", f"r{j}")
    if OPT["early"]: a.wait_vm({"poll"})
    else: e(f"v_mov_b32 v{vF}, 0")
    for c in late_pubs: publish(c)(a)
    stamp(a, 6)
    prev = 0
    for hi in pubs:
        e(f"v_cmp_gt_u32 vcc, {hi}, v{vF}")
        e(f"s_cbranch_vccz L_go{hi}")
        e(f"s_mov_b32 s45, {hi}")
        e(f"s_call_b64 s[{sRet}:{sRet+1}], L_poll")
        a.lab(f"L_go{hi}")
        for j in range(prev, hi): loads(j)
        prev = hi
    def red(j):
        d = vD + 4*j
        for k in range(4):
            e(f"{MF} {q4(d)}, {q4(vSel)}, {dreg(j, k)}, {'0' if k == 0 else q4(d)}")
    def fin(j):
        d = vD + 4*j
        e(f"v_cvt_pk_bf16_f32 v{d}, v{d}, v{d+1}")
        e(f"v_cvt_pk_bf16_f32 v{d+1}, v{d+2}, v{d+3}")
        e(f"buffer_store_dwordx2 v[{d}:{d+1}], v{vRo}, s[{sOut}:{sOut+3}], s{16+j} offen {OPT['out_pol']}")
    for j in range(7 - NS, 7): loads(j)
    e(f"s_waitcnt vmcnt({4*NS})")
    for j in range(7 - NS): red(j)
    for j in range(7 - NS): fin(j)
    e(f"s_waitcnt vmcnt({7 - NS})")
    for j in range(7 - NS, 7):
        a.lab(f"L_sen{j}")
        r = vO + 16*(j - (7 - NS))
        e(f"v_max3_u32 v{vT0}, v{r}, v{r+1}, v{r+2}")
        e(f"v_max3_u32 v{vT0+1}, v{r+3}, v{r+4}, v{r+5}")
        for k in range(6, 16, 4):
            e(f"v_max3_u32 v{vT0}, v{vT0}, v{r+k}, v{r+k+1}")
            if k + 2 < 16: e(f"v_max3_u32 v{vT0+1}, v{vT0+1}, v{r+k+2}, v{r+k+3}")
        e(f"v_max_u32 v{vT0}, v{vT0}, v{vT0+1}")
        e(f"v_cmp_eq_u32 vcc, -1, v{vT0}")
        e(f"s_cbranch_vccz L_sok{j}")
        e(f"s_sub_u32 s{sSpin}, s{sSpin}, 1")
        e(f"s_cbranch_scc1 L_sto{j}")
        for jj in range(j, 7): loads(jj)
        e("s_waitcnt vmcnt(0)")
        e(f"s_branch L_sen{j}")
        a.lab(f"L_sto{j}")
        e(f"s_mov_b32 s{sSpin}, 0")
        a.lab(f"L_sok{j}")
        red(j); fin(j)
    if OPT["diag"]:
        e("v_mov_b32 v8, 128")
        e(f"buffer_load_dword v5, v8, s[{sDb}:{sDb+3}], 0 offen sc1")
        e("s_waitcnt vmcnt(0)")
        e("v_readfirstlane_b32 s3, v5")
        e("s_bcnt1_i32_b32 s3, s3")
        e("s_cmp_le_u32 s3, 1")
        e("s_cbranch_scc1 L_diag_ok")
        e("s_mov_b32 s3, 30")
        a.lab("L_diag_l")
        e("s_sleep 64")
        e("s_sub_u32 s3, s3, 1")
        e("s_cmp_gt_u32 s3, 0")
        e("s_cbranch_scc1 L_diag_l")
        a.lab("L_diag_ok")
    if OPT["stamps"]:
        e("s_waitcnt vmcnt(0)")
        stamp(a, 7)
        e("s_waitcnt lgkmcnt(0)")
        if OPT["dly"] >= 0:
            if OPT["dwg"] >= 0:
                e(f"s_cmp_lg_u32 s2, {OPT['dwg']}"); e("s_cbranch_scc1 L_dly_done")
            e(f"s_sub_u32 s44, s{sStamp+2*OPT['dly']}, s{sStamp}")
            e(f"s_mul_i32 s44, s44, {OPT['dk']}")
            e("s_min_u32 s44, s44, 100000")
            e("s_mov_b32 s45, 200000")
            a.lab("L_dly")
            e("s_memrealtime s[46:47]")
            e("s_sub_u32 s45, s45, 1")
            e("s_cbranch_scc1 L_dly_done")
            e("s_waitcnt lgkmcnt(0)")
            e(f"s_sub_u32 s46, s46, s{sStamp+14}")
            e("s_cmp_lt_u32 s46, s44")
            e("s_cbranch_scc1 L_dly")
            a.lab("L_dly_done")
        e(f"s_add_u32 s32, s{sWsP}, 0x4000000"); e(f"s_addc_u32 s33, s{sWsP+1}, 0"); e("s_mov_b32 s34, 0x100000"); e("s_mov_b32 s35, 0x00020000")
        e("s_lshl_b32 s3, s2, 6")
        e("v_mov_b32 v1, s3")
        for k in range(8):
            e(f"v_mov_b32 v{2+k}, s{sStamp+2*k}")
        if OPT["trace"]:
            e(f"v_writelane_b32 v{vTr}, s{sTr+4}, 59")
            e(f"v_writelane_b32 v{vTr+1}, s{sTr+6}, 59")
            e("s_lshl_b32 s3, s2, 11")
            e("s_add_u32 s3, s3, 0x10000")
            e("v_lshlrev_b32 v10, 3, v0")
            e("v_add_u32 v10, s3, v10")
            e(f"buffer_store_dwordx2 v[{vTr}:{vTr+1}], v10, s[32:35], 0 offen")
        e("v_cmp_eq_u32 vcc, 0, v0")
        e("s_and_saveexec_b64 s[36:37], vcc")
        e("s_cbranch_execz L_k1_done")
        e("buffer_store_dwordx4 v[2:5], v1, s[32:35], 0 offen")
        e("buffer_store_dwordx4 v[6:9], v1, s[32:35], 0 offen offset:16")
        e("s_waitcnt vmcnt(0)")
    a.lab("L_k1_done")
    e("s_endpgm")
    a.lab("L_poll")
    e(f"buffer_load_dword v{vF}, v{vFp}, s[{sFl}:{sFl+3}], 0 offen sc1")
    e(f"s_sub_u32 s{sSpin}, s{sSpin}, 1")
    e("s_cbranch_scc1 L_poll_to")
    e("s_waitcnt vmcnt(0)")
    e(f"v_cmp_gt_u32 vcc, s45, v{vF}")
    e("s_cbranch_vccz L_poll_ret")
    if OPT["sleep"]: e(f"s_sleep {OPT['sleep']}")
    e("s_branch L_poll")
    a.lab("L_poll_to")
    e(f"s_mov_b32 s{sSpin}, 0")
    e("s_waitcnt vmcnt(0)")
    a.lab("L_poll_ret")
    e(f"s_setpc_b64 s[{sRet}:{sRet+1}]")
    a.lab("L_chk_wait")
    e(f"buffer_load_dword v{vF}, v{vDbV}, s[{sDb}:{sDb+3}], 0 offen sc1")
    e(f"s_sub_u32 s{sSpin}, s{sSpin}, 1")
    e("s_cbranch_scc1 L_poll_to")
    e("s_waitcnt vmcnt(0)")
    e(f"v_cmp_eq_u32 vcc, 0, v{vF}")
    e("s_cbranch_vccz L_poll_ret")
    e("s_sleep 4")
    e("s_branch L_chk_wait")
    for (nm, par, first) in (("L_fix0", 0, True), ("L_fixp0", 0, False), ("L_fixp1", 1, False)):
        S, S2 = vSb[par], vSb[par ^ 1]
        Lo = vL + 2*par
        a.lab(nm)
        e("s_nop 7")
        for u in range(2):
            T, T2, r = vT0 + u, vT0 + 2, S + 8*u
            e(f"v_max3_f32 v{T}, v{r}, v{r+1}, v{r+2}")
            e(f"v_max3_f32 v{T}, v{T}, v{r+3}, v{r+4}")
            e(f"v_max3_f32 v{T}, v{T}, v{r+5}, v{r+6}")
            e(f"v_max_f32 v{T}, v{T}, v{r+7}")
            e(f"v_mov_b32 v{T2}, v{T}")
            e(f"v_permlane32_swap_b32 v{T}, v{T2}")
            e(f"v_max_f32 v{T}, v{T}, v{T2}")
            e(f"v_mov_b32 v{T2}, v{T}")
            e(f"v_permlane16_swap_b32 v{T}, v{T2}")
            e(f"v_max_f32 v{T}, v{T}, v{T2}")
            if not first:
                e(f"v_max_f32 v{T}, 0, v{T}")
                e(f"v_exp_f32 v{vAl+u}, -v{T}")
            for k in range(8):
                e(f"v_sub_f32 v{r+k}, v{r+k}, v{T}")
                e(f"v_sub_f32 v{S2+8*u+k}, v{S2+8*u+k}, v{T}")
            for k in range(4): e(f"v_sub_f32 v{vNM+4*u+k}, v{vNM+4*u+k}, v{T}")
            if not first: e(f"v_mul_f32 v{Lo+u}, v{Lo+u}, v{vAl+u}")
        for s in softmax(S, par): e(s)
        if not first:
            for r in range(128):
                e(f"v_mul_f32 v{vO+r}, v{vO+r}, v{vAl + ((r >> 3) & 1)}")
        e("s_nop 3")
        e(f"s_setpc_b64 s[{sRet}:{sRet+1}]")
    a.lab("L_k1_end")
    lines = "\n".join(a.L).split("\n")
    lines, npad = pad_hazards(lines)
    sys.stderr.write(f"k1: {len(lines)} lines, {npad} hazard pads\n")
    return "\n".join(lines) + "\n"

def desc(name, vgpr, acc, sgpr=102):
    return f""".p2align 6
.amdhsa_kernel {name}
  .amdhsa_next_free_vgpr {vgpr}
  .amdhsa_next_free_sgpr {sgpr}
  .amdhsa_accum_offset {acc}
  .amdhsa_group_segment_fixed_size 0
  .amdhsa_kernarg_size 104
  .amdhsa_user_sgpr_count 2
  .amdhsa_user_sgpr_kernarg_segment_ptr 1
  .amdhsa_system_sgpr_workgroup_id_x 1
.end_amdhsa_kernel
"""

def main():
    ref = open(f"cdna_kernels/{NAME}.s.ref").read().splitlines()
    hdr = [l for l in ref if l.startswith(";") and "@launch" not in l and "Override launch" not in l and "grid=ceil" not in l]
    out = "\n".join(hdr) + "\n"
    if OPT["lst"]:
        out += f"; @launch kernel={K1} grid=(256,1,1) block=(256,1,1) lds=163840\n"
    else:
        out += f"; @launch grid=(256,1,1) block=(256,1,1) lds=163840\n"
    out += '.amdgcn_target "amdgcn-amd-amdhsa--gfx950"\n.text\n'
    out += gen_k1(gen_k1(None))
    out += '.section .rodata,"a"\n'
    out += desc(K1, 512, 256)
    open(sys.argv[1], "w").write(out)

main()
```

```python
import sys, math, struct
from collections import defaultdict
sys.path.insert(0, "gen")
from asmlib import pad_hazards

NAME = "concat_heads__mha_block_cached__gqa_block_cached__near_ridge"
K1 = NAME + "_kernel"

OPT = dict(stamps=0, trace=0, st_pol="sc1", kv_pol="nt", w_pol="", x_pol="", out_pol="", D=6, wev=2, codepf=1,
           L1=4, PR=2.0, KA=8.5, KB=40.0, WO0=34.0, LWO=6, spw=1,
           pub="2,4", PUBD=4, NS=3, CLR=41.0, early=1, nodma=0, thr=1048576.0, tlo=2.0**-30, verbose=0, sleep=1, lst=1,
           X1=13, pfn=0, pfbit=3, pf_pol="", NP=0, PK=3.0, UP=2, j2=1, NB=8, wf=1, onorm=1, n0=4,
           p1slots="8,9,1,2,4,3,5,7,6,0,8,1,9,4,2,5,3,6,7,8,9", late=0, CLS=4, wow=-1.0, OS=1.0, OI=-1, o_pol="", o0_pol="", MF=0, MFE=1, dsp=1, dsp1=1, dph=0, diag=0, TA=-1.0, TB=38.0, T0=0, t_pol="", TS=7, KS="", park=0, pkq=1, UPD=1.0, wcost=2, usp=1, dly=-1, dk=10, dwg=-1, tst=0, t2=0, spA=905, spL=946, nA=2, spB=944, nB=3, spC=957, thr2="4,5,6,7", prog=1, pD=6, FS=2, spE=959, hold=0, HP=54.0, HE=58.0)
for a in sys.argv[2:]:
    k, v = a.split("=")
    OPT[k] = type(OPT[k])(v) if not isinstance(OPT[k], str) else v.replace("+", " ")

sW, sH, sB, sBLK = 4, 5, 6, 7
sK, sV, sWq, sWo, sX, sG, sFl, sDb, sOut = 8, 12, 16, 20, 24, 28, 32, 36, 40
sWoff = 48
sXoff, sWqoff, sWooff = 49, 50, 51
sStA, sStB = 52, 53
sC, sThr = 54, 55
sNP0, sSpin = 56, 57
sRet = 58
sTmp, sTmp2 = 60, 61
sTr = 64
sWsP = 80
sStamp = 82
sTlo = 98
sPf, sPfo = 72, 76
vPf = 62

vKr, vVr, vWor = 10, 14, 22
vKd, vVd, vWod = 26, 28, 30
vSt = 34
vL = 35
vT0 = 39
vAl = 43
vFl, vFp, vDbA, vDbV, vF, vFv = 45, 46, 47, 48, 49, 50
vDV = 51
vSel = 52
vRd, vRo = 56, 57
vUp = 58
vTr = 60
vSb = (64, 80)
vE, vNM, vP = 96, 112, 120
vWqd, vXd = 96, 100
vWr, vXr = 64, 88
vAcc = 64
vO = 128
aX, aPk, aQ = 0, 112, 160
NB = OPT["NB"]
def aFr(i):
    k = i % NB
    return 224 + 4*k if k < 8 else 112 + 4*(k - 8)
aSen = 0
FLAGS_OFF = 32 << 20
FS = OPT["FS"]; WS = max(8, FS + 4)
MF = "v_mfma_f32_16x16x32_bf16"

SCALE = math.log2(math.e) / 16.0
def f32hex(x):
    return "0x%08x" % struct.unpack("<I", struct.pack("<f", x))[0]

class Em:
    def __init__(self):
        self.L = []
        self.vmq = []
        self.ldsq = []
    def e(self, s, vm=None, lds=None):
        if isinstance(s, tuple):
            return self.e(*s)
        if callable(s):
            return s(self)
        self.L.append("    " + s)
        if vm is not None: self.vmq.append(vm)
        if lds is not None: self.ldsq.append(lds)
    def lab(self, s): self.L.append(s + ":")
    def c(self, s): self.L.append("    ; " + s)
    def wait_vm(self, tags):
        idx = [i for i, t in enumerate(self.vmq) if t in tags]
        if not idx: return
        n = len(self.vmq) - 1 - max(idx)
        self.e(f"s_waitcnt vmcnt({min(n, 63)})")
        self.vmq = self.vmq[max(idx) + 1:] if n <= 63 else self.vmq[-63:]
    def wait_lds(self, tags):
        idx = [i for i, t in enumerate(self.ldsq) if t in tags]
        if not idx: return
        n = len(self.ldsq) - 1 - max(idx)
        self.e(f"s_waitcnt lgkmcnt({min(n, 15)})")
        self.ldsq = self.ldsq[max(idx) + 1:] if n <= 15 else self.ldsq[-15:]

def stamp(a, idx, tail=False):
    if OPT["tst"] and idx in (1, 2, 3, 4) and not tail: return
    if tail and not OPT["tst"]: return
    if OPT["stamps"]:
        a.e(f"s_memrealtime s[{sStamp+2*idx}:{sStamp+2*idx+1}]")

units = []
for c in range(7): units += [("X", c), ("W", c)]
units += [("W", c) for c in range(7, 14)]
kv = [("K", 0), ("K", 1)]
for t in range(0, 14):
    kv += [("V", t), ("K", t + 2)]
kv += [("V", 14), ("V", 15)]
units += kv
units += [("O", k) for k in range(14)]
NU = len(units)
uidx = {u: n for n, u in enumerate(units)}
HS = [[2*c, 2*c+1] for c in range(7)] + [[uidx[("W", c)]] for c in range(7, 14)]
if OPT["j2"]:
    HS[12] = [uidx[("W", 12)], uidx[("W", 13)]]; HS[13] = []
for n in range(21, NU): HS.append([n])
needed, consumed = {}, {}
for H, us in enumerate(HS):
    for n in us: consumed[n] = H; needed[n] = H
if OPT["j2"]: consumed[uidx[("W", 12)]] = consumed[uidx[("W", 13)]] = 13
parked = {}
NP = OPT["park"]
P1SLOT = [int(x) for x in OPT["p1slots"].split(",")]
assert len(P1SLOT) == 21
def fixed_slot(n):
    t, i = units[n]
    if t in "XW": return P1SLOT[n]
    if t == "K": return i & 3
    if t == "V": return 4 + (i & 3)
    if t == "O" and i < 2: return 8 + i
    return None
iss = []
for n in range(21):
    iss.append((-1 if n < OPT["n0"] else max(0, int(round(16*(n - OPT["L1"])/OPT["PR"]))), n))
stream = list(range(21, 53))
if OPT["OI"] >= 0:
    stream.insert(OPT["OI"], 53); stream.insert(OPT["OI"] + 2, 54)
for i, n in enumerate(stream):
    if OPT["KS"]:
        kn = [tuple(float(y) for y in x.split(":")) for x in OPT["KS"].split(",")]
        for (i0, h0), (i1, h1) in zip(kn, kn[1:]):
            if i0 <= i <= i1: h = h0 + (h1 - h0)*(i - i0)/(i1 - i0)
    else: h = OPT["KA"] + (OPT["KB"] - OPT["KA"])*i/(len(stream) - 1)
    iss.append((int(round(16*h)), n))
for k in range(2 if OPT["OI"] >= 0 else 0, 14):
    pos = max(16*(46 + k - OPT["LWO"]), 16*(OPT["WO0"] + OPT["OS"]*k))
    iss.append((int(pos), 53 + k))
iss.sort(key=lambda x: x[0])

slot_of = {}
def dma(n):
    t, i = units[n]
    g = []
    pk = parked.get(n)
    for jj in range(4):
        ins = []
        if jj == 0:
            if pk is None: ins.append(f"s_add_u32 m0, s{sWoff}, {slot_of[n]*16384}")
            if t in "KV": ins.append(f"s_mov_b32 s{sTmp}, {i*16384}")
            elif t == "O" and (i & 1): ins.append(f"s_add_u32 s{sTmp}, s{sWooff}, {128*896}")
            elif t == "W" and i == 7: ins += [f"s_add_u32 s{sWq}, s{sWq}, 256", f"s_addc_u32 s{sWq+1}, s{sWq+1}, 0"]
        off = f" offset:{jj*1024}" if jj else ""
        dst = "" if pk is None else f"a[{pk+4*jj}:{pk+4*jj+3}], "
        lds = " lds" if pk is None else ""
        if t == "K": ld = f"buffer_load_dwordx4 {dst}v{vKd+(jj&1)}, s[{sK}:{sK+3}], s{sTmp} offen{off} {OPT['kv_pol']}{lds}"
        elif t == "V": ld = f"buffer_load_dwordx4 {dst}v{vVd+(jj&1)}, s[{sV}:{sV+3}], s{sTmp} offen{off} {OPT['kv_pol']}{lds}"
        elif t == "W": ld = f"buffer_load_dwordx4 v{vWqd+jj}, s[{sWq}:{sWq+3}], s{sWqoff} offen{off} {OPT['w_pol']} lds"
        elif t == "X": ld = f"buffer_load_dwordx4 v{vXd+jj}, s[{sX}:{sX+3}], s{sXoff} offen{off} {OPT['x_pol']} lds"
        elif t == "O":
            so = sTmp if (i & 1) else sWooff
            ld = f"buffer_load_dwordx4 v{vWod+jj}, s[{sWo}:{sWo+3}], s{so} offen{off} {OPT['o0_pol'] if i < 2 else OPT['o_pol']} lds"
        if OPT["MF"] and t in "KV" and jj % OPT["MFE"] == 0:
            def lim(a):
                k = OPT["MF"] - OPT["MFE"]
                if len(a.vmq) > k:
                    a.e(f"s_waitcnt vmcnt({k})")
                    a.vmq = a.vmq[len(a.vmq) - k:]
            lim.cost = 1
            ins.append(lim)
        if not OPT["nodma"]: ins.append((ld, f"u{n}"))
        if jj == 3:
            if t == "W" and i < 13: ins += [f"s_add_u32 s{sWqoff}, s{sWqoff}, {64*8192}", f"s_cmp_eq_u32 s{sWqoff}, {448*8192}", f"s_cselect_b32 s{sWqoff}, 0, s{sWqoff}"]
            if t == "X" and i < 6: ins += [f"s_add_u32 s{sXoff}, s{sXoff}, 128", f"s_cmp_eq_u32 s{sXoff}, 896", f"s_cselect_b32 s{sXoff}, 0, s{sXoff}"]
            if t == "O" and (i & 1) and i < 13: ins += [f"s_add_u32 s{sWooff}, s{sWooff}, 128", f"s_cmp_eq_u32 s{sWooff}, 896", f"s_cselect_b32 s{sWooff}, 0, s{sWooff}"]
        g.append(ins)
    return g

GROUPS = {"K": (vKr, 4), "V": (vVr, 8), "O": (vWor, 4), "W": (vWr, 8), "X": (vXr, 2)}

class Item:
    def __init__(self, H, mf, reads):
        self.H = H; self.mf = mf; self.reads = reads
        self.first = False

def tr_reads(grp, ridx, n, off0, off1):
    return [("ds_read_b64_tr_b16", "a[{b}:{b1}]", grp, ridx, n, off0), ("ds_read_b64_tr_b16", "a[{b2}:{b3}]", grp, ridx, n, off1)]

def acc_of(base, T, u): return base + 16*(T >> 1) + 8*u + 4*(T & 1)
def q4(r, k="v"): return f"{k}[{r}:{r+3}]"

def cost(s):
    if isinstance(s, list): return sum(cost(x) for x in s)
    if callable(s): return getattr(s, "cost", 2)
    if isinstance(s, tuple): s = s[0]
    if s.startswith("ds_write"): return OPT["wcost"]
    return 2 if s.startswith(("v_exp", "v_rcp")) else 1

def gen_k1(BASE):
    a = Em()
    e = a.e
    slot_of.clear(); parked.clear()
    slot_free_at = [-10]*10
    slot_free_pos = [-10]*10
    last_slot = {"O": 8}
    def alloc(n, Hbar, p=0):
        t = units[n][0]
        s = fixed_slot(n)
        if s is not None and slot_free_pos[s] > p: return False
        if t in "KV":
            if units[n][1] >= 4 and uidx[(t, units[n][1] - 4)] not in slot_of: return False
            if any(P1SLOT[m] == s and m not in slot_of for m in range(21)): return False
        if s is None:
            pend = {fixed_slot(m) for m in range(NU) if m not in slot_of}
            fr = [s for s in range(10) if slot_free_at[s] <= Hbar and s not in pend]
            if not fr: return False
            same = [s for s in fr if s // 4 == last_slot[t] // 4]
            s = (same or fr)[0]
        elif slot_free_at[s] > Hbar: return False
        slot_of[n] = s; last_slot[t] = s
        if t == "X": slot_free_pos[s] = 16*consumed[n] + 2
        else: slot_free_at[s] = consumed[n] + 2
        return True

    a.L.append(f".globl {K1}\n.p2align 8\n.type {K1},@function\n{K1}:")
    e("s_cmp_ge_u32 s2, 256")
    e("s_cbranch_scc1 L_k1_done")
    stamp(a, 0)
    e("s_and_b32 s3, s2, 7")
    e(f"s_lshr_b32 s{sBLK}, s3, 2")
    e(f"s_mul_i32 s{sTmp}, s{sBLK}, 40")
    e(f"s_add_u32 s44, s0, s{sTmp}")
    e("s_addc_u32 s45, s1, 0")
    e("s_load_dwordx2 s[64:65], s[44:45], 0")
    e("s_load_dwordx4 s[72:75], s[44:45], 24")
    e("s_load_dwordx4 s[68:71], s[44:45], 8")
    e("s_load_dwordx4 s[76:79], s[0:1], 80")
    e(f"s_load_dwordx2 s[{sWsP}:{sWsP+1}], s[0:1], 96")
    e("v_lshrrev_b32 v1, 6, v0")
    e("v_and_b32 v2, 63, v0")
    e("s_and_b32 s3, s3, 3")
    e(f"v_readfirstlane_b32 s{sW}, v1")
    e("s_lshl_b32 s3, s3, 2")
    e(f"s_lshr_b32 s{sB}, s2, 3")
    e(f"s_and_b32 s{sH}, s{sB}, 3")
    e(f"s_lshl_b32 s{sTmp}, s{sH}, 1")
    e(f"s_add_u32 s{sH}, s{sH}, s3")
    e(f"s_lshr_b32 s{sB}, s{sB}, 2")
    e(f"s_add_u32 s{sTmp}, s{sTmp}, s{sB}")
    for _ in range(2):
        e(f"s_cmp_ge_u32 s{sTmp}, 7"); e(f"s_cselect_b32 s3, 7, 0"); e(f"s_sub_u32 s{sTmp}, s{sTmp}, s3")
    e(f"s_lshl_b32 s{sXoff}, s{sTmp}, 7")
    e(f"s_lshl_b32 s{sWqoff}, s{sTmp}, 19")
    e("v_and_b32 v3, 15, v2")
    e("v_lshrrev_b32 v4, 4, v2")
    e(f"s_lshl_b32 s{sWoff}, s{sW}, 12")
    e("v_lshrrev_b32 v5, 3, v2")
    e("v_mul_u32_u24 v5, 896, v5")
    e(f"s_mul_i32 s3, s{sW}, {32*896}")
    e("v_and_b32 v6, 7, v2")
    e(f"v_add_u32 v{vWod}, s3, v5")
    e("v_xor_b32 v6, v6, v4")
    e(f"v_lshl_add_u32 v{vXd}, v6, 4, v{vWod}")
    e(f"v_xor_b32 v5, 64, v{vXd}")
    e(f"v_add_u32 v{vXd+1}, 6144, v5")
    e(f"v_add_u32 v{vXd+2}, {2*6144}, v{vXd}")
    e(f"v_add_u32 v{vXd+3}, {3*6144}, v5")
    e(f"s_lshl_b32 s3, s{sW}, 17")
    e(f"s_lshl_b32 s{sTmp}, s{sH}, 9")
    e(f"s_add_u32 s3, s3, s{sTmp}")
    e("v_lshlrev_b32 v6, 1, v4")
    e("v_xor_b32 v6, v6, v3")
    e("v_lshlrev_b32 v6, 4, v6")
    e("v_lshl_add_u32 v6, v4, 13, v6")
    e(f"v_add_u32 v{vWqd}, s3, v6")
    e(f"v_xor_b32 v7, 0x80, v{vWqd}")
    e(f"v_add_u32 v{vWqd+1}, {32768-1024}, v{vWqd}")
    e(f"v_add_u32 v{vWqd+2}, {2*(32768-1024)}, v7")
    e(f"v_add_u32 v{vWqd+3}, {3*(32768-1024)}, v7")
    for s, sz in ((sX, 114688), (sWq, 448*8192), (sK, 262144), (sV, 262144)):
        e(f"s_mov_b32 s{s+2}, {sz}"); e(f"s_mov_b32 s{s+3}, 0x00020000")
    e(f"s_mul_i32 s46, s{sB}, 114688")
    e(f"s_lshl_b32 s47, s{sB}, 4")
    e(f"s_add_u32 s47, s47, s{sH}")
    e(f"s_lshl_b32 s47, s47, 18")
    if OPT["spw"]:
        e("v_lshrrev_b32 v8, 2, v0")
        e("v_lshlrev_b32 v8, 13, v8")
        e("v_and_b32 v9, 3, v0")
        e("v_lshl_add_u32 v8, v9, 6, v8")
        e(f"v_add_u32 v8, s{sTmp}, v8")
    e("s_waitcnt lgkmcnt(0)")
    e(f"s_add_u32 s{sX}, s64, s46"); e(f"s_addc_u32 s{sX+1}, s65, 0")
    e(f"s_mov_b32 s{sWq}, s72"); e(f"s_mov_b32 s{sWq+1}, s73")
    e(f"s_add_u32 s{sK}, s68, s47"); e(f"s_addc_u32 s{sK+1}, s69, 0")
    e(f"s_add_u32 s{sV}, s70, s47"); e(f"s_addc_u32 s{sV+1}, s71, 0")
    if OPT["pfn"]:
        if OPT["pfbit"] >= 0:
            e(f"s_bitcmp1_b32 s2, {OPT['pfbit']}")
            e("s_cbranch_scc0 L_nopf")
        elif OPT["pfbit"] == -2:
            e("s_lshr_b32 s3, s2, 2"); e("s_xor_b32 s3, s3, s2"); e("s_bitcmp1_b32 s3, 3")
            e("s_cbranch_scc0 L_nopf")
        e("v_lshlrev_b32 v5, 7, v2")
        e(f"s_and_b32 s3, s{sW}, 1"); e("s_lshl_b32 s3, s3, 13")
        e("v_add_u32 v5, s3, v5")
        e(f"s_cmp_ge_u32 s{sW}, 2")
        e("s_cbranch_scc1 L_pf_hi")
        for part in range(2):
            for k in range(part, OPT["pfn"], 2):
                t, i = units[21 + k]
                sr = sK if t == "K" else sV
                e(f"s_mov_b32 s{sTmp2}, {i*16384}")
                e(f"buffer_load_dword a{aQ+2+k//2}, v5, s[{sr}:{sr+3}], s{sTmp2} offen {OPT['pf_pol']}")
            if part == 0:
                e("s_branch L_nopf")
                a.lab("L_pf_hi")
        a.lab("L_nopf")
    ip = [0]
    while iss[ip[0]][0] < 0:
        m = iss[ip[0]][1]; ip[0] += 1
        assert alloc(m, 0)
        if m == 1 and OPT["spw"]:
            e(f"buffer_load_dword a{aQ+1}, v8, s[{sWq}:{sWq+3}], s{sWqoff} offen offset:256 {OPT['w_pol']}", "pf")
        for g in dma(m):
            for s in g: e(s)
    if OPT["codepf"]:
        e("s_getpc_b64 s[62:63]")
        a.lab("L_pc")
        e("s_lshr_b32 s3, s2, 3")
        e("s_lshl_b32 s3, s3, 12")
        e("v_lshlrev_b32 v5, 4, v0")
        e("v_add_u32 v5, s3, v5")
        e("v_min_u32 v5, L_k1_end-L_pc-8, v5")
        e(f"global_load_dword a{aQ}, v5, s[62:63]", "pf")
    e("v_bfe_u32 v6, v2, 2, 2")
    e("v_and_b32 v7, 3, v2")
    e("v_bfe_u32 v5, v2, 2, 3")
    e("v_lshl_add_u32 v8, v4, 3, v6")
    e("v_lshlrev_b32 v9, 5, v5")
    e("v_lshl_add_u32 v9, v7, 3, v9")
    e("v_lshl_add_u32 v9, v8, 8, v9")
    e("v_lshl_add_u32 v8, v8, 8, v9")
    e(f"v_add_u32 v{vVr}, 0x10000, v8")
    for w in (2, 0, 1):
        e(f"v_add_u32 v{vWr+8*w}, {w*65536}, v9")
        for T in range(1, 8): e(f"v_xor_b32 v{vWr+8*w+T}, {T<<5}, v{vWr+8*w}")
    e("v_lshrrev_b32 v5, 1, v3"); e("v_xor_b32 v5, v5, v4"); e("v_lshlrev_b32 v5, 4, v5")
    e("v_lshl_add_u32 v5, v3, 7, v5")
    e(f"v_add_u32 v{vXr}, s{sWoff}, v5")
    e(f"v_xor_b32 v{vXr+1}, 64, v{vXr}")
    for w in (2, 1):
        e(f"v_add_u32 v{vXr+2*w}, {w*65536}, v{vXr}"); e(f"v_add_u32 v{vXr+2*w+1}, {w*65536}, v{vXr+1}")
    for s, sz in ((sWo, 229376), (sG, 16*114688), (sFl, 4 << WS), (sDb, 256), (sOut, 128*1792)):
        e(f"s_mov_b32 s{s+2}, {sz}"); e(f"s_mov_b32 s{s+3}, 0x00020000")
    e(f"s_cmp_eq_u32 s{sB}, 7"); e(f"s_cselect_b32 s3, 0, s{sB}")
    e(f"s_lshl_b32 s{sWooff}, s3, 7")
    e(f"s_lshl_b32 s{sStA}, s3, 12")
    e(f"s_mov_b32 s{sNP0}, s{sStA}")
    e(f"s_mul_i32 s3, s{sH}, 229376")
    e(f"s_add_u32 s{sWo}, s74, s3"); e(f"s_addc_u32 s{sWo+1}, s75, 0")
    e(f"s_lshl_b32 s46, s{sBLK}, 3")
    e(f"s_add_u32 s46, s46, s{sB}")
    e(f"s_mul_i32 s3, s46, {16*114688}")
    e(f"s_add_u32 s{sG}, s{sWsP}, s3"); e(f"s_addc_u32 s{sG+1}, s{sWsP+1}, 0")
    e(f"s_lshl_b32 s3, s46, {WS + 2}")
    e(f"s_add_u32 s3, s3, {FLAGS_OFF}")
    e(f"s_add_u32 s{sFl}, s{sWsP}, s3"); e(f"s_addc_u32 s{sFl+1}, s{sWsP+1}, 0")
    e(f"s_mov_b32 s{sDb}, s78"); e(f"s_mov_b32 s{sDb+1}, s79")
    e(f"s_mul_i32 s3, s{sB}, {128*1792}")
    e(f"s_add_u32 s{sOut}, s76, s3"); e(f"s_addc_u32 s{sOut+1}, s77, 0")
    e(f"s_mov_b32 s{sC}, {f32hex(SCALE)}")
    e(f"s_mov_b32 s{sThr}, {f32hex(OPT['thr'])}")
    e(f"s_mov_b32 s{sTlo}, {f32hex(OPT['tlo'])}")
    e(f"s_mov_b32 s{sSpin}, 0x8000")
    if OPT["TA"] >= 0:
        e(f"s_cmp_ge_u32 s{sW}, 2")
        e(f"s_cselect_b32 s{sPf}, s{sV}, s{sK}"); e(f"s_cselect_b32 s{sPf+1}, s{sV+1}, s{sK+1}")
        e(f"s_cselect_b32 s{sPfo}, {(OPT['T0']-1)*16384}, {OPT['T0']*16384}")
        e(f"s_mov_b32 s{sPf+2}, 262144"); e(f"s_mov_b32 s{sPf+3}, 0x00020000")
        e(f"s_and_b32 s3, s{sW}, 1"); e("s_lshl_b32 s3, s3, 13")
        e(f"v_lshl_add_u32 v{vPf}, v2, 7, s3")
    if OPT["diag"]:
        e("s_getreg_b32 s3, hwreg(HW_REG_XCC_ID, 0, 4)")
        e("s_sub_u32 s3, s3, s2"); e("s_and_b32 s3, s3, 7"); e("s_lshl_b32 s3, 1, s3")
        e("v_mov_b32 v5, s3"); e("v_lshlrev_b32 v8, 12, v0"); e("v_add_u32 v8, 128, v8")
        e(f"buffer_atomic_or v5, v8, s[{sDb}:{sDb+3}], 0 offen sc1", "pf")
    stamp(a, 1)
    late = []
    l = late.append
    l("v_lshrrev_b32 v5, 5, v2"); l("v_and_b32 v9, 31, v2")
    l("v_lshlrev_b32 v8, 9, v5"); l(f"v_add_u32 v8, s{sWoff}, v8")
    l(f"s_lshl_b32 s3, s{sW}, 2")
    l("v_xor_b32 v1, v9, v5"); l("v_xor_b32 v1, s3, v1")
    l(f"v_lshl_add_u32 v{vKd}, v1, 4, v8")
    l(f"v_xor_b32 v{vKd+1}, 32, v{vKd}")
    l(f"s_and_b32 s3, s{sW}, 1"); l("s_lshl_b32 s3, s3, 3")
    l("v_lshlrev_b32 v5, 1, v5"); l("v_xor_b32 v1, v9, v5"); l("v_xor_b32 v1, s3, v1")
    l(f"v_lshl_add_u32 v{vVd}, v1, 4, v8")
    l(f"v_xor_b32 v{vVd+1}, 64, v{vVd}")
    l(f"s_mul_i32 s3, s{sW}, 28672"); l(f"s_mul_i32 s44, s{sH}, 114688"); l("s_add_u32 s3, s3, s44")
    l("v_lshl_add_u32 v5, v3, 2, v4")
    l(f"v_lshl_add_u32 v{vSt}, v5, 4, s3")
    for T in range(1, 8): l(f"v_xor_b32 v{vVr+T}, {T<<5}, v{vVr}")
    if OPT["CLR"] < 14:
        for r in range(4): l(f"v_mov_b32 v{vE+8+r}, -1")
    if OPT["wow"] >= 0:
        l(f"s_mul_i32 s3, s{sB}, 28672"); l(f"v_lshl_add_u32 v63, v0, 7, s3")
    l(f"s_lshl_b32 s3, s{sW}, {WS}"); l(f"s_lshl_b32 s44, s{sH}, {FS}"); l("s_add_u32 s3, s3, s44")
    l(f"v_lshl_add_u32 v{vFl}, v2, 16, s3")
    l(f"v_lshlrev_b32 v5, {FS}, v3")
    l(f"s_lshr_b32 s3, s{sH}, 2"); l(f"s_lshl_b32 s3, s3, {WS}")
    l(f"v_add_u32 v{vFp}, s3, v5")
    if OPT["t2"]:
        l(f"v_cmp_eq_u32 vcc, s{sH}, v3"); l("s_nop 0"); l(f"v_cndmask_b32 v{vDV}, 0, 7, vcc")
    l(f"v_lshl_add_u32 v5, v4, {WS}, v5")
    l([f"s_or_b32 s3, s{sH}, s{sW}", "s_cmp_eq_u32 s3, 0", "s_cselect_b32 s45, 0, 0x10000"])
    l("v_add_u32 v5, s45, v5")
    l(f"v_mov_b32 v{vL}, 0"); l(f"v_mov_b32 v{vL+1}, 0")
    l((f"buffer_store_dword v{vL}, v5, s[{sFl}:{sFl+3}], 0 offen sc1", "clr"))
    l("s_lshl_b32 s44, s46, 2"); l("s_add_u32 s45, s45, s44")
    l(f"v_lshl_add_u32 v{vDbA}, v2, 12, s45")
    l(f"v_mov_b32 v{vDbV}, s44")
    l(f"v_mov_b32 v{vFv}, 1")
    l("v_lshrrev_b32 v5, 1, v4"); l("v_and_b32 v8, 1, v4"); l("v_lshl_add_u32 v5, v8, 1, v5")
    l("v_xor_b32 v5, v5, v3"); l("v_lshlrev_b32 v5, 4, v5")
    l("v_lshl_add_u32 v8, v6, 3, v7")
    l(f"v_lshl_add_u32 v{vKr}, v8, 9, v5")
    for s in range(1, 4): l(f"v_xor_b32 v{vKr+s}, {s<<6}, v{vKr}")
    l("v_lshrrev_b32 v5, 2, v2"); l("v_lshlrev_b32 v5, 7, v5")
    l("v_bfe_u32 v8, v2, 3, 2"); l("v_lshl_add_u32 v5, v8, 5, v5")
    l("v_lshl_add_u32 v5, v7, 3, v5")
    l(f"v_add_u32 v{vWor}, 0x20000, v5")
    for n in range(1, 4): l(f"v_xor_b32 v{vWor+n}, {n<<5}, v{vWor}")
    l("v_and_b32 v8, 7, v2"); l("v_lshlrev_b32 v9, 1, v4"); l("v_xor_b32 v8, v8, v9")
    l(f"v_lshl_add_u32 v{vWod}, v8, 4, v{vWod}")
    for jj in range(1, 4): l(f"v_add_u32 v{vWod+jj}, {jj*(7168-1024)}, v{vWod}")
    for r in range(8): l(f"v_mov_b32 v{vNM+r}, 0")
    if NP:
        l(f"v_lshl_add_u32 v{vUp}, v2, 4, s{sWoff}"); l(f"v_add_u32 v{vUp+1}, 0x10000, v{vUp}")
    l(f"s_lshr_b32 s44, s{sH}, 2"); l("s_mul_i32 s3, s44, 28672")
    l(f"s_and_b32 s45, s{sH}, 3"); l("s_lshl_b32 s45, s45, 10"); l("s_add_u32 s3, s3, s45")
    l(f"s_lshl_b32 s45, s{sW}, 8"); l("s_add_u32 s3, s3, s45")
    l("v_mul_u32_u24 v5, 114688, v4"); l("v_lshl_add_u32 v5, v3, 4, v5")
    l(f"v_add_u32 v{vRd}, s3, v5")
    l("s_lshl_b32 s3, s44, 5"); l(f"s_and_b32 s45, s{sH}, 1"); l("s_lshl_b32 s45, s45, 4"); l("s_add_u32 s3, s3, s45")
    l(f"s_lshl_b32 s45, s{sW}, 2"); l("s_add_u32 s3, s3, s45"); l("s_mul_i32 s3, s3, 1792")
    l(f"s_mul_i32 s45, s{sBLK}, 896"); l("s_add_u32 s3, s3, s45")
    l(f"s_and_b32 s45, s{sH}, 2"); l("s_lshl_b32 s45, s45, 5"); l("s_add_u32 s3, s3, s45")
    l("v_mul_u32_u24 v5, 1792, v6"); l("v_lshl_add_u32 v5, v7, 3, v5")
    l("v_and_b32 v8, 1, v4"); l("v_lshl_add_u32 v5, v8, 5, v5")
    l("v_lshrrev_b32 v8, 1, v4"); l("v_lshl_add_u32 v5, v8, 24, v5")
    l(f"v_add_u32 v{vRo}, s3, v5")
    l("v_and_b32 v5, 1, v2"); l("v_lshlrev_b32 v5, 4, v5"); l("v_mov_b32 v8, 0x3f80"); l("v_lshlrev_b32 v5, v5, v8")
    l("v_bfe_u32 v8, v2, 1, 2")
    for r in range(4):
        l(f"v_cmp_eq_u32 vcc, {r}, v8"); l("s_nop 0"); l(f"v_cndmask_b32 v{vSel+r}, 0, v5, vcc")

    items = []
    fill = defaultdict(list)
    def add(p, ins):
        fill[p].extend(ins if isinstance(ins, list) else [ins])
    load = defaultdict(float, BASE or {})
    def spread(p0, p1, ins):
        n = p1 - p0 + 1
        if not OPT["wf"]:
            for k, s in enumerate(ins): add(p0 + (k*n)//len(ins), [s])
            return
        if BASE is None: return
        tot = cost(ins)
        lo, hi = 0.0, 100.0
        for _ in range(40):
            L = (lo + hi)/2
            if sum(max(0.0, L - load[p]) for p in range(p0, p1 + 1)) >= tot: hi = L
            else: lo = L
        k, bud = 0, 1e-6
        for p in range(p0, p1 + 1):
            bud += max(0.0, hi - load[p])
            while k < len(ins) and (bud >= cost(ins[k])/2 or p == p1):
                add(p, [ins[k]]); load[p] += cost(ins[k]); bud -= cost(ins[k]); k += 1
    if OPT["late"]: spread(0, 16*6, late)
    else:
        for s in late:
            for x in (s if isinstance(s, list) else [s]): e(x)
    def p1item(H, i, T, kap):
        half, c = i // 7, i % 7
        n = uidx[("W", i)]
        mf = []
        for u in range(2):
            acc = acc_of(vO, 8*half + T, u)
            cin = "0" if (c == 0 and kap == 0) else q4(acc)
            mf.append(f"{MF} {q4(acc)}, a[{{b}}:{{b3}}], {q4(aX + 16*c + 8*kap + 4*u, 'a')}, {cin}")
        rd = tr_reads("W", T, n, kap*8192, kap*8192 + 1024)
        if i < 7 and T == 0:
            rd = [("ds_read_b128", q4(aX + 16*c + 8*kap + 4*u, "a"), "X", kap, uidx[("X", c)], u*2048) for u in range(2)] + rd
        items.append(Item(H, mf, rd))
    done_at = {}
    for H in range(14):
        if OPT["j2"] and H >= 12:
            for T in range(4*(H-12), 4*(H-12)+4):
                for i in (12, 13):
                    for kap in range(2): p1item(H, i, T, kap)
                done_at[4 + T//2] = len(items) - 1
        else:
            for T in range(8):
                for kap in range(2): p1item(H, H, T, kap)
                if H % 7 == 6: done_at[4*(H//7) + T//2] = len(items) - 1
    def qconv(s):
        t = []
        R = [vO + 16*s, vO + 16*s + 8]
        for r in R:
            for j in range(8): t.append(f"v_mul_f32 v{r+j}, s{sC}, v{r+j}")
        for r in R:
            for j in range(4): t.append(f"v_cvt_pk_bf16_f32 v{r+j}, v{r+2*j}, v{r+2*j+1}")
        for r in R:
            t += [f"v_permlane16_swap_b32 v{r}, v{r+2}", f"v_permlane16_swap_b32 v{r+1}, v{r+3}"]
        for u, r in enumerate(R):
            for j in range(4): t.append(f"v_accvgpr_write_b32 a{aQ+8*s+4*u+j}, v{r+j}")
        return t
    t = []
    for s in range(4): t += qconv(s)
    spread(7*16 + 2, 12*16 + 6, t)
    if OPT["j2"]:
        lim = [(done_at[4]+2, done_at[4]+12), (done_at[4]+13, done_at[6]+1), (done_at[6]+2, done_at[6]+11), (done_at[6]+12, 14*16+12)]
    else:
        lim = [(13*16+5+6*k, 13*16+10+6*k) for k in range(4)]
    for k, (p0, p1) in enumerate(lim):
        assert p0 >= done_at[4+k] + 2 and p1 < 14*16 + 2*(4+k) - 1, (k, p0, p1)
        spread(p0, p1, qconv(4 + k))

    def qk(H, n, S):
        for f in range(16):
            s, ee = f >> 1, f & 1
            mf = []
            for u in range(2):
                acc = S + 8*u + 4*ee
                cin = q4(vNM + 4*u) if s == 0 else q4(acc)
                mf.append(f"{MF} {q4(acc)}, a[{{b}}:{{b3}}], {q4(aQ + 8*s + 4*u, 'a')}, {cin}")
            items.append(Item(H, mf, [("ds_read_b128", "a[{b}:{b3}]", "K", s & 3, n, (s >> 2)*256 + ee*2048)]))
    def pv(H, n, P, first):
        for T in range(16):
            mf = []
            for u in range(2):
                acc = acc_of(vO, T, u)
                mf.append(f"{MF} {q4(acc)}, a[{{b}}:{{b3}}], {q4(P + 4*u)}, {'0' if first else q4(acc)}")
            o = (T >> 3)*256
            items.append(Item(H, mf, tr_reads("V", T & 7, n, o, o + 2048)))
    EORD = [0, 1, 2, 3, 8, 9, 10, 11, 4, 5, 6, 7, 12, 13, 14, 15]
    Pb = (vP, vE + 8)
    def softmax(S, par):
        Lo, Ln, P = vL + 2*par, vL + 2*(par ^ 1), Pb[par]
        L = []
        seen = set()
        def addk(i):
            u = EORD[i] >> 3
            src = Ln + u if u in seen else Lo + u
            seen.add(u)
            return f"v_add_f32 v{Ln+u}, v{src}, v{vE+(i&7)}"
        cv = lambda i: f"v_cvt_pk_bf16_f32 v{P+EORD[i]//2}, v{vE+(i&7)}, v{vE+((i+1)&7)}"
        for i, k in enumerate(EORD):
            L.append(f"v_exp_f32 v{vE+(i&7)}, v{S+k}")
            if i >= 1: L.append(addk(i-1))
            if i >= 2 and i % 2 == 0: L.append(cv(i-2))
        L += [addk(15), cv(14)]
        return L
    lblc = [0]
    def check(t):
        lblc[0] += 1
        k = lblc[0]
        Ln = vL + 2*((t & 1) ^ 1)
        nm = "L_fix0" if t == 0 else f"L_fixp{t & 1}"
        def f(a):
            a.e(f"v_max_f32 v{vT0}, v{Ln}, v{Ln+1}")
            if t == 0:
                a.e(f"v_min_f32 v{vT0+1}, v{Ln}, v{Ln+1}")
                a.e(f"v_cmp_lt_f32 vcc, s{sThr}, v{vT0}")
                a.e(f"v_cmp_gt_f32 s[44:45], s{sTlo}, v{vT0+1}")
                a.e("s_or_b64 s[44:45], s[44:45], vcc")
                a.e(f"s_cbranch_scc0 L_nm{k}")
            else:
                a.e(f"v_cmp_lt_f32 vcc, s{sThr}, v{vT0}")
                a.e(f"s_cbranch_vccz L_nm{k}")
            a.e(f"s_call_b64 s[{sRet}:{sRet+1}], {nm}")
            a.lab(f"L_nm{k}")
        f.after2 = (t == 15)
        f.cost = 3
        return f
    H = 14
    qk(H, 21, vSb[0]); H += 1
    qk(H, 22, vSb[1])
    add(16*H + 15, [check(0)])
    spread(16*H + 1, 16*H + 14, softmax(vSb[0], 0))
    H += 1
    for t in range(1, 16):
        n = uidx[("V", t-1)]
        assert consumed[n] == H
        pv(H, n, Pb[(t-1) & 1], t == 1)
        p0 = 16*H
        H += 1
        if t <= 14:
            n = uidx[("K", t+1)]
            assert consumed[n] == H
            qk(H, n, vSb[(t+1) & 1])
            H += 1
        add(16*H - 1, [check(t)])
        spread(p0 + 1, 16*H - 2, softmax(vSb[t & 1], t & 1))
    n = uidx[("V", 15)]
    assert consumed[n] == H and H == 45
    pv(H, n, Pb[1], False)
    L0, L1 = vL, vL + 1
    fin = [f"v_permlane32_swap_b32 v{L0}, v{L1}", f"v_add_f32 v{L0}, v{L0}, v{L1}", f"v_mov_b32 v{L1}, v{L0}",
           f"v_permlane16_swap_b32 v{L0}, v{L1}", f"v_add_f32 v{L0}, v{L0}, v{L1}", f"v_rcp_f32 v{vAl}, v{L0}",
           f"v_mov_b32 v{vAl+1}, v{vAl}", f"v_permlane32_swap_b32 v{vAl}, v{vAl+1}"]
    ON = OPT["onorm"]
    for k, s in enumerate(fin): add((45*16 + k//2) if ON else (47*16 - 12 + k), s)
    p = 16*H + (4 if ON else 3)
    for s in range(8):
        t = []
        R = [vO + 16*s, vO + 16*s + 8]
        if ON:
            for u, r in enumerate(R): t += [f"v_mul_f32 v{r+j}, v{r+j}, v{vAl+u}" for j in range(8)]
        for r in R: t += [f"v_cvt_pk_bf16_f32 v{r+j}, v{r+2*j}, v{r+2*j+1}" for j in range(4)]
        w = 5 if ON else 3
        assert p >= 16*H + 2*s + 3 and p + w - 1 <= 16*H + 16 + 4*s - 1
        spread(p, p + w - 1, t)
        p += w
    H += 1
    def epilogue(acc, so, q, j):
        u = q & 1
        g = [] if ON else [f"v_mul_f32 v{acc+r}, v{acc+r}, v{vAl+u}" for r in range(8)]
        dst = vO + 8*(4*j + q) + 4 if j < OPT["hold"] else acc
        g += [f"v_cvt_pk_bf16_f32 v{dst+jj}, v{acc+2*jj}, v{acc+2*jj+1}" for jj in range(4)]
        offs = f" offset:{q*1024}" if q else ""
        st = (f"buffer_store_dwordx4 {q4(dst)}, v{vSt}, s[{sG}:{sG+3}], s{so} offen{offs} {OPT['st_pol']}", f"st{j}")
        if j < OPT["hold"]: held.append(st)
        else: g.append(st)
        return g
    held = []
    NS = OPT["NS"]
    pubs = [int(x) for x in OPT["pub"].split(",")]
    assert pubs[-1] == 7 - NS
    def publish(cnt):
        def f(a):
            a.wait_vm({f"st{j}" for j in range(cnt)} | {"sen"})
            a.e(f"v_mov_b32 v{vFv}, {cnt}")
            a.e(f"buffer_store_dword v{vFv}, v{vFl}, s[{sFl}:{sFl+3}], 0 offen sc1", "pub")
        return f
    late_pubs = []
    hpos = lambda k: OPT["HP"] + (OPT["HE"] - OPT["HP"])*k/(4*OPT["hold"] - 1)
    for j in range(7):
        so = 8 + j if j else sNP0
        so2 = 9 + j
        A = vAcc + 32*(j & 1)
        for hf in range(2):
            n = uidx[("O", 2*j+hf)]
            assert consumed[n] == H
            order = [(nn, s4) for nn in range(4) for s4 in range(4)]
            if j == 0: order = [(nn, s4) for s4 in range(4) for nn in range(4)]
            for (nn, s4) in order:
                s = 4*hf + s4
                mf = []
                for u in range(2):
                    acc = acc_of(A, nn, u)
                    mf.append(f"{MF} {q4(acc)}, a[{{b}}:{{b3}}], {q4(vO + 16*s + 8*u)}, {'0' if s == 0 else q4(acc)}")
                items.append(Item(H, mf, tr_reads("O", nn, n, s4*4096, s4*4096 + 2048)))
            H += 1
        pend = 16*H
        g0 = epilogue(A, so, 0, j) + epilogue(A + 8, so, 1, j)
        g1 = epilogue(A + 16, so, 2, j) + epilogue(A + 24, so, 3, j)
        if j < 6:
            spread(pend - 7 if j else pend + 1, pend + 8, g0)
            spread(pend + 9, pend + 23, g1)
            add(pend - 8, [[f"s_add_u32 s{so2}, s{so}, 4096", f"s_cmp_eq_u32 s{so2}, 28672", f"s_cselect_b32 s{so2}, 0, s{so2}"]])
        else:
            spread(pend - 7, pend - 1, g0)
            tail_epi = g1
        if j + 1 in pubs:
            pp = pend + 25 + 16*OPT["PUBD"]
            if OPT["hold"]: pp = max(pp, int(16*(hpos(4*min(j + 1, OPT["hold"]) - 1) + OPT["PUBD"])) + 1)
            if pp < 960 - 2: add(pp, [publish(j + 1)])
            else: late_pubs.append(j + 1)
    for k, st in enumerate(held):
        assert 16*hpos(k) > 16*(48 + 2*(k//4)) + (9 if k % 4 < 2 else 24)
        add(int(16*hpos(k)), [st])
    N = len(items)
    assert N == 960
    for p in range(N):
        if p % 16 == 0: items[p].first = True
    p = int(16*OPT["CLR"])
    for j in range(7 - NS, 7):
        add(p, [[f"s_add_u32 s44, s{sNP0}, {j*4096}", "s_cmp_ge_u32 s44, 28672", "s_cselect_b32 s45, 28672, 0", "s_sub_u32 s44, s44, s45"]])
        for q in range(4):
            offs = f" offset:{q*1024}" if q else ""
            add(p + 1 + q*OPT["CLS"], [(f"buffer_store_dwordx4 {q4(vE + 8) if OPT['CLR'] < 14 else q4(aSen, 'a')}, v{vSt}, s[{sG}:{sG+3}], s44 offen{offs} {OPT['st_pol']}", "sen")])
        p += 4*OPT["CLS"]
    assert p < 53*16
    if NS == 0: pass
    elif OPT["CLR"] >= 14: spread(int(16*OPT["CLR"]) - 5, int(16*OPT["CLR"]) - 1, [f"v_accvgpr_write_b32 a{aSen+r}, -1" for r in range(4)])
    else: assert p < 15*16 and not OPT["late"]
    if OPT["wow"] >= 0:
        add(int(16*OPT["wow"]), [(f"buffer_load_dword a145, v63, s[{sWo}:{sWo+3}], 0 offen", "pf")])
    if OPT["TA"] >= 0:
        nt = 17 - OPT["T0"]
        for k in range(nt):
            pos = int(round(16*(OPT["TA"] + (OPT["TB"] - OPT["TA"])*k/(nt - 1))))
            add(pos, [[f"s_max_i32 s{sTmp2}, s{sPfo}, 0", f"s_min_i32 s{sTmp2}, s{sTmp2}, {15*16384}",
                       (f"buffer_load_dword a144, v{vPf}, s[{sPf}:{sPf+3}], s{sTmp2} offen {OPT['t_pol']}", "pf"),
                       f"s_add_u32 s{sPfo}, s{sPfo}, 16384"]])
    def lead(a):
        a.wait_vm({"clr"})
        a.e(f"buffer_store_dword v{vFv}, v{vDbA}, s[{sDb}:{sDb+3}], 0 offen sc1", "sig")
    add(16*13 + 5, [lead])
    add(16*39 + 5, [(f"buffer_load_dword v{vF}, v{vDbV}, s[{sDb}:{sDb+3}], 0 offen sc1", "chk")])
    def chk(a):
        a.wait_vm({"chk"})
        a.e(f"v_cmp_eq_u32 vcc, 0, v{vF}")
        a.e("s_cbranch_vccz L_chk_ok")
        a.e(f"s_call_b64 s[{sRet}:{sRet+1}], L_chk_wait")
        a.lab("L_chk_ok")
    add(16*47 + 3, [chk])
    vD = 192
    def dreg(j, k):
        return q4(16*j + 4*k, "a") if j < 7 - NS else q4(vO + 16*(j - (7 - NS)) + 4*k)
    tsetup = [f"s_mov_b32 s8, s{sNP0}"]
    tsetup_b = [f"s_lshr_b32 s{16+j}, s{8+j}, 5" for j in range(7)]
    tsetup += [f"v_add_u32 v{vKr+k}, {k*4*114688}, v{vRd}" for k in range(1, 4)]
    def ld1(j, k):
        return (f"buffer_load_dwordx4 {dreg(j, k)}, v{vKr+k if k else vRd}, s[{sG}:{sG+3}], s{8+j} offen sc1", f"r{j}")
    vFA, vFB, vNx = 62, 63, 59
    def poll(r, tag): return (f"buffer_load_dword v{r}, v{vFp}, s[{sFl}:{sFl+3}], 0 offen sc1", tag)
    if OPT["t2"]:
        assert NS == 0
        spread(866, 900, tsetup)
        nA, nB = OPT["nA"], OPT["nB"]
        if nA:
            add(OPT["spA"], [poll(vFA, "pA")])
            wa = lambda a: a.wait_vm({"pA"})
            wa.cost = 1
            add(OPT["spL"] - 1, [wa])
            L = [ld1(j, k) for j in range(nA) for k in range(4)]
            for i, x in enumerate(L): add(OPT["spL"] + (i*(OPT["spE"] - OPT["spL"]))//len(L), [x])
        if nB > nA: add(OPT["spB"], [poll(vFB, "pB")])
        add(OPT["spC"], [poll(vNx, "pC")])
    elif OPT["early"]:
        add(960 - 40, [(f"buffer_load_dword v{vF}, v{vFp}, s[{sFl}:{sFl+3}], 0 offen sc1", "poll")])
    if OPT["stamps"]:
        add(14*16 - 1, [lambda a: stamp(a, 3)])
        add(46*16 - 1, [lambda a: stamp(a, 4)])

    D, WEV = OPT["D"], OPT["wev"]
    window = {"K": 0, "V": 1, "O": 2}
    uses = defaultdict(list)
    for i, it in enumerate(items):
        for r in it.reads: uses[r[2]].append((i, r[4]))
    soft_dma = []
    soft_up = []
    soft_adr = []
    log = []
    cur = []
    def put(s): cur.append(s)
    def set_window(g, w):
        if window[g] == w: return
        base, cnt = GROUPS[g]
        d = (w - window[g]) * 65536
        window[g] = w
        soft_adr.extend((g, k, f"v_add_u32 v{base+k}, {d & 0xffffffff}, v{base+k}") for k in range(cnt))
    def flush_adr(g, k):
        rest = []
        for (gg, kk, s) in soft_adr:
            if gg == g and kk == k: put(s)
            else: rest.append((gg, kk, s))
        soft_adr[:] = rest
    upos = {g: 0 for g in GROUPS}
    rp = [0]
    hbar = [-1]
    issued = set(m for (pos, m) in iss[:ip[0]])
    pend = list(iss[ip[0]:])
    upq = []
    unparked = set()
    areas = []
    if NP:
        areas.append([144, 0, 10000])
        if OPT["pkq"]: areas += [[aQ + 32, 0, lim[0][0] - 2], [aQ + 48, 0, lim[2][0] - 2]]
        areas += [[aX + 16*c, 16*(min(7 + c, 13) + 1) + 1 if c < 5 else 14*16 + 1, 10000] for c in range(7)]
        if NS and 14 <= OPT["CLR"] < 44: areas = [x for x in areas if x[0] != aSen]
        areas = areas[:NP]
    area_of = {}
    cls = lambda m: "P" if units[m][0] in "XW" else units[m][0]
    def next_unit(p, force=None):
        seen = set()
        for k, (pos, m) in enumerate(pend):
            c = cls(m)
            if c in seen: continue
            seen.add(c)
            if force is not None:
                if c != cls(force): continue
            elif pos > p: break
            ok = alloc(m, hbar[0], p)
            if not ok and c in "KV":
                fr = [x for x in areas if x[1] <= p and x[2] > p + 64 and (x[2] == 10000 or units[m][1] < 4)]
                if fr:
                    x = min(fr, key=lambda x: x[2])
                    parked[m] = x[0]; area_of[m] = x; x[1] = 10000; upq.append(m); ok = True
            assert ok or force is None, ("no slot", m, p)
            if not ok: continue
            pend.pop(k)
            issued.add(m)
            log.append((p, "iss", units[m], slot_of.get(m, f"a{parked.get(m)}")))
            soft_dma.extend(dma(m))
            return True
        return False
    def next_unpark(p, force=None):
        for m in upq:
            if force is not None and m != force: continue
            due = min(16*(needed[m] - OPT["UPD"]) - D, area_of[m][2] - 10)
            if force is None and (p < due or soft_dma_has(m)): continue
            if not alloc(m, hbar[0], p):
                assert force is None and p < area_of[m][2] - 5, ("no slot (unpark)", m, p)
                continue
            upq.remove(m)
            s = slot_of[m]
            log.append((p, "unp", units[m], s))
            for jj in range(4):
                pk = parked[m] + 4*jj
                ins = []
                if jj == 0: ins.append(lambda a, m=m: a.wait_vm({f"u{m}"}))
                ins.append((f"ds_write_b128 v{vUp + s//4}, a[{pk}:{pk+3}] offset:{(s%4)*16384 + jj*1024}", None, f"w{m}"))
                soft_up.append(ins)
            area_of[m][1] = p + 24
            unparked.add(m)
            return True
        return False
    def soft_dma_has(m):
        return any(isinstance(s, tuple) and s[1] == f"u{m}" for g in soft_dma for s in g)
    def issue(i, p):
        it = items[i]
        if it.first:
            Hh = it.H
            for n in HS[Hh]:
                while n not in issued: next_unit(p, n)
                if soft_dma_has(n):
                    for g in soft_dma: put(g)
                    soft_dma.clear()
                if n in parked:
                    if n not in unparked: next_unpark(p, n)
                    for g in soft_up: put(g)
                    soft_up.clear()
            def ev(a, Hh=Hh):
                a.c(f"event H={Hh} needs {[units[n] for n in HS[Hh]]}")
                if OPT["trace"]:
                    if Hh > 0:
                        a.e(f"v_writelane_b32 v{vTr}, s{sTr+4*((Hh-1)&1)}, {Hh-1}")
                        a.e(f"v_writelane_b32 v{vTr+1}, s{sTr+2+4*((Hh-1)&1)}, {Hh-1}")
                    a.e(f"{'s_memtime' if OPT['trace'] == 2 else 's_memrealtime'} s[{sTr+4*(Hh&1)}:{sTr+1+4*(Hh&1)}]")
                a.wait_vm({f"u{n}" for n in HS[Hh] if n not in parked})
                a.wait_lds({f"w{n}" for n in HS[Hh]})
                a.e("s_barrier")
                if OPT["trace"]:
                    a.e(f"s_memrealtime s[{sTr+2+4*(Hh&1)}:{sTr+3+4*(Hh&1)}]")
                if Hh == 0: stamp(a, 2)
            ev.cost = 2 + (4 if OPT["trace"] else 0)
            put(ev)
            hbar[0] = Hh
        b = aFr(i)
        for (op, dst, g, ridx, n, inoff) in it.reads:
            slot = slot_of[n]
            if g in "WX":
                put((f"{op} {dst.format(b=b, b1=b+1, b2=b+2, b3=b+3)}, v{GROUPS[g][0]+GROUPS[g][1]*(slot//4)+ridx} offset:{(slot % 4)*16384 + inoff}", None, i))
                continue
            set_window(g, slot // 4)
            flush_adr(g, ridx)
            imm = (slot % 4)*16384 + inoff
            put((f"{op} {dst.format(b=b, b1=b+1, b2=b+2, b3=b+3)}, v{GROUPS[g][0]+ridx} offset:{imm}", None, i))
            upos[g] += 1
            if upos[g] < len(uses[g]):
                ni, nn = uses[g][upos[g]]
                if nn != n and nn in slot_of and ni > i + 2:
                    set_window(g, slot_of[nn]//4)
    def adv(limit, p):
        while rp[0] < N and rp[0] <= limit:
            issue(rp[0], p); rp[0] += 1
    def emit(s):
        if isinstance(s, list):
            for x in s: e(x)
        else: e(s)
    loads_out = {}
    est = [0]
    adv(D - 1, -1)
    for s in cur: emit(s)
    for p in range(N):
        cur.clear()
        if p % WEV == 0: a.wait_lds(set(range(p, p + WEV)))
        b = aFr(p)
        adv(p + D, p)
        SR = list(cur); cur.clear()
        SF = list(fill.get(p, []))
        if not soft_up: next_unpark(p)
        if not soft_dma: next_unit(p)
        sp = OPT["dsp1"] if p < 14*16 else OPT["dsp"]
        if soft_dma and (p - OPT["dph"]) % sp == 0: put(soft_dma.pop(0))
        if soft_up and (p % OPT["usp"] == 0 or p < 15*16): put(soft_up.pop(0))
        SM = list(cur)
        if soft_adr: SR.append(soft_adr.pop(0)[2])
        wt = 1 if (p + 1) % WEV == 0 else 0
        tot = cost(SR) + cost(SF) + cost(SM) + wt
        loads_out[p] = tot
        evi = [k for k, x in enumerate(SR) if callable(x)]
        a2 = [k for k, x in enumerate(SF) if getattr(x, "after2", False)]
        best = None
        for kr in range(len(SR) + 1):
            for kf in range((a2[0] if a2 else len(SF)) + 1):
                for km in range(len(SM) + 1):
                    if km and evi and kr <= evi[-1]: continue
                    c1 = cost(SR[:kr]) + cost(SF[:kf]) + cost(SM[:km])
                    key = (max(2, c1) + max(2, tot - c1), abs(2*c1 - tot), -kr)
                    if best is None or key < best[0]: best = (key, kr, kf, km)
        _, kr, kf, km = best
        est[0] += best[0][0]*4 + 16
        if p % 16 == 15: est.append(est[0]); est[0] = 0
        e(items[p].mf[0].format(b=b, b3=b+3))
        for s in SR[:kr] + SF[:kf] + SM[:km]: emit(s)
        e(items[p].mf[1].format(b=b, b3=b+3))
        for s in SR[kr:] + SF[kf:] + SM[km:]: emit(s)
    assert not soft_dma and not soft_up and not pend and not upq
    if BASE is None: return loads_out
    sys.stderr.write(f"est cycles: {' '.join(map(str, est[1:]))} total {sum(est)}\n")
    for s in tail_epi: e(s)
    if OPT["verbose"]:
        for (p, w, u, s) in log:
            sys.stderr.write(f"  {p/16:6.2f} {w} {u} slot {s} (need {needed[uidx[u]]})\n")
    stamp(a, 5)
    def loads(j):
        for k in range(4): e(ld1(j, k))
    def red(j):
        d = vD + 4*j
        for k in range(4):
            e(f"{MF} {q4(d)}, {q4(vSel)}, {dreg(j, k)}, {'0' if k == 0 else q4(d)}")
    def fin(j):
        d = vD + 4*j
        e(f"v_cvt_pk_bf16_f32 v{d}, v{d}, v{d+1}")
        e(f"v_cvt_pk_bf16_f32 v{d+1}, v{d+2}, v{d+3}")
        e(f"buffer_store_dwordx2 v[{d}:{d+1}], v{vRo}, s[{sOut}:{sOut+3}], s{16+j} offen {OPT['out_pol']}")
    if OPT["t2"]:
        if nB > nA:
            a.wait_vm({"pB"})
            for j in range(nA, nB): loads(j)
        nb = None
        for c in late_pubs:
            publish(c)(a)
            if nb is not None: nb += 1
            if c == OPT["pD"]: e(poll(vNx - 1, "pD")); nb = 0
        for x in tsetup_b: e(x)
        a.wait_vm({"pC"})
        e("s_barrier")
        stamp(a, 6)
        e(f"v_max_u32 v{vF}, v{vNx}, v{vDV}")
        for (r, lo, hi) in ((vFA, 0, nA), (vFB, nA, nB)):
            if hi == lo: continue
            e(f"v_cmp_gt_u32 vcc, {hi}, v{r}")
            e(f"s_cbranch_vccz L_sv{hi}")
            e(f"v_cmp_gt_u32 vcc, {hi}, v{vF}")
            e(f"s_cbranch_vccz L_sr{hi}")
            e(f"s_mov_b32 s45, {hi}")
            e(f"s_call_b64 s[{sRet}:{sRet+1}], L_poll")
            a.lab(f"L_sr{hi}")
            for j in range(lo, hi): loads(j)
            a.lab(f"L_sv{hi}")
        ths = [int(x) for x in OPT["thr2"].split(",")]
        prev, done, cur = nB, 0, vNx - 1
        for hi in ths:
            e(f"v_cmp_gt_u32 vcc, {hi}, v{vF}")
            e(f"s_cbranch_vccz L_go{hi}")
            if nb is not None:
                e(f"s_waitcnt vmcnt({nb})")
                e(f"v_max3_u32 v{vF}, v{cur}, v{vDV}, v{vF}")
                e(f"v_cmp_gt_u32 vcc, {hi}, v{vF}")
                e(f"s_cbranch_vccz L_go{hi}")
            e(f"s_mov_b32 s45, {hi}")
            e(f"s_call_b64 s[{sRet}:{sRet+1}], L_poll")
            a.lab(f"L_go{hi}")
            if hi in ths[-3:]: stamp(a, 1 + ths[-3:].index(hi), True)
            cur ^= 1
            if hi < 7: e(poll(cur, "pn"))
            for j in range(prev, hi): loads(j)
            nb = 4*(hi - prev)
            if OPT["prog"] and (hi == 7 or OPT["prog"] > 1) and prev > done:
                e(f"s_waitcnt vmcnt({nb + (1 if hi < 7 else 0)})")
                for j in range(done, prev): red(j)
                for j in range(done, prev): fin(j)
                nb += prev - done
                last_fin = prev - done
                done = prev
            else: last_fin = 0
            prev = hi
        e(f"s_waitcnt vmcnt({last_fin})")
        stamp(a, 4, True)
        for j in range(done, 7): red(j)
        for j in range(done, 7): fin(j)
    else:
      for x in tsetup + tsetup_b: emit(x)
      if OPT["early"]: a.wait_vm({"poll"})
      else: e(f"v_mov_b32 v{vF}, 0")
      for c in late_pubs: publish(c)(a)
      stamp(a, 6)
      prev = 0
      for hi in pubs:
          e(f"v_cmp_gt_u32 vcc, {hi}, v{vF}")
          e(f"s_cbranch_vccz L_go{hi}")
          e(f"s_mov_b32 s45, {hi}")
          e(f"s_call_b64 s[{sRet}:{sRet+1}], L_poll")
          a.lab(f"L_go{hi}")
          if hi in pubs[-3:]: stamp(a, 1 + pubs[-3:].index(hi), True)
          for j in range(prev, hi): loads(j)
          prev = hi
      for j in range(7 - NS, 7): loads(j)
      e(f"s_waitcnt vmcnt({4*NS})")
      stamp(a, 4, True)
      for j in range(7 - NS): red(j)
      for j in range(7 - NS): fin(j)
      e(f"s_waitcnt vmcnt({7 - NS})")
      for j in range(7 - NS, 7):
          a.lab(f"L_sen{j}")
          r = vO + 16*(j - (7 - NS))
          e(f"v_max3_u32 v{vT0}, v{r}, v{r+1}, v{r+2}")
          e(f"v_max3_u32 v{vT0+1}, v{r+3}, v{r+4}, v{r+5}")
          for k in range(6, 16, 4):
              e(f"v_max3_u32 v{vT0}, v{vT0}, v{r+k}, v{r+k+1}")
              if k + 2 < 16: e(f"v_max3_u32 v{vT0+1}, v{vT0+1}, v{r+k+2}, v{r+k+3}")
          e(f"v_max_u32 v{vT0}, v{vT0}, v{vT0+1}")
          e(f"v_cmp_eq_u32 vcc, -1, v{vT0}")
          e(f"s_cbranch_vccz L_sok{j}")
          e(f"s_sub_u32 s{sSpin}, s{sSpin}, 1")
          e(f"s_cbranch_scc1 L_sto{j}")
          for jj in range(j, 7): loads(jj)
          e("s_waitcnt vmcnt(0)")
          e(f"s_branch L_sen{j}")
          a.lab(f"L_sto{j}")
          e(f"s_mov_b32 s{sSpin}, 0")
          a.lab(f"L_sok{j}")
          red(j); fin(j)
    if OPT["diag"]:
        e("v_mov_b32 v8, 128")
        e(f"buffer_load_dword v5, v8, s[{sDb}:{sDb+3}], 0 offen sc1")
        e("s_waitcnt vmcnt(0)")
        e("v_readfirstlane_b32 s3, v5")
        e("s_bcnt1_i32_b32 s3, s3")
        e("s_cmp_le_u32 s3, 1")
        e("s_cbranch_scc1 L_diag_ok")
        e("s_mov_b32 s3, 30")
        a.lab("L_diag_l")
        e("s_sleep 64")
        e("s_sub_u32 s3, s3, 1")
        e("s_cmp_gt_u32 s3, 0")
        e("s_cbranch_scc1 L_diag_l")
        a.lab("L_diag_ok")
    if OPT["stamps"]:
        e("s_waitcnt vmcnt(0)")
        stamp(a, 7)
        e("s_waitcnt lgkmcnt(0)")
        if OPT["dly"] >= 0:
            if OPT["dwg"] >= 0:
                e(f"s_cmp_lg_u32 s2, {OPT['dwg']}"); e("s_cbranch_scc1 L_dly_done")
            e(f"s_sub_u32 s44, s{sStamp+2*OPT['dly']}, s{sStamp}")
            e(f"s_mul_i32 s44, s44, {OPT['dk']}")
            e("s_min_u32 s44, s44, 100000")
            e("s_mov_b32 s45, 200000")
            a.lab("L_dly")
            e("s_memrealtime s[46:47]")
            e("s_sub_u32 s45, s45, 1")
            e("s_cbranch_scc1 L_dly_done")
            e("s_waitcnt lgkmcnt(0)")
            e(f"s_sub_u32 s46, s46, s{sStamp+14}")
            e("s_cmp_lt_u32 s46, s44")
            e("s_cbranch_scc1 L_dly")
            a.lab("L_dly_done")
        e(f"s_add_u32 s32, s{sWsP}, 0x4000000"); e(f"s_addc_u32 s33, s{sWsP+1}, 0"); e("s_mov_b32 s34, 0x100000"); e("s_mov_b32 s35, 0x00020000")
        e("s_lshl_b32 s3, s2, 6")
        e("v_mov_b32 v1, s3")
        for k in range(8):
            e(f"v_mov_b32 v{2+k}, s{sStamp+2*k}")
        if OPT["trace"]:
            e(f"v_writelane_b32 v{vTr}, s{sTr+4}, 59")
            e(f"v_writelane_b32 v{vTr+1}, s{sTr+6}, 59")
            e("s_lshl_b32 s3, s2, 11")
            e("s_add_u32 s3, s3, 0x10000")
            e("v_lshlrev_b32 v10, 3, v0")
            e("v_add_u32 v10, s3, v10")
            e(f"buffer_store_dwordx2 v[{vTr}:{vTr+1}], v10, s[32:35], 0 offen")
        e("v_cmp_eq_u32 vcc, 0, v0")
        e("s_and_saveexec_b64 s[36:37], vcc")
        e("s_cbranch_execz L_k1_done")
        e("buffer_store_dwordx4 v[2:5], v1, s[32:35], 0 offen")
        e("buffer_store_dwordx4 v[6:9], v1, s[32:35], 0 offen offset:16")
        e("s_waitcnt vmcnt(0)")
    a.lab("L_k1_done")
    e("s_endpgm")
    a.lab("L_poll")
    e(f"buffer_load_dword v{vF}, v{vFp}, s[{sFl}:{sFl+3}], 0 offen sc1")
    e(f"s_sub_u32 s{sSpin}, s{sSpin}, 1")
    e("s_cbranch_scc1 L_poll_to")
    e("s_waitcnt vmcnt(0)")
    if OPT["t2"]: e(f"v_max_u32 v{vF}, v{vF}, v{vDV}")
    e(f"v_cmp_gt_u32 vcc, s45, v{vF}")
    e("s_cbranch_vccz L_poll_ret")
    if OPT["sleep"]: e(f"s_sleep {OPT['sleep']}")
    e("s_branch L_poll")
    a.lab("L_poll_to")
    e(f"s_mov_b32 s{sSpin}, 0")
    e("s_waitcnt vmcnt(0)")
    a.lab("L_poll_ret")
    e(f"s_setpc_b64 s[{sRet}:{sRet+1}]")
    a.lab("L_chk_wait")
    e(f"buffer_load_dword v{vF}, v{vDbV}, s[{sDb}:{sDb+3}], 0 offen sc1")
    e(f"s_sub_u32 s{sSpin}, s{sSpin}, 1")
    e("s_cbranch_scc1 L_poll_to")
    e("s_waitcnt vmcnt(0)")
    e(f"v_cmp_eq_u32 vcc, 0, v{vF}")
    e("s_cbranch_vccz L_poll_ret")
    e("s_sleep 4")
    e("s_branch L_chk_wait")
    for (nm, par, first) in (("L_fix0", 0, True), ("L_fixp0", 0, False), ("L_fixp1", 1, False)):
        S, S2 = vSb[par], vSb[par ^ 1]
        Lo = vL + 2*par
        a.lab(nm)
        e("s_nop 7")
        for u in range(2):
            T, T2, r = vT0 + u, vT0 + 2, S + 8*u
            e(f"v_max3_f32 v{T}, v{r}, v{r+1}, v{r+2}")
            e(f"v_max3_f32 v{T}, v{T}, v{r+3}, v{r+4}")
            e(f"v_max3_f32 v{T}, v{T}, v{r+5}, v{r+6}")
            e(f"v_max_f32 v{T}, v{T}, v{r+7}")
            e(f"v_mov_b32 v{T2}, v{T}")
            e(f"v_permlane32_swap_b32 v{T}, v{T2}")
            e(f"v_max_f32 v{T}, v{T}, v{T2}")
            e(f"v_mov_b32 v{T2}, v{T}")
            e(f"v_permlane16_swap_b32 v{T}, v{T2}")
            e(f"v_max_f32 v{T}, v{T}, v{T2}")
            if not first:
                e(f"v_max_f32 v{T}, 0, v{T}")
                e(f"v_exp_f32 v{vAl+u}, -v{T}")
            for k in range(8):
                e(f"v_sub_f32 v{r+k}, v{r+k}, v{T}")
                e(f"v_sub_f32 v{S2+8*u+k}, v{S2+8*u+k}, v{T}")
            for k in range(4): e(f"v_sub_f32 v{vNM+4*u+k}, v{vNM+4*u+k}, v{T}")
            if not first: e(f"v_mul_f32 v{Lo+u}, v{Lo+u}, v{vAl+u}")
        for s in softmax(S, par): e(s)
        if not first:
            for r in range(128):
                e(f"v_mul_f32 v{vO+r}, v{vO+r}, v{vAl + ((r >> 3) & 1)}")
        e("s_nop 3")
        e(f"s_setpc_b64 s[{sRet}:{sRet+1}]")
    a.lab("L_k1_end")
    lines = "\n".join(a.L).split("\n")
    lines, npad = pad_hazards(lines)
    sys.stderr.write(f"k1: {len(lines)} lines, {npad} hazard pads\n")
    return "\n".join(lines) + "\n"

def desc(name, vgpr, acc, sgpr=102):
    return f""".p2align 6
.amdhsa_kernel {name}
  .amdhsa_next_free_vgpr {vgpr}
  .amdhsa_next_free_sgpr {sgpr}
  .amdhsa_accum_offset {acc}
  .amdhsa_group_segment_fixed_size 0
  .amdhsa_kernarg_size 104
  .amdhsa_user_sgpr_count 2
  .amdhsa_user_sgpr_kernarg_segment_ptr 1
  .amdhsa_system_sgpr_workgroup_id_x 1
.end_amdhsa_kernel
"""

def main():
    ref = open(f"cdna_kernels/{NAME}.s.ref").read().splitlines()
    hdr = [l for l in ref if l.startswith(";") and "@launch" not in l and "Override launch" not in l and "grid=ceil" not in l]
    out = "\n".join(hdr) + "\n"
    if OPT["lst"]:
        out += f"; @launch kernel={K1} grid=(256,1,1) block=(256,1,1) lds=163840\n"
    else:
        out += f"; @launch grid=(256,1,1) block=(256,1,1) lds=163840\n"
    out += '.amdgcn_target "amdgcn-amd-amdhsa--gfx950"\n.text\n'
    out += gen_k1(gen_k1(None))
    out += '.section .rodata,"a"\n'
    out += desc(K1, 512, 256)
    open(sys.argv[1], "w").write(out)

main()
```

```python
import sys, math, struct
from collections import defaultdict
sys.path.insert(0, "gen")
from asmlib import pad_hazards

NAME = "concat_heads__mha_block_cached__gqa_block_cached__near_ridge"
K1 = NAME + "_kernel"

OPT = dict(stamps=0, trace=0, st_pol="sc1", kv_pol="nt", w_pol="", x_pol="", out_pol="", D=6, wev=2, codepf=1,
           L1=4, PR=2.0, KA=8.5, KB=40.0, WO0=34.0, LWO=6, spw=1,
           pub="2,4", PUBD=4, NS=3, CLR=41.0, early=1, nodma=0, thr=1048576.0, tlo=2.0**-30, verbose=0, sleep=1, lst=1,
           X1=13, pfn=0, pfbit=3, pf_pol="", NP=0, PK=3.0, UP=2, j2=1, NB=8, wf=1, onorm=1, n0=4,
           p1slots="8,9,1,2,4,3,5,7,6,0,8,1,9,4,2,5,3,6,7,8,9", late=0, CLS=4, wow=-1.0, OS=1.0, OI=-1, o_pol="", o0_pol="", MF=0, MFE=1, dsp=1, dsp1=1, dph=0, diag=0, TA=-1.0, TB=38.0, T0=0, t_pol="", TS=7, KS="", park=0, pkq=1, UPD=1.0, wcost=2, usp=1, dly=-1, dk=10, dwg=-1, tst=0, t2=0, spA=905, spL=946, nA=2, spB=944, nB=3, spC=957, thr2="4,5,6,7", prog=1, pD=6, FS=2, spE=959, hold=0, HP=54.0, HE=58.0, pace="", pcs=8, org=0, orgH=6.5, ad=0, adm=0.3, adS=2, adD=1, adM=31, adE=42, adL=800, adW=4, adR=2)
for a in sys.argv[2:]:
    k, v = a.split("=")
    OPT[k] = type(OPT[k])(v) if not isinstance(OPT[k], str) else v.replace("+", " ")

sW, sH, sB, sBLK = 4, 5, 6, 7
sK, sV, sWq, sWo, sX, sG, sFl, sDb, sOut = 8, 12, 16, 20, 24, 28, 32, 36, 40
sWoff = 48
sXoff, sWqoff, sWooff = 49, 50, 51
sStA, sStB = 52, 53
sC, sThr = 54, 55
sNP0, sSpin = 56, 57
sRet = 58
sTmp, sTmp2 = 60, 61
sTr = 64
sWsP = 80
sStamp = 82
sTlo = 98
sPf, sPfo = 72, 76
vPf = 62

vKr, vVr, vWor = 10, 14, 22
vKd, vVd, vWod = 26, 28, 30
vSt = 34
vL = 35
vT0 = 39
vAl = 43
vFl, vFp, vDbA, vDbV, vF, vFv = 45, 46, 47, 48, 49, 50
vDV = 51
vSel = 52
vRd, vRo = 56, 57
vUp = 58
vTr = 60
vSb = (64, 80)
vE, vNM, vP = 96, 112, 120
vWqd, vXd = 96, 100
vWr, vXr = 64, 88
vAcc = 64
vO = 128
aX, aPk, aQ = 0, 112, 160
NB = OPT["NB"]
def aFr(i):
    k = i % NB
    return 224 + 4*k if k < 8 else 112 + 4*(k - 8)
aSen = 0
FLAGS_OFF = 32 << 20
FS = OPT["FS"]; WS = max(8, FS + 4)
MF = "v_mfma_f32_16x16x32_bf16"

SCALE = math.log2(math.e) / 16.0
def f32hex(x):
    return "0x%08x" % struct.unpack("<I", struct.pack("<f", x))[0]

class Em:
    def __init__(self):
        self.L = []
        self.vmq = []
        self.ldsq = []
    def e(self, s, vm=None, lds=None):
        if isinstance(s, tuple):
            return self.e(*s)
        if callable(s):
            return s(self)
        self.L.append("    " + s)
        if vm is not None: self.vmq.append(vm)
        if lds is not None: self.ldsq.append(lds)
    def lab(self, s): self.L.append(s + ":")
    def c(self, s): self.L.append("    ; " + s)
    def wait_vm(self, tags):
        idx = [i for i, t in enumerate(self.vmq) if t in tags]
        if not idx: return
        n = len(self.vmq) - 1 - max(idx)
        self.e(f"s_waitcnt vmcnt({min(n, 63)})")
        self.vmq = self.vmq[max(idx) + 1:] if n <= 63 else self.vmq[-63:]
    def wait_lds(self, tags):
        idx = [i for i, t in enumerate(self.ldsq) if t in tags]
        if not idx: return
        n = len(self.ldsq) - 1 - max(idx)
        self.e(f"s_waitcnt lgkmcnt({min(n, 15)})")
        self.ldsq = self.ldsq[max(idx) + 1:] if n <= 15 else self.ldsq[-15:]

def stamp(a, idx, tail=False):
    if OPT["tst"] and idx in (1, 2, 3, 4) and not tail: return
    if tail and not OPT["tst"]: return
    if OPT["stamps"]:
        a.e(f"s_memrealtime s[{sStamp+2*idx}:{sStamp+2*idx+1}]")

units = []
for c in range(7): units += [("X", c), ("W", c)]
units += [("W", c) for c in range(7, 14)]
kv = [("K", 0), ("K", 1)]
for t in range(0, 14):
    kv += [("V", t), ("K", t + 2)]
kv += [("V", 14), ("V", 15)]
units += kv
units += [("O", k) for k in range(14)]
NU = len(units)
uidx = {u: n for n, u in enumerate(units)}
HS = [[2*c, 2*c+1] for c in range(7)] + [[uidx[("W", c)]] for c in range(7, 14)]
if OPT["j2"]:
    HS[12] = [uidx[("W", 12)], uidx[("W", 13)]]; HS[13] = []
for n in range(21, NU): HS.append([n])
needed, consumed = {}, {}
for H, us in enumerate(HS):
    for n in us: consumed[n] = H; needed[n] = H
if OPT["j2"]: consumed[uidx[("W", 12)]] = consumed[uidx[("W", 13)]] = 13
parked = {}
NP = OPT["park"]
P1SLOT = [int(x) for x in OPT["p1slots"].split(",")]
assert len(P1SLOT) == 21
def fixed_slot(n):
    t, i = units[n]
    if t in "XW": return P1SLOT[n]
    if t == "K": return i & 3
    if t == "V": return 4 + (i & 3)
    if t == "O" and i < 2: return 8 + i
    return None
iss = []
for n in range(21):
    iss.append((-1 if n < OPT["n0"] else max(0, int(round(16*(n - OPT["L1"])/OPT["PR"]))), n))
stream = list(range(21, 53))
if OPT["OI"] >= 0:
    stream.insert(OPT["OI"], 53); stream.insert(OPT["OI"] + 2, 54)
for i, n in enumerate(stream):
    if OPT["KS"]:
        kn = [tuple(float(y) for y in x.split(":")) for x in OPT["KS"].split(",")]
        for (i0, h0), (i1, h1) in zip(kn, kn[1:]):
            if i0 <= i <= i1: h = h0 + (h1 - h0)*(i - i0)/(i1 - i0)
    else: h = OPT["KA"] + (OPT["KB"] - OPT["KA"])*i/(len(stream) - 1)
    iss.append((int(round(16*h)), n))
for k in range(2 if OPT["OI"] >= 0 else 0, 14):
    pos = max(16*(46 + k - OPT["LWO"]), 16*(OPT["WO0"] + OPT["OS"]*k))
    iss.append((int(pos), 53 + k))
iss.sort(key=lambda x: x[0])

PACE = {}
if OPT["pace"]:
    kn = [tuple(float(y) for y in x.split(":")) for x in OPT["pace"].split(",")]
    for (h0, t0), (h1, t1) in zip(kn, kn[1:]):
        for h in range(int(h0), int(h1) + 1): PACE[h] = int(round(100*(t0 + (t1 - t0)*(h - h0)/(h1 - h0))))
    assert OPT["TA"] < 0 and min(PACE) >= 3
slot_of = {}
def dma(n):
    t, i = units[n]
    g = []
    pk = parked.get(n)
    for jj in range(4):
        ins = []
        if jj == 0:
            if pk is None: ins.append(f"s_add_u32 m0, s{sWoff}, {slot_of[n]*16384}")
            if t in "KV": ins.append(f"s_mov_b32 s{sTmp}, {i*16384}")
            elif t == "O" and (i & 1): ins.append(f"s_add_u32 s{sTmp}, s{sWooff}, {128*896}")
            elif t == "W" and i == 7: ins += [f"s_add_u32 s{sWq}, s{sWq}, 256", f"s_addc_u32 s{sWq+1}, s{sWq+1}, 0"]
        off = f" offset:{jj*1024}" if jj else ""
        dst = "" if pk is None else f"a[{pk+4*jj}:{pk+4*jj+3}], "
        lds = " lds" if pk is None else ""
        if t == "K": ld = f"buffer_load_dwordx4 {dst}v{vKd+(jj&1)}, s[{sK}:{sK+3}], s{sTmp} offen{off} {OPT['kv_pol']}{lds}"
        elif t == "V": ld = f"buffer_load_dwordx4 {dst}v{vVd+(jj&1)}, s[{sV}:{sV+3}], s{sTmp} offen{off} {OPT['kv_pol']}{lds}"
        elif t == "W": ld = f"buffer_load_dwordx4 v{vWqd+jj}, s[{sWq}:{sWq+3}], s{sWqoff} offen{off} {OPT['w_pol']} lds"
        elif t == "X": ld = f"buffer_load_dwordx4 v{vXd+jj}, s[{sX}:{sX+3}], s{sXoff} offen{off} {OPT['x_pol']} lds"
        elif t == "O":
            so = sTmp if (i & 1) else sWooff
            ld = f"buffer_load_dwordx4 v{vWod+jj}, s[{sWo}:{sWo+3}], s{so} offen{off} {OPT['o0_pol'] if i < 2 else OPT['o_pol']} lds"
        if OPT["MF"] and t in "KV" and jj % OPT["MFE"] == 0:
            def lim(a):
                k = OPT["MF"] - OPT["MFE"]
                if len(a.vmq) > k:
                    a.e(f"s_waitcnt vmcnt({k})")
                    a.vmq = a.vmq[len(a.vmq) - k:]
            lim.cost = 1
            ins.append(lim)
        if not OPT["nodma"]: ins.append((ld, f"u{n}"))
        if jj == 3:
            if t == "W" and i < 13: ins += [f"s_add_u32 s{sWqoff}, s{sWqoff}, {64*8192}", f"s_cmp_eq_u32 s{sWqoff}, {448*8192}", f"s_cselect_b32 s{sWqoff}, 0, s{sWqoff}"]
            if t == "X" and i < 6: ins += [f"s_add_u32 s{sXoff}, s{sXoff}, 128", f"s_cmp_eq_u32 s{sXoff}, 896", f"s_cselect_b32 s{sXoff}, 0, s{sXoff}"]
            if t == "O" and (i & 1) and i < 13: ins += [f"s_add_u32 s{sWooff}, s{sWooff}, 128", f"s_cmp_eq_u32 s{sWooff}, 896", f"s_cselect_b32 s{sWooff}, 0, s{sWooff}"]
        g.append(ins)
    return g

GROUPS = {"K": (vKr, 4), "V": (vVr, 8), "O": (vWor, 4), "W": (vWr, 8), "X": (vXr, 2)}

class Item:
    def __init__(self, H, mf, reads):
        self.H = H; self.mf = mf; self.reads = reads
        self.first = False

def tr_reads(grp, ridx, n, off0, off1):
    return [("ds_read_b64_tr_b16", "a[{b}:{b1}]", grp, ridx, n, off0), ("ds_read_b64_tr_b16", "a[{b2}:{b3}]", grp, ridx, n, off1)]

def acc_of(base, T, u): return base + 16*(T >> 1) + 8*u + 4*(T & 1)
def q4(r, k="v"): return f"{k}[{r}:{r+3}]"

def cost(s):
    if isinstance(s, list): return sum(cost(x) for x in s)
    if callable(s): return getattr(s, "cost", 2)
    if isinstance(s, tuple): s = s[0]
    if s.startswith("ds_write"): return OPT["wcost"]
    return 2 if s.startswith(("v_exp", "v_rcp")) else 1

def gen_k1(BASE):
    a = Em()
    e = a.e
    slot_of.clear(); parked.clear()
    slot_free_at = [-10]*10
    slot_free_pos = [-10]*10
    last_slot = {"O": 8}
    def alloc(n, Hbar, p=0):
        t = units[n][0]
        s = fixed_slot(n)
        if s is not None and slot_free_pos[s] > p: return False
        if t in "KV":
            if units[n][1] >= 4 and uidx[(t, units[n][1] - 4)] not in slot_of: return False
            if any(P1SLOT[m] == s and m not in slot_of for m in range(21)): return False
        if s is None:
            pend = {fixed_slot(m) for m in range(NU) if m not in slot_of}
            fr = [s for s in range(10) if slot_free_at[s] <= Hbar and s not in pend]
            if not fr: return False
            same = [s for s in fr if s // 4 == last_slot[t] // 4]
            s = (same or fr)[0]
        elif slot_free_at[s] > Hbar: return False
        slot_of[n] = s; last_slot[t] = s
        if t == "X": slot_free_pos[s] = 16*consumed[n] + 2
        else: slot_free_at[s] = consumed[n] + 2
        return True

    a.L.append(f".globl {K1}\n.p2align 8\n.type {K1},@function\n{K1}:")
    e("s_cmp_ge_u32 s2, 256")
    e("s_cbranch_scc1 L_k1_done")
    stamp(a, 0)
    if OPT["pace"]: e("s_memrealtime s[100:101]")
    e("s_and_b32 s3, s2, 7")
    e(f"s_lshr_b32 s{sBLK}, s3, 2")
    e(f"s_mul_i32 s{sTmp}, s{sBLK}, 40")
    e(f"s_add_u32 s44, s0, s{sTmp}")
    e("s_addc_u32 s45, s1, 0")
    e("s_load_dwordx2 s[64:65], s[44:45], 0")
    e("s_load_dwordx4 s[72:75], s[44:45], 24")
    e("s_load_dwordx4 s[68:71], s[44:45], 8")
    e("s_load_dwordx4 s[76:79], s[0:1], 80")
    e(f"s_load_dwordx2 s[{sWsP}:{sWsP+1}], s[0:1], 96")
    e("v_lshrrev_b32 v1, 6, v0")
    e("v_and_b32 v2, 63, v0")
    e("s_and_b32 s3, s3, 3")
    e(f"v_readfirstlane_b32 s{sW}, v1")
    e("s_lshl_b32 s3, s3, 2")
    e(f"s_lshr_b32 s{sB}, s2, 3")
    e(f"s_and_b32 s{sH}, s{sB}, 3")
    e(f"s_lshl_b32 s{sTmp}, s{sH}, 1")
    e(f"s_add_u32 s{sH}, s{sH}, s3")
    e(f"s_lshr_b32 s{sB}, s{sB}, 2")
    e(f"s_add_u32 s{sTmp}, s{sTmp}, s{sB}")
    for _ in range(2):
        e(f"s_cmp_ge_u32 s{sTmp}, 7"); e(f"s_cselect_b32 s3, 7, 0"); e(f"s_sub_u32 s{sTmp}, s{sTmp}, s3")
    e(f"s_lshl_b32 s{sXoff}, s{sTmp}, 7")
    e(f"s_lshl_b32 s{sWqoff}, s{sTmp}, 19")
    e("v_and_b32 v3, 15, v2")
    e("v_lshrrev_b32 v4, 4, v2")
    e(f"s_lshl_b32 s{sWoff}, s{sW}, 12")
    e("v_lshrrev_b32 v5, 3, v2")
    e("v_mul_u32_u24 v5, 896, v5")
    e(f"s_mul_i32 s3, s{sW}, {32*896}")
    e("v_and_b32 v6, 7, v2")
    e(f"v_add_u32 v{vWod}, s3, v5")
    e("v_xor_b32 v6, v6, v4")
    e(f"v_lshl_add_u32 v{vXd}, v6, 4, v{vWod}")
    e(f"v_xor_b32 v5, 64, v{vXd}")
    e(f"v_add_u32 v{vXd+1}, 6144, v5")
    e(f"v_add_u32 v{vXd+2}, {2*6144}, v{vXd}")
    e(f"v_add_u32 v{vXd+3}, {3*6144}, v5")
    e(f"s_lshl_b32 s3, s{sW}, 17")
    e(f"s_lshl_b32 s{sTmp}, s{sH}, 9")
    e(f"s_add_u32 s3, s3, s{sTmp}")
    e("v_lshlrev_b32 v6, 1, v4")
    e("v_xor_b32 v6, v6, v3")
    e("v_lshlrev_b32 v6, 4, v6")
    e("v_lshl_add_u32 v6, v4, 13, v6")
    e(f"v_add_u32 v{vWqd}, s3, v6")
    e(f"v_xor_b32 v7, 0x80, v{vWqd}")
    e(f"v_add_u32 v{vWqd+1}, {32768-1024}, v{vWqd}")
    e(f"v_add_u32 v{vWqd+2}, {2*(32768-1024)}, v7")
    e(f"v_add_u32 v{vWqd+3}, {3*(32768-1024)}, v7")
    for s, sz in ((sX, 114688), (sWq, 448*8192), (sK, 262144), (sV, 262144)):
        e(f"s_mov_b32 s{s+2}, {sz}"); e(f"s_mov_b32 s{s+3}, 0x00020000")
    e(f"s_mul_i32 s46, s{sB}, 114688")
    e(f"s_lshl_b32 s47, s{sB}, 4")
    e(f"s_add_u32 s47, s47, s{sH}")
    e(f"s_lshl_b32 s47, s47, 18")
    if OPT["spw"]:
        e("v_lshrrev_b32 v8, 2, v0")
        e("v_lshlrev_b32 v8, 13, v8")
        e("v_and_b32 v9, 3, v0")
        e("v_lshl_add_u32 v8, v9, 6, v8")
        e(f"v_add_u32 v8, s{sTmp}, v8")
    e("s_waitcnt lgkmcnt(0)")
    e(f"s_add_u32 s{sX}, s64, s46"); e(f"s_addc_u32 s{sX+1}, s65, 0")
    e(f"s_mov_b32 s{sWq}, s72"); e(f"s_mov_b32 s{sWq+1}, s73")
    e(f"s_add_u32 s{sK}, s68, s47"); e(f"s_addc_u32 s{sK+1}, s69, 0")
    e(f"s_add_u32 s{sV}, s70, s47"); e(f"s_addc_u32 s{sV+1}, s71, 0")
    if OPT["pfn"]:
        if OPT["pfbit"] >= 0:
            e(f"s_bitcmp1_b32 s2, {OPT['pfbit']}")
            e("s_cbranch_scc0 L_nopf")
        elif OPT["pfbit"] == -2:
            e("s_lshr_b32 s3, s2, 2"); e("s_xor_b32 s3, s3, s2"); e("s_bitcmp1_b32 s3, 3")
            e("s_cbranch_scc0 L_nopf")
        e("v_lshlrev_b32 v5, 7, v2")
        e(f"s_and_b32 s3, s{sW}, 1"); e("s_lshl_b32 s3, s3, 13")
        e("v_add_u32 v5, s3, v5")
        e(f"s_cmp_ge_u32 s{sW}, 2")
        e("s_cbranch_scc1 L_pf_hi")
        for part in range(2):
            for k in range(part, OPT["pfn"], 2):
                t, i = units[21 + k]
                sr = sK if t == "K" else sV
                e(f"s_mov_b32 s{sTmp2}, {i*16384}")
                e(f"buffer_load_dword a{aQ+2+k//2}, v5, s[{sr}:{sr+3}], s{sTmp2} offen {OPT['pf_pol']}")
            if part == 0:
                e("s_branch L_nopf")
                a.lab("L_pf_hi")
        a.lab("L_nopf")
    ip = [0]
    while iss[ip[0]][0] < 0:
        m = iss[ip[0]][1]; ip[0] += 1
        assert alloc(m, 0)
        if m == 1 and OPT["spw"]:
            e(f"buffer_load_dword a{aQ+1}, v8, s[{sWq}:{sWq+3}], s{sWqoff} offen offset:256 {OPT['w_pol']}", "pf")
        for g in dma(m):
            for s in g: e(s)
    if OPT["codepf"]:
        e("s_getpc_b64 s[62:63]")
        a.lab("L_pc")
        e("s_lshr_b32 s3, s2, 3")
        e("s_lshl_b32 s3, s3, 12")
        e("v_lshlrev_b32 v5, 4, v0")
        e("v_add_u32 v5, s3, v5")
        e("v_min_u32 v5, L_k1_end-L_pc-8, v5")
        e(f"global_load_dword a{aQ}, v5, s[62:63]", "pf")
    e("v_bfe_u32 v6, v2, 2, 2")
    e("v_and_b32 v7, 3, v2")
    e("v_bfe_u32 v5, v2, 2, 3")
    e("v_lshl_add_u32 v8, v4, 3, v6")
    e("v_lshlrev_b32 v9, 5, v5")
    e("v_lshl_add_u32 v9, v7, 3, v9")
    e("v_lshl_add_u32 v9, v8, 8, v9")
    e("v_lshl_add_u32 v8, v8, 8, v9")
    e(f"v_add_u32 v{vVr}, 0x10000, v8")
    for w in (2, 0, 1):
        e(f"v_add_u32 v{vWr+8*w}, {w*65536}, v9")
        for T in range(1, 8): e(f"v_xor_b32 v{vWr+8*w+T}, {T<<5}, v{vWr+8*w}")
    e("v_lshrrev_b32 v5, 1, v3"); e("v_xor_b32 v5, v5, v4"); e("v_lshlrev_b32 v5, 4, v5")
    e("v_lshl_add_u32 v5, v3, 7, v5")
    e(f"v_add_u32 v{vXr}, s{sWoff}, v5")
    e(f"v_xor_b32 v{vXr+1}, 64, v{vXr}")
    for w in (2, 1):
        e(f"v_add_u32 v{vXr+2*w}, {w*65536}, v{vXr}"); e(f"v_add_u32 v{vXr+2*w+1}, {w*65536}, v{vXr+1}")
    for s, sz in ((sWo, 229376), (sG, 16*114688), (sFl, 4 << WS), (sDb, 256), (sOut, 128*1792)):
        e(f"s_mov_b32 s{s+2}, {sz}"); e(f"s_mov_b32 s{s+3}, 0x00020000")
    e(f"s_cmp_eq_u32 s{sB}, 7"); e(f"s_cselect_b32 s3, 0, s{sB}")
    e(f"s_lshl_b32 s{sWooff}, s3, 7")
    e(f"s_lshl_b32 s{sStA}, s3, 12")
    e(f"s_mov_b32 s{sNP0}, s{sStA}")
    e(f"s_mul_i32 s3, s{sH}, 229376")
    e(f"s_add_u32 s{sWo}, s74, s3"); e(f"s_addc_u32 s{sWo+1}, s75, 0")
    e(f"s_lshl_b32 s46, s{sBLK}, 3")
    e(f"s_add_u32 s46, s46, s{sB}")
    e(f"s_mul_i32 s3, s46, {16*114688}")
    e(f"s_add_u32 s{sG}, s{sWsP}, s3"); e(f"s_addc_u32 s{sG+1}, s{sWsP+1}, 0")
    e(f"s_lshl_b32 s3, s46, {WS + 2}")
    e(f"s_add_u32 s3, s3, {FLAGS_OFF}")
    e(f"s_add_u32 s{sFl}, s{sWsP}, s3"); e(f"s_addc_u32 s{sFl+1}, s{sWsP+1}, 0")
    e(f"s_mov_b32 s{sDb}, s78"); e(f"s_mov_b32 s{sDb+1}, s79")
    e(f"s_mul_i32 s3, s{sB}, {128*1792}")
    e(f"s_add_u32 s{sOut}, s76, s3"); e(f"s_addc_u32 s{sOut+1}, s77, 0")
    e(f"s_mov_b32 s{sC}, {f32hex(SCALE)}")
    e(f"s_mov_b32 s{sThr}, {f32hex(OPT['thr'])}")
    e(f"s_mov_b32 s{sTlo}, {f32hex(OPT['tlo'])}")
    e(f"s_mov_b32 s{sSpin}, 0x8000")
    if OPT["TA"] >= 0:
        e(f"s_cmp_ge_u32 s{sW}, 2")
        e(f"s_cselect_b32 s{sPf}, s{sV}, s{sK}"); e(f"s_cselect_b32 s{sPf+1}, s{sV+1}, s{sK+1}")
        e(f"s_cselect_b32 s{sPfo}, {(OPT['T0']-1)*16384}, {OPT['T0']*16384}")
        e(f"s_mov_b32 s{sPf+2}, 262144"); e(f"s_mov_b32 s{sPf+3}, 0x00020000")
        e(f"s_and_b32 s3, s{sW}, 1"); e("s_lshl_b32 s3, s3, 13")
        e(f"v_lshl_add_u32 v{vPf}, v2, 7, s3")
    if OPT["diag"]:
        e("s_getreg_b32 s3, hwreg(HW_REG_XCC_ID, 0, 4)")
        e("s_sub_u32 s3, s3, s2"); e("s_and_b32 s3, s3, 7"); e("s_lshl_b32 s3, 1, s3")
        e("v_mov_b32 v5, s3"); e("v_lshlrev_b32 v8, 12, v0"); e("v_add_u32 v8, 128, v8")
        e(f"buffer_atomic_or v5, v8, s[{sDb}:{sDb+3}], 0 offen sc1", "pf")
    if OPT["org"]:
        e("v_not_b32 v5, s100"); e("v_lshlrev_b32 v8, 12, v0")
        e(f"buffer_atomic_umax v5, v8, s[{sDb}:{sDb+3}], 0 offen offset:64 sc1", "pf")
    stamp(a, 1)
    late = []
    l = late.append
    l("v_lshrrev_b32 v5, 5, v2"); l("v_and_b32 v9, 31, v2")
    l("v_lshlrev_b32 v8, 9, v5"); l(f"v_add_u32 v8, s{sWoff}, v8")
    l(f"s_lshl_b32 s3, s{sW}, 2")
    l("v_xor_b32 v1, v9, v5"); l("v_xor_b32 v1, s3, v1")
    l(f"v_lshl_add_u32 v{vKd}, v1, 4, v8")
    l(f"v_xor_b32 v{vKd+1}, 32, v{vKd}")
    l(f"s_and_b32 s3, s{sW}, 1"); l("s_lshl_b32 s3, s3, 3")
    l("v_lshlrev_b32 v5, 1, v5"); l("v_xor_b32 v1, v9, v5"); l("v_xor_b32 v1, s3, v1")
    l(f"v_lshl_add_u32 v{vVd}, v1, 4, v8")
    l(f"v_xor_b32 v{vVd+1}, 64, v{vVd}")
    l(f"s_mul_i32 s3, s{sW}, 28672"); l(f"s_mul_i32 s44, s{sH}, 114688"); l("s_add_u32 s3, s3, s44")
    l("v_lshl_add_u32 v5, v3, 2, v4")
    l(f"v_lshl_add_u32 v{vSt}, v5, 4, s3")
    for T in range(1, 8): l(f"v_xor_b32 v{vVr+T}, {T<<5}, v{vVr}")
    if OPT["CLR"] < 14:
        for r in range(4): l(f"v_mov_b32 v{vE+8+r}, -1")
    if OPT["wow"] >= 0:
        l(f"s_mul_i32 s3, s{sB}, 28672"); l(f"v_lshl_add_u32 v63, v0, 7, s3")
    l(f"s_lshl_b32 s3, s{sW}, {WS}"); l(f"s_lshl_b32 s44, s{sH}, {FS}"); l("s_add_u32 s3, s3, s44")
    l(f"v_lshl_add_u32 v{vFl}, v2, 16, s3")
    l(f"v_lshlrev_b32 v5, {FS}, v3")
    l(f"s_lshr_b32 s3, s{sH}, 2"); l(f"s_lshl_b32 s3, s3, {WS}")
    l(f"v_add_u32 v{vFp}, s3, v5")
    if OPT["t2"]:
        l(f"v_cmp_eq_u32 vcc, s{sH}, v3"); l("s_nop 0"); l(f"v_cndmask_b32 v{vDV}, 0, 7, vcc")
    l(f"v_lshl_add_u32 v5, v4, {WS}, v5")
    l([f"s_or_b32 s3, s{sH}, s{sW}", "s_cmp_eq_u32 s3, 0", "s_cselect_b32 s45, 0, 0x10000"])
    l("v_add_u32 v5, s45, v5")
    l(f"v_mov_b32 v{vL}, 0"); l(f"v_mov_b32 v{vL+1}, 0")
    l((f"buffer_store_dword v{vL}, v5, s[{sFl}:{sFl+3}], 0 offen sc1", "clr"))
    l("s_lshl_b32 s44, s46, 2"); l("s_add_u32 s45, s45, s44")
    l(f"v_lshl_add_u32 v{vDbA}, v2, 12, s45")
    l(f"v_mov_b32 v{vDbV}, s44")
    l(f"v_mov_b32 v{vFv}, 1")
    l("v_lshrrev_b32 v5, 1, v4"); l("v_and_b32 v8, 1, v4"); l("v_lshl_add_u32 v5, v8, 1, v5")
    l("v_xor_b32 v5, v5, v3"); l("v_lshlrev_b32 v5, 4, v5")
    l("v_lshl_add_u32 v8, v6, 3, v7")
    l(f"v_lshl_add_u32 v{vKr}, v8, 9, v5")
    for s in range(1, 4): l(f"v_xor_b32 v{vKr+s}, {s<<6}, v{vKr}")
    l("v_lshrrev_b32 v5, 2, v2"); l("v_lshlrev_b32 v5, 7, v5")
    l("v_bfe_u32 v8, v2, 3, 2"); l("v_lshl_add_u32 v5, v8, 5, v5")
    l("v_lshl_add_u32 v5, v7, 3, v5")
    l(f"v_add_u32 v{vWor}, 0x20000, v5")
    for n in range(1, 4): l(f"v_xor_b32 v{vWor+n}, {n<<5}, v{vWor}")
    l("v_and_b32 v8, 7, v2"); l("v_lshlrev_b32 v9, 1, v4"); l("v_xor_b32 v8, v8, v9")
    l(f"v_lshl_add_u32 v{vWod}, v8, 4, v{vWod}")
    for jj in range(1, 4): l(f"v_add_u32 v{vWod+jj}, {jj*(7168-1024)}, v{vWod}")
    for r in range(8): l(f"v_mov_b32 v{vNM+r}, 0")
    if NP:
        l(f"v_lshl_add_u32 v{vUp}, v2, 4, s{sWoff}"); l(f"v_add_u32 v{vUp+1}, 0x10000, v{vUp}")
    l(f"s_lshr_b32 s44, s{sH}, 2"); l("s_mul_i32 s3, s44, 28672")
    l(f"s_and_b32 s45, s{sH}, 3"); l("s_lshl_b32 s45, s45, 10"); l("s_add_u32 s3, s3, s45")
    l(f"s_lshl_b32 s45, s{sW}, 8"); l("s_add_u32 s3, s3, s45")
    l("v_mul_u32_u24 v5, 114688, v4"); l("v_lshl_add_u32 v5, v3, 4, v5")
    l(f"v_add_u32 v{vRd}, s3, v5")
    l("s_lshl_b32 s3, s44, 5"); l(f"s_and_b32 s45, s{sH}, 1"); l("s_lshl_b32 s45, s45, 4"); l("s_add_u32 s3, s3, s45")
    l(f"s_lshl_b32 s45, s{sW}, 2"); l("s_add_u32 s3, s3, s45"); l("s_mul_i32 s3, s3, 1792")
    l(f"s_mul_i32 s45, s{sBLK}, 896"); l("s_add_u32 s3, s3, s45")
    l(f"s_and_b32 s45, s{sH}, 2"); l("s_lshl_b32 s45, s45, 5"); l("s_add_u32 s3, s3, s45")
    l("v_mul_u32_u24 v5, 1792, v6"); l("v_lshl_add_u32 v5, v7, 3, v5")
    l("v_and_b32 v8, 1, v4"); l("v_lshl_add_u32 v5, v8, 5, v5")
    l("v_lshrrev_b32 v8, 1, v4"); l("v_lshl_add_u32 v5, v8, 24, v5")
    l(f"v_add_u32 v{vRo}, s3, v5")
    l("v_and_b32 v5, 1, v2"); l("v_lshlrev_b32 v5, 4, v5"); l("v_mov_b32 v8, 0x3f80"); l("v_lshlrev_b32 v5, v5, v8")
    l("v_bfe_u32 v8, v2, 1, 2")
    for r in range(4):
        l(f"v_cmp_eq_u32 vcc, {r}, v8"); l("s_nop 0"); l(f"v_cndmask_b32 v{vSel+r}, 0, v5, vcc")

    if OPT["ad"]:
        assert not OPT["late"]
        l("s_lshr_b32 s3, s2, 3"); l(f"s_and_b32 s3, s3, {OPT['adM']}"); l("s_lshl_b32 s3, s3, 16")
        l("s_and_b32 s44, s2, 7"); l("s_lshl_b32 s44, s44, 2"); l("s_add_u32 s3, s3, s44")
        l("v_lshl_add_u32 v1, v0, 7, s3")
        l(f"v_cmp_le_u32 vcc, {OPT['adW']}, v0"); l("v_mov_b32 v3, 0x10000"); l("v_cndmask_b32 v3, 0, v3, vcc")
        l("v_add_u32 v1, v1, v3")
        l("s_lshl_b32 s3, s2, 16"); l("v_lshl_add_u32 v3, v0, 4, s3")
        l("s_mov_b32 s99, s100")
        for r in range(4): l(f"v_mov_b32 v{4+r}, 0")
        for r in range(8): l(f"s_mov_b32 s{64+r}, 0")
        assert not OPT["trace"]
    items = []
    fill = defaultdict(list)
    def add(p, ins):
        fill[p].extend(ins if isinstance(ins, list) else [ins])
    load = defaultdict(float, BASE or {})
    def spread(p0, p1, ins):
        n = p1 - p0 + 1
        if not OPT["wf"]:
            for k, s in enumerate(ins): add(p0 + (k*n)//len(ins), [s])
            return
        if BASE is None: return
        tot = cost(ins)
        lo, hi = 0.0, 100.0
        for _ in range(40):
            L = (lo + hi)/2
            if sum(max(0.0, L - load[p]) for p in range(p0, p1 + 1)) >= tot: hi = L
            else: lo = L
        k, bud = 0, 1e-6
        for p in range(p0, p1 + 1):
            bud += max(0.0, hi - load[p])
            while k < len(ins) and (bud >= cost(ins[k])/2 or p == p1):
                add(p, [ins[k]]); load[p] += cost(ins[k]); bud -= cost(ins[k]); k += 1
    if OPT["late"]: spread(0, 16*6, late)
    else:
        for s in late:
            for x in (s if isinstance(s, list) else [s]): e(x)
    def p1item(H, i, T, kap):
        half, c = i // 7, i % 7
        n = uidx[("W", i)]
        mf = []
        for u in range(2):
            acc = acc_of(vO, 8*half + T, u)
            cin = "0" if (c == 0 and kap == 0) else q4(acc)
            mf.append(f"{MF} {q4(acc)}, a[{{b}}:{{b3}}], {q4(aX + 16*c + 8*kap + 4*u, 'a')}, {cin}")
        rd = tr_reads("W", T, n, kap*8192, kap*8192 + 1024)
        if i < 7 and T == 0:
            rd = [("ds_read_b128", q4(aX + 16*c + 8*kap + 4*u, "a"), "X", kap, uidx[("X", c)], u*2048) for u in range(2)] + rd
        items.append(Item(H, mf, rd))
    done_at = {}
    for H in range(14):
        if OPT["j2"] and H >= 12:
            for T in range(4*(H-12), 4*(H-12)+4):
                for i in (12, 13):
                    for kap in range(2): p1item(H, i, T, kap)
                done_at[4 + T//2] = len(items) - 1
        else:
            for T in range(8):
                for kap in range(2): p1item(H, H, T, kap)
                if H % 7 == 6: done_at[4*(H//7) + T//2] = len(items) - 1
    def qconv(s):
        t = []
        R = [vO + 16*s, vO + 16*s + 8]
        for r in R:
            for j in range(8): t.append(f"v_mul_f32 v{r+j}, s{sC}, v{r+j}")
        for r in R:
            for j in range(4): t.append(f"v_cvt_pk_bf16_f32 v{r+j}, v{r+2*j}, v{r+2*j+1}")
        for r in R:
            t += [f"v_permlane16_swap_b32 v{r}, v{r+2}", f"v_permlane16_swap_b32 v{r+1}, v{r+3}"]
        for u, r in enumerate(R):
            for j in range(4): t.append(f"v_accvgpr_write_b32 a{aQ+8*s+4*u+j}, v{r+j}")
        return t
    t = []
    for s in range(4): t += qconv(s)
    spread(7*16 + 2, 12*16 + 6, t)
    if OPT["j2"]:
        lim = [(done_at[4]+2, done_at[4]+12), (done_at[4]+13, done_at[6]+1), (done_at[6]+2, done_at[6]+11), (done_at[6]+12, 14*16+12)]
    else:
        lim = [(13*16+5+6*k, 13*16+10+6*k) for k in range(4)]
    for k, (p0, p1) in enumerate(lim):
        assert p0 >= done_at[4+k] + 2 and p1 < 14*16 + 2*(4+k) - 1, (k, p0, p1)
        spread(p0, p1, qconv(4 + k))

    def qk(H, n, S):
        for f in range(16):
            s, ee = f >> 1, f & 1
            mf = []
            for u in range(2):
                acc = S + 8*u + 4*ee
                cin = q4(vNM + 4*u) if s == 0 else q4(acc)
                mf.append(f"{MF} {q4(acc)}, a[{{b}}:{{b3}}], {q4(aQ + 8*s + 4*u, 'a')}, {cin}")
            items.append(Item(H, mf, [("ds_read_b128", "a[{b}:{b3}]", "K", s & 3, n, (s >> 2)*256 + ee*2048)]))
    def pv(H, n, P, first):
        for T in range(16):
            mf = []
            for u in range(2):
                acc = acc_of(vO, T, u)
                mf.append(f"{MF} {q4(acc)}, a[{{b}}:{{b3}}], {q4(P + 4*u)}, {'0' if first else q4(acc)}")
            o = (T >> 3)*256
            items.append(Item(H, mf, tr_reads("V", T & 7, n, o, o + 2048)))
    EORD = [0, 1, 2, 3, 8, 9, 10, 11, 4, 5, 6, 7, 12, 13, 14, 15]
    Pb = (vP, vE + 8)
    def softmax(S, par):
        Lo, Ln, P = vL + 2*par, vL + 2*(par ^ 1), Pb[par]
        L = []
        seen = set()
        def addk(i):
            u = EORD[i] >> 3
            src = Ln + u if u in seen else Lo + u
            seen.add(u)
            return f"v_add_f32 v{Ln+u}, v{src}, v{vE+(i&7)}"
        cv = lambda i: f"v_cvt_pk_bf16_f32 v{P+EORD[i]//2}, v{vE+(i&7)}, v{vE+((i+1)&7)}"
        for i, k in enumerate(EORD):
            L.append(f"v_exp_f32 v{vE+(i&7)}, v{S+k}")
            if i >= 1: L.append(addk(i-1))
            if i >= 2 and i % 2 == 0: L.append(cv(i-2))
        L += [addk(15), cv(14)]
        return L
    lblc = [0]
    def check(t):
        lblc[0] += 1
        k = lblc[0]
        Ln = vL + 2*((t & 1) ^ 1)
        nm = "L_fix0" if t == 0 else f"L_fixp{t & 1}"
        def f(a):
            a.e(f"v_max_f32 v{vT0}, v{Ln}, v{Ln+1}")
            if t == 0:
                a.e(f"v_min_f32 v{vT0+1}, v{Ln}, v{Ln+1}")
                a.e(f"v_cmp_lt_f32 vcc, s{sThr}, v{vT0}")
                a.e(f"v_cmp_gt_f32 s[44:45], s{sTlo}, v{vT0+1}")
                a.e("s_or_b64 s[44:45], s[44:45], vcc")
                a.e(f"s_cbranch_scc0 L_nm{k}")
            else:
                a.e(f"v_cmp_lt_f32 vcc, s{sThr}, v{vT0}")
                a.e(f"s_cbranch_vccz L_nm{k}")
            a.e(f"s_call_b64 s[{sRet}:{sRet+1}], {nm}")
            a.lab(f"L_nm{k}")
        f.after2 = (t == 15)
        f.cost = 3
        return f
    H = 14
    qk(H, 21, vSb[0]); H += 1
    qk(H, 22, vSb[1])
    add(16*H + 15, [check(0)])
    spread(16*H + 1, 16*H + 14, softmax(vSb[0], 0))
    H += 1
    for t in range(1, 16):
        n = uidx[("V", t-1)]
        assert consumed[n] == H
        pv(H, n, Pb[(t-1) & 1], t == 1)
        p0 = 16*H
        H += 1
        if t <= 14:
            n = uidx[("K", t+1)]
            assert consumed[n] == H
            qk(H, n, vSb[(t+1) & 1])
            H += 1
        add(16*H - 1, [check(t)])
        spread(p0 + 1, 16*H - 2, softmax(vSb[t & 1], t & 1))
    n = uidx[("V", 15)]
    assert consumed[n] == H and H == 45
    pv(H, n, Pb[1], False)
    L0, L1 = vL, vL + 1
    fin = [f"v_permlane32_swap_b32 v{L0}, v{L1}", f"v_add_f32 v{L0}, v{L0}, v{L1}", f"v_mov_b32 v{L1}, v{L0}",
           f"v_permlane16_swap_b32 v{L0}, v{L1}", f"v_add_f32 v{L0}, v{L0}, v{L1}", f"v_rcp_f32 v{vAl}, v{L0}",
           f"v_mov_b32 v{vAl+1}, v{vAl}", f"v_permlane32_swap_b32 v{vAl}, v{vAl+1}"]
    ON = OPT["onorm"]
    for k, s in enumerate(fin): add((45*16 + k//2) if ON else (47*16 - 12 + k), s)
    p = 16*H + (4 if ON else 3)
    for s in range(8):
        t = []
        R = [vO + 16*s, vO + 16*s + 8]
        if ON:
            for u, r in enumerate(R): t += [f"v_mul_f32 v{r+j}, v{r+j}, v{vAl+u}" for j in range(8)]
        for r in R: t += [f"v_cvt_pk_bf16_f32 v{r+j}, v{r+2*j}, v{r+2*j+1}" for j in range(4)]
        w = 5 if ON else 3
        assert p >= 16*H + 2*s + 3 and p + w - 1 <= 16*H + 16 + 4*s - 1
        spread(p, p + w - 1, t)
        p += w
    H += 1
    def epilogue(acc, so, q, j):
        u = q & 1
        g = [] if ON else [f"v_mul_f32 v{acc+r}, v{acc+r}, v{vAl+u}" for r in range(8)]
        dst = vO + 8*(4*j + q) + 4 if j < OPT["hold"] else acc
        g += [f"v_cvt_pk_bf16_f32 v{dst+jj}, v{acc+2*jj}, v{acc+2*jj+1}" for jj in range(4)]
        offs = f" offset:{q*1024}" if q else ""
        st = (f"buffer_store_dwordx4 {q4(dst)}, v{vSt}, s[{sG}:{sG+3}], s{so} offen{offs} {OPT['st_pol']}", f"st{j}")
        if j < OPT["hold"]: held.append(st)
        else: g.append(st)
        return g
    held = []
    NS = OPT["NS"]
    pubs = [int(x) for x in OPT["pub"].split(",")]
    assert pubs[-1] == 7 - NS
    def publish(cnt):
        def f(a):
            a.wait_vm({f"st{j}" for j in range(cnt)} | {"sen"})
            a.e(f"v_mov_b32 v{vFv}, {cnt}")
            a.e(f"buffer_store_dword v{vFv}, v{vFl}, s[{sFl}:{sFl+3}], 0 offen sc1", "pub")
        return f
    late_pubs = []
    hpos = lambda k: OPT["HP"] + (OPT["HE"] - OPT["HP"])*k/(4*OPT["hold"] - 1)
    for j in range(7):
        so = 8 + j if j else sNP0
        so2 = 9 + j
        A = vAcc + 32*(j & 1)
        for hf in range(2):
            n = uidx[("O", 2*j+hf)]
            assert consumed[n] == H
            order = [(nn, s4) for nn in range(4) for s4 in range(4)]
            if j == 0: order = [(nn, s4) for s4 in range(4) for nn in range(4)]
            for (nn, s4) in order:
                s = 4*hf + s4
                mf = []
                for u in range(2):
                    acc = acc_of(A, nn, u)
                    mf.append(f"{MF} {q4(acc)}, a[{{b}}:{{b3}}], {q4(vO + 16*s + 8*u)}, {'0' if s == 0 else q4(acc)}")
                items.append(Item(H, mf, tr_reads("O", nn, n, s4*4096, s4*4096 + 2048)))
            H += 1
        pend = 16*H
        g0 = epilogue(A, so, 0, j) + epilogue(A + 8, so, 1, j)
        g1 = epilogue(A + 16, so, 2, j) + epilogue(A + 24, so, 3, j)
        if j < 6:
            spread(pend - 7 if j else pend + 1, pend + 8, g0)
            spread(pend + 9, pend + 23, g1)
            add(pend - 8, [[f"s_add_u32 s{so2}, s{so}, 4096", f"s_cmp_eq_u32 s{so2}, 28672", f"s_cselect_b32 s{so2}, 0, s{so2}"]])
        else:
            spread(pend - 7, pend - 1, g0)
            tail_epi = g1
        if j + 1 in pubs:
            pp = pend + 25 + 16*OPT["PUBD"]
            if OPT["hold"]: pp = max(pp, int(16*(hpos(4*min(j + 1, OPT["hold"]) - 1) + OPT["PUBD"])) + 1)
            if pp < 960 - 2: add(pp, [publish(j + 1)])
            else: late_pubs.append(j + 1)
    for k, st in enumerate(held):
        assert 16*hpos(k) > 16*(48 + 2*(k//4)) + (9 if k % 4 < 2 else 24)
        add(int(16*hpos(k)), [st])
    N = len(items)
    assert N == 960
    for p in range(N):
        if p % 16 == 0: items[p].first = True
    p = int(16*OPT["CLR"])
    for j in range(7 - NS, 7):
        add(p, [[f"s_add_u32 s44, s{sNP0}, {j*4096}", "s_cmp_ge_u32 s44, 28672", "s_cselect_b32 s45, 28672, 0", "s_sub_u32 s44, s44, s45"]])
        for q in range(4):
            offs = f" offset:{q*1024}" if q else ""
            add(p + 1 + q*OPT["CLS"], [(f"buffer_store_dwordx4 {q4(vE + 8) if OPT['CLR'] < 14 else q4(aSen, 'a')}, v{vSt}, s[{sG}:{sG+3}], s44 offen{offs} {OPT['st_pol']}", "sen")])
        p += 4*OPT["CLS"]
    assert p < 53*16
    if NS == 0: pass
    elif OPT["CLR"] >= 14: spread(int(16*OPT["CLR"]) - 5, int(16*OPT["CLR"]) - 1, [f"v_accvgpr_write_b32 a{aSen+r}, -1" for r in range(4)])
    else: assert p < 15*16 and not OPT["late"]
    if OPT["wow"] >= 0:
        add(int(16*OPT["wow"]), [(f"buffer_load_dword a145, v63, s[{sWo}:{sWo+3}], 0 offen", "pf")])
    if OPT["TA"] >= 0:
        nt = 17 - OPT["T0"]
        for k in range(nt):
            pos = int(round(16*(OPT["TA"] + (OPT["TB"] - OPT["TA"])*k/(nt - 1))))
            add(pos, [[f"s_max_i32 s{sTmp2}, s{sPfo}, 0", f"s_min_i32 s{sTmp2}, s{sTmp2}, {15*16384}",
                       (f"buffer_load_dword a144, v{vPf}, s[{sPf}:{sPf+3}], s{sTmp2} offen {OPT['t_pol']}", "pf"),
                       f"s_add_u32 s{sPfo}, s{sPfo}, 16384"]])
    def lead(a):
        a.wait_vm({"clr"})
        a.e(f"buffer_store_dword v{vFv}, v{vDbA}, s[{sDb}:{sDb+3}], 0 offen sc1", "sig")
    add(16*13 + 5, [lead])
    add(16*39 + 5, [(f"buffer_load_dword v{vF}, v{vDbV}, s[{sDb}:{sDb+3}], 0 offen sc1", "chk")])
    def chk(a):
        a.wait_vm({"chk"})
        a.e(f"v_cmp_eq_u32 vcc, 0, v{vF}")
        a.e("s_cbranch_vccz L_chk_ok")
        a.e(f"s_call_b64 s[{sRet}:{sRet+1}], L_chk_wait")
        a.lab("L_chk_ok")
    add(16*47 + 3, [chk])
    vD = 192
    def dreg(j, k):
        return q4(16*j + 4*k, "a") if j < 7 - NS else q4(vO + 16*(j - (7 - NS)) + 4*k)
    tsetup = [f"s_mov_b32 s8, s{sNP0}"]
    tsetup_b = [f"s_lshr_b32 s{16+j}, s{8+j}, 5" for j in range(7)]
    tsetup += [f"v_add_u32 v{vKr+k}, {k*4*114688}, v{vRd}" for k in range(1, 4)]
    def ld1(j, k):
        return (f"buffer_load_dwordx4 {dreg(j, k)}, v{vKr+k if k else vRd}, s[{sG}:{sG+3}], s{8+j} offen sc1", f"r{j}")
    vFA, vFB, vNx = 62, 63, 59
    def poll(r, tag): return (f"buffer_load_dword v{r}, v{vFp}, s[{sFl}:{sFl+3}], 0 offen sc1", tag)
    if OPT["t2"]:
        assert NS == 0
        spread(866, 900, tsetup)
        nA, nB = OPT["nA"], OPT["nB"]
        if nA:
            add(OPT["spA"], [poll(vFA, "pA")])
            wa = lambda a: a.wait_vm({"pA"})
            wa.cost = 1
            add(OPT["spL"] - 1, [wa])
            L = [ld1(j, k) for j in range(nA) for k in range(4)]
            for i, x in enumerate(L): add(OPT["spL"] + (i*(OPT["spE"] - OPT["spL"]))//len(L), [x])
        if nB > nA: add(OPT["spB"], [poll(vFB, "pB")])
        add(OPT["spC"], [poll(vNx, "pC")])
    elif OPT["early"]:
        add(960 - 40, [(f"buffer_load_dword v{vF}, v{vFp}, s[{sFl}:{sFl+3}], 0 offen sc1", "poll")])
    if OPT["stamps"]:
        add(14*16 - 1, [lambda a: stamp(a, 3)])
        add(46*16 - 1, [lambda a: stamp(a, 4)])

    if OPT["org"]:
        add(int(16*OPT["orgH"]), [(f"buffer_load_dword v{vF}, off, s[{sDb}:{sDb+3}], 0 offset:64 sc1", "org")])
        def org(a):
            a.wait_vm({"org"})
            a.e(f"v_readfirstlane_b32 s74, v{vF}")
            a.e("s_not_b32 s74, s74")
            a.e("s_sub_u32 s75, s100, s74")
            a.e("s_cmp_lt_u32 s75, 300")
            a.e("s_cselect_b32 s100, s74, s100")
        org.cost = 5
        add(16*14 - OPT["D"] + 1, [org])
        assert min(PACE) >= 15
    if OPT["ad"]:
        h0 = min(PACE)
        assert max(pos for (pos, m) in iss if units[m][0] == "X") < 16*3
        add(16*4, [[f"s_add_u32 s{sX}, s{sWsP}, {FLAGS_OFF + (1 << 20)}", f"s_addc_u32 s{sX+1}, s{sWsP+1}, 0", f"s_mov_b32 s{sX+2}, 4096"]])
        add(16*4 + 1, [(f"buffer_store_dwordx4 v[4:7], v3, s[{sX}:{sX+3}], 0 offen sc1", "pf")])
        for k, Hh in enumerate(range(h0, max(PACE), OPT["adS"])):
            pe = 16*Hh - OPT["D"]
            assert (k + 1 + OPT["adW"])*128 <= 4096
            if Hh < OPT["adE"]:
                add(pe + 1, [[f"s_sub_u32 s77, s72, {PACE[Hh] + int(round(100*OPT['adm']))}", "v_mov_b32 v2, s77",
                              (f"buffer_store_dword v2, v1, s[{sX}:{sX+3}], 0 offen offset:{(k+1)*128} sc1", "pf")]])
            if k: add(pe + OPT["adR"], [f"s_load_dwordx8 s[64:71], s[{sX}:{sX+1}], {k*128}"])
        for Hh in range(h0 + OPT["adS"] + OPT["adD"], max(PACE) + 1, OPT["adD"]):
            for q in range(3):
                add(16*Hh - OPT["D"] - 6 + q, [[f"s_max_u32 s78, s{64+3*q}, s{78 if q else 65}", f"s_max_u32 s78, s78, s{66+2*q+(q>0)-(q>1)*0}"] if q == 0 else
                                                [f"s_max_u32 s78, s78, s{65+2*q}", f"s_max_u32 s78, s78, s{66+2*q}"]])
            add(16*Hh - OPT["D"] - 3, [["s_max_u32 s78, s78, s71", "s_sub_u32 s75, s78, s99", f"s_cmp_lt_u32 s75, {OPT['adL']}", "s_cselect_b32 s100, s78, s100"]])
    for Hh in PACE:
        add(16*Hh - OPT["D"] - OPT["pcs"], ["s_memrealtime s[72:73]"])
    D, WEV = OPT["D"], OPT["wev"]
    window = {"K": 0, "V": 1, "O": 2}
    uses = defaultdict(list)
    for i, it in enumerate(items):
        for r in it.reads: uses[r[2]].append((i, r[4]))
    soft_dma = []
    soft_up = []
    soft_adr = []
    log = []
    cur = []
    def put(s): cur.append(s)
    def set_window(g, w):
        if window[g] == w: return
        base, cnt = GROUPS[g]
        d = (w - window[g]) * 65536
        window[g] = w
        soft_adr.extend((g, k, f"v_add_u32 v{base+k}, {d & 0xffffffff}, v{base+k}") for k in range(cnt))
    def flush_adr(g, k):
        rest = []
        for (gg, kk, s) in soft_adr:
            if gg == g and kk == k: put(s)
            else: rest.append((gg, kk, s))
        soft_adr[:] = rest
    upos = {g: 0 for g in GROUPS}
    rp = [0]
    hbar = [-1]
    issued = set(m for (pos, m) in iss[:ip[0]])
    pend = list(iss[ip[0]:])
    upq = []
    unparked = set()
    areas = []
    if NP:
        areas.append([144, 0, 10000])
        if OPT["pkq"]: areas += [[aQ + 32, 0, lim[0][0] - 2], [aQ + 48, 0, lim[2][0] - 2]]
        areas += [[aX + 16*c, 16*(min(7 + c, 13) + 1) + 1 if c < 5 else 14*16 + 1, 10000] for c in range(7)]
        if NS and 14 <= OPT["CLR"] < 44: areas = [x for x in areas if x[0] != aSen]
        areas = areas[:NP]
    area_of = {}
    cls = lambda m: "P" if units[m][0] in "XW" else units[m][0]
    def next_unit(p, force=None):
        seen = set()
        for k, (pos, m) in enumerate(pend):
            c = cls(m)
            if c in seen: continue
            seen.add(c)
            if force is not None:
                if c != cls(force): continue
            elif pos > p: break
            ok = alloc(m, hbar[0], p)
            if not ok and c in "KV":
                fr = [x for x in areas if x[1] <= p and x[2] > p + 64 and (x[2] == 10000 or units[m][1] < 4)]
                if fr:
                    x = min(fr, key=lambda x: x[2])
                    parked[m] = x[0]; area_of[m] = x; x[1] = 10000; upq.append(m); ok = True
            assert ok or force is None, ("no slot", m, p)
            if not ok: continue
            pend.pop(k)
            issued.add(m)
            log.append((p, "iss", units[m], slot_of.get(m, f"a{parked.get(m)}")))
            soft_dma.extend(dma(m))
            return True
        return False
    def next_unpark(p, force=None):
        for m in upq:
            if force is not None and m != force: continue
            due = min(16*(needed[m] - OPT["UPD"]) - D, area_of[m][2] - 10)
            if force is None and (p < due or soft_dma_has(m)): continue
            if not alloc(m, hbar[0], p):
                assert force is None and p < area_of[m][2] - 5, ("no slot (unpark)", m, p)
                continue
            upq.remove(m)
            s = slot_of[m]
            log.append((p, "unp", units[m], s))
            for jj in range(4):
                pk = parked[m] + 4*jj
                ins = []
                if jj == 0: ins.append(lambda a, m=m: a.wait_vm({f"u{m}"}))
                ins.append((f"ds_write_b128 v{vUp + s//4}, a[{pk}:{pk+3}] offset:{(s%4)*16384 + jj*1024}", None, f"w{m}"))
                soft_up.append(ins)
            area_of[m][1] = p + 24
            unparked.add(m)
            return True
        return False
    def soft_dma_has(m):
        return any(isinstance(s, tuple) and s[1] == f"u{m}" for g in soft_dma for s in g)
    def issue(i, p):
        it = items[i]
        if it.first:
            Hh = it.H
            for n in HS[Hh]:
                while n not in issued: next_unit(p, n)
                if soft_dma_has(n):
                    for g in soft_dma: put(g)
                    soft_dma.clear()
                if n in parked:
                    if n not in unparked: next_unpark(p, n)
                    for g in soft_up: put(g)
                    soft_up.clear()
            def ev(a, Hh=Hh):
                a.c(f"event H={Hh} needs {[units[n] for n in HS[Hh]]}")
                if OPT["trace"]:
                    if Hh > 0:
                        a.e(f"v_writelane_b32 v{vTr}, s{sTr+4*((Hh-1)&1)}, {Hh-1}")
                        a.e(f"v_writelane_b32 v{vTr+1}, s{sTr+2+4*((Hh-1)&1)}, {Hh-1}")
                    a.e(f"{'s_memtime' if OPT['trace'] == 2 else 's_memrealtime'} s[{sTr+4*(Hh&1)}:{sTr+1+4*(Hh&1)}]")
                if Hh in PACE:
                    a.e("s_sub_u32 s74, s72, s100")
                    a.e(f"s_cmp_ge_u32 s74, {PACE[Hh]}")
                    a.e(f"s_cbranch_scc1 L_pc{Hh}")
                    a.e(f"s_mov_b32 s75, {PACE[Hh]}")
                    a.e(f"s_call_b64 s[{sRet}:{sRet+1}], L_pace")
                    a.lab(f"L_pc{Hh}")
                a.wait_vm({f"u{n}" for n in HS[Hh] if n not in parked})
                a.wait_lds({f"w{n}" for n in HS[Hh]})
                a.e("s_barrier")
                if OPT["trace"]:
                    a.e(f"s_memrealtime s[{sTr+2+4*(Hh&1)}:{sTr+3+4*(Hh&1)}]")
                if Hh == 0: stamp(a, 2)
            ev.cost = 2 + (4 if OPT["trace"] else 0) + (3 if Hh in PACE else 0)
            put(ev)
            hbar[0] = Hh
        b = aFr(i)
        for (op, dst, g, ridx, n, inoff) in it.reads:
            slot = slot_of[n]
            if g in "WX":
                put((f"{op} {dst.format(b=b, b1=b+1, b2=b+2, b3=b+3)}, v{GROUPS[g][0]+GROUPS[g][1]*(slot//4)+ridx} offset:{(slot % 4)*16384 + inoff}", None, i))
                continue
            set_window(g, slot // 4)
            flush_adr(g, ridx)
            imm = (slot % 4)*16384 + inoff
            put((f"{op} {dst.format(b=b, b1=b+1, b2=b+2, b3=b+3)}, v{GROUPS[g][0]+ridx} offset:{imm}", None, i))
            upos[g] += 1
            if upos[g] < len(uses[g]):
                ni, nn = uses[g][upos[g]]
                if nn != n and nn in slot_of and ni > i + 2:
                    set_window(g, slot_of[nn]//4)
    def adv(limit, p):
        while rp[0] < N and rp[0] <= limit:
            issue(rp[0], p); rp[0] += 1
    def emit(s):
        if isinstance(s, list):
            for x in s: e(x)
        else: e(s)
    loads_out = {}
    est = [0]
    adv(D - 1, -1)
    for s in cur: emit(s)
    for p in range(N):
        cur.clear()
        if p % WEV == 0: a.wait_lds(set(range(p, p + WEV)))
        b = aFr(p)
        adv(p + D, p)
        SR = list(cur); cur.clear()
        SF = list(fill.get(p, []))
        if not soft_up: next_unpark(p)
        if not soft_dma: next_unit(p)
        sp = OPT["dsp1"] if p < 14*16 else OPT["dsp"]
        if soft_dma and (p - OPT["dph"]) % sp == 0: put(soft_dma.pop(0))
        if soft_up and (p % OPT["usp"] == 0 or p < 15*16): put(soft_up.pop(0))
        SM = list(cur)
        if soft_adr: SR.append(soft_adr.pop(0)[2])
        wt = 1 if (p + 1) % WEV == 0 else 0
        tot = cost(SR) + cost(SF) + cost(SM) + wt
        loads_out[p] = tot
        evi = [k for k, x in enumerate(SR) if callable(x)]
        a2 = [k for k, x in enumerate(SF) if getattr(x, "after2", False)]
        best = None
        for kr in range(len(SR) + 1):
            for kf in range((a2[0] if a2 else len(SF)) + 1):
                for km in range(len(SM) + 1):
                    if km and evi and kr <= evi[-1]: continue
                    c1 = cost(SR[:kr]) + cost(SF[:kf]) + cost(SM[:km])
                    key = (max(2, c1) + max(2, tot - c1), abs(2*c1 - tot), -kr)
                    if best is None or key < best[0]: best = (key, kr, kf, km)
        _, kr, kf, km = best
        est[0] += best[0][0]*4 + 16
        if p % 16 == 15: est.append(est[0]); est[0] = 0
        e(items[p].mf[0].format(b=b, b3=b+3))
        for s in SR[:kr] + SF[:kf] + SM[:km]: emit(s)
        e(items[p].mf[1].format(b=b, b3=b+3))
        for s in SR[kr:] + SF[kf:] + SM[km:]: emit(s)
    assert not soft_dma and not soft_up and not pend and not upq
    if BASE is None: return loads_out
    sys.stderr.write(f"est cycles: {' '.join(map(str, est[1:]))} total {sum(est)}\n")
    for s in tail_epi: e(s)
    if OPT["verbose"]:
        for (p, w, u, s) in log:
            sys.stderr.write(f"  {p/16:6.2f} {w} {u} slot {s} (need {needed[uidx[u]]})\n")
    stamp(a, 5)
    def loads(j):
        for k in range(4): e(ld1(j, k))
    def red(j):
        d = vD + 4*j
        for k in range(4):
            e(f"{MF} {q4(d)}, {q4(vSel)}, {dreg(j, k)}, {'0' if k == 0 else q4(d)}")
    def fin(j):
        d = vD + 4*j
        e(f"v_cvt_pk_bf16_f32 v{d}, v{d}, v{d+1}")
        e(f"v_cvt_pk_bf16_f32 v{d+1}, v{d+2}, v{d+3}")
        e(f"buffer_store_dwordx2 v[{d}:{d+1}], v{vRo}, s[{sOut}:{sOut+3}], s{16+j} offen {OPT['out_pol']}")
    if OPT["t2"]:
        if nB > nA:
            a.wait_vm({"pB"})
            for j in range(nA, nB): loads(j)
        nb = None
        for c in late_pubs:
            publish(c)(a)
            if nb is not None: nb += 1
            if c == OPT["pD"]: e(poll(vNx - 1, "pD")); nb = 0
        for x in tsetup_b: e(x)
        a.wait_vm({"pC"})
        e("s_barrier")
        stamp(a, 6)
        e(f"v_max_u32 v{vF}, v{vNx}, v{vDV}")
        for (r, lo, hi) in ((vFA, 0, nA), (vFB, nA, nB)):
            if hi == lo: continue
            e(f"v_cmp_gt_u32 vcc, {hi}, v{r}")
            e(f"s_cbranch_vccz L_sv{hi}")
            e(f"v_cmp_gt_u32 vcc, {hi}, v{vF}")
            e(f"s_cbranch_vccz L_sr{hi}")
            e(f"s_mov_b32 s45, {hi}")
            e(f"s_call_b64 s[{sRet}:{sRet+1}], L_poll")
            a.lab(f"L_sr{hi}")
            for j in range(lo, hi): loads(j)
            a.lab(f"L_sv{hi}")
        ths = [int(x) for x in OPT["thr2"].split(",")]
        prev, done, cur = nB, 0, vNx - 1
        for hi in ths:
            e(f"v_cmp_gt_u32 vcc, {hi}, v{vF}")
            e(f"s_cbranch_vccz L_go{hi}")
            if nb is not None:
                e(f"s_waitcnt vmcnt({nb})")
                e(f"v_max3_u32 v{vF}, v{cur}, v{vDV}, v{vF}")
                e(f"v_cmp_gt_u32 vcc, {hi}, v{vF}")
                e(f"s_cbranch_vccz L_go{hi}")
            e(f"s_mov_b32 s45, {hi}")
            e(f"s_call_b64 s[{sRet}:{sRet+1}], L_poll")
            a.lab(f"L_go{hi}")
            if hi in ths[-3:]: stamp(a, 1 + ths[-3:].index(hi), True)
            cur ^= 1
            if hi < 7: e(poll(cur, "pn"))
            for j in range(prev, hi): loads(j)
            nb = 4*(hi - prev)
            if OPT["prog"] and (hi == 7 or OPT["prog"] > 1) and prev > done:
                e(f"s_waitcnt vmcnt({nb + (1 if hi < 7 else 0)})")
                for j in range(done, prev): red(j)
                for j in range(done, prev): fin(j)
                nb += prev - done
                last_fin = prev - done
                done = prev
            else: last_fin = 0
            prev = hi
        e(f"s_waitcnt vmcnt({last_fin})")
        stamp(a, 4, True)
        for j in range(done, 7): red(j)
        for j in range(done, 7): fin(j)
    else:
      for x in tsetup + tsetup_b: emit(x)
      if OPT["early"]: a.wait_vm({"poll"})
      else: e(f"v_mov_b32 v{vF}, 0")
      for c in late_pubs: publish(c)(a)
      stamp(a, 6)
      prev = 0
      for hi in pubs:
          e(f"v_cmp_gt_u32 vcc, {hi}, v{vF}")
          e(f"s_cbranch_vccz L_go{hi}")
          e(f"s_mov_b32 s45, {hi}")
          e(f"s_call_b64 s[{sRet}:{sRet+1}], L_poll")
          a.lab(f"L_go{hi}")
          if hi in pubs[-3:]: stamp(a, 1 + pubs[-3:].index(hi), True)
          for j in range(prev, hi): loads(j)
          prev = hi
      for j in range(7 - NS, 7): loads(j)
      e(f"s_waitcnt vmcnt({4*NS})")
      stamp(a, 4, True)
      for j in range(7 - NS): red(j)
      for j in range(7 - NS): fin(j)
      e(f"s_waitcnt vmcnt({7 - NS})")
      for j in range(7 - NS, 7):
          a.lab(f"L_sen{j}")
          r = vO + 16*(j - (7 - NS))
          e(f"v_max3_u32 v{vT0}, v{r}, v{r+1}, v{r+2}")
          e(f"v_max3_u32 v{vT0+1}, v{r+3}, v{r+4}, v{r+5}")
          for k in range(6, 16, 4):
              e(f"v_max3_u32 v{vT0}, v{vT0}, v{r+k}, v{r+k+1}")
              if k + 2 < 16: e(f"v_max3_u32 v{vT0+1}, v{vT0+1}, v{r+k+2}, v{r+k+3}")
          e(f"v_max_u32 v{vT0}, v{vT0}, v{vT0+1}")
          e(f"v_cmp_eq_u32 vcc, -1, v{vT0}")
          e(f"s_cbranch_vccz L_sok{j}")
          e(f"s_sub_u32 s{sSpin}, s{sSpin}, 1")
          e(f"s_cbranch_scc1 L_sto{j}")
          for jj in range(j, 7): loads(jj)
          e("s_waitcnt vmcnt(0)")
          e(f"s_branch L_sen{j}")
          a.lab(f"L_sto{j}")
          e(f"s_mov_b32 s{sSpin}, 0")
          a.lab(f"L_sok{j}")
          red(j); fin(j)
    if OPT["diag"]:
        e("v_mov_b32 v8, 128")
        e(f"buffer_load_dword v5, v8, s[{sDb}:{sDb+3}], 0 offen sc1")
        e("s_waitcnt vmcnt(0)")
        e("v_readfirstlane_b32 s3, v5")
        e("s_bcnt1_i32_b32 s3, s3")
        e("s_cmp_le_u32 s3, 1")
        e("s_cbranch_scc1 L_diag_ok")
        e("s_mov_b32 s3, 30")
        a.lab("L_diag_l")
        e("s_sleep 64")
        e("s_sub_u32 s3, s3, 1")
        e("s_cmp_gt_u32 s3, 0")
        e("s_cbranch_scc1 L_diag_l")
        a.lab("L_diag_ok")
    if OPT["stamps"]:
        e("s_waitcnt vmcnt(0)")
        stamp(a, 7)
        e("s_waitcnt lgkmcnt(0)")
        if OPT["dly"] >= 0:
            if OPT["dwg"] >= 0:
                e(f"s_cmp_lg_u32 s2, {OPT['dwg']}"); e("s_cbranch_scc1 L_dly_done")
            e(f"s_sub_u32 s44, s{sStamp+2*OPT['dly']}, s{sStamp}")
            e(f"s_mul_i32 s44, s44, {OPT['dk']}")
            e("s_min_u32 s44, s44, 100000")
            e("s_mov_b32 s45, 200000")
            a.lab("L_dly")
            e("s_memrealtime s[46:47]")
            e("s_sub_u32 s45, s45, 1")
            e("s_cbranch_scc1 L_dly_done")
            e("s_waitcnt lgkmcnt(0)")
            e(f"s_sub_u32 s46, s46, s{sStamp+14}")
            e("s_cmp_lt_u32 s46, s44")
            e("s_cbranch_scc1 L_dly")
            a.lab("L_dly_done")
        e(f"s_add_u32 s32, s{sWsP}, 0x4000000"); e(f"s_addc_u32 s33, s{sWsP+1}, 0"); e("s_mov_b32 s34, 0x100000"); e("s_mov_b32 s35, 0x00020000")
        e("s_lshl_b32 s3, s2, 6")
        e("v_mov_b32 v1, s3")
        for k in range(8):
            e(f"v_mov_b32 v{2+k}, s{sStamp+2*k}")
        if OPT["trace"]:
            e(f"v_writelane_b32 v{vTr}, s{sTr+4}, 59")
            e(f"v_writelane_b32 v{vTr+1}, s{sTr+6}, 59")
            e("s_lshl_b32 s3, s2, 11")
            e("s_add_u32 s3, s3, 0x10000")
            e("v_lshlrev_b32 v10, 3, v0")
            e("v_add_u32 v10, s3, v10")
            e(f"buffer_store_dwordx2 v[{vTr}:{vTr+1}], v10, s[32:35], 0 offen")
        e("v_cmp_eq_u32 vcc, 0, v0")
        e("s_and_saveexec_b64 s[36:37], vcc")
        e("s_cbranch_execz L_k1_done")
        e("buffer_store_dwordx4 v[2:5], v1, s[32:35], 0 offen")
        e("buffer_store_dwordx4 v[6:9], v1, s[32:35], 0 offen offset:16")
        e("s_waitcnt vmcnt(0)")
    a.lab("L_k1_done")
    e("s_endpgm")
    a.lab("L_poll")
    e(f"buffer_load_dword v{vF}, v{vFp}, s[{sFl}:{sFl+3}], 0 offen sc1")
    e(f"s_sub_u32 s{sSpin}, s{sSpin}, 1")
    e("s_cbranch_scc1 L_poll_to")
    e("s_waitcnt vmcnt(0)")
    if OPT["t2"]: e(f"v_max_u32 v{vF}, v{vF}, v{vDV}")
    e(f"v_cmp_gt_u32 vcc, s45, v{vF}")
    e("s_cbranch_vccz L_poll_ret")
    if OPT["sleep"]: e(f"s_sleep {OPT['sleep']}")
    e("s_branch L_poll")
    a.lab("L_poll_to")
    e(f"s_mov_b32 s{sSpin}, 0")
    e("s_waitcnt vmcnt(0)")
    a.lab("L_poll_ret")
    e(f"s_setpc_b64 s[{sRet}:{sRet+1}]")
    if PACE:
        a.lab("L_pace")
        e("s_mov_b32 s76, 400")
        a.lab("L_pace_l")
        e("s_memrealtime s[72:73]")
        e("s_sub_u32 s76, s76, 1")
        e("s_cbranch_scc1 L_pace_r")
        e("s_sleep 1" if OPT["ad"] else "s_waitcnt lgkmcnt(0)")
        e("s_sub_u32 s74, s72, s100")
        e("s_cmp_lt_u32 s74, s75")
        e("s_cbranch_scc1 L_pace_l")
        a.lab("L_pace_r")
        e(f"s_setpc_b64 s[{sRet}:{sRet+1}]")
    a.lab("L_chk_wait")
    e(f"buffer_load_dword v{vF}, v{vDbV}, s[{sDb}:{sDb+3}], 0 offen sc1")
    e(f"s_sub_u32 s{sSpin}, s{sSpin}, 1")
    e("s_cbranch_scc1 L_poll_to")
    e("s_waitcnt vmcnt(0)")
    e(f"v_cmp_eq_u32 vcc, 0, v{vF}")
    e("s_cbranch_vccz L_poll_ret")
    e("s_sleep 4")
    e("s_branch L_chk_wait")
    for (nm, par, first) in (("L_fix0", 0, True), ("L_fixp0", 0, False), ("L_fixp1", 1, False)):
        S, S2 = vSb[par], vSb[par ^ 1]
        Lo = vL + 2*par
        a.lab(nm)
        e("s_nop 7")
        for u in range(2):
            T, T2, r = vT0 + u, vT0 + 2, S + 8*u
            e(f"v_max3_f32 v{T}, v{r}, v{r+1}, v{r+2}")
            e(f"v_max3_f32 v{T}, v{T}, v{r+3}, v{r+4}")
            e(f"v_max3_f32 v{T}, v{T}, v{r+5}, v{r+6}")
            e(f"v_max_f32 v{T}, v{T}, v{r+7}")
            e(f"v_mov_b32 v{T2}, v{T}")
            e(f"v_permlane32_swap_b32 v{T}, v{T2}")
            e(f"v_max_f32 v{T}, v{T}, v{T2}")
            e(f"v_mov_b32 v{T2}, v{T}")
            e(f"v_permlane16_swap_b32 v{T}, v{T2}")
            e(f"v_max_f32 v{T}, v{T}, v{T2}")
            if not first:
                e(f"v_max_f32 v{T}, 0, v{T}")
                e(f"v_exp_f32 v{vAl+u}, -v{T}")
            for k in range(8):
                e(f"v_sub_f32 v{r+k}, v{r+k}, v{T}")
                e(f"v_sub_f32 v{S2+8*u+k}, v{S2+8*u+k}, v{T}")
            for k in range(4): e(f"v_sub_f32 v{vNM+4*u+k}, v{vNM+4*u+k}, v{T}")
            if not first: e(f"v_mul_f32 v{Lo+u}, v{Lo+u}, v{vAl+u}")
        for s in softmax(S, par): e(s)
        if not first:
            for r in range(128):
                e(f"v_mul_f32 v{vO+r}, v{vO+r}, v{vAl + ((r >> 3) & 1)}")
        e("s_nop 3")
        e(f"s_setpc_b64 s[{sRet}:{sRet+1}]")
    a.lab("L_k1_end")
    lines = "\n".join(a.L).split("\n")
    lines, npad = pad_hazards(lines)
    sys.stderr.write(f"k1: {len(lines)} lines, {npad} hazard pads\n")
    return "\n".join(lines) + "\n"

def desc(name, vgpr, acc, sgpr=102):
    return f""".p2align 6
.amdhsa_kernel {name}
  .amdhsa_next_free_vgpr {vgpr}
  .amdhsa_next_free_sgpr {sgpr}
  .amdhsa_accum_offset {acc}
  .amdhsa_group_segment_fixed_size 0
  .amdhsa_kernarg_size 104
  .amdhsa_user_sgpr_count 2
  .amdhsa_user_sgpr_kernarg_segment_ptr 1
  .amdhsa_system_sgpr_workgroup_id_x 1
.end_amdhsa_kernel
"""

def main():
    ref = open(f"cdna_kernels/{NAME}.s.ref").read().splitlines()
    hdr = [l for l in ref if l.startswith(";") and "@launch" not in l and "Override launch" not in l and "grid=ceil" not in l]
    out = "\n".join(hdr) + "\n"
    if OPT["lst"]:
        out += f"; @launch kernel={K1} grid=(256,1,1) block=(256,1,1) lds=163840\n"
    else:
        out += f"; @launch grid=(256,1,1) block=(256,1,1) lds=163840\n"
    out += '.amdgcn_target "amdgcn-amd-amdhsa--gfx950"\n.text\n'
    out += gen_k1(gen_k1(None))
    out += '.section .rodata,"a"\n'
    out += desc(K1, 512, 256)
    open(sys.argv[1], "w").write(out)

main()
```

```python
import sys, math, struct
from collections import defaultdict
sys.path.insert(0, "gen")
from asmlib import pad_hazards

NAME = "concat_heads__mha_block_cached__gqa_block_cached__near_ridge"
K1 = NAME + "_kernel"

OPT = dict(stamps=0, trace=0, st_pol="sc1", kv_pol="nt", w_pol="", x_pol="", out_pol="", D=6, wev=2, codepf=1,
           L1=4, PR=2.0, KA=8.5, KB=40.0, WO0=34.0, LWO=6, spw=1,
           pub="2,4", PUBD=4, NS=3, CLR=41.0, early=1, nodma=0, thr=1048576.0, tlo=2.0**-30, verbose=0, sleep=1, lst=1,
           X1=13, pfn=0, pfbit=3, pf_pol="", NP=0, PK=3.0, UP=2, j2=1, NB=8, wf=1, onorm=1, n0=4,
           p1slots="8,9,1,2,4,3,5,7,6,0,8,1,9,4,2,5,3,6,7,8,9", late=0, CLS=4, wow=-1.0, OS=1.0, OI=-1, o_pol="", o0_pol="", MF=0, MFE=1, dsp=1, dsp1=1, dph=0, diag=0, TA=-1.0, TB=38.0, T0=0, t_pol="", TS=7, KS="", park=0, pkq=1, UPD=1.0, wcost=2, usp=1, dly=-1, dk=10, dwg=-1, tst=0, t2=0, spA=905, spL=946, nA=2, spB=944, nB=3, spC=957, thr2="4,5,6,7", prog=1, pD=6, FS=2, spE=959, hold=0, HP=54.0, HE=58.0, pace="", pcs=8, org=0, orgH=6.5, ad=0, adm=0.3, adS=2, adD=1, adM=31, adE=42, adL=800, adW=4, adR=2, pace2="", clsh=2, clm=1, mp=4, rb=1, rh=2, ld_pol="sc1", fl_pol="sc1", fp_pol="sc1", iod=0, iodf=-1, prp=45, npr=3, prw=1, fl2=1, prH="", prs=256, prk=-1, prst=0, prn=0, prH0=18, prLW=4, prNW=4, prstg=12, prsm=1, pro=-9, lk="", lkm=0)
for a in sys.argv[2:]:
    k, v = a.split("=")
    OPT[k] = type(OPT[k])(v) if not isinstance(OPT[k], str) else v.replace("+", " ")

sW, sH, sB, sBLK = 4, 5, 6, 7
sK, sV, sWq, sWo, sX, sG, sFl, sDb, sOut = 8, 12, 16, 20, 24, 28, 32, 36, 40
sWoff = 48
sXoff, sWqoff, sWooff = 49, 50, 51
sStA, sStB = 52, 53
sC, sThr = 54, 55
sNP0, sSpin = 56, 57
sRet = 58
sTmp, sTmp2 = 60, 61
sTr = 64
sWsP = 80
sStamp = 82
sTlo = 98
sPf, sPfo = 72, 76
vPf = 62

vKr, vVr, vWor = 10, 14, 22
vKd, vVd, vWod = 26, 28, 30
vSt = 34
vL = 35
vT0 = 39
vAl = 43
vFl, vFp, vDbA, vDbV, vF, vFv = 45, 46, 47, 48, 49, 50
vDV = 51
vSel = 52
vRd, vRo = 56, 57
vUp = 58
vTr = 60
vSb = (64, 80)
vE, vNM, vP = 96, 112, 120
vWqd, vXd = 96, 100
vWr, vXr = 64, 88
vAcc = 64
vO = 128
aX, aPk, aQ = 0, 112, 160
NB = OPT["NB"]
def aFr(i):
    k = i % NB
    return 224 + 4*k if k < 8 else 112 + 4*(k - 8)
aSen = 0
FLAGS_OFF = 32 << 20
IOD = OPT["iod"]
PBASE = 128 << 20
HOLE = 52*1024
sSel = 99
FSH = 14 if IOD else 0
FS = OPT["FS"]; WS = max(8, FS + 4)
MF = "v_mfma_f32_16x16x32_bf16"

SCALE = math.log2(math.e) / 16.0
def f32hex(x):
    return "0x%08x" % struct.unpack("<I", struct.pack("<f", x))[0]

class Em:
    def __init__(self):
        self.L = []
        self.vmq = []
        self.ldsq = []
    def e(self, s, vm=None, lds=None):
        if isinstance(s, tuple):
            return self.e(*s)
        if callable(s):
            return s(self)
        self.L.append("    " + s)
        if vm is not None: self.vmq.append(vm)
        if lds is not None: self.ldsq.append(lds)
    def lab(self, s): self.L.append(s + ":")
    def c(self, s): self.L.append("    ; " + s)
    def wait_vm(self, tags):
        idx = [i for i, t in enumerate(self.vmq) if t in tags]
        if not idx: return
        n = len(self.vmq) - 1 - max(idx)
        self.e(f"s_waitcnt vmcnt({min(n, 63)})")
        self.vmq = self.vmq[max(idx) + 1:] if n <= 63 else self.vmq[-63:]
    def wait_lds(self, tags):
        idx = [i for i, t in enumerate(self.ldsq) if t in tags]
        if not idx: return
        n = len(self.ldsq) - 1 - max(idx)
        self.e(f"s_waitcnt lgkmcnt({min(n, 15)})")
        self.ldsq = self.ldsq[max(idx) + 1:] if n <= 15 else self.ldsq[-15:]

def stamp(a, idx, tail=False):
    if OPT["tst"] and idx in (1, 2, 3, 4) and not tail: return
    if tail and not OPT["tst"]: return
    if OPT["stamps"]:
        a.e(f"s_memrealtime s[{sStamp+2*idx}:{sStamp+2*idx+1}]")

units = []
for c in range(7): units += [("X", c), ("W", c)]
units += [("W", c) for c in range(7, 14)]
kv = [("K", 0), ("K", 1)]
for t in range(0, 14):
    kv += [("V", t), ("K", t + 2)]
kv += [("V", 14), ("V", 15)]
units += kv
units += [("O", k) for k in range(14)]
NU = len(units)
uidx = {u: n for n, u in enumerate(units)}
HS = [[2*c, 2*c+1] for c in range(7)] + [[uidx[("W", c)]] for c in range(7, 14)]
if OPT["j2"]:
    HS[12] = [uidx[("W", 12)], uidx[("W", 13)]]; HS[13] = []
for n in range(21, NU): HS.append([n])
needed, consumed = {}, {}
for H, us in enumerate(HS):
    for n in us: consumed[n] = H; needed[n] = H
if OPT["j2"]: consumed[uidx[("W", 12)]] = consumed[uidx[("W", 13)]] = 13
parked = {}
NP = OPT["park"]
P1SLOT = [int(x) for x in OPT["p1slots"].split(",")]
assert len(P1SLOT) == 21
def fixed_slot(n):
    t, i = units[n]
    if t in "XW": return P1SLOT[n]
    if t == "K": return i & 3
    if t == "V": return 4 + (i & 3)
    if t == "O" and i < 2: return 8 + i
    return None
iss = []
for n in range(21):
    iss.append((-1 if n < OPT["n0"] else max(0, int(round(16*(n - OPT["L1"])/OPT["PR"]))), n))
stream = list(range(21, 53))
if OPT["OI"] >= 0:
    stream.insert(OPT["OI"], 53); stream.insert(OPT["OI"] + 2, 54)
for i, n in enumerate(stream):
    if OPT["KS"]:
        kn = [tuple(float(y) for y in x.split(":")) for x in OPT["KS"].split(",")]
        for (i0, h0), (i1, h1) in zip(kn, kn[1:]):
            if i0 <= i <= i1: h = h0 + (h1 - h0)*(i - i0)/(i1 - i0)
    else: h = OPT["KA"] + (OPT["KB"] - OPT["KA"])*i/(len(stream) - 1)
    iss.append((int(round(16*h)), n))
for k in range(2 if OPT["OI"] >= 0 else 0, 14):
    pos = max(16*(46 + k - OPT["LWO"]), 16*(OPT["WO0"] + OPT["OS"]*k))
    iss.append((int(pos), 53 + k))
iss.sort(key=lambda x: x[0])

PACE = {}
if OPT["pace"]:
    kn = [tuple(float(y) for y in x.split(":")) for x in OPT["pace"].split(",")]
    for (h0, t0), (h1, t1) in zip(kn, kn[1:]):
        for h in range(int(h0), int(h1) + 1): PACE[h] = int(round(100*(t0 + (t1 - t0)*(h - h0)/(h1 - h0))))
    assert OPT["TA"] < 0 and min(PACE) >= 3
PACE2 = {}
if OPT["pace2"]:
    kn = [tuple(float(y) for y in x.split(":")) for x in OPT["pace2"].split(",")]
    for (h0, t0), (h1, t1) in zip(kn, kn[1:]):
        for h in range(int(h0), int(h1) + 1): PACE2[h] = int(round(100*(t0 + (t1 - t0)*(h - h0)/(h1 - h0))))
    assert set(PACE2) == set(PACE) and not OPT["ad"]
LK = {}
if OPT["lk"]:
    kn = [tuple(float(y) for y in x.split(":")) for x in OPT["lk"].split(",")]
    for (h0, t0), (h1, t1) in zip(kn, kn[1:]):
        for h in range(int(h0), int(h1) + 1): LK[h] = int(round(4*(t0 + (t1 - t0)*(h - h0)/(h1 - h0))))
slot_of = {}
def dma(n):
    t, i = units[n]
    g = []
    pk = parked.get(n)
    for jj in range(4):
        ins = []
        if jj == 0:
            if pk is None: ins.append(f"s_add_u32 m0, s{sWoff}, {slot_of[n]*16384}")
            if t in "KV": ins.append(f"s_mov_b32 s{sTmp}, {i*16384}")
            elif t == "O" and (i & 1): ins.append(f"s_add_u32 s{sTmp}, s{sWooff}, {128*896}")
            elif t == "W" and i == 7: ins += [f"s_add_u32 s{sWq}, s{sWq}, 256", f"s_addc_u32 s{sWq+1}, s{sWq+1}, 0"]
        off = f" offset:{jj*1024}" if jj else ""
        dst = "" if pk is None else f"a[{pk+4*jj}:{pk+4*jj+3}], "
        lds = " lds" if pk is None else ""
        if t == "K": ld = f"buffer_load_dwordx4 {dst}v{vKd+(jj&1)}, s[{sK}:{sK+3}], s{sTmp} offen{off} {OPT['kv_pol']}{lds}"
        elif t == "V": ld = f"buffer_load_dwordx4 {dst}v{vVd+(jj&1)}, s[{sV}:{sV+3}], s{sTmp} offen{off} {OPT['kv_pol']}{lds}"
        elif t == "W": ld = f"buffer_load_dwordx4 v{vWqd+jj}, s[{sWq}:{sWq+3}], s{sWqoff} offen{off} {OPT['w_pol']} lds"
        elif t == "X": ld = f"buffer_load_dwordx4 v{vXd+jj}, s[{sX}:{sX+3}], s{sXoff} offen{off} {OPT['x_pol']} lds"
        elif t == "O":
            so = sTmp if (i & 1) else sWooff
            ld = f"buffer_load_dwordx4 v{vWod+jj}, s[{sWo}:{sWo+3}], s{so} offen{off} {OPT['o0_pol'] if i < 2 else OPT['o_pol']} lds"
        if OPT["MF"] and t in "KV" and jj % OPT["MFE"] == 0:
            def lim(a):
                k = OPT["MF"] - OPT["MFE"]
                if len(a.vmq) > k:
                    a.e(f"s_waitcnt vmcnt({k})")
                    a.vmq = a.vmq[len(a.vmq) - k:]
            lim.cost = 1
            ins.append(lim)
        if not OPT["nodma"]: ins.append((ld, f"u{n}"))
        if jj == 3:
            if t == "W" and i < 13: ins += [f"s_add_u32 s{sWqoff}, s{sWqoff}, {64*8192}", f"s_cmp_eq_u32 s{sWqoff}, {448*8192}", f"s_cselect_b32 s{sWqoff}, 0, s{sWqoff}"]
            if t == "X" and i < 6: ins += [f"s_add_u32 s{sXoff}, s{sXoff}, 128", f"s_cmp_eq_u32 s{sXoff}, 896", f"s_cselect_b32 s{sXoff}, 0, s{sXoff}"]
            if t == "O" and (i & 1) and i < 13: ins += [f"s_add_u32 s{sWooff}, s{sWooff}, 128", f"s_cmp_eq_u32 s{sWooff}, 896", f"s_cselect_b32 s{sWooff}, 0, s{sWooff}"]
        g.append(ins)
    return g

GROUPS = {"K": (vKr, 4), "V": (vVr, 8), "O": (vWor, 4), "W": (vWr, 8), "X": (vXr, 2)}

class Item:
    def __init__(self, H, mf, reads):
        self.H = H; self.mf = mf; self.reads = reads
        self.first = False

def tr_reads(grp, ridx, n, off0, off1):
    return [("ds_read_b64_tr_b16", "a[{b}:{b1}]", grp, ridx, n, off0), ("ds_read_b64_tr_b16", "a[{b2}:{b3}]", grp, ridx, n, off1)]

def acc_of(base, T, u): return base + 16*(T >> 1) + 8*u + 4*(T & 1)
def q4(r, k="v"): return f"{k}[{r}:{r+3}]"

def cost(s):
    if isinstance(s, list): return sum(cost(x) for x in s)
    if callable(s): return getattr(s, "cost", 2)
    if isinstance(s, tuple): s = s[0]
    if s.startswith("ds_write"): return OPT["wcost"]
    return 2 if s.startswith(("v_exp", "v_rcp")) else 1

def gen_k1(BASE):
    a = Em()
    e = a.e
    slot_of.clear(); parked.clear()
    slot_free_at = [-10]*10
    slot_free_pos = [-10]*10
    last_slot = {"O": 8}
    def alloc(n, Hbar, p=0):
        t = units[n][0]
        s = fixed_slot(n)
        if s is not None and slot_free_pos[s] > p: return False
        if t in "KV":
            if units[n][1] >= 4 and uidx[(t, units[n][1] - 4)] not in slot_of: return False
            if any(P1SLOT[m] == s and m not in slot_of for m in range(21)): return False
        if s is None:
            pend = {fixed_slot(m) for m in range(NU) if m not in slot_of}
            fr = [s for s in range(10) if slot_free_at[s] <= Hbar and s not in pend]
            if not fr: return False
            same = [s for s in fr if s // 4 == last_slot[t] // 4]
            s = (same or fr)[0]
        elif slot_free_at[s] > Hbar: return False
        slot_of[n] = s; last_slot[t] = s
        if t == "X": slot_free_pos[s] = 16*consumed[n] + 2
        else: slot_free_at[s] = consumed[n] + 2
        return True

    a.L.append(f".globl {K1}\n.p2align 8\n.type {K1},@function\n{K1}:")
    e("s_cmp_ge_u32 s2, 256")
    e("s_cbranch_scc1 L_k1_done")
    stamp(a, 0)
    if OPT["pace"]: e("s_memrealtime s[100:101]")
    e("s_and_b32 s3, s2, 7")
    e(f"s_lshr_b32 s{sBLK}, s3, 2")
    e(f"s_mul_i32 s{sTmp}, s{sBLK}, 40")
    e(f"s_add_u32 s44, s0, s{sTmp}")
    e("s_addc_u32 s45, s1, 0")
    e("s_load_dwordx2 s[64:65], s[44:45], 0")
    e("s_load_dwordx4 s[72:75], s[44:45], 24")
    e("s_load_dwordx4 s[68:71], s[44:45], 8")
    e("s_load_dwordx4 s[76:79], s[0:1], 80")
    e(f"s_load_dwordx2 s[{sWsP}:{sWsP+1}], s[0:1], 96")
    e("v_lshrrev_b32 v1, 6, v0")
    e("v_and_b32 v2, 63, v0")
    e(f"v_readfirstlane_b32 s{sW}, v1")
    if OPT["mp"] == 4:
        e("s_and_b32 s3, s3, 3")
        e("s_lshl_b32 s3, s3, 2")
        e(f"s_lshr_b32 s{sB}, s2, 3")
        e(f"s_and_b32 s{sH}, s{sB}, 3")
        e(f"s_lshl_b32 s{sTmp}, s{sH}, 1")
        e(f"s_add_u32 s{sH}, s{sH}, s3")
        e(f"s_lshr_b32 s{sB}, s{sB}, 2")
        e(f"s_add_u32 s{sTmp}, s{sTmp}, s{sB}")
        for _ in range(2):
            e(f"s_cmp_ge_u32 s{sTmp}, 7"); e(f"s_cselect_b32 s3, 7, 0"); e(f"s_sub_u32 s{sTmp}, s{sTmp}, s3")
    else:
        if OPT["mp"] == 8:
            e(f"s_bfe_u32 s{sB}, s2, 0x10001"); e(f"s_lshl_b32 s{sB}, s{sB}, 2"); e("s_lshr_b32 s3, s2, 6"); e(f"s_add_u32 s{sB}, s{sB}, s3")
            e(f"s_and_b32 s{sH}, s2, 1"); e(f"s_lshl_b32 s{sH}, s{sH}, 3"); e("s_bfe_u32 s3, s2, 0x30003"); e(f"s_add_u32 s{sH}, s{sH}, s3")
        else:
            e(f"s_and_b32 s{sB}, s2, 3"); e(f"s_lshl_b32 s{sB}, s{sB}, 1"); e("s_lshr_b32 s3, s2, 7"); e(f"s_add_u32 s{sB}, s{sB}, s3")
            e(f"s_bfe_u32 s{sH}, s2, 0x40003")
        assert 7*OPT["rb"] + 15*OPT["rh"] < 85
        e(f"s_mul_i32 s{sTmp}, s{sB}, {OPT['rb']}"); e(f"s_mul_i32 s3, s{sH}, {OPT['rh']}"); e(f"s_add_u32 s{sTmp}, s{sTmp}, s3")
        e(f"s_mul_i32 s3, s{sTmp}, 37"); e("s_lshr_b32 s3, s3, 8"); e("s_mul_i32 s3, s3, 7"); e(f"s_sub_u32 s{sTmp}, s{sTmp}, s3")
    e(f"s_lshl_b32 s{sXoff}, s{sTmp}, 7")
    e(f"s_lshl_b32 s{sWqoff}, s{sTmp}, 19")
    e("v_and_b32 v3, 15, v2")
    e("v_lshrrev_b32 v4, 4, v2")
    e(f"s_lshl_b32 s{sWoff}, s{sW}, 12")
    e("v_lshrrev_b32 v5, 3, v2")
    e("v_mul_u32_u24 v5, 896, v5")
    e(f"s_mul_i32 s3, s{sW}, {32*896}")
    e("v_and_b32 v6, 7, v2")
    e(f"v_add_u32 v{vWod}, s3, v5")
    e("v_xor_b32 v6, v6, v4")
    e(f"v_lshl_add_u32 v{vXd}, v6, 4, v{vWod}")
    e(f"v_xor_b32 v5, 64, v{vXd}")
    e(f"v_add_u32 v{vXd+1}, 6144, v5")
    e(f"v_add_u32 v{vXd+2}, {2*6144}, v{vXd}")
    e(f"v_add_u32 v{vXd+3}, {3*6144}, v5")
    e(f"s_lshl_b32 s3, s{sW}, 17")
    e(f"s_lshl_b32 s{sTmp}, s{sH}, 9")
    e(f"s_add_u32 s3, s3, s{sTmp}")
    e("v_lshlrev_b32 v6, 1, v4")
    e("v_xor_b32 v6, v6, v3")
    e("v_lshlrev_b32 v6, 4, v6")
    e("v_lshl_add_u32 v6, v4, 13, v6")
    e(f"v_add_u32 v{vWqd}, s3, v6")
    e(f"v_xor_b32 v7, 0x80, v{vWqd}")
    e(f"v_add_u32 v{vWqd+1}, {32768-1024}, v{vWqd}")
    e(f"v_add_u32 v{vWqd+2}, {2*(32768-1024)}, v7")
    e(f"v_add_u32 v{vWqd+3}, {3*(32768-1024)}, v7")
    for s, sz in ((sX, 114688), (sWq, 448*8192), (sK, 262144), (sV, 262144)):
        e(f"s_mov_b32 s{s+2}, {sz}"); e(f"s_mov_b32 s{s+3}, 0x00020000")
    e(f"s_mul_i32 s46, s{sB}, 114688")
    e(f"s_lshl_b32 s47, s{sB}, 4")
    e(f"s_add_u32 s47, s47, s{sH}")
    e(f"s_lshl_b32 s47, s47, 18")
    if OPT["spw"]:
        e("v_lshrrev_b32 v8, 2, v0")
        e("v_lshlrev_b32 v8, 13, v8")
        e("v_and_b32 v9, 3, v0")
        e("v_lshl_add_u32 v8, v9, 6, v8")
        e(f"v_add_u32 v8, s{sTmp}, v8")
    e("s_waitcnt lgkmcnt(0)")
    e(f"s_add_u32 s{sX}, s64, s46"); e(f"s_addc_u32 s{sX+1}, s65, 0")
    e(f"s_mov_b32 s{sWq}, s72"); e(f"s_mov_b32 s{sWq+1}, s73")
    e(f"s_add_u32 s{sK}, s68, s47"); e(f"s_addc_u32 s{sK+1}, s69, 0")
    e(f"s_add_u32 s{sV}, s70, s47"); e(f"s_addc_u32 s{sV+1}, s71, 0")
    if OPT["pfn"]:
        if OPT["pfbit"] >= 0:
            e(f"s_bitcmp1_b32 s2, {OPT['pfbit']}")
            e("s_cbranch_scc0 L_nopf")
        elif OPT["pfbit"] == -2:
            e("s_lshr_b32 s3, s2, 2"); e("s_xor_b32 s3, s3, s2"); e("s_bitcmp1_b32 s3, 3")
            e("s_cbranch_scc0 L_nopf")
        e("v_lshlrev_b32 v5, 7, v2")
        e(f"s_and_b32 s3, s{sW}, 1"); e("s_lshl_b32 s3, s3, 13")
        e("v_add_u32 v5, s3, v5")
        e(f"s_cmp_ge_u32 s{sW}, 2")
        e("s_cbranch_scc1 L_pf_hi")
        for part in range(2):
            for k in range(part, OPT["pfn"], 2):
                t, i = units[21 + k]
                sr = sK if t == "K" else sV
                e(f"s_mov_b32 s{sTmp2}, {i*16384}")
                e(f"buffer_load_dword a{aQ+2+k//2}, v5, s[{sr}:{sr+3}], s{sTmp2} offen {OPT['pf_pol']}")
            if part == 0:
                e("s_branch L_nopf")
                a.lab("L_pf_hi")
        a.lab("L_nopf")
    ip = [0]
    while iss[ip[0]][0] < 0:
        m = iss[ip[0]][1]; ip[0] += 1
        assert alloc(m, 0)
        if m == 1 and OPT["spw"]:
            e(f"buffer_load_dword a{aQ+1}, v8, s[{sWq}:{sWq+3}], s{sWqoff} offen offset:256 {OPT['w_pol']}", "pf")
        for g in dma(m):
            for s in g: e(s)
    if OPT["codepf"]:
        e("s_getpc_b64 s[62:63]")
        a.lab("L_pc")
        e("s_lshr_b32 s3, s2, 3")
        e("s_lshl_b32 s3, s3, 12")
        e("v_lshlrev_b32 v5, 4, v0")
        e("v_add_u32 v5, s3, v5")
        e("v_min_u32 v5, L_k1_end-L_pc-8, v5")
        e(f"global_load_dword a{aQ}, v5, s[62:63]", "pf")
    if IOD:
        e(f"s_lshl_b32 s3, s{sBLK}, 3"); e(f"s_add_u32 s3, s3, s{sB}"); e("s_lshl_b32 s3, s3, 22"); e(f"s_add_u32 s3, s3, {PBASE}")
        e(f"s_add_u32 s{sG}, s{sWsP}, s3"); e(f"s_addc_u32 s{sG+1}, s{sWsP+1}, 0")
        e(f"s_lshl_b32 s3, s{sW}, 4"); e(f"s_add_u32 s3, s3, s{sH}"); e("s_lshl_b32 s47, s3, 16")
        e(f"s_add_u32 s64, s{sG}, s47"); e(f"s_addc_u32 s65, s{sG+1}, 0")
        if OPT["prw"] and OPT["iodf"] < 0: e(f"s_load_dword s{sSel}, s[64:65], {HOLE + 1024}")
        if OPT["prw"] > 1 and OPT["iodf"] < 0: e(f"s_load_dword s66, s[64:65], {HOLE + 1024 + 8192}")
    e("v_bfe_u32 v6, v2, 2, 2")
    e("v_and_b32 v7, 3, v2")
    e("v_bfe_u32 v5, v2, 2, 3")
    e("v_lshl_add_u32 v8, v4, 3, v6")
    e("v_lshlrev_b32 v9, 5, v5")
    e("v_lshl_add_u32 v9, v7, 3, v9")
    e("v_lshl_add_u32 v9, v8, 8, v9")
    e("v_lshl_add_u32 v8, v8, 8, v9")
    e(f"v_add_u32 v{vVr}, 0x10000, v8")
    for w in (2, 0, 1):
        e(f"v_add_u32 v{vWr+8*w}, {w*65536}, v9")
        for T in range(1, 8): e(f"v_xor_b32 v{vWr+8*w+T}, {T<<5}, v{vWr+8*w}")
    e("v_lshrrev_b32 v5, 1, v3"); e("v_xor_b32 v5, v5, v4"); e("v_lshlrev_b32 v5, 4, v5")
    e("v_lshl_add_u32 v5, v3, 7, v5")
    e(f"v_add_u32 v{vXr}, s{sWoff}, v5")
    e(f"v_xor_b32 v{vXr+1}, 64, v{vXr}")
    for w in (2, 1):
        e(f"v_add_u32 v{vXr+2*w}, {w*65536}, v{vXr}"); e(f"v_add_u32 v{vXr+2*w+1}, {w*65536}, v{vXr+1}")
    for s, sz in ((sWo, 229376), (sG, (4 << 20) if IOD else 16*114688), (sFl, (4 << 20) if IOD else (4 << WS)), (sDb, 256), (sOut, 128*1792)):
        e(f"s_mov_b32 s{s+2}, {sz}"); e(f"s_mov_b32 s{s+3}, 0x00020000")
    e(f"s_cmp_eq_u32 s{sB}, 7"); e(f"s_cselect_b32 s3, 0, s{sB}")
    e(f"s_lshl_b32 s{sWooff}, s3, 7")
    if IOD:
        e(f"s_lshl_b32 s{sStA}, s3, 12"); e("s_lshr_b32 s3, s3, 1"); e("s_lshl_b32 s3, s3, 13"); e(f"s_add_u32 s{sNP0}, s{sStA}, s3")
    else:
        e(f"s_lshl_b32 s{sStA}, s3, 12")
        e(f"s_mov_b32 s{sNP0}, s{sStA}")
    e(f"s_mul_i32 s3, s{sH}, 229376")
    e(f"s_add_u32 s{sWo}, s74, s3"); e(f"s_addc_u32 s{sWo+1}, s75, 0")
    e(f"s_lshl_b32 s46, s{sBLK}, 3")
    e(f"s_add_u32 s46, s46, s{sB}")
    if IOD:
        e(f"s_mov_b32 s{sFl}, s{sG}"); e(f"s_mov_b32 s{sFl+1}, s{sG+1}")
    else:
        e(f"s_mul_i32 s3, s46, {16*114688}")
        e(f"s_add_u32 s{sG}, s{sWsP}, s3"); e(f"s_addc_u32 s{sG+1}, s{sWsP+1}, 0")
        e(f"s_lshl_b32 s3, s46, {WS + 2}")
        e(f"s_add_u32 s3, s3, {FLAGS_OFF}")
        e(f"s_add_u32 s{sFl}, s{sWsP}, s3"); e(f"s_addc_u32 s{sFl+1}, s{sWsP+1}, 0")
    e(f"s_mov_b32 s{sDb}, s78"); e(f"s_mov_b32 s{sDb+1}, s79")
    e(f"s_mul_i32 s3, s{sB}, {128*1792}")
    e(f"s_add_u32 s{sOut}, s76, s3"); e(f"s_addc_u32 s{sOut+1}, s77, 0")
    e(f"s_mov_b32 s{sC}, {f32hex(SCALE)}")
    e(f"s_mov_b32 s{sThr}, {f32hex(OPT['thr'])}")
    e(f"s_mov_b32 s{sTlo}, {f32hex(OPT['tlo'])}")
    e(f"s_mov_b32 s{sSpin}, 0x8000")
    if OPT["TA"] >= 0:
        e(f"s_cmp_ge_u32 s{sW}, 2")
        e(f"s_cselect_b32 s{sPf}, s{sV}, s{sK}"); e(f"s_cselect_b32 s{sPf+1}, s{sV+1}, s{sK+1}")
        e(f"s_cselect_b32 s{sPfo}, {(OPT['T0']-1)*16384}, {OPT['T0']*16384}")
        e(f"s_mov_b32 s{sPf+2}, 262144"); e(f"s_mov_b32 s{sPf+3}, 0x00020000")
        e(f"s_and_b32 s3, s{sW}, 1"); e("s_lshl_b32 s3, s3, 13")
        e(f"v_lshl_add_u32 v{vPf}, v2, 7, s3")
    if OPT["diag"]:
        e("s_getreg_b32 s3, hwreg(HW_REG_XCC_ID, 0, 4)")
        e("s_sub_u32 s3, s3, s2"); e("s_and_b32 s3, s3, 7"); e("s_lshl_b32 s3, 1, s3")
        e("v_mov_b32 v5, s3"); e("v_lshlrev_b32 v8, 12, v0"); e("v_add_u32 v8, 128, v8")
        e(f"buffer_atomic_or v5, v8, s[{sDb}:{sDb+3}], 0 offen sc1", "pf")
    if OPT["org"]:
        e("v_not_b32 v5, s100"); e("v_lshlrev_b32 v8, 12, v0")
        e(f"buffer_atomic_umax v5, v8, s[{sDb}:{sDb+3}], 0 offen offset:64 sc1", "pf")
    stamp(a, 1)
    late = []
    l = late.append
    l("v_lshrrev_b32 v5, 5, v2"); l("v_and_b32 v9, 31, v2")
    l("v_lshlrev_b32 v8, 9, v5"); l(f"v_add_u32 v8, s{sWoff}, v8")
    l(f"s_lshl_b32 s3, s{sW}, 2")
    l("v_xor_b32 v1, v9, v5"); l("v_xor_b32 v1, s3, v1")
    l(f"v_lshl_add_u32 v{vKd}, v1, 4, v8")
    l(f"v_xor_b32 v{vKd+1}, 32, v{vKd}")
    l(f"s_and_b32 s3, s{sW}, 1"); l("s_lshl_b32 s3, s3, 3")
    l("v_lshlrev_b32 v5, 1, v5"); l("v_xor_b32 v1, v9, v5"); l("v_xor_b32 v1, s3, v1")
    l(f"v_lshl_add_u32 v{vVd}, v1, 4, v8")
    l(f"v_xor_b32 v{vVd+1}, 64, v{vVd}")
    if not IOD: l(f"s_mul_i32 s3, s{sW}, 28672"); l(f"s_mul_i32 s44, s{sH}, 114688"); l("s_add_u32 s3, s3, s44")
    l("v_lshl_add_u32 v5, v3, 2, v4")
    l(f"v_lshl_add_u32 v{vSt}, v5, 4, {'s47' if IOD else 's3'}")
    for T in range(1, 8): l(f"v_xor_b32 v{vVr+T}, {T<<5}, v{vVr}")
    if OPT["CLR"] < 14:
        for r in range(4): l(f"v_mov_b32 v{vE+8+r}, -1")
    if OPT["wow"] >= 0:
        l(f"s_mul_i32 s3, s{sB}, 28672"); l(f"v_lshl_add_u32 v63, v0, 7, s3")
    if IOD:
        assert OPT["t2"] and OPT["NS"] == 0 and not OPT["hold"] and not OPT["late"] and not OPT["ad"]
        l(f"s_lshl_b32 s3, s{sW}, 20"); l(f"s_lshl2_add_u32 s3, s{sH}, s3"); l(f"s_add_u32 s3, s3, {HOLE}")
        l("v_and_b32 v5, 1, v2"); l("v_lshrrev_b32 v8, 1, v2")
        if not OPT["fl2"]: l("v_mov_b32 v8, v2")
        l("v_lshlrev_b32 v8, 22, v8"); l("v_lshl_add_u32 v5, v5, 13, v8")
        l(f"v_add_u32 v{vFl}, s3, v5")
        l("v_lshl_add_u32 v5, v7, 2, v4")
        l(f"s_lshr_b32 s3, s{sH}, 2"); l(f"s_lshl_b32 s3, s3, 20"); l(f"s_add_u32 s3, s3, {HOLE}")
        l(f"v_lshl_add_u32 v{vFp}, v5, 2, s3")
        l(f"v_mov_b32 v8, {7 << FSH}")
        l(f"v_cmp_eq_u32 vcc, s{sH}, v5"); l("s_nop 0"); l(f"v_cndmask_b32 v{vDV}, 0, v8, vcc")
        l("v_lshlrev_b32 v5, 2, v3"); l(f"v_lshl_add_u32 v5, v4, 20, v5")
        l([f"s_or_b32 s3, s{sH}, s{sW}", "s_cmp_eq_u32 s3, 0", "s_cselect_b32 s45, 0, 0x400000"])
        l(f"s_add_u32 s3, s45, {HOLE}"); l(f"s_add_u32 s44, s45, {HOLE + 8192}")
        l(f"v_mov_b32 v{vL}, 0"); l(f"v_mov_b32 v{vL+1}, 0")
        l("v_add_u32 v8, s44, v5"); l("v_add_u32 v5, s3, v5")
        l((f"buffer_store_dword v{vL}, v5, s[{sFl}:{sFl+3}], 0 offen {OPT['fl_pol']}", "clr"))
        l((f"buffer_store_dword v{vL}, v8, s[{sFl}:{sFl+3}], 0 offen {OPT['fl_pol']}", "clr"))
    else:
        l(f"s_lshl_b32 s3, s{sW}, {WS}"); l(f"s_lshl_b32 s44, s{sH}, {FS}"); l("s_add_u32 s3, s3, s44")
        l(f"v_lshl_add_u32 v{vFl}, v2, 16, s3")
        l(f"v_lshlrev_b32 v5, {FS}, v3")
        l(f"s_lshr_b32 s3, s{sH}, 2"); l(f"s_lshl_b32 s3, s3, {WS}")
        l(f"v_add_u32 v{vFp}, s3, v5")
        if OPT["t2"]:
            l(f"v_cmp_eq_u32 vcc, s{sH}, v3"); l("s_nop 0"); l(f"v_cndmask_b32 v{vDV}, 0, 7, vcc")
        l(f"v_lshl_add_u32 v5, v4, {WS}, v5")
        l([f"s_or_b32 s3, s{sH}, s{sW}", "s_cmp_eq_u32 s3, 0", "s_cselect_b32 s45, 0, 0x10000"])
        l("v_add_u32 v5, s45, v5")
        l(f"v_mov_b32 v{vL}, 0"); l(f"v_mov_b32 v{vL+1}, 0")
        l((f"buffer_store_dword v{vL}, v5, s[{sFl}:{sFl+3}], 0 offen {OPT['fl_pol']}", "clr"))
    l("s_lshl_b32 s44, s46, 2"); l("s_add_u32 s45, s45, s44")
    l(f"v_lshl_add_u32 v{vDbA}, v2, 12, s45")
    l(f"v_mov_b32 v{vDbV}, s44")
    l(f"v_mov_b32 v{vFv}, 1")
    l("v_lshrrev_b32 v5, 1, v4"); l("v_and_b32 v8, 1, v4"); l("v_lshl_add_u32 v5, v8, 1, v5")
    l("v_xor_b32 v5, v5, v3"); l("v_lshlrev_b32 v5, 4, v5")
    l("v_lshl_add_u32 v8, v6, 3, v7")
    l(f"v_lshl_add_u32 v{vKr}, v8, 9, v5")
    for s in range(1, 4): l(f"v_xor_b32 v{vKr+s}, {s<<6}, v{vKr}")
    l("v_lshrrev_b32 v5, 2, v2"); l("v_lshlrev_b32 v5, 7, v5")
    l("v_bfe_u32 v8, v2, 3, 2"); l("v_lshl_add_u32 v5, v8, 5, v5")
    l("v_lshl_add_u32 v5, v7, 3, v5")
    l(f"v_add_u32 v{vWor}, 0x20000, v5")
    for n in range(1, 4): l(f"v_xor_b32 v{vWor+n}, {n<<5}, v{vWor}")
    l("v_and_b32 v8, 7, v2"); l("v_lshlrev_b32 v9, 1, v4"); l("v_xor_b32 v8, v8, v9")
    l(f"v_lshl_add_u32 v{vWod}, v8, 4, v{vWod}")
    for jj in range(1, 4): l(f"v_add_u32 v{vWod+jj}, {jj*(7168-1024)}, v{vWod}")
    for r in range(8): l(f"v_mov_b32 v{vNM+r}, 0")
    if NP:
        l(f"v_lshl_add_u32 v{vUp}, v2, 4, s{sWoff}"); l(f"v_add_u32 v{vUp+1}, 0x10000, v{vUp}")
    l(f"s_lshr_b32 s44, s{sH}, 2"); l(f"s_mul_i32 s3, s44, {(1 << 20) if IOD else 28672}")
    l(f"s_and_b32 s45, s{sH}, 3"); l("s_lshl_b32 s45, s45, 10"); l("s_add_u32 s3, s3, s45")
    l(f"s_lshl_b32 s45, s{sW}, 8"); l("s_add_u32 s3, s3, s45")
    l(f"v_mul_u32_u24 v5, {65536 if IOD else 114688}, v4"); l("v_lshl_add_u32 v5, v3, 4, v5")
    l(f"v_add_u32 v{vRd}, s3, v5")
    l("s_lshl_b32 s3, s44, 5"); l(f"s_and_b32 s45, s{sH}, 1"); l("s_lshl_b32 s45, s45, 4"); l("s_add_u32 s3, s3, s45")
    l(f"s_lshl_b32 s45, s{sW}, 2"); l("s_add_u32 s3, s3, s45"); l("s_mul_i32 s3, s3, 1792")
    l(f"s_mul_i32 s45, s{sBLK}, 896"); l("s_add_u32 s3, s3, s45")
    l(f"s_and_b32 s45, s{sH}, 2"); l("s_lshl_b32 s45, s45, 5"); l("s_add_u32 s3, s3, s45")
    l("v_mul_u32_u24 v5, 1792, v6"); l("v_lshl_add_u32 v5, v7, 3, v5")
    l("v_and_b32 v8, 1, v4"); l("v_lshl_add_u32 v5, v8, 5, v5")
    l("v_lshrrev_b32 v8, 1, v4"); l("v_lshl_add_u32 v5, v8, 24, v5")
    l(f"v_add_u32 v{vRo}, s3, v5")
    l("v_and_b32 v5, 1, v2"); l("v_lshlrev_b32 v5, 4, v5"); l("v_mov_b32 v8, 0x3f80"); l("v_lshlrev_b32 v5, v5, v8")
    l("v_bfe_u32 v8, v2, 1, 2")
    for r in range(4):
        l(f"v_cmp_eq_u32 vcc, {r}, v8"); l("s_nop 0"); l(f"v_cndmask_b32 v{vSel+r}, 0, v5, vcc")

    if OPT["ad"]:
        assert not OPT["late"]
        l("s_lshr_b32 s3, s2, 3"); l(f"s_and_b32 s3, s3, {OPT['adM']}"); l("s_lshl_b32 s3, s3, 16")
        l("s_and_b32 s44, s2, 7"); l("s_lshl_b32 s44, s44, 2"); l("s_add_u32 s3, s3, s44")
        l("v_lshl_add_u32 v1, v0, 7, s3")
        l(f"v_cmp_le_u32 vcc, {OPT['adW']}, v0"); l("v_mov_b32 v3, 0x10000"); l("v_cndmask_b32 v3, 0, v3, vcc")
        l("v_add_u32 v1, v1, v3")
        l("s_lshl_b32 s3, s2, 16"); l("v_lshl_add_u32 v3, v0, 4, s3")
        l("s_mov_b32 s99, s100")
        for r in range(4): l(f"v_mov_b32 v{4+r}, 0")
        for r in range(8): l(f"s_mov_b32 s{64+r}, 0")
        assert not OPT["trace"]
    if PACE2: l(f"s_lshr_b32 s79, s{sB}, {OPT['clsh']}"); l(f"s_and_b32 s79, s79, {OPT['clm']}")
    if IOD:
        NPR = OPT["npr"]
        if OPT["iodf"] >= 0:
            l(f"s_lshr_b32 s3, s{sW}, 1"); l(f"s_xor_b32 s3, s3, s{sBLK}"); l(f"s_xor_b32 s3, s3, {OPT['iodf']}"); l(f"s_lshl_b32 s{sSel}, s3, 13")
        elif OPT["prn"]:
            assert not OPT["trace"] and not PACE2 and OPT["prNW"] <= 4 and not OPT["prw"]
            l("v_and_b32 v5, 1, v2"); l("v_bfe_u32 v8, v2, 1, 2"); l("v_lshrrev_b32 v9, 3, v2")
            l("v_lshlrev_b32 v5, 13, v5"); l("v_lshl_add_u32 v5, v8, 9, v5"); l("v_lshl_add_u32 v5, v9, 22, v5")
            l(f"s_add_u32 s3, s47, {HOLE + 2048}"); l("v_add_u32 v5, s3, v5")
            l((f"buffer_store_dword v{vL}, v5, s[{sG}:{sG+3}], 0 offen sc1", "pf"))
            l("s_mov_b32 s66, 0"); l("s_mov_b32 s67, 0"); l("s_mov_b32 s79, 0")
        elif OPT["prH"]:
            l("s_mov_b32 s78, 0x9e3779b9"); l("s_mov_b32 s79, 0")
            assert not OPT["trace"] and not PACE2
        else:
            pr = ["s_mov_b32 s47, 0x9e3779b9"] + [f"s_mov_b32 s{66+k}, s47" for k in range(2*NPR)]
            if OPT["prw"]: pr.append("s_waitcnt lgkmcnt(0)")
            for k in range(NPR):
                ab = [f"s_load_dword s{66+2*k+x}, s[64:65], {HOLE + 2048 + (2*k+x)*256 + x*8192}" for x in range(2)]
                pr += ab if k % 2 == 0 else ab[::-1]
            k0 = len(late) - OPT["prp"]
            assert k0 > [i for i, x in enumerate(late) if "s47" in str(x)][-1]
            late[k0:k0] = pr
            l("s_mov_b32 s3, 0")
            l(f"s_waitcnt lgkmcnt({NPR})")
            for k in range(NPR):
                l(f"s_cmp_eq_u32 s{66+2*k}, s47"); l("s_addc_u32 s3, s3, 0")
                l(f"s_cmp_eq_u32 s{67+2*k}, s47"); l("s_subb_u32 s3, s3, 0")
            l("s_cmp_gt_i32 s3, 0")
            l(f"s_cselect_b32 s{sSel}, 0x2000, 0")
            if IOD == 2: l(f"s_mov_b32 s{sStamp+3}, s3")
    items = []
    fill = defaultdict(list)
    def add(p, ins):
        fill[p].extend(ins if isinstance(ins, list) else [ins])
    load = defaultdict(float, BASE or {})
    def spread(p0, p1, ins):
        n = p1 - p0 + 1
        if not OPT["wf"]:
            for k, s in enumerate(ins): add(p0 + (k*n)//len(ins), [s])
            return
        if BASE is None: return
        tot = cost(ins)
        lo, hi = 0.0, 100.0
        for _ in range(40):
            L = (lo + hi)/2
            if sum(max(0.0, L - load[p]) for p in range(p0, p1 + 1)) >= tot: hi = L
            else: lo = L
        k, bud = 0, 1e-6
        for p in range(p0, p1 + 1):
            bud += max(0.0, hi - load[p])
            while k < len(ins) and (bud >= cost(ins[k])/2 or p == p1):
                add(p, [ins[k]]); load[p] += cost(ins[k]); bud -= cost(ins[k]); k += 1
    if OPT["late"]: spread(0, 16*6, late)
    else:
        for s in late:
            for x in (s if isinstance(s, list) else [s]): e(x)
    if IOD:
        PRH = [int(x) for x in OPT["prH"].split(",")] if OPT["prH"] else []
        psel = 16*max(PRH) if PRH else 20
        if OPT["prn"]:
            for k in range(OPT["prNW"]):
                p0 = 16*(OPT["prH0"] + OPT["prLW"]*k) + OPT["pro"]
                for w in range(4):
                    def race(a, k=k, w=w):
                        a.e(f"s_cmp_lg_u32 s{sW}, {w}"); a.e(f"s_cbranch_scc1 L_npr{k}_{w}")
                        a.e("s_mov_b64 s[66:67], -1")
                        for x in range(2): a.e(f"s_load_dword s{66+x}, s[64:65], {HOLE + 2048 + k*512 + (x ^ (k & 1))*8192}")
                        a.lab(f"L_npr{k}_{w}")
                    race.cost = 3
                    add(p0 + w*OPT["prstg"], [race])
                for p in range(p0 + 4, p0 + 16*OPT["prLW"], OPT["prsm"]):
                    add(p, [["s_cmp_lg_u32 s66, s67", f"s_{'addc' if k & 1 else 'subb'}_u32 s79, s79, 0"]])
            psel = p0 + 16*OPT["prLW"] + 1
            add(psel - 1, [["s_cmp_gt_i32 s79, 0", f"s_cselect_b32 s{sSel}, 0x2000, 0"] + ([f"s_mov_b32 s{sStamp+3}, s79"] if IOD == 2 else [])])
        add(psel, [[f"v_add_u32 v{vSt}, s{sSel}, v{vSt}"]])
        if OPT["fl2"]: add(psel + 1, [[f"s_lshr_b32 s44, s{sH}, 2", f"s_xor_b32 s44, s44, s{sW}", "s_lshl_b32 s44, s44, 12", f"s_xor_b32 s44, s44, s{sSel}", "s_and_b32 s44, s44, 0x2000", f"v_add_u32 v{vFp}, s44, v{vFp}"]])
    def p1item(H, i, T, kap):
        half, c = i // 7, i % 7
        n = uidx[("W", i)]
        mf = []
        for u in range(2):
            acc = acc_of(vO, 8*half + T, u)
            cin = "0" if (c == 0 and kap == 0) else q4(acc)
            mf.append(f"{MF} {q4(acc)}, a[{{b}}:{{b3}}], {q4(aX + 16*c + 8*kap + 4*u, 'a')}, {cin}")
        rd = tr_reads("W", T, n, kap*8192, kap*8192 + 1024)
        if i < 7 and T == 0:
            rd = [("ds_read_b128", q4(aX + 16*c + 8*kap + 4*u, "a"), "X", kap, uidx[("X", c)], u*2048) for u in range(2)] + rd
        items.append(Item(H, mf, rd))
    done_at = {}
    for H in range(14):
        if OPT["j2"] and H >= 12:
            for T in range(4*(H-12), 4*(H-12)+4):
                for i in (12, 13):
                    for kap in range(2): p1item(H, i, T, kap)
                done_at[4 + T//2] = len(items) - 1
        else:
            for T in range(8):
                for kap in range(2): p1item(H, H, T, kap)
                if H % 7 == 6: done_at[4*(H//7) + T//2] = len(items) - 1
    def qconv(s):
        t = []
        R = [vO + 16*s, vO + 16*s + 8]
        for r in R:
            for j in range(8): t.append(f"v_mul_f32 v{r+j}, s{sC}, v{r+j}")
        for r in R:
            for j in range(4): t.append(f"v_cvt_pk_bf16_f32 v{r+j}, v{r+2*j}, v{r+2*j+1}")
        for r in R:
            t += [f"v_permlane16_swap_b32 v{r}, v{r+2}", f"v_permlane16_swap_b32 v{r+1}, v{r+3}"]
        for u, r in enumerate(R):
            for j in range(4): t.append(f"v_accvgpr_write_b32 a{aQ+8*s+4*u+j}, v{r+j}")
        return t
    t = []
    for s in range(4): t += qconv(s)
    spread(7*16 + 2, 12*16 + 6, t)
    if OPT["j2"]:
        lim = [(done_at[4]+2, done_at[4]+12), (done_at[4]+13, done_at[6]+1), (done_at[6]+2, done_at[6]+11), (done_at[6]+12, 14*16+12)]
    else:
        lim = [(13*16+5+6*k, 13*16+10+6*k) for k in range(4)]
    for k, (p0, p1) in enumerate(lim):
        assert p0 >= done_at[4+k] + 2 and p1 < 14*16 + 2*(4+k) - 1, (k, p0, p1)
        spread(p0, p1, qconv(4 + k))

    def qk(H, n, S):
        for f in range(16):
            s, ee = f >> 1, f & 1
            mf = []
            for u in range(2):
                acc = S + 8*u + 4*ee
                cin = q4(vNM + 4*u) if s == 0 else q4(acc)
                mf.append(f"{MF} {q4(acc)}, a[{{b}}:{{b3}}], {q4(aQ + 8*s + 4*u, 'a')}, {cin}")
            items.append(Item(H, mf, [("ds_read_b128", "a[{b}:{b3}]", "K", s & 3, n, (s >> 2)*256 + ee*2048)]))
    def pv(H, n, P, first):
        for T in range(16):
            mf = []
            for u in range(2):
                acc = acc_of(vO, T, u)
                mf.append(f"{MF} {q4(acc)}, a[{{b}}:{{b3}}], {q4(P + 4*u)}, {'0' if first else q4(acc)}")
            o = (T >> 3)*256
            items.append(Item(H, mf, tr_reads("V", T & 7, n, o, o + 2048)))
    EORD = [0, 1, 2, 3, 8, 9, 10, 11, 4, 5, 6, 7, 12, 13, 14, 15]
    Pb = (vP, vE + 8)
    def softmax(S, par):
        Lo, Ln, P = vL + 2*par, vL + 2*(par ^ 1), Pb[par]
        L = []
        seen = set()
        def addk(i):
            u = EORD[i] >> 3
            src = Ln + u if u in seen else Lo + u
            seen.add(u)
            return f"v_add_f32 v{Ln+u}, v{src}, v{vE+(i&7)}"
        cv = lambda i: f"v_cvt_pk_bf16_f32 v{P+EORD[i]//2}, v{vE+(i&7)}, v{vE+((i+1)&7)}"
        for i, k in enumerate(EORD):
            L.append(f"v_exp_f32 v{vE+(i&7)}, v{S+k}")
            if i >= 1: L.append(addk(i-1))
            if i >= 2 and i % 2 == 0: L.append(cv(i-2))
        L += [addk(15), cv(14)]
        return L
    lblc = [0]
    def check(t):
        lblc[0] += 1
        k = lblc[0]
        Ln = vL + 2*((t & 1) ^ 1)
        nm = "L_fix0" if t == 0 else f"L_fixp{t & 1}"
        def f(a):
            a.e(f"v_max_f32 v{vT0}, v{Ln}, v{Ln+1}")
            if t == 0:
                a.e(f"v_min_f32 v{vT0+1}, v{Ln}, v{Ln+1}")
                a.e(f"v_cmp_lt_f32 vcc, s{sThr}, v{vT0}")
                a.e(f"v_cmp_gt_f32 s[44:45], s{sTlo}, v{vT0+1}")
                a.e("s_or_b64 s[44:45], s[44:45], vcc")
                a.e(f"s_cbranch_scc0 L_nm{k}")
            else:
                a.e(f"v_cmp_lt_f32 vcc, s{sThr}, v{vT0}")
                a.e(f"s_cbranch_vccz L_nm{k}")
            a.e(f"s_call_b64 s[{sRet}:{sRet+1}], {nm}")
            a.lab(f"L_nm{k}")
        f.after2 = (t == 15)
        f.cost = 3
        return f
    H = 14
    qk(H, 21, vSb[0]); H += 1
    qk(H, 22, vSb[1])
    add(16*H + 15, [check(0)])
    spread(16*H + 1, 16*H + 14, softmax(vSb[0], 0))
    H += 1
    for t in range(1, 16):
        n = uidx[("V", t-1)]
        assert consumed[n] == H
        pv(H, n, Pb[(t-1) & 1], t == 1)
        p0 = 16*H
        H += 1
        if t <= 14:
            n = uidx[("K", t+1)]
            assert consumed[n] == H
            qk(H, n, vSb[(t+1) & 1])
            H += 1
        add(16*H - 1, [check(t)])
        spread(p0 + 1, 16*H - 2, softmax(vSb[t & 1], t & 1))
    n = uidx[("V", 15)]
    assert consumed[n] == H and H == 45
    pv(H, n, Pb[1], False)
    L0, L1 = vL, vL + 1
    fin = [f"v_permlane32_swap_b32 v{L0}, v{L1}", f"v_add_f32 v{L0}, v{L0}, v{L1}", f"v_mov_b32 v{L1}, v{L0}",
           f"v_permlane16_swap_b32 v{L0}, v{L1}", f"v_add_f32 v{L0}, v{L0}, v{L1}", f"v_rcp_f32 v{vAl}, v{L0}",
           f"v_mov_b32 v{vAl+1}, v{vAl}", f"v_permlane32_swap_b32 v{vAl}, v{vAl+1}"]
    ON = OPT["onorm"]
    for k, s in enumerate(fin): add((45*16 + k//2) if ON else (47*16 - 12 + k), s)
    p = 16*H + (4 if ON else 3)
    for s in range(8):
        t = []
        R = [vO + 16*s, vO + 16*s + 8]
        if ON:
            for u, r in enumerate(R): t += [f"v_mul_f32 v{r+j}, v{r+j}, v{vAl+u}" for j in range(8)]
        for r in R: t += [f"v_cvt_pk_bf16_f32 v{r+j}, v{r+2*j}, v{r+2*j+1}" for j in range(4)]
        w = 5 if ON else 3
        assert p >= 16*H + 2*s + 3 and p + w - 1 <= 16*H + 16 + 4*s - 1
        spread(p, p + w - 1, t)
        p += w
    H += 1
    def epilogue(acc, so, q, j):
        u = q & 1
        g = [] if ON else [f"v_mul_f32 v{acc+r}, v{acc+r}, v{vAl+u}" for r in range(8)]
        dst = vO + 8*(4*j + q) + 4 if j < OPT["hold"] else acc
        g += [f"v_cvt_pk_bf16_f32 v{dst+jj}, v{acc+2*jj}, v{acc+2*jj+1}" for jj in range(4)]
        offs = f" offset:{q*1024}" if q else ""
        st = (f"buffer_store_dwordx4 {q4(dst)}, v{vSt}, s[{sG}:{sG+3}], s{so} offen{offs} {OPT['st_pol']}", f"st{j}")
        if j < OPT["hold"]: held.append(st)
        else: g.append(st)
        return g
    held = []
    NS = OPT["NS"]
    pubs = [int(x) for x in OPT["pub"].split(",")]
    assert pubs[-1] == 7 - NS
    def publish(cnt):
        def f(a):
            a.wait_vm({f"st{j}" for j in range(cnt)} | {"sen"})
            if IOD:
                a.e(f"s_or_b32 s44, s{sSel}, {cnt << FSH}")
                a.e(f"v_mov_b32 v{vFv}, s44")
            else: a.e(f"v_mov_b32 v{vFv}, {cnt}")
            a.e(f"buffer_store_dword v{vFv}, v{vFl}, s[{sFl}:{sFl+3}], 0 offen {OPT['fl_pol']}", "pub")
        return f
    late_pubs = []
    hpos = lambda k: OPT["HP"] + (OPT["HE"] - OPT["HP"])*k/(4*OPT["hold"] - 1)
    for j in range(7):
        so = 8 + j if j else sNP0
        so2 = 9 + j
        A = vAcc + 32*(j & 1)
        for hf in range(2):
            n = uidx[("O", 2*j+hf)]
            assert consumed[n] == H
            order = [(nn, s4) for nn in range(4) for s4 in range(4)]
            if j == 0: order = [(nn, s4) for s4 in range(4) for nn in range(4)]
            for (nn, s4) in order:
                s = 4*hf + s4
                mf = []
                for u in range(2):
                    acc = acc_of(A, nn, u)
                    mf.append(f"{MF} {q4(acc)}, a[{{b}}:{{b3}}], {q4(vO + 16*s + 8*u)}, {'0' if s == 0 else q4(acc)}")
                items.append(Item(H, mf, tr_reads("O", nn, n, s4*4096, s4*4096 + 2048)))
            H += 1
        pend = 16*H
        g0 = epilogue(A, so, 0, j) + epilogue(A + 8, so, 1, j)
        g1 = epilogue(A + 16, so, 2, j) + epilogue(A + 24, so, 3, j)
        if j < 6:
            spread(pend - 7 if j else pend + 1, pend + 8, g0)
            spread(pend + 9, pend + 23, g1)
            if IOD:
                add(pend - 10, [[f"s_add_u32 s{so2}, s{so}, 4096", f"s_and_b32 s3, s{so2}, 8192", f"s_add_u32 s{so2}, s{so2}, s3"]])
                add(pend - 8, [[f"s_cmp_eq_u32 s{so2}, {HOLE}", f"s_cselect_b32 s{so2}, 0, s{so2}"]])
            else: add(pend - 8, [[f"s_add_u32 s{so2}, s{so}, 4096", f"s_cmp_eq_u32 s{so2}, 28672", f"s_cselect_b32 s{so2}, 0, s{so2}"]])
        else:
            spread(pend - 7, pend - 1, g0)
            tail_epi = g1
        if j + 1 in pubs:
            pp = pend + 25 + 16*OPT["PUBD"]
            if OPT["hold"]: pp = max(pp, int(16*(hpos(4*min(j + 1, OPT["hold"]) - 1) + OPT["PUBD"])) + 1)
            if pp < 960 - 2: add(pp, [publish(j + 1)])
            else: late_pubs.append(j + 1)
    for k, st in enumerate(held):
        assert 16*hpos(k) > 16*(48 + 2*(k//4)) + (9 if k % 4 < 2 else 24)
        add(int(16*hpos(k)), [st])
    N = len(items)
    assert N == 960
    for p in range(N):
        if p % 16 == 0: items[p].first = True
    p = int(16*OPT["CLR"])
    for j in range(7 - NS, 7):
        add(p, [[f"s_add_u32 s44, s{sNP0}, {j*4096}", "s_cmp_ge_u32 s44, 28672", "s_cselect_b32 s45, 28672, 0", "s_sub_u32 s44, s44, s45"]])
        for q in range(4):
            offs = f" offset:{q*1024}" if q else ""
            add(p + 1 + q*OPT["CLS"], [(f"buffer_store_dwordx4 {q4(vE + 8) if OPT['CLR'] < 14 else q4(aSen, 'a')}, v{vSt}, s[{sG}:{sG+3}], s44 offen{offs} {OPT['st_pol']}", "sen")])
        p += 4*OPT["CLS"]
    assert p < 53*16
    if NS == 0: pass
    elif OPT["CLR"] >= 14: spread(int(16*OPT["CLR"]) - 5, int(16*OPT["CLR"]) - 1, [f"v_accvgpr_write_b32 a{aSen+r}, -1" for r in range(4)])
    else: assert p < 15*16 and not OPT["late"]
    if OPT["wow"] >= 0:
        add(int(16*OPT["wow"]), [(f"buffer_load_dword a145, v63, s[{sWo}:{sWo+3}], 0 offen", "pf")])
    if OPT["TA"] >= 0:
        nt = 17 - OPT["T0"]
        for k in range(nt):
            pos = int(round(16*(OPT["TA"] + (OPT["TB"] - OPT["TA"])*k/(nt - 1))))
            add(pos, [[f"s_max_i32 s{sTmp2}, s{sPfo}, 0", f"s_min_i32 s{sTmp2}, s{sTmp2}, {15*16384}",
                       (f"buffer_load_dword a144, v{vPf}, s[{sPf}:{sPf+3}], s{sTmp2} offen {OPT['t_pol']}", "pf"),
                       f"s_add_u32 s{sPfo}, s{sPfo}, 16384"]])
    def lead(a):
        a.wait_vm({"clr"})
        a.e(f"buffer_store_dword v{vFv}, v{vDbA}, s[{sDb}:{sDb+3}], 0 offen sc1", "sig")
    add(16*13 + 5, [lead])
    add(16*39 + 5, [(f"buffer_load_dword v{vF}, v{vDbV}, s[{sDb}:{sDb+3}], 0 offen sc1", "chk")])
    def chk(a):
        a.wait_vm({"chk"})
        a.e(f"v_cmp_eq_u32 vcc, 0, v{vF}")
        a.e("s_cbranch_vccz L_chk_ok")
        a.e(f"s_call_b64 s[{sRet}:{sRet+1}], L_chk_wait")
        a.lab("L_chk_ok")
    add(16*47 + 3, [chk])
    selst = [0]
    if IOD:
        def selpub(a):
            a.e(f"v_mov_b32 v{vFv}, s{sSel}")
            a.e(f"buffer_store_dword v{vFv}, v{vFl}, s[{sFl}:{sFl+3}], 0 offen {OPT['fl_pol']}", "sel")
            selst[0] = 1
        add(16*47 + 4, [selpub])
        for x in pubs:
            for y in pubs: assert x | y == max(x, y)
    vD = 192
    def dreg(j, k):
        return q4(16*j + 4*k, "a") if j < 7 - NS else q4(vO + 16*(j - (7 - NS)) + 4*k)
    tsetup = [f"s_mov_b32 s8, s{sNP0}"]
    tsetup_b = [f"s_lshr_b32 s{16+j}, s{8+j}, 5" for j in range(7)]
    if IOD: tsetup_b = [x for j in range(7) for x in (f"s_lshr_b32 s{16+j}, s{8+j}, 6", f"s_and_b32 s3, s{16+j}, 0x40", f"s_add_u32 s{16+j}, s{16+j}, s3")]
    tsetup += [f"v_add_u32 v{vKr+k}, {k*4*(65536 if IOD else 114688)}, v{vRd}" for k in range(1, 4)]
    def ld1(j, k):
        return (f"buffer_load_dwordx4 {dreg(j, k)}, v{vKr+k if k else vRd}, s[{sG}:{sG+3}], s{8+j} offen {OPT['ld_pol']}", f"r{j}")
    vFA, vFB, vNx = 62, 63, 59
    def poll(r, tag): return (f"buffer_load_dword v{r}, v{vFp}, s[{sFl}:{sFl+3}], 0 offen {OPT['fp_pol']}", tag)
    if OPT["t2"]:
        assert NS == 0
        spread(866, 900, tsetup)
        nA, nB = OPT["nA"], OPT["nB"]
        if nA:
            add(OPT["spA"], [poll(vFA, "pA")])
            wa = lambda a: a.wait_vm({"pA"})
            wa.cost = 1
            add(OPT["spL"] - 1, [wa])
            L = [ld1(j, k) for j in range(nA) for k in range(4)]
            for i, x in enumerate(L): add(OPT["spL"] + (i*(OPT["spE"] - OPT["spL"]))//len(L), [x])
        if nB > nA: add(OPT["spB"], [poll(vFB, "pB")])
        def pc(a):
            assert not IOD or selst[0] == 2
            a.e(poll(vNx, "pC"))
        pc.cost = 1
        add(OPT["spC"], [pc])
        assert not IOD or nA == nB == 0
    elif OPT["early"]:
        add(960 - 40, [(f"buffer_load_dword v{vF}, v{vFp}, s[{sFl}:{sFl+3}], 0 offen {OPT['fp_pol']}", "poll")])
    if OPT["stamps"]:
        add(14*16 - 1, [lambda a: stamp(a, 3)])
        add(46*16 - 1, [lambda a: stamp(a, 4)])

    if OPT["org"]:
        add(int(16*OPT["orgH"]), [(f"buffer_load_dword v{vF}, off, s[{sDb}:{sDb+3}], 0 offset:64 sc1", "org")])
        def org(a):
            a.wait_vm({"org"})
            a.e(f"v_readfirstlane_b32 s74, v{vF}")
            a.e("s_not_b32 s74, s74")
            a.e("s_sub_u32 s75, s100, s74")
            a.e("s_cmp_lt_u32 s75, 300")
            a.e("s_cselect_b32 s100, s74, s100")
        org.cost = 5
        add(16*14 - OPT["D"] + 1, [org])
        assert min(PACE) >= 15
    if OPT["ad"]:
        h0 = min(PACE)
        assert max(pos for (pos, m) in iss if units[m][0] == "X") < 16*3
        add(16*4, [[f"s_add_u32 s{sX}, s{sWsP}, {FLAGS_OFF + (1 << 20)}", f"s_addc_u32 s{sX+1}, s{sWsP+1}, 0", f"s_mov_b32 s{sX+2}, 4096"]])
        add(16*4 + 1, [(f"buffer_store_dwordx4 v[4:7], v3, s[{sX}:{sX+3}], 0 offen sc1", "pf")])
        for k, Hh in enumerate(range(h0, max(PACE), OPT["adS"])):
            pe = 16*Hh - OPT["D"]
            assert (k + 1 + OPT["adW"])*128 <= 4096
            if Hh < OPT["adE"]:
                add(pe + 1, [[f"s_sub_u32 s77, s72, {PACE[Hh] + int(round(100*OPT['adm']))}", "v_mov_b32 v2, s77",
                              (f"buffer_store_dword v2, v1, s[{sX}:{sX+3}], 0 offen offset:{(k+1)*128} sc1", "pf")]])
            if k: add(pe + OPT["adR"], [f"s_load_dwordx8 s[64:71], s[{sX}:{sX+1}], {k*128}"])
        for Hh in range(h0 + OPT["adS"] + OPT["adD"], max(PACE) + 1, OPT["adD"]):
            for q in range(3):
                add(16*Hh - OPT["D"] - 6 + q, [[f"s_max_u32 s78, s{64+3*q}, s{78 if q else 65}", f"s_max_u32 s78, s78, s{66+2*q+(q>0)-(q>1)*0}"] if q == 0 else
                                                [f"s_max_u32 s78, s78, s{65+2*q}", f"s_max_u32 s78, s78, s{66+2*q}"]])
            add(16*Hh - OPT["D"] - 3, [["s_max_u32 s78, s78, s71", "s_sub_u32 s75, s78, s99", f"s_cmp_lt_u32 s75, {OPT['adL']}", "s_cselect_b32 s100, s78, s100"]])
    for Hh in PACE:
        add(16*Hh - OPT["D"] - OPT["pcs"], ["s_memrealtime s[72:73]"])
    D, WEV = OPT["D"], OPT["wev"]
    window = {"K": 0, "V": 1, "O": 2}
    uses = defaultdict(list)
    for i, it in enumerate(items):
        for r in it.reads: uses[r[2]].append((i, r[4]))
    soft_dma = []
    soft_up = []
    soft_adr = []
    log = []
    cur = []
    def put(s): cur.append(s)
    def set_window(g, w):
        if window[g] == w: return
        base, cnt = GROUPS[g]
        d = (w - window[g]) * 65536
        window[g] = w
        soft_adr.extend((g, k, f"v_add_u32 v{base+k}, {d & 0xffffffff}, v{base+k}") for k in range(cnt))
    def flush_adr(g, k):
        rest = []
        for (gg, kk, s) in soft_adr:
            if gg == g and kk == k: put(s)
            else: rest.append((gg, kk, s))
        soft_adr[:] = rest
    upos = {g: 0 for g in GROUPS}
    rp = [0]
    hbar = [-1]
    issued = set(m for (pos, m) in iss[:ip[0]])
    pend = list(iss[ip[0]:])
    upq = []
    unparked = set()
    areas = []
    if NP:
        areas.append([144, 0, 10000])
        if OPT["pkq"]: areas += [[aQ + 32, 0, lim[0][0] - 2], [aQ + 48, 0, lim[2][0] - 2]]
        areas += [[aX + 16*c, 16*(min(7 + c, 13) + 1) + 1 if c < 5 else 14*16 + 1, 10000] for c in range(7)]
        if NS and 14 <= OPT["CLR"] < 44: areas = [x for x in areas if x[0] != aSen]
        areas = areas[:NP]
    area_of = {}
    cls = lambda m: "P" if units[m][0] in "XW" else units[m][0]
    def next_unit(p, force=None):
        seen = set()
        for k, (pos, m) in enumerate(pend):
            c = cls(m)
            if c in seen: continue
            seen.add(c)
            if force is not None:
                if c != cls(force): continue
            elif pos > p: break
            ok = alloc(m, hbar[0], p)
            if not ok and c in "KV":
                fr = [x for x in areas if x[1] <= p and x[2] > p + 64 and (x[2] == 10000 or units[m][1] < 4)]
                if fr:
                    x = min(fr, key=lambda x: x[2])
                    parked[m] = x[0]; area_of[m] = x; x[1] = 10000; upq.append(m); ok = True
            assert ok or force is None, ("no slot", m, p)
            if not ok: continue
            pend.pop(k)
            issued.add(m)
            log.append((p, "iss", units[m], slot_of.get(m, f"a{parked.get(m)}")))
            soft_dma.extend(dma(m))
            return True
        return False
    def next_unpark(p, force=None):
        for m in upq:
            if force is not None and m != force: continue
            due = min(16*(needed[m] - OPT["UPD"]) - D, area_of[m][2] - 10)
            if force is None and (p < due or soft_dma_has(m)): continue
            if not alloc(m, hbar[0], p):
                assert force is None and p < area_of[m][2] - 5, ("no slot (unpark)", m, p)
                continue
            upq.remove(m)
            s = slot_of[m]
            log.append((p, "unp", units[m], s))
            for jj in range(4):
                pk = parked[m] + 4*jj
                ins = []
                if jj == 0: ins.append(lambda a, m=m: a.wait_vm({f"u{m}"}))
                ins.append((f"ds_write_b128 v{vUp + s//4}, a[{pk}:{pk+3}] offset:{(s%4)*16384 + jj*1024}", None, f"w{m}"))
                soft_up.append(ins)
            area_of[m][1] = p + 24
            unparked.add(m)
            return True
        return False
    def soft_dma_has(m):
        return any(isinstance(s, tuple) and s[1] == f"u{m}" for g in soft_dma for s in g)
    def issue(i, p):
        it = items[i]
        if it.first:
            Hh = it.H
            for n in HS[Hh]:
                while n not in issued: next_unit(p, n)
                if soft_dma_has(n):
                    for g in soft_dma: put(g)
                    soft_dma.clear()
                if n in parked:
                    if n not in unparked: next_unpark(p, n)
                    for g in soft_up: put(g)
                    soft_up.clear()
            def ev(a, Hh=Hh):
                a.c(f"event H={Hh} needs {[units[n] for n in HS[Hh]]}")
                if OPT["trace"]:
                    if Hh > 0:
                        a.e(f"v_writelane_b32 v{vTr}, s{sTr+4*((Hh-1)&1)}, {Hh-1}")
                        a.e(f"v_writelane_b32 v{vTr+1}, s{sTr+2+4*((Hh-1)&1)}, {Hh-1}")
                    a.e(f"{'s_memtime' if OPT['trace'] == 2 else 's_memrealtime'} s[{sTr+4*(Hh&1)}:{sTr+1+4*(Hh&1)}]")
                if Hh in PACE:
                    a.e("s_sub_u32 s74, s72, s100")
                    if PACE2:
                        a.e(f"s_mul_i32 s75, s79, {(PACE2[Hh] - PACE[Hh])//OPT['clm']}")
                        a.e(f"s_add_u32 s75, s75, {PACE[Hh]}")
                        a.e("s_cmp_ge_u32 s74, s75")
                        a.e(f"s_cbranch_scc1 L_pc{Hh}")
                    else:
                        a.e(f"s_cmp_ge_u32 s74, {PACE[Hh]}")
                        a.e(f"s_cbranch_scc1 L_pc{Hh}")
                        a.e(f"s_mov_b32 s75, {PACE[Hh]}")
                    a.e(f"s_call_b64 s[{sRet}:{sRet+1}], L_pace")
                    a.lab(f"L_pc{Hh}")
                if IOD and Hh in PRH:
                    ri = PRH.index(Hh)
                    if OPT["prst"]:
                        a.e(f"s_cmp_lg_u32 s{sW}, {ri & 3}"); a.e(f"s_cbranch_scc1 L_npr{Hh}")
                        ri >>= 2
                        a.e("s_waitcnt lgkmcnt(0)")
                    else:
                        a.e("s_waitcnt lgkmcnt(0)"); a.ldsq = []
                    for k in range(2*NPR): a.e(f"s_mov_b32 s{66+k}, s78")
                    for k in range(NPR):
                        q = ri*NPR + k
                        o = q*OPT["prs"]
                        o = HOLE + 4096 - OPT["prs"] - (o % 8192) - (o // 8192)*16384
                        assert o >= 0 and not HOLE - 256 < o < HOLE + 1280
                        ab = [f"s_load_dword s{66+2*k+x}, s[64:65], {o + x*8192}" for x in range(2)]
                        for x in (ab if q % 2 == 0 else ab[::-1]): a.e(x)
                    a.e(f"s_waitcnt lgkmcnt({NPR if OPT['prk'] < 0 else OPT['prk']})")
                    for k in range(NPR):
                        a.e(f"s_cmp_eq_u32 s{66+2*k}, s78"); a.e("s_addc_u32 s79, s79, 0")
                        a.e(f"s_cmp_eq_u32 s{67+2*k}, s78"); a.e("s_subb_u32 s79, s79, 0")
                    if OPT["prst"]: a.lab(f"L_npr{Hh}")
                    if Hh == max(PRH):
                        a.e("s_cmp_gt_i32 s79, 0")
                        a.e(f"s_cselect_b32 s{sSel}, 0x2000, 0")
                        if IOD == 2: a.e(f"s_mov_b32 s{sStamp+3}, s79")
                if LK.get(Hh, 0) > 0:
                    n0 = max(HS[Hh])
                    idx = [i for i, t in enumerate(a.vmq) if t[0] == "u" and int(t[1:]) <= n0 + (LK[Hh] + 3)//4 and units[int(t[1:])][0] in "KV"]
                    cut = (-LK[Hh]) % 4
                    last = [i for i in idx if int(a.vmq[i][1:]) == n0 + (LK[Hh] + 3)//4]
                    tot = lkq.get(n0 + (LK[Hh] + 3)//4, 0)
                    keep = max(0, 4 - cut - tot)
                    idx = [i for i in idx if i not in last[keep:]]
                    if idx:
                        m = min(max(idx), len(a.vmq) - 1 - OPT["lkm"])
                        if m >= 0:
                            for t in a.vmq[:m + 1]:
                                if t[0] == "u": lkq[int(t[1:])] = lkq.get(int(t[1:]), 0) + 1
                            a.e(f"s_waitcnt vmcnt({len(a.vmq) - 1 - m})")
                            lklog.append((Hh, len(a.vmq) - 1 - m))
                            a.vmq = a.vmq[m + 1:]
                a.wait_vm({f"u{n}" for n in HS[Hh] if n not in parked})
                a.wait_lds({f"w{n}" for n in HS[Hh]})
                if selst[0] == 1 and "sel" not in a.vmq: selst[0] = 2
                a.e("s_barrier")
                if OPT["trace"]:
                    a.e(f"s_memrealtime s[{sTr+2+4*(Hh&1)}:{sTr+3+4*(Hh&1)}]")
                if Hh == 0: stamp(a, 2)
            ev.cost = 2 + (4 if OPT["trace"] else 0) + ((5 if PACE2 else 3) if Hh in PACE else 0)
            put(ev)
            hbar[0] = Hh
        b = aFr(i)
        for (op, dst, g, ridx, n, inoff) in it.reads:
            slot = slot_of[n]
            if g in "WX":
                put((f"{op} {dst.format(b=b, b1=b+1, b2=b+2, b3=b+3)}, v{GROUPS[g][0]+GROUPS[g][1]*(slot//4)+ridx} offset:{(slot % 4)*16384 + inoff}", None, i))
                continue
            set_window(g, slot // 4)
            flush_adr(g, ridx)
            imm = (slot % 4)*16384 + inoff
            put((f"{op} {dst.format(b=b, b1=b+1, b2=b+2, b3=b+3)}, v{GROUPS[g][0]+ridx} offset:{imm}", None, i))
            upos[g] += 1
            if upos[g] < len(uses[g]):
                ni, nn = uses[g][upos[g]]
                if nn != n and nn in slot_of and ni > i + 2:
                    set_window(g, slot_of[nn]//4)
    def adv(limit, p):
        while rp[0] < N and rp[0] <= limit:
            issue(rp[0], p); rp[0] += 1
    def emit(s):
        if isinstance(s, list):
            for x in s: e(x)
        else: e(s)
    loads_out = {}
    lkq = {}
    lklog = []
    est = [0]
    adv(D - 1, -1)
    for s in cur: emit(s)
    for p in range(N):
        cur.clear()
        if p % WEV == 0: a.wait_lds(set(range(p, p + WEV)))
        b = aFr(p)
        adv(p + D, p)
        SR = list(cur); cur.clear()
        SF = list(fill.get(p, []))
        if not soft_up: next_unpark(p)
        if not soft_dma: next_unit(p)
        sp = OPT["dsp1"] if p < 14*16 else OPT["dsp"]
        if soft_dma and (p - OPT["dph"]) % sp == 0: put(soft_dma.pop(0))
        if soft_up and (p % OPT["usp"] == 0 or p < 15*16): put(soft_up.pop(0))
        SM = list(cur)
        if soft_adr: SR.append(soft_adr.pop(0)[2])
        wt = 1 if (p + 1) % WEV == 0 else 0
        tot = cost(SR) + cost(SF) + cost(SM) + wt
        loads_out[p] = tot
        evi = [k for k, x in enumerate(SR) if callable(x)]
        a2 = [k for k, x in enumerate(SF) if getattr(x, "after2", False)]
        best = None
        for kr in range(len(SR) + 1):
            for kf in range((a2[0] if a2 else len(SF)) + 1):
                for km in range(len(SM) + 1):
                    if km and evi and kr <= evi[-1]: continue
                    c1 = cost(SR[:kr]) + cost(SF[:kf]) + cost(SM[:km])
                    key = (max(2, c1) + max(2, tot - c1), abs(2*c1 - tot), -kr)
                    if best is None or key < best[0]: best = (key, kr, kf, km)
        _, kr, kf, km = best
        est[0] += best[0][0]*4 + 16
        if p % 16 == 15: est.append(est[0]); est[0] = 0
        e(items[p].mf[0].format(b=b, b3=b+3))
        for s in SR[:kr] + SF[:kf] + SM[:km]: emit(s)
        e(items[p].mf[1].format(b=b, b3=b+3))
        for s in SR[kr:] + SF[kf:] + SM[km:]: emit(s)
    assert not soft_dma and not soft_up and not pend and not upq
    if BASE is None: return loads_out
    sys.stderr.write(f"est cycles: {' '.join(map(str, est[1:]))} total {sum(est)}\n")
    if lklog: sys.stderr.write(f"lk waits: {lklog}\n")
    for s in tail_epi: e(s)
    if OPT["verbose"]:
        for (p, w, u, s) in log:
            sys.stderr.write(f"  {p/16:6.2f} {w} {u} slot {s} (need {needed[uidx[u]]})\n")
    stamp(a, 5)
    def loads(j):
        for k in range(4): e(ld1(j, k))
    def red(j):
        d = vD + 4*j
        for k in range(4):
            e(f"{MF} {q4(d)}, {q4(vSel)}, {dreg(j, k)}, {'0' if k == 0 else q4(d)}")
    def fin(j):
        d = vD + 4*j
        e(f"v_cvt_pk_bf16_f32 v{d}, v{d}, v{d+1}")
        e(f"v_cvt_pk_bf16_f32 v{d+1}, v{d+2}, v{d+3}")
        e(f"buffer_store_dwordx2 v[{d}:{d+1}], v{vRo}, s[{sOut}:{sOut+3}], s{16+j} offen {OPT['out_pol']}")
    if OPT["t2"]:
        if nB > nA:
            a.wait_vm({"pB"})
            for j in range(nA, nB): loads(j)
        nb = None
        for c in late_pubs:
            publish(c)(a)
            if nb is not None: nb += 1
            if c == OPT["pD"]: e(poll(vNx - 1, "pD")); nb = 0
        for x in tsetup_b: e(x)
        a.wait_vm({"pC"})
        e("s_barrier")
        stamp(a, 6)
        e(f"v_{'or_b32' if IOD else 'max_u32'} v{vF}, v{vNx}, v{vDV}")
        for (r, lo, hi) in ((vFA, 0, nA), (vFB, nA, nB)):
            if hi == lo: continue
            e(f"v_cmp_gt_u32 vcc, {hi}, v{r}")
            e(f"s_cbranch_vccz L_sv{hi}")
            e(f"v_cmp_gt_u32 vcc, {hi}, v{vF}")
            e(f"s_cbranch_vccz L_sr{hi}")
            e(f"s_mov_b32 s45, {hi}")
            e(f"s_call_b64 s[{sRet}:{sRet+1}], L_poll")
            a.lab(f"L_sr{hi}")
            for j in range(lo, hi): loads(j)
            a.lab(f"L_sv{hi}")
        ths = [int(x) for x in OPT["thr2"].split(",")]
        prev, done, cur = nB, 0, vNx - 1
        for hi in ths:
            e(f"v_cmp_gt_u32 vcc, {hi << FSH}, v{vF}")
            e(f"s_cbranch_vccz L_go{hi}")
            if nb is not None:
                e(f"s_waitcnt vmcnt({nb})")
                e(f"v_{'or3_b32' if IOD else 'max3_u32'} v{vF}, v{cur}, v{vDV}, v{vF}")
                e(f"v_cmp_gt_u32 vcc, {hi << FSH}, v{vF}")
                e(f"s_cbranch_vccz L_go{hi}")
            e(f"s_mov_b32 s45, {hi << FSH}")
            e(f"s_call_b64 s[{sRet}:{sRet+1}], L_poll")
            a.lab(f"L_go{hi}")
            if IOD and hi == ths[0]:
                e(f"v_and_b32 v{vT0}, 0x2000, v{vF}")
                e("s_nop 1")
                for k in range(4):
                    r = vKr + k if k else vRd
                    e(f"v_add_u32_dpp v{r}, v{vT0}, v{r} quad_perm:[{k},{k},{k},{k}] row_mask:0xf bank_mask:0xf")
            if hi in ths[-3:]: stamp(a, 1 + ths[-3:].index(hi), True)
            cur ^= 1
            if hi < 7: e(poll(cur, "pn"))
            for j in range(prev, hi): loads(j)
            nb = 4*(hi - prev)
            if OPT["prog"] and (hi == 7 or OPT["prog"] > 1) and prev > done:
                e(f"s_waitcnt vmcnt({nb + (1 if hi < 7 else 0)})")
                for j in range(done, prev): red(j)
                for j in range(done, prev): fin(j)
                nb += prev - done
                last_fin = prev - done
                done = prev
            else: last_fin = 0
            prev = hi
        e(f"s_waitcnt vmcnt({last_fin})")
        stamp(a, 4, True)
        for j in range(done, 7): red(j)
        for j in range(done, 7): fin(j)
    else:
      for x in tsetup + tsetup_b: emit(x)
      if OPT["early"]: a.wait_vm({"poll"})
      else: e(f"v_mov_b32 v{vF}, 0")
      for c in late_pubs: publish(c)(a)
      stamp(a, 6)
      prev = 0
      for hi in pubs:
          e(f"v_cmp_gt_u32 vcc, {hi}, v{vF}")
          e(f"s_cbranch_vccz L_go{hi}")
          e(f"s_mov_b32 s45, {hi}")
          e(f"s_call_b64 s[{sRet}:{sRet+1}], L_poll")
          a.lab(f"L_go{hi}")
          if hi in pubs[-3:]: stamp(a, 1 + pubs[-3:].index(hi), True)
          for j in range(prev, hi): loads(j)
          prev = hi
      for j in range(7 - NS, 7): loads(j)
      e(f"s_waitcnt vmcnt({4*NS})")
      stamp(a, 4, True)
      for j in range(7 - NS): red(j)
      for j in range(7 - NS): fin(j)
      e(f"s_waitcnt vmcnt({7 - NS})")
      for j in range(7 - NS, 7):
          a.lab(f"L_sen{j}")
          r = vO + 16*(j - (7 - NS))
          e(f"v_max3_u32 v{vT0}, v{r}, v{r+1}, v{r+2}")
          e(f"v_max3_u32 v{vT0+1}, v{r+3}, v{r+4}, v{r+5}")
          for k in range(6, 16, 4):
              e(f"v_max3_u32 v{vT0}, v{vT0}, v{r+k}, v{r+k+1}")
              if k + 2 < 16: e(f"v_max3_u32 v{vT0+1}, v{vT0+1}, v{r+k+2}, v{r+k+3}")
          e(f"v_max_u32 v{vT0}, v{vT0}, v{vT0+1}")
          e(f"v_cmp_eq_u32 vcc, -1, v{vT0}")
          e(f"s_cbranch_vccz L_sok{j}")
          e(f"s_sub_u32 s{sSpin}, s{sSpin}, 1")
          e(f"s_cbranch_scc1 L_sto{j}")
          for jj in range(j, 7): loads(jj)
          e("s_waitcnt vmcnt(0)")
          e(f"s_branch L_sen{j}")
          a.lab(f"L_sto{j}")
          e(f"s_mov_b32 s{sSpin}, 0")
          a.lab(f"L_sok{j}")
          red(j); fin(j)
    if OPT["diag"]:
        e("v_mov_b32 v8, 128")
        e(f"buffer_load_dword v5, v8, s[{sDb}:{sDb+3}], 0 offen sc1")
        e("s_waitcnt vmcnt(0)")
        e("v_readfirstlane_b32 s3, v5")
        e("s_bcnt1_i32_b32 s3, s3")
        e("s_cmp_le_u32 s3, 1")
        e("s_cbranch_scc1 L_diag_ok")
        e("s_mov_b32 s3, 30")
        a.lab("L_diag_l")
        e("s_sleep 64")
        e("s_sub_u32 s3, s3, 1")
        e("s_cmp_gt_u32 s3, 0")
        e("s_cbranch_scc1 L_diag_l")
        a.lab("L_diag_ok")
    if OPT["stamps"]:
        e("s_waitcnt vmcnt(0)")
        stamp(a, 7)
        e("s_waitcnt lgkmcnt(0)")
        if OPT["dly"] >= 0:
            if OPT["dwg"] >= 0:
                e(f"s_cmp_lg_u32 s2, {OPT['dwg']}"); e("s_cbranch_scc1 L_dly_done")
            e(f"s_sub_u32 s44, s{sStamp+2*OPT['dly']}, s{sStamp}")
            e(f"s_mul_i32 s44, s44, {OPT['dk']}")
            e("s_min_u32 s44, s44, 100000")
            e("s_mov_b32 s45, 200000")
            a.lab("L_dly")
            e("s_memrealtime s[46:47]")
            e("s_sub_u32 s45, s45, 1")
            e("s_cbranch_scc1 L_dly_done")
            e("s_waitcnt lgkmcnt(0)")
            e(f"s_sub_u32 s46, s46, s{sStamp+14}")
            e("s_cmp_lt_u32 s46, s44")
            e("s_cbranch_scc1 L_dly")
            a.lab("L_dly_done")
        e(f"s_add_u32 s32, s{sWsP}, 0x4000000"); e(f"s_addc_u32 s33, s{sWsP+1}, 0"); e("s_mov_b32 s34, 0x100000"); e("s_mov_b32 s35, 0x00020000")
        e("s_lshl_b32 s3, s2, 6")
        e("v_mov_b32 v1, s3")
        for k in range(8):
            e(f"v_mov_b32 v{2+k}, s{sStamp+2*k}")
        if OPT["trace"]:
            e(f"v_writelane_b32 v{vTr}, s{sTr+4}, 59")
            e(f"v_writelane_b32 v{vTr+1}, s{sTr+6}, 59")
            e("s_lshl_b32 s3, s2, 11")
            e("s_add_u32 s3, s3, 0x10000")
            e("v_lshlrev_b32 v10, 3, v0")
            e("v_add_u32 v10, s3, v10")
            e(f"buffer_store_dwordx2 v[{vTr}:{vTr+1}], v10, s[32:35], 0 offen")
        if IOD == 2:
            e("s_lshl_b32 s3, s2, 4"); e(f"s_lshl2_add_u32 s3, s{sW}, s3"); e("s_add_u32 s3, s3, 0xF0000")
            e("v_mov_b32 v10, s3"); e(f"v_mov_b32 v11, s{sStamp+3}")
            e("buffer_store_dword v11, v10, s[32:35], 0 offen")
        e("v_cmp_eq_u32 vcc, 0, v0")
        e("s_and_saveexec_b64 s[36:37], vcc")
        e("s_cbranch_execz L_k1_done")
        e("buffer_store_dwordx4 v[2:5], v1, s[32:35], 0 offen")
        e("buffer_store_dwordx4 v[6:9], v1, s[32:35], 0 offen offset:16")
        e("s_waitcnt vmcnt(0)")
    a.lab("L_k1_done")
    e("s_endpgm")
    a.lab("L_poll")
    e(f"buffer_load_dword v{vF}, v{vFp}, s[{sFl}:{sFl+3}], 0 offen {OPT['fp_pol']}")
    e(f"s_sub_u32 s{sSpin}, s{sSpin}, 1")
    e("s_cbranch_scc1 L_poll_to")
    e("s_waitcnt vmcnt(0)")
    if OPT["t2"]: e(f"v_{'or_b32' if IOD else 'max_u32'} v{vF}, v{vF}, v{vDV}")
    e(f"v_cmp_gt_u32 vcc, s45, v{vF}")
    e("s_cbranch_vccz L_poll_ret")
    if OPT["sleep"]: e(f"s_sleep {OPT['sleep']}")
    e("s_branch L_poll")
    a.lab("L_poll_to")
    e(f"s_mov_b32 s{sSpin}, 0")
    e("s_waitcnt vmcnt(0)")
    a.lab("L_poll_ret")
    e(f"s_setpc_b64 s[{sRet}:{sRet+1}]")
    if PACE:
        a.lab("L_pace")
        e("s_mov_b32 s76, 400")
        a.lab("L_pace_l")
        e("s_memrealtime s[72:73]")
        e("s_sub_u32 s76, s76, 1")
        e("s_cbranch_scc1 L_pace_r")
        e("s_sleep 1" if OPT["ad"] else "s_waitcnt lgkmcnt(0)")
        e("s_sub_u32 s74, s72, s100")
        e("s_cmp_lt_u32 s74, s75")
        e("s_cbranch_scc1 L_pace_l")
        a.lab("L_pace_r")
        e(f"s_setpc_b64 s[{sRet}:{sRet+1}]")
    a.lab("L_chk_wait")
    e(f"buffer_load_dword v{vF}, v{vDbV}, s[{sDb}:{sDb+3}], 0 offen sc1")
    e(f"s_sub_u32 s{sSpin}, s{sSpin}, 1")
    e("s_cbranch_scc1 L_poll_to")
    e("s_waitcnt vmcnt(0)")
    e(f"v_cmp_eq_u32 vcc, 0, v{vF}")
    e("s_cbranch_vccz L_poll_ret")
    e("s_sleep 4")
    e("s_branch L_chk_wait")
    for (nm, par, first) in (("L_fix0", 0, True), ("L_fixp0", 0, False), ("L_fixp1", 1, False)):
        S, S2 = vSb[par], vSb[par ^ 1]
        Lo = vL + 2*par
        a.lab(nm)
        e("s_nop 7")
        for u in range(2):
            T, T2, r = vT0 + u, vT0 + 2, S + 8*u
            e(f"v_max3_f32 v{T}, v{r}, v{r+1}, v{r+2}")
            e(f"v_max3_f32 v{T}, v{T}, v{r+3}, v{r+4}")
            e(f"v_max3_f32 v{T}, v{T}, v{r+5}, v{r+6}")
            e(f"v_max_f32 v{T}, v{T}, v{r+7}")
            e(f"v_mov_b32 v{T2}, v{T}")
            e(f"v_permlane32_swap_b32 v{T}, v{T2}")
            e(f"v_max_f32 v{T}, v{T}, v{T2}")
            e(f"v_mov_b32 v{T2}, v{T}")
            e(f"v_permlane16_swap_b32 v{T}, v{T2}")
            e(f"v_max_f32 v{T}, v{T}, v{T2}")
            if not first:
                e(f"v_max_f32 v{T}, 0, v{T}")
                e(f"v_exp_f32 v{vAl+u}, -v{T}")
            for k in range(8):
                e(f"v_sub_f32 v{r+k}, v{r+k}, v{T}")
                e(f"v_sub_f32 v{S2+8*u+k}, v{S2+8*u+k}, v{T}")
            for k in range(4): e(f"v_sub_f32 v{vNM+4*u+k}, v{vNM+4*u+k}, v{T}")
            if not first: e(f"v_mul_f32 v{Lo+u}, v{Lo+u}, v{vAl+u}")
        for s in softmax(S, par): e(s)
        if not first:
            for r in range(128):
                e(f"v_mul_f32 v{vO+r}, v{vO+r}, v{vAl + ((r >> 3) & 1)}")
        e("s_nop 3")
        e(f"s_setpc_b64 s[{sRet}:{sRet+1}]")
    a.lab("L_k1_end")
    lines = "\n".join(a.L).split("\n")
    lines, npad = pad_hazards(lines)
    sys.stderr.write(f"k1: {len(lines)} lines, {npad} hazard pads\n")
    return "\n".join(lines) + "\n"

def desc(name, vgpr, acc, sgpr=102):
    return f""".p2align 6
.amdhsa_kernel {name}
  .amdhsa_next_free_vgpr {vgpr}
  .amdhsa_next_free_sgpr {sgpr}
  .amdhsa_accum_offset {acc}
  .amdhsa_group_segment_fixed_size 0
  .amdhsa_kernarg_size 104
  .amdhsa_user_sgpr_count 2
  .amdhsa_user_sgpr_kernarg_segment_ptr 1
  .amdhsa_system_sgpr_workgroup_id_x 1
.end_amdhsa_kernel
"""

def main():
    ref = open(f"cdna_kernels/{NAME}.s.ref").read().splitlines()
    hdr = [l for l in ref if l.startswith(";") and "@launch" not in l and "Override launch" not in l and "grid=ceil" not in l]
    out = "\n".join(hdr) + "\n"
    if OPT["lst"]:
        out += f"; @launch kernel={K1} grid=(256,1,1) block=(256,1,1) lds=163840\n"
    else:
        out += f"; @launch grid=(256,1,1) block=(256,1,1) lds=163840\n"
    out += '.amdgcn_target "amdgcn-amd-amdhsa--gfx950"\n.text\n'
    out += gen_k1(gen_k1(None))
    out += '.section .rodata,"a"\n'
    out += desc(K1, 512, 256)
    open(sys.argv[1], "w").write(out)

main()
```

```python
import sys, math, struct
from collections import defaultdict
sys.path.insert(0, "gen")
from asmlib import pad_hazards

NAME = "concat_heads__mha_block_cached__gqa_block_cached__near_ridge"
K1 = NAME + "_kernel"

OPT = dict(stamps=0, trace=0, st_pol="sc1", kv_pol="nt", w_pol="", x_pol="", out_pol="", D=6, wev=2, codepf=1,
           L1=4, PR=2.0, KA=8.5, KB=40.0, WO0=34.0, LWO=6, spw=1,
           pub="2,4", PUBD=4, NS=3, CLR=41.0, early=1, nodma=0, thr=1048576.0, tlo=2.0**-30, verbose=0, sleep=1, lst=1,
           X1=13, pfn=0, pfbit=3, pf_pol="", NP=0, PK=3.0, UP=2, j2=1, NB=8, wf=1, onorm=1, n0=4,
           p1slots="8,9,1,2,4,3,5,7,6,0,8,1,9,4,2,5,3,6,7,8,9", late=0, CLS=4, wow=-1.0, OS=1.0, OI=-1, o_pol="", o0_pol="", MF=0, MFE=1, dsp=1, dsp1=1, dph=0, diag=0, TA=-1.0, TB=38.0, T0=0, t_pol="", TS=7, KS="", park=0, pkq=1, UPD=1.0, wcost=2, usp=1, dly=-1, dk=10, dwg=-1, tst=0, t2=0, spA=905, spL=946, nA=2, spB=944, nB=3, spC=957, thr2="4,5,6,7", prog=1, pD=6, FS=2, spE=959, hold=0, HP=54.0, HE=58.0, pace="", pcs=8, org=0, orgH=6.5, ad=0, adm=0.3, adS=2, adD=1, adM=31, adE=42, adL=800, adW=4, adR=2, pace2="", clsh=2, clm=1, mp=4, rb=1, rh=2, ld_pol="sc1", fl_pol="sc1", fp_pol="sc1", iod=0, iodf=-1, prp=45, npr=3, prw=1, fl2=1, prH="", prs=256, prk=-1, prst=0, prn=0, prH0=18, prLW=4, prNW=4, prstg=12, prsm=1, pro=-9, lk="", lkm=0, nost=0, nobar=0, noval=0, fc=0, fcP=2, fc0=16, fc1=44, fcH="22,26,30,34,38,42", fcL=5.5, fcA=4, fcB=4, SIG=13.3, CHKL=39.3, CHKH=47.2, fcs=2, TN=0, tw=0, TH=0, rot="", MFI=0, dspH=14.0, fine=-1, MFO=0, n1=0, sms=0, XS="", pfp=0, pfi=0, dyn=0, MFT=0, SN=0, HNT=0, PP=0, PPS=2, pg="", pga=0, MF2=0, MFJ=99, fpat=0, LM=0, PT=4.0, lm_pol="", clr_pol="sc1", FT=-1.0, LQ=0, near=0, rwo=0)
for a in sys.argv[2:]:
    k, v = a.split("=")
    OPT[k] = type(OPT[k])(v) if not isinstance(OPT[k], str) else v.replace("+", " ")

sW, sH, sB, sBLK = 4, 5, 6, 7
sK, sV, sWq, sWo, sX, sG, sFl, sDb, sOut = 8, 12, 16, 20, 24, 28, 32, 36, 40
sWoff = 48
sXoff, sWqoff, sWooff = 49, 50, 51
sStA, sStB = 52, 53
sC, sThr = 54, 55
sNP0, sSpin = 56, 57
sRet = 58
sTmp, sTmp2 = 60, 61
sTr = 68
sWsP = 80
sStamp = 82
sTlo = 98
sPf, sPfo = 72, 76
vPf = 62

vKr, vVr, vWor = 10, 14, 22
vKd, vVd, vWod = 26, 28, 30
vSt = 34
vL = 35
vT0 = 39
vAl = 43
vFl, vFp, vDbA, vDbV, vF, vFv = 45, 46, 47, 48, 49, 50
vDV = 51
vSel = 52
vRd, vRo = 56, 57
vUp = 58
vTr = 60
vSb = (64, 80)
vE, vNM, vP = 96, 112, 120
vWqd, vXd = 96, 100
vWr, vXr = 64, 88
vAcc = 64
vO = 128
aX, aPk, aQ = 0, 112, 160
NB = OPT["NB"]
def aFr(i):
    k = i % NB
    return 224 + 4*k if k < 8 else 112 + 4*(k - 8)
aSen = 0
FLAGS_OFF = 32 << 20
IOD = OPT["iod"]
PBASE = 128 << 20
HOLE = 52*1024
sSel = 99
FSH = 14 if IOD else 0
FS = OPT["FS"]; WS = max(8, FS + 4)
MF = "v_mfma_f32_16x16x32_bf16"

SCALE = math.log2(math.e) / 16.0
def f32hex(x):
    return "0x%08x" % struct.unpack("<I", struct.pack("<f", x))[0]

class Em:
    def __init__(self):
        self.L = []
        self.vmq = []
        self.ldsq = []
    def e(self, s, vm=None, lds=None):
        if isinstance(s, tuple):
            return self.e(*s)
        if callable(s):
            return s(self)
        self.L.append("    " + s)
        if vm is not None: self.vmq.append(vm)
        if lds is not None: self.ldsq.append(lds)
    def lab(self, s): self.L.append(s + ":")
    def c(self, s): self.L.append("    ; " + s)
    def wait_vm(self, tags):
        idx = [i for i, t in enumerate(self.vmq) if t in tags]
        if not idx: return
        n = len(self.vmq) - 1 - max(idx)
        self.e(f"s_waitcnt vmcnt({min(n, 63)})")
        self.vmq = self.vmq[max(idx) + 1:] if n <= 63 else self.vmq[-63:]
    def wait_lds(self, tags):
        idx = [i for i, t in enumerate(self.ldsq) if t in tags]
        if not idx: return
        n = len(self.ldsq) - 1 - max(idx)
        self.e(f"s_waitcnt lgkmcnt({min(n, 15)})")
        self.ldsq = self.ldsq[max(idx) + 1:] if n <= 15 else self.ldsq[-15:]

def stamp(a, idx, tail=False):
    if OPT["tst"] and idx in (1, 2, 3, 4) and not tail: return
    if tail and not OPT["tst"]: return
    if OPT["stamps"]:
        a.e(f"s_memrealtime s[{sStamp+2*idx}:{sStamp+2*idx+1}]")

units = []
for c in range(7): units += [("X", c), ("W", c)]
units += [("W", c) for c in range(7, 14)]
kv = [("K", 0), ("K", 1)]
for t in range(0, 14):
    kv += [("V", t), ("K", t + 2)]
kv += [("V", 14), ("V", 15)]
units += kv
units += [("O", k) for k in range(14)]
NU = len(units)
uidx = {u: n for n, u in enumerate(units)}
HS = [[2*c, 2*c+1] for c in range(7)] + [[uidx[("W", c)]] for c in range(7, 14)]
if OPT["j2"]:
    HS[12] = [uidx[("W", 12)], uidx[("W", 13)]]; HS[13] = []
for n in range(21, NU): HS.append([n])
needed, consumed = {}, {}
for H, us in enumerate(HS):
    for n in us: consumed[n] = H; needed[n] = H
if OPT["j2"]: consumed[uidx[("W", 12)]] = consumed[uidx[("W", 13)]] = 13
parked = {}
NP = OPT["park"]
P1SLOT = [int(x) for x in OPT["p1slots"].split(",")] if OPT["p1slots"] != "auto" else [0]*21
assert len(P1SLOT) == 21
def fixed_slot(n):
    t, i = units[n]
    if t in "XW": return P1SLOT[n]
    if t == "K": return i & 3
    if t == "V": return 4 + (i & 3)
    if t == "O" and i < 2: return 8 + i
    return None
iss = []
for n in range(21):
    if OPT["XS"] and n >= OPT["n0"] + OPT["n1"]:
        kn = [tuple(float(y) for y in x.split(":")) for x in OPT["XS"].split(",")]
        for (i0, h0), (i1, h1) in zip(kn, kn[1:]):
            if i0 <= n <= i1: h = h0 + (h1 - h0)*(n - i0)/(i1 - i0)
        iss.append((max(0, int(round(16*h))), n))
        continue
    iss.append((-2 if n < OPT["n0"] else -1 if n < OPT["n0"] + OPT["n1"] else max(0, int(round(16*(n - OPT["L1"])/OPT["PR"]))), n))
stream = list(range(21, 53))
if OPT["OI"] >= 0:
    stream.insert(OPT["OI"], 53); stream.insert(OPT["OI"] + 2, 54)
for i, n in enumerate(stream):
    if OPT["KS"]:
        kn = [tuple(float(y) for y in x.split(":")) for x in OPT["KS"].split(",")]
        for (i0, h0), (i1, h1) in zip(kn, kn[1:]):
            if i0 <= i <= i1: h = h0 + (h1 - h0)*(i - i0)/(i1 - i0)
    else: h = OPT["KA"] + (OPT["KB"] - OPT["KA"])*i/(len(stream) - 1)
    iss.append((int(round(16*h)), n))
kvpos = [(pos, n) for (pos, n) in iss if units[n][0] in "KV"]
kvstep = {}
for i, (pos, n) in enumerate(kvpos):
    kvstep[n] = (kvpos[i + 1][0] - pos)/4 if i + 1 < len(kvpos) else kvstep[kvpos[i - 1][1]]
def isfine(n): return OPT["fine"] >= 0 and units[n][0] in "KV" and n - 21 >= OPT["fine"]
for k in range(2 if OPT["OI"] >= 0 else 0, 14):
    pos = max(16*(46 + k - OPT["LWO"]), 16*(OPT["WO0"] + OPT["OS"]*k))
    iss.append((int(pos), 53 + k))
iss.sort(key=lambda x: x[0])
if OPT["p1slots"] == "auto":
    kvf = {8: 10**6, 9: 10**6}
    for (pos, n) in kvpos:
        if units[n][1] < 4: kvf[fixed_slot(n)] = pos
    fr = [-100]*10
    for (pos, n) in iss:
        if n >= 21: continue
        rel = 16*consumed[n] + 2 if units[n][0] == "X" else 16*(consumed[n] + 2) - OPT["D"]
        ok = [x for x in range(10) if fr[x] <= pos]
        if not ok: ok = [min(range(10), key=lambda x: fr[x])]
        fit = [x for x in ok if kvf[x] >= rel]
        x = min(fit, key=lambda x: kvf[x]) if fit else max(ok, key=lambda x: kvf[x])
        P1SLOT[n] = x; fr[x] = rel
    sys.stderr.write(f"p1slots={','.join(map(str, P1SLOT))}\n")

PACE = {}
if OPT["pace"]:
    kn = [tuple(float(y) for y in x.split(":")) for x in OPT["pace"].split(",")]
    for (h0, t0), (h1, t1) in zip(kn, kn[1:]):
        for h in range(int(h0), int(h1) + 1): PACE[h] = int(round(100*(t0 + (t1 - t0)*(h - h0)/(h1 - h0))))
    assert OPT["TA"] < 0 and min(PACE) >= 3
PACE2 = {}
if OPT["pace2"]:
    kn = [tuple(float(y) for y in x.split(":")) for x in OPT["pace2"].split(",")]
    for (h0, t0), (h1, t1) in zip(kn, kn[1:]):
        for h in range(int(h0), int(h1) + 1): PACE2[h] = int(round(100*(t0 + (t1 - t0)*(h - h0)/(h1 - h0))))
    assert set(PACE2) == set(PACE) and not OPT["ad"]
LK = {}
if OPT["lk"]:
    kn = [tuple(float(y) for y in x.split(":")) for x in OPT["lk"].split(",")]
    for (h0, t0), (h1, t1) in zip(kn, kn[1:]):
        for h in range(int(h0), int(h1) + 1): LK[h] = int(round(4*(t0 + (t1 - t0)*(h - h0)/(h1 - h0))))
PG = [(float(x.split(":")[0]), int(x.split(":")[1]), int(x.split(":")[2])) for x in OPT["pg"].split(",")] if OPT["pg"] else []
slot_of = {}
def dma(n):
    t, i = units[n]
    g = []
    pk = parked.get(n)
    for jj in range(4):
        ins = []
        sKV = sTmp2 if isfine(n) else sTmp
        if jj and isfine(n) and pk is None: ins.append(f"s_add_u32 m0, s{sWoff}, {slot_of[n]*16384}")
        if jj == 0:
            if pk is None: ins.append(f"s_add_u32 m0, s{sWoff}, {slot_of[n]*16384}")
            if t in "KV": ins.append(f"s_xor_b32 s{sKV}, s77, {i*16384}" if OPT["rot"] else f"s_mov_b32 s{sKV}, {i*16384}")
            elif t == "O" and (i & 1): ins.append(f"s_add_u32 s{sTmp}, s{sWooff}, {128*896}")
            elif t == "W" and i == 7: ins += [f"s_add_u32 s{sWq}, s{sWq}, 256", f"s_addc_u32 s{sWq+1}, s{sWq+1}, 0"]
        off = f" offset:{jj*1024}" if jj else ""
        dst = "" if pk is None else f"a[{pk+4*jj}:{pk+4*jj+3}], "
        lds = " lds" if pk is None else ""
        if t == "K": ld = f"buffer_load_dwordx4 {dst}v{vKd+(jj&1)}, s[{sK}:{sK+3}], s{sKV} offen{off} {OPT['kv_pol']}{lds}"
        elif t == "V": ld = f"buffer_load_dwordx4 {dst}v{vVd+(jj&1)}, s[{sV}:{sV+3}], s{sKV} offen{off} {OPT['kv_pol']}{lds}"
        elif t == "W": ld = f"buffer_load_dwordx4 v{vWqd+jj}, s[{sWq}:{sWq+3}], s{sWqoff} offen{off} {OPT['w_pol']} lds"
        elif t == "X": ld = f"buffer_load_dwordx4 v{vXd+jj}, s[{sX}:{sX+3}], s{sXoff} offen{off} {OPT['x_pol']} lds"
        elif t == "O":
            so = sTmp if (i & 1) else sWooff
            ld = f"buffer_load_dwordx4 v{vWod+jj}, s[{sWo}:{sWo+3}], s{so} offen{off} {OPT['o0_pol'] if i < 2 else OPT['o_pol']} lds"
        if OPT["MF"] and t in "KV" and jj % OPT["MFE"] == 0 and n - 21 >= OPT["MFI"]:
            def lim(a):
                k = (OPT["MF2"] if n - 21 >= OPT["MFJ"] else OPT["MF"]) - OPT["MFE"]
                if OPT["MFT"]:
                    idx = [x for x, tg in enumerate(a.vmq) if tg[0] == "u" and units[int(tg[1:])][0] in "KV"]
                    if len(idx) <= k: return
                    k = len(a.vmq) - 1 - idx[len(idx) - k - 1]
                if len(a.vmq) > k:
                    a.e(f"s_waitcnt vmcnt({k})")
                    a.vmq = a.vmq[len(a.vmq) - k:]
            lim.cost = 1
            ins.append(lim)
        if not OPT["nodma"]: ins.append((ld, f"u{n}"))
        if jj == 3:
            if t == "W" and i < 13: ins += [f"s_add_u32 s{sWqoff}, s{sWqoff}, {64*8192}", f"s_cmp_eq_u32 s{sWqoff}, {448*8192}", f"s_cselect_b32 s{sWqoff}, 0, s{sWqoff}"]
            if t == "X" and i < 6: ins += [f"s_add_u32 s{sXoff}, s{sXoff}, 128", f"s_cmp_eq_u32 s{sXoff}, 896", f"s_cselect_b32 s{sXoff}, 0, s{sXoff}"]
            if t == "O" and (i & 1) and i < 13: ins += [f"s_add_u32 s{sWooff}, s{sWooff}, 128", f"s_cmp_eq_u32 s{sWooff}, 896", f"s_cselect_b32 s{sWooff}, 0, s{sWooff}"]
        g.append(ins)
    return g

GROUPS = {"K": (vKr, 4), "V": (vVr, 8), "O": (vWor, 4), "W": (vWr, 8), "X": (vXr, 2)}

class Item:
    def __init__(self, H, mf, reads):
        self.H = H; self.mf = mf; self.reads = reads
        self.first = False

def tr_reads(grp, ridx, n, off0, off1):
    return [("ds_read_b64_tr_b16", "a[{b}:{b1}]", grp, ridx, n, off0), ("ds_read_b64_tr_b16", "a[{b2}:{b3}]", grp, ridx, n, off1)]

def acc_of(base, T, u): return base + 16*(T >> 1) + 8*u + 4*(T & 1)
def q4(r, k="v"): return f"{k}[{r}:{r+3}]"

def cost(s):
    if isinstance(s, list): return sum(cost(x) for x in s)
    if callable(s): return getattr(s, "cost", 2)
    if isinstance(s, tuple): s = s[0]
    if s.startswith("ds_write"): return OPT["wcost"]
    return 2 if s.startswith(("v_exp", "v_rcp")) else 1

def gen_k1(BASE):
    a = Em()
    e = a.e
    slot_of.clear(); parked.clear()
    slot_free_at = [-10]*10
    slot_free_pos = [-10]*10
    last_slot = {"O": 8}
    def alloc(n, Hbar, p=0):
        t = units[n][0]
        s = fixed_slot(n)
        if OPT["dyn"] and t in "KVO":
            res = {P1SLOT[m] for m in range(21) if m not in slot_of}
            fr = [x for x in range(10) if slot_free_at[x] <= Hbar and slot_free_pos[x] <= p and x not in res]
            if not fr: return False
            home = {"K": 0, "V": 1, "O": last_slot["O"]//4}[t]
            fr.sort(key=lambda x: (x//4 != home, x//4 != 2, x))
            slot_of[n] = fr[0]; last_slot[t] = fr[0]
            slot_free_at[fr[0]] = consumed[n] + 2
            return True
        if s is not None and slot_free_pos[s] > p: return False
        if t in "KV":
            if units[n][1] >= 4 and uidx[(t, units[n][1] - 4)] not in slot_of: return False
            if any(P1SLOT[m] == s and m not in slot_of for m in range(21)): return False
        if s is None:
            pend = {fixed_slot(m) for m in range(NU) if m not in slot_of}
            fr = [s for s in range(10) if slot_free_at[s] <= Hbar and s not in pend]
            if not fr: return False
            same = [s for s in fr if s // 4 == last_slot[t] // 4]
            s = (same or fr)[0]
        elif slot_free_at[s] > Hbar: return False
        slot_of[n] = s; last_slot[t] = s
        if t == "X": slot_free_pos[s] = 16*consumed[n] + 2
        else: slot_free_at[s] = consumed[n] + 2
        return True

    a.L.append(f".globl {K1}\n" + (".p2align 12\n" if OPT["pg"] or OPT["pga"] else "") + f".p2align 8\n.type {K1},@function\n{K1}:")
    e("s_cmp_ge_u32 s2, 256")
    e("s_cbranch_scc1 L_k1_done")
    stamp(a, 0)
    if OPT["pace"]: e("s_memrealtime s[100:101]")
    e("s_and_b32 s3, s2, 7")
    e(f"s_lshr_b32 s{sBLK}, s3, 2")
    e(f"s_mul_i32 s{sTmp}, s{sBLK}, 40")
    e(f"s_add_u32 s44, s0, s{sTmp}")
    e("s_addc_u32 s45, s1, 0")
    e("s_load_dwordx2 s[64:65], s[44:45], 0")
    e("s_load_dwordx4 s[72:75], s[44:45], 24")
    e("s_load_dwordx4 s[68:71], s[44:45], 8")
    e("s_load_dwordx4 s[76:79], s[0:1], 80")
    e(f"s_load_dwordx2 s[{sWsP}:{sWsP+1}], s[0:1], 96")
    e("v_lshrrev_b32 v1, 6, v0")
    e("v_and_b32 v2, 63, v0")
    e(f"v_readfirstlane_b32 s{sW}, v1")
    if OPT["mp"] == 4:
        e("s_and_b32 s3, s3, 3")
        e("s_lshl_b32 s3, s3, 2")
        e(f"s_lshr_b32 s{sB}, s2, 3")
        e(f"s_and_b32 s{sH}, s{sB}, 3")
        e(f"s_lshl_b32 s{sTmp}, s{sH}, 1")
        e(f"s_add_u32 s{sH}, s{sH}, s3")
        e(f"s_lshr_b32 s{sB}, s{sB}, 2")
        e(f"s_add_u32 s{sTmp}, s{sTmp}, s{sB}")
        for _ in range(2):
            e(f"s_cmp_ge_u32 s{sTmp}, 7"); e(f"s_cselect_b32 s3, 7, 0"); e(f"s_sub_u32 s{sTmp}, s{sTmp}, s3")
    else:
        if OPT["mp"] == 8:
            e(f"s_bfe_u32 s{sB}, s2, 0x10001"); e(f"s_lshl_b32 s{sB}, s{sB}, 2"); e("s_lshr_b32 s3, s2, 6"); e(f"s_add_u32 s{sB}, s{sB}, s3")
            e(f"s_and_b32 s{sH}, s2, 1"); e(f"s_lshl_b32 s{sH}, s{sH}, 3"); e("s_bfe_u32 s3, s2, 0x30003"); e(f"s_add_u32 s{sH}, s{sH}, s3")
        else:
            e(f"s_and_b32 s{sB}, s2, 3"); e(f"s_lshl_b32 s{sB}, s{sB}, 1"); e("s_lshr_b32 s3, s2, 7"); e(f"s_add_u32 s{sB}, s{sB}, s3")
            e(f"s_bfe_u32 s{sH}, s2, 0x40003")
        assert 7*OPT["rb"] + 15*OPT["rh"] < 85
        e(f"s_mul_i32 s{sTmp}, s{sB}, {OPT['rb']}"); e(f"s_mul_i32 s3, s{sH}, {OPT['rh']}"); e(f"s_add_u32 s{sTmp}, s{sTmp}, s3")
        e(f"s_mul_i32 s3, s{sTmp}, 37"); e("s_lshr_b32 s3, s3, 8"); e("s_mul_i32 s3, s3, 7"); e(f"s_sub_u32 s{sTmp}, s{sTmp}, s3")
    e(f"s_lshl_b32 s{sXoff}, s{sTmp}, 7")
    e(f"s_lshl_b32 s{sWqoff}, s{sTmp}, 19")
    e("v_and_b32 v3, 15, v2")
    e("v_lshrrev_b32 v4, 4, v2")
    e(f"s_lshl_b32 s{sWoff}, s{sW}, 12")
    e("v_lshrrev_b32 v5, 3, v2")
    e("v_mul_u32_u24 v5, 896, v5")
    e(f"s_mul_i32 s3, s{sW}, {32*896}")
    e("v_and_b32 v6, 7, v2")
    e(f"v_add_u32 v{vWod}, s3, v5")
    e("v_xor_b32 v6, v6, v4")
    e(f"v_lshl_add_u32 v{vXd}, v6, 4, v{vWod}")
    e(f"v_xor_b32 v5, 64, v{vXd}")
    e(f"v_add_u32 v{vXd+1}, 6144, v5")
    e(f"v_add_u32 v{vXd+2}, {2*6144}, v{vXd}")
    e(f"v_add_u32 v{vXd+3}, {3*6144}, v5")
    e(f"s_lshl_b32 s3, s{sW}, 17")
    e(f"s_lshl_b32 s{sTmp}, s{sH}, 9")
    e(f"s_add_u32 s3, s3, s{sTmp}")
    e("v_lshlrev_b32 v6, 1, v4")
    e("v_xor_b32 v6, v6, v3")
    e("v_lshlrev_b32 v6, 4, v6")
    e("v_lshl_add_u32 v6, v4, 13, v6")
    e(f"v_add_u32 v{vWqd}, s3, v6")
    e(f"v_xor_b32 v7, 0x80, v{vWqd}")
    e(f"v_add_u32 v{vWqd+1}, {32768-1024}, v{vWqd}")
    e(f"v_add_u32 v{vWqd+2}, {2*(32768-1024)}, v7")
    e(f"v_add_u32 v{vWqd+3}, {3*(32768-1024)}, v7")
    for s, sz in ((sX, 114688), (sWq, 448*8192), (sK, 262144), (sV, 262144)):
        e(f"s_mov_b32 s{s+2}, {sz}"); e(f"s_mov_b32 s{s+3}, 0x00020000")
    e(f"s_mul_i32 s46, s{sB}, 114688")
    e(f"s_lshl_b32 s47, s{sB}, 4")
    e(f"s_add_u32 s47, s47, s{sH}")
    e(f"s_lshl_b32 s47, s47, 18")
    if OPT["spw"]:
        e("v_lshrrev_b32 v8, 2, v0")
        e("v_lshlrev_b32 v8, 13, v8")
        e("v_and_b32 v9, 3, v0")
        e("v_lshl_add_u32 v8, v9, 6, v8")
        e(f"v_add_u32 v8, s{sTmp}, v8")
    e("s_waitcnt lgkmcnt(0)")
    e(f"s_add_u32 s{sX}, s64, s46"); e(f"s_addc_u32 s{sX+1}, s65, 0")
    e(f"s_mov_b32 s{sWq}, s72"); e(f"s_mov_b32 s{sWq+1}, s73")
    e(f"s_add_u32 s{sK}, s68, s47"); e(f"s_addc_u32 s{sK+1}, s69, 0")
    e(f"s_add_u32 s{sV}, s70, s47"); e(f"s_addc_u32 s{sV+1}, s71, 0")
    def touch0():
        if OPT["pfn"]:
            if OPT["pfbit"] >= 0:
                e(f"s_bitcmp1_b32 s2, {OPT['pfbit']}")
                e("s_cbranch_scc0 L_nopf")
            elif OPT["pfbit"] == -2:
                e("s_lshr_b32 s3, s2, 2"); e("s_xor_b32 s3, s3, s2"); e("s_bitcmp1_b32 s3, 3")
                e("s_cbranch_scc0 L_nopf")
            e("v_lshlrev_b32 v63, 7, v2")
            e(f"s_and_b32 s3, s{sW}, 1"); e("s_lshl_b32 s3, s3, 13")
            e("v_add_u32 v63, s3, v63")
            e(f"s_cmp_ge_u32 s{sW}, 2")
            e("s_cbranch_scc1 L_pf_hi")
            for part in range(2):
                for k in range(part, OPT["pfn"], 2):
                    t, i = units[21 + OPT["pfi"] + k]
                    sr = sK if t == "K" else sV
                    e(f"s_mov_b32 s{sTmp2}, {i*16384}")
                    e(f"buffer_load_dword a{aQ+2+k//2}, v63, s[{sr}:{sr+3}], s{sTmp2} offen {OPT['pf_pol']}", "pf" if part == 0 and OPT["pfbit"] == -1 and OPT["pfn"] % 2 == 0 else None)
                if part == 0:
                    e("s_branch L_nopf")
                    a.lab("L_pf_hi")
            a.lab("L_nopf")
    if OPT["pfp"] == 0: touch0()
    ip = [0]
    while iss[ip[0]][0] < -1:
        m = iss[ip[0]][1]; ip[0] += 1
        assert alloc(m, 0)
        if m == 1 and OPT["spw"]:
            e(f"buffer_load_dword a{aQ+1}, v8, s[{sWq}:{sWq+3}], s{sWqoff} offen offset:256 {OPT['w_pol']}", "pf")
        for g in dma(m):
            for s in g: e(s)
    if OPT["pfp"] == 1: touch0()
    if OPT["tw"] & 1:
        e(f"s_load_dword s66, s[{sK}:{sK+1}], 0")
        e(f"s_load_dword s67, s[{sV}:{sV+1}], 0")
    if OPT["tw"] & 2:
        e(f"buffer_load_dword a{aQ+1}, off, s[{sK}:{sK+3}], 0", "pf")
        e(f"buffer_load_dword a{aQ+2}, off, s[{sV}:{sV+3}], 0", "pf")
    if OPT["codepf"]:
        e("s_getpc_b64 s[62:63]")
        a.lab("L_pc")
        e("s_lshr_b32 s3, s2, 3")
        e("s_lshl_b32 s3, s3, 12")
        e("v_lshlrev_b32 v5, 4, v0")
        e("v_add_u32 v5, s3, v5")
        e("v_min_u32 v5, L_k1_end-L_pc-8, v5")
        e(f"global_load_dword a{aQ}, v5, s[62:63]", "pf")
    if IOD:
        e(f"s_lshl_b32 s3, s{sBLK}, 3"); e(f"s_add_u32 s3, s3, s{sB}"); e("s_lshl_b32 s3, s3, 22"); e(f"s_add_u32 s3, s3, {PBASE}")
        e(f"s_add_u32 s{sG}, s{sWsP}, s3"); e(f"s_addc_u32 s{sG+1}, s{sWsP+1}, 0")
        e(f"s_lshl_b32 s3, s{sW}, 4"); e(f"s_add_u32 s3, s3, s{sH}"); e("s_lshl_b32 s47, s3, 16")
        e(f"s_add_u32 s64, s{sG}, s47"); e(f"s_addc_u32 s65, s{sG+1}, 0")
        if OPT["prw"] and OPT["iodf"] < 0: e(f"s_load_dword s{sSel}, s[64:65], {HOLE + 1024}")
        if OPT["prw"] > 1 and OPT["iodf"] < 0: e(f"s_load_dword s66, s[64:65], {HOLE + 1024 + 8192}")
    e("v_bfe_u32 v6, v2, 2, 2")
    e("v_and_b32 v7, 3, v2")
    e("v_bfe_u32 v5, v2, 2, 3")
    e("v_lshl_add_u32 v8, v4, 3, v6")
    e("v_lshlrev_b32 v9, 5, v5")
    e("v_lshl_add_u32 v9, v7, 3, v9")
    e("v_lshl_add_u32 v9, v8, 8, v9")
    e("v_lshl_add_u32 v8, v8, 8, v9")
    e(f"v_add_u32 v{vVr}, 0x10000, v8")
    for w in (2, 0, 1):
        e(f"v_add_u32 v{vWr+8*w}, {w*65536}, v9")
        for T in range(1, 8): e(f"v_xor_b32 v{vWr+8*w+T}, {T<<5}, v{vWr+8*w}")
    e("v_lshrrev_b32 v5, 1, v3"); e("v_xor_b32 v5, v5, v4"); e("v_lshlrev_b32 v5, 4, v5")
    e("v_lshl_add_u32 v5, v3, 7, v5")
    e(f"v_add_u32 v{vXr}, s{sWoff}, v5")
    e(f"v_xor_b32 v{vXr+1}, 64, v{vXr}")
    for w in (2, 1):
        e(f"v_add_u32 v{vXr+2*w}, {w*65536}, v{vXr}"); e(f"v_add_u32 v{vXr+2*w+1}, {w*65536}, v{vXr+1}")
    for s, sz in ((sWo, 229376), (sG, (4 << 20) if IOD else 16*114688), (sFl, (4 << 20) if IOD else (4 << WS)), (sDb, 256), (sOut, 128*1792)):
        e(f"s_mov_b32 s{s+2}, {sz}"); e(f"s_mov_b32 s{s+3}, 0x00020000")
    if OPT["rwo"] == 0: e(f"s_cmp_eq_u32 s{sB}, 7"); e(f"s_cselect_b32 s3, 0, s{sB}")
    elif OPT["rwo"] == 1: e(f"s_and_b32 s3, s{sB}, 6")
    elif OPT["rwo"] == 2: e(f"s_lshr_b32 s3, s{sB}, 1")
    elif OPT["rwo"] == 3: e(f"s_mul_i32 s3, s{sBLK}, 3")
    elif OPT["rwo"] == 4: e(f"s_and_b32 s3, s{sB}, 1")
    e(f"s_lshl_b32 s{sWooff}, s3, 7")
    if IOD:
        e(f"s_lshl_b32 s{sStA}, s3, 12"); e("s_lshr_b32 s3, s3, 1"); e("s_lshl_b32 s3, s3, 13"); e(f"s_add_u32 s{sNP0}, s{sStA}, s3")
    else:
        e(f"s_lshl_b32 s{sStA}, s3, 12")
        e(f"s_mov_b32 s{sNP0}, s{sStA}")
    e(f"s_mul_i32 s3, s{sH}, 229376")
    e(f"s_add_u32 s{sWo}, s74, s3"); e(f"s_addc_u32 s{sWo+1}, s75, 0")
    e(f"s_lshl_b32 s46, s{sBLK}, 3")
    e(f"s_add_u32 s46, s46, s{sB}")
    if IOD:
        e(f"s_mov_b32 s{sFl}, s{sG}"); e(f"s_mov_b32 s{sFl+1}, s{sG+1}")
    else:
        e(f"s_mul_i32 s3, s46, {16*114688}")
        e(f"s_add_u32 s{sG}, s{sWsP}, s3"); e(f"s_addc_u32 s{sG+1}, s{sWsP+1}, 0")
        e(f"s_lshl_b32 s3, s46, {WS + 2}")
        e(f"s_add_u32 s3, s3, {FLAGS_OFF}")
        e(f"s_add_u32 s{sFl}, s{sWsP}, s3"); e(f"s_addc_u32 s{sFl+1}, s{sWsP+1}, 0")
    e(f"s_mov_b32 s{sDb}, s78"); e(f"s_mov_b32 s{sDb+1}, s79")
    e(f"s_mul_i32 s3, s{sB}, {128*1792}")
    e(f"s_add_u32 s{sOut}, s76, s3"); e(f"s_addc_u32 s{sOut+1}, s77, 0")
    e(f"s_mov_b32 s{sC}, {f32hex(SCALE)}")
    e(f"s_mov_b32 s{sThr}, {f32hex(OPT['thr'])}")
    e(f"s_mov_b32 s{sTlo}, {f32hex(OPT['tlo'])}")
    e(f"s_mov_b32 s{sSpin}, 0x8000")
    if OPT["rot"]:
        rm, rs, rk = [int(x) for x in OPT["rot"].split(",")]
        e(f"s_mul_i32 s77, s2, {rm}"); e(f"s_lshr_b32 s77, s77, {rs}"); e(f"s_and_b32 s77, s77, {rk}"); e("s_lshl_b32 s77, s77, 14")
    if OPT["TA"] >= 0:
        e(f"s_cmp_ge_u32 s{sW}, 2")
        e(f"s_cselect_b32 s{sPf}, s{sV}, s{sK}"); e(f"s_cselect_b32 s{sPf+1}, s{sV+1}, s{sK+1}")
        e(f"s_cselect_b32 s{sPfo}, {OPT['T0']-1}, {OPT['T0']}"); e(f"s_lshl_b32 s{sPfo}, s{sPfo}, 14")
        e(f"s_mov_b32 s{sPf+2}, 262144"); e(f"s_mov_b32 s{sPf+3}, 0x00020000")
        e(f"s_and_b32 s3, s{sW}, 1"); e("s_lshl_b32 s3, s3, 13")
        e(f"v_lshl_add_u32 v{vPf}, v2, 7, s3")
    if OPT["diag"]:
        e("s_getreg_b32 s3, hwreg(HW_REG_XCC_ID, 0, 4)")
        e("s_sub_u32 s3, s3, s2"); e("s_and_b32 s3, s3, 7"); e("s_lshl_b32 s3, 1, s3")
        e("v_mov_b32 v5, s3"); e("v_lshlrev_b32 v8, 12, v0"); e("v_add_u32 v8, 128, v8")
        e(f"buffer_atomic_or v5, v8, s[{sDb}:{sDb+3}], 0 offen sc1", "pf")
    if OPT["org"]:
        e("v_not_b32 v5, s100"); e("v_lshlrev_b32 v8, 12, v0")
        e(f"buffer_atomic_umax v5, v8, s[{sDb}:{sDb+3}], 0 offen offset:64 sc1", "pf")
    stamp(a, 1)
    late = []
    l = late.append
    l("v_lshrrev_b32 v5, 5, v2"); l("v_and_b32 v9, 31, v2")
    l("v_lshlrev_b32 v8, 9, v5"); l(f"v_add_u32 v8, s{sWoff}, v8")
    l(f"s_lshl_b32 s3, s{sW}, 2")
    l("v_xor_b32 v1, v9, v5"); l("v_xor_b32 v1, s3, v1")
    l(f"v_lshl_add_u32 v{vKd}, v1, 4, v8")
    l(f"v_xor_b32 v{vKd+1}, 32, v{vKd}")
    l(f"s_and_b32 s3, s{sW}, 1"); l("s_lshl_b32 s3, s3, 3")
    l("v_lshlrev_b32 v5, 1, v5"); l("v_xor_b32 v1, v9, v5"); l("v_xor_b32 v1, s3, v1")
    l(f"v_lshl_add_u32 v{vVd}, v1, 4, v8")
    l(f"v_xor_b32 v{vVd+1}, 64, v{vVd}")
    if not IOD: l(f"s_mul_i32 s3, s{sW}, 28672"); l(f"s_mul_i32 s44, s{sH}, 114688"); l("s_add_u32 s3, s3, s44")
    l("v_lshl_add_u32 v5, v3, 2, v4")
    l(f"v_lshl_add_u32 v{vSt}, v5, 4, {'s47' if IOD else 's3'}")
    if OPT["LM"] or OPT["LQ"]: l("v_lshl_add_u32 v63, v2, 6, s3")
    for T in range(1, 8): l(f"v_xor_b32 v{vVr+T}, {T<<5}, v{vVr}")
    if OPT["CLR"] < 14:
        for r in range(4): l(f"v_mov_b32 v{vE+8+r}, -1")
    if OPT["wow"] >= 0:
        l(f"s_mul_i32 s3, s{sB}, 28672"); l(f"v_lshl_add_u32 v63, v0, 7, s3")
    if IOD:
        assert OPT["t2"] and OPT["NS"] == 0 and not OPT["late"] and not OPT["ad"]
        assert FS <= 7
        l(f"s_lshl_b32 s3, s{sW}, 20"); l(f"s_lshl_b32 s44, s{sH}, {FS}"); l("s_add_u32 s3, s3, s44"); l(f"s_add_u32 s3, s3, {HOLE}")
        l("v_and_b32 v5, 1, v2"); l("v_lshrrev_b32 v8, 1, v2")
        if not OPT["fl2"]: l("v_mov_b32 v8, v2")
        l("v_lshlrev_b32 v8, 22, v8"); l("v_lshl_add_u32 v5, v5, 13, v8")
        l(f"v_add_u32 v{vFl}, s3, v5")
        l("v_lshl_add_u32 v5, v7, 2, v4")
        l(f"s_lshr_b32 s3, s{sH}, 2"); l(f"s_lshl_b32 s3, s3, 20"); l(f"s_add_u32 s3, s3, {HOLE}")
        l(f"v_lshl_add_u32 v{vFp}, v5, {FS}, s3")
        l(f"v_mov_b32 v8, {7 << FSH}")
        l(f"v_cmp_eq_u32 vcc, s{sH}, v5"); l("s_nop 0"); l(f"v_cndmask_b32 v{vDV}, 0, v8, vcc")
        l(f"v_lshlrev_b32 v5, {FS}, v3"); l(f"v_lshl_add_u32 v5, v4, 20, v5")
        l([f"s_or_b32 s3, s{sH}, s{sW}", "s_cmp_eq_u32 s3, 0", "s_cselect_b32 s45, 0, 0x400000"])
        l(f"s_add_u32 s3, s45, {HOLE}"); l(f"s_add_u32 s44, s45, {HOLE + 8192}")
        l(f"v_mov_b32 v{vL}, 0"); l(f"v_mov_b32 v{vL+1}, 0")
        l("v_add_u32 v8, s44, v5"); l("v_add_u32 v5, s3, v5")
        l((f"buffer_store_dword v{vL}, v5, s[{sFl}:{sFl+3}], 0 offen {OPT['clr_pol']}", "clr"))
        l((f"buffer_store_dword v{vL}, v8, s[{sFl}:{sFl+3}], 0 offen {OPT['clr_pol']}", "clr"))
    else:
        l(f"s_lshl_b32 s3, s{sW}, {WS}"); l(f"s_lshl_b32 s44, s{sH}, {FS}"); l("s_add_u32 s3, s3, s44")
        l(f"v_lshl_add_u32 v{vFl}, v2, 16, s3")
        l(f"v_lshlrev_b32 v5, {FS}, v3")
        l(f"s_lshr_b32 s3, s{sH}, 2"); l(f"s_lshl_b32 s3, s3, {WS}")
        l(f"v_add_u32 v{vFp}, s3, v5")
        if OPT["t2"]:
            l(f"v_cmp_eq_u32 vcc, s{sH}, v3"); l("s_nop 0"); l(f"v_cndmask_b32 v{vDV}, 0, 7, vcc")
        if OPT["fpat"]:
            l(f"v_lshl_add_u32 v{vFp}, v4, 16, v{vFp}")
            l("v_cmp_lt_u32 vcc, 0, v4"); l("s_nop 0"); l(f"v_cndmask_b32 v{vDV}, v{vDV}, 7, vcc")
        l(f"v_lshl_add_u32 v5, v4, {WS}, v5")
        l([f"s_or_b32 s3, s{sH}, s{sW}", "s_cmp_eq_u32 s3, 0", "s_cselect_b32 s45, 0, 0x10000"])
        l("v_add_u32 v5, s45, v5")
        l(f"v_mov_b32 v{vL}, 0"); l(f"v_mov_b32 v{vL+1}, 0")
        l((f"buffer_store_dword v{vL}, v5, s[{sFl}:{sFl+3}], 0 offen {OPT['clr_pol']}", "clr"))
    l(f"s_lshl_b32 s44, s46, {4 if OPT['near'] else 2}"); l("s_add_u32 s45, s45, s44")
    if OPT["near"]:
        assert not OPT["pace"]
        l("s_getreg_b32 s100, hwreg(HW_REG_XCC_ID, 0, 4)")
        l("s_mul_i32 s101, s100, s100"); l("s_lshl_b32 s101, s101, 8"); l("s_add_u32 s101, s101, s100")
        l("s_lshl_b32 s101, s101, 8"); l("s_add_u32 s101, s101, 1")
        l("v_mov_b32 v5, s101"); l("v_lshl_add_u32 v8, v0, 12, s44")
        l((f"buffer_atomic_add v5, v8, s[{sDb}:{sDb+3}], 0 offen offset:4 sc1", "pf"))
        l("s_lshl_b32 s101, s101, 4")
    l(f"v_lshl_add_u32 v{vDbA}, v2, 12, s45")
    l(f"v_mov_b32 v{vDbV}, s44")
    l(f"v_mov_b32 v{vFv}, 1")
    l("v_lshrrev_b32 v5, 1, v4"); l("v_and_b32 v8, 1, v4"); l("v_lshl_add_u32 v5, v8, 1, v5")
    l("v_xor_b32 v5, v5, v3"); l("v_lshlrev_b32 v5, 4, v5")
    l("v_lshl_add_u32 v8, v6, 3, v7")
    l(f"v_lshl_add_u32 v{vKr}, v8, 9, v5")
    for s in range(1, 4): l(f"v_xor_b32 v{vKr+s}, {s<<6}, v{vKr}")
    l("v_lshrrev_b32 v5, 2, v2"); l("v_lshlrev_b32 v5, 7, v5")
    l("v_bfe_u32 v8, v2, 3, 2"); l("v_lshl_add_u32 v5, v8, 5, v5")
    l("v_lshl_add_u32 v5, v7, 3, v5")
    l(f"v_add_u32 v{vWor}, 0x20000, v5")
    for n in range(1, 4): l(f"v_xor_b32 v{vWor+n}, {n<<5}, v{vWor}")
    l("v_and_b32 v8, 7, v2"); l("v_lshlrev_b32 v9, 1, v4"); l("v_xor_b32 v8, v8, v9")
    l(f"v_lshl_add_u32 v{vWod}, v8, 4, v{vWod}")
    for jj in range(1, 4): l(f"v_add_u32 v{vWod+jj}, {jj*(7168-1024)}, v{vWod}")
    for r in range(8): l(f"v_mov_b32 v{vNM+r}, 0")
    if NP:
        l(f"v_lshl_add_u32 v{vUp}, v2, 4, s{sWoff}"); l(f"v_add_u32 v{vUp+1}, 0x10000, v{vUp}")
    l(f"s_lshr_b32 s44, s{sH}, 2"); l(f"s_mul_i32 s3, s44, {(1 << 20) if IOD else 28672}")
    l(f"s_and_b32 s45, s{sH}, 3"); l("s_lshl_b32 s45, s45, 10"); l("s_add_u32 s3, s3, s45")
    l(f"s_lshl_b32 s45, s{sW}, 8"); l("s_add_u32 s3, s3, s45")
    l(f"v_mul_u32_u24 v5, {65536 if IOD else 114688}, v4"); l("v_lshl_add_u32 v5, v3, 4, v5")
    l(f"v_add_u32 v{vRd}, s3, v5")
    l("s_lshl_b32 s3, s44, 5"); l(f"s_and_b32 s45, s{sH}, 1"); l("s_lshl_b32 s45, s45, 4"); l("s_add_u32 s3, s3, s45")
    l(f"s_lshl_b32 s45, s{sW}, 2"); l("s_add_u32 s3, s3, s45"); l("s_mul_i32 s3, s3, 1792")
    l(f"s_mul_i32 s45, s{sBLK}, 896"); l("s_add_u32 s3, s3, s45")
    l(f"s_and_b32 s45, s{sH}, 2"); l("s_lshl_b32 s45, s45, 5"); l("s_add_u32 s3, s3, s45")
    l("v_mul_u32_u24 v5, 1792, v6"); l("v_lshl_add_u32 v5, v7, 3, v5")
    l("v_and_b32 v8, 1, v4"); l("v_lshl_add_u32 v5, v8, 5, v5")
    l("v_lshrrev_b32 v8, 1, v4"); l("v_lshl_add_u32 v5, v8, 24, v5")
    l(f"v_add_u32 v{vRo}, s3, v5")
    l("v_and_b32 v5, 1, v2"); l("v_lshlrev_b32 v5, 4, v5"); l("v_mov_b32 v8, 0x3f80"); l("v_lshlrev_b32 v5, v5, v8")
    l("v_bfe_u32 v8, v2, 1, 2")
    for r in range(4):
        l(f"v_cmp_eq_u32 vcc, {r}, v8"); l("s_nop 0"); l(f"v_cndmask_b32 v{vSel+r}, 0, v5, vcc")

    if OPT["ad"]:
        assert not OPT["late"]
        l("s_lshr_b32 s3, s2, 3"); l(f"s_and_b32 s3, s3, {OPT['adM']}"); l("s_lshl_b32 s3, s3, 16")
        l("s_and_b32 s44, s2, 7"); l("s_lshl_b32 s44, s44, 2"); l("s_add_u32 s3, s3, s44")
        l("v_lshl_add_u32 v1, v0, 7, s3")
        l(f"v_cmp_le_u32 vcc, {OPT['adW']}, v0"); l("v_mov_b32 v3, 0x10000"); l("v_cndmask_b32 v3, 0, v3, vcc")
        l("v_add_u32 v1, v1, v3")
        l("s_lshl_b32 s3, s2, 16"); l("v_lshl_add_u32 v3, v0, 4, s3")
        l("s_mov_b32 s99, s100")
        for r in range(4): l(f"v_mov_b32 v{4+r}, 0")
        for r in range(8): l(f"s_mov_b32 s{64+r}, 0")
        assert not OPT["trace"]
    if PACE2: l(f"s_lshr_b32 s79, s{sB}, {OPT['clsh']}"); l(f"s_and_b32 s79, s79, {OPT['clm']}")
    if IOD:
        NPR = OPT["npr"]
        if OPT["iodf"] >= 0:
            l(f"s_lshr_b32 s3, s{sW}, 1"); l(f"s_xor_b32 s3, s3, s{sBLK}"); l(f"s_xor_b32 s3, s3, {OPT['iodf']}"); l(f"s_lshl_b32 s{sSel}, s3, 13")
        elif OPT["prn"]:
            assert not PACE2 and OPT["prNW"] <= 4 and not OPT["prw"]
            l("v_and_b32 v5, 1, v2"); l("v_bfe_u32 v8, v2, 1, 2"); l("v_lshrrev_b32 v9, 3, v2")
            l("v_lshlrev_b32 v5, 13, v5"); l("v_lshl_add_u32 v5, v8, 9, v5"); l("v_lshl_add_u32 v5, v9, 22, v5")
            l(f"s_add_u32 s3, s47, {HOLE + 2048}"); l("v_add_u32 v5, s3, v5")
            l((f"buffer_store_dword v{vL}, v5, s[{sG}:{sG+3}], 0 offen sc1", "pf"))
            l("s_mov_b32 s66, 0"); l("s_mov_b32 s67, 0"); l("s_mov_b32 s79, 0")
        elif OPT["prH"]:
            l("s_mov_b32 s78, 0x9e3779b9"); l("s_mov_b32 s79, 0")
            assert not OPT["trace"] and not PACE2
        else:
            pr = ["s_mov_b32 s47, 0x9e3779b9"] + [f"s_mov_b32 s{66+k}, s47" for k in range(2*NPR)]
            if OPT["prw"]: pr.append("s_waitcnt lgkmcnt(0)")
            for k in range(NPR):
                ab = [f"s_load_dword s{66+2*k+x}, s[64:65], {HOLE + 2048 + (2*k+x)*256 + x*8192}" for x in range(2)]
                pr += ab if k % 2 == 0 else ab[::-1]
            k0 = len(late) - OPT["prp"]
            assert k0 > [i for i, x in enumerate(late) if "s47" in str(x)][-1]
            late[k0:k0] = pr
            l("s_mov_b32 s3, 0")
            l(f"s_waitcnt lgkmcnt({NPR})")
            for k in range(NPR):
                l(f"s_cmp_eq_u32 s{66+2*k}, s47"); l("s_addc_u32 s3, s3, 0")
                l(f"s_cmp_eq_u32 s{67+2*k}, s47"); l("s_subb_u32 s3, s3, 0")
            l("s_cmp_gt_i32 s3, 0")
            l(f"s_cselect_b32 s{sSel}, 0x2000, 0")
            if IOD == 2: l(f"s_mov_b32 s{sStamp+3}, s3")
    items = []
    fill = defaultdict(list)
    def add(p, ins):
        fill[p].extend(ins if isinstance(ins, list) else [ins])
    load = defaultdict(float, BASE or {})
    def spread(p0, p1, ins):
        n = p1 - p0 + 1
        if not OPT["wf"]:
            for k, s in enumerate(ins): add(p0 + (k*n)//len(ins), [s])
            return
        if BASE is None: return
        tot = cost(ins)
        lo, hi = 0.0, 100.0
        for _ in range(40):
            L = (lo + hi)/2
            if sum(max(0.0, L - load[p]) for p in range(p0, p1 + 1)) >= tot: hi = L
            else: lo = L
        k, bud = 0, 1e-6
        for p in range(p0, p1 + 1):
            bud += max(0.0, hi - load[p])
            while k < len(ins) and (bud >= cost(ins[k])/2 or p == p1):
                add(p, [ins[k]]); load[p] += cost(ins[k]); bud -= cost(ins[k]); k += 1
    if OPT["late"]: spread(0, 16*6, late)
    else:
        for s in late:
            for x in (s if isinstance(s, list) else [s]): e(x)
    if OPT["pfp"] == 2: touch0()
    while iss[ip[0]][0] < 0:
        m = iss[ip[0]][1]; ip[0] += 1
        assert alloc(m, 0)
        for g in dma(m):
            for s in g: e(s)
    if OPT["pfp"] == 3: touch0()
    def visit(k0, n):
        def f(a):
            a.e("s_mov_b64 exec, 0")
            for w in range(1, n):
                a.e(f"s_cmp_eq_u32 s{sW}, {w}"); a.e(f"s_cbranch_scc1 L_pg{k0+w}")
            a.e(f"s_branch L_pg{k0}")
            a.lab(f"L_pgr{k0}")
            a.e("s_mov_b64 exec, -1")
            a.e("s_nop 3")
        f.cost = 8
        return f
    for x in PG:
        if x[0] < 0: visit(x[1], x[2])(a)
        else: add(int(16*x[0]), [visit(x[1], x[2])])
    if IOD:
        PRH = [int(x) for x in OPT["prH"].split(",")] if OPT["prH"] else []
        psel = 16*max(PRH) if PRH else 20
        if OPT["prn"]:
            for k in range(OPT["prNW"]):
                p0 = 16*(OPT["prH0"] + OPT["prLW"]*k) + OPT["pro"]
                for w in range(4):
                    def race(a, k=k, w=w):
                        a.e(f"s_cmp_lg_u32 s{sW}, {w}"); a.e(f"s_cbranch_scc1 L_npr{k}_{w}")
                        a.e("s_mov_b64 s[66:67], -1")
                        for x in range(2): a.e(f"s_load_dword s{66+x}, s[64:65], {HOLE + 2048 + k*512 + (x ^ (k & 1))*8192}")
                        a.lab(f"L_npr{k}_{w}")
                    race.cost = 3
                    add(p0 + w*OPT["prstg"], [race])
                for p in range(p0 + 4, p0 + 16*OPT["prLW"], OPT["prsm"]):
                    add(p, [["s_cmp_lg_u32 s66, s67", f"s_{'addc' if k & 1 else 'subb'}_u32 s79, s79, 0"]])
            psel = p0 + 16*OPT["prLW"] + 1
            add(psel - 1, [["s_cmp_gt_i32 s79, 0", f"s_cselect_b32 s{sSel}, 0x2000, 0"] + ([f"s_mov_b32 s{sStamp+3}, s79"] if IOD == 2 else [])])
        add(psel, [[f"v_add_u32 v{vSt}, s{sSel}, v{vSt}"]])
        if OPT["fl2"]: add(psel + 1, [[f"s_lshr_b32 s44, s{sH}, 2", f"s_xor_b32 s44, s44, s{sW}", "s_lshl_b32 s44, s44, 12", f"s_xor_b32 s44, s44, s{sSel}", "s_and_b32 s44, s44, 0x2000", f"v_add_u32 v{vFp}, s44, v{vFp}"]])
    def p1item(H, i, T, kap):
        half, c = i // 7, i % 7
        n = uidx[("W", i)]
        mf = []
        for u in range(2):
            acc = acc_of(vO, 8*half + T, u)
            cin = "0" if (c == 0 and kap == 0) else q4(acc)
            mf.append(f"{MF} {q4(acc)}, a[{{b}}:{{b3}}], {q4(aX + 16*c + 8*kap + 4*u, 'a')}, {cin}")
        rd = tr_reads("W", T, n, kap*8192, kap*8192 + 1024)
        if i < 7 and T == 0:
            rd = [("ds_read_b128", q4(aX + 16*c + 8*kap + 4*u, "a"), "X", kap, uidx[("X", c)], u*2048) for u in range(2)] + rd
        items.append(Item(H, mf, rd))
    done_at = {}
    for H in range(14):
        if OPT["j2"] and H >= 12:
            for T in range(4*(H-12), 4*(H-12)+4):
                for i in (12, 13):
                    for kap in range(2): p1item(H, i, T, kap)
                done_at[4 + T//2] = len(items) - 1
        else:
            for T in range(8):
                for kap in range(2): p1item(H, H, T, kap)
                if H % 7 == 6: done_at[4*(H//7) + T//2] = len(items) - 1
    def qconv(s):
        t = []
        R = [vO + 16*s, vO + 16*s + 8]
        for r in R:
            for j in range(0 if OPT["sms"] else 8): t.append(f"v_mul_f32 v{r+j}, s{sC}, v{r+j}")
        for r in R:
            for j in range(4): t.append(f"v_cvt_pk_bf16_f32 v{r+j}, v{r+2*j}, v{r+2*j+1}")
        for r in R:
            t += [f"v_permlane16_swap_b32 v{r}, v{r+2}", f"v_permlane16_swap_b32 v{r+1}, v{r+3}"]
        for u, r in enumerate(R):
            for j in range(4): t.append(f"v_accvgpr_write_b32 a{aQ+8*s+4*u+j}, v{r+j}")
        return t
    t = []
    for s in range(4): t += qconv(s)
    spread(7*16 + 2, 12*16 + 6, t)
    if OPT["j2"]:
        lim = [(done_at[4]+2, done_at[4]+12), (done_at[4]+13, done_at[6]+1), (done_at[6]+2, done_at[6]+11), (done_at[6]+12, 14*16+12)]
    else:
        lim = [(13*16+5+6*k, 13*16+10+6*k) for k in range(4)]
    for k, (p0, p1) in enumerate(lim):
        assert p0 >= done_at[4+k] + 2 and p1 < 14*16 + 2*(4+k) - 1, (k, p0, p1)
        spread(p0, p1, qconv(4 + k))

    def qk(H, n, S):
        for f in range(16):
            s, ee = f >> 1, f & 1
            mf = []
            for u in range(2):
                acc = S + 8*u + 4*ee
                cin = q4(vNM + 4*u) if s == 0 else q4(acc)
                mf.append(f"{MF} {q4(acc)}, a[{{b}}:{{b3}}], {q4(aQ + 8*s + 4*u, 'a')}, {cin}")
            items.append(Item(H, mf, [("ds_read_b128", "a[{b}:{b3}]", "K", s & 3, n, (s >> 2)*256 + ee*2048)]))
    def pv(H, n, P, first):
        for T in range(16):
            mf = []
            for u in range(2):
                acc = acc_of(vO, T, u)
                mf.append(f"{MF} {q4(acc)}, a[{{b}}:{{b3}}], {q4(P + 4*u)}, {'0' if first else q4(acc)}")
            o = (T >> 3)*256
            items.append(Item(H, mf, tr_reads("V", T & 7, n, o, o + 2048)))
    EORD = [0, 1, 2, 3, 8, 9, 10, 11, 4, 5, 6, 7, 12, 13, 14, 15]
    Pb = (vP, vE + 8)
    def softmax(S, par):
        Lo, Ln, P = vL + 2*par, vL + 2*(par ^ 1), Pb[par]
        L = []
        seen = set()
        def addk(i):
            u = EORD[i] >> 3
            src = Ln + u if u in seen else Lo + u
            seen.add(u)
            return f"v_add_f32 v{Ln+u}, v{src}, v{vE+(i&7)}"
        cv = lambda i: f"v_cvt_pk_bf16_f32 v{P+EORD[i]//2}, v{vE+(i&7)}, v{vE+((i+1)&7)}"
        if OPT["sms"]: L.append(f"v_mul_f32 v{vE}, s{sC}, v{S+EORD[0]}")
        for i, k in enumerate(EORD):
            if OPT["sms"]:
                if i < 15: L.append(f"v_mul_f32 v{vE+((i+1)&7)}, s{sC}, v{S+EORD[i+1]}")
                L.append(f"v_exp_f32 v{vE+(i&7)}, v{vE+(i&7)}")
            else: L.append(f"v_exp_f32 v{vE+(i&7)}, v{S+k}")
            if i >= 1: L.append(addk(i-1))
            if i >= 2 and i % 2 == 0: L.append(cv(i-2))
        L += [addk(15), cv(14)]
        return L
    lblc = [0]
    def check(t):
        lblc[0] += 1
        k = lblc[0]
        Ln = vL + 2*((t & 1) ^ 1)
        nm = "L_fix0" if t == 0 else f"L_fixp{t & 1}"
        def f(a):
            a.e(f"v_max_f32 v{vT0}, v{Ln}, v{Ln+1}")
            if t == 0:
                a.e(f"v_min_f32 v{vT0+1}, v{Ln}, v{Ln+1}")
                a.e(f"v_cmp_lt_f32 vcc, s{sThr}, v{vT0}")
                a.e(f"v_cmp_gt_f32 s[44:45], s{sTlo}, v{vT0+1}")
                a.e("s_or_b64 s[44:45], s[44:45], vcc")
                a.e(f"s_cbranch_scc0 L_nm{k}")
            else:
                a.e(f"v_cmp_lt_f32 vcc, s{sThr}, v{vT0}")
                a.e(f"s_cbranch_vccz L_nm{k}")
            a.e(f"s_call_b64 s[{sRet}:{sRet+1}], {nm}")
            a.lab(f"L_nm{k}")
        f.after2 = (t == 15)
        f.cost = 3
        return f
    H = 14
    qk(H, 21, vSb[0]); H += 1
    qk(H, 22, vSb[1])
    add(16*H + 15, [check(0)])
    spread(16*H + 1, 16*H + 14, softmax(vSb[0], 0))
    H += 1
    for t in range(1, 16):
        n = uidx[("V", t-1)]
        assert consumed[n] == H
        pv(H, n, Pb[(t-1) & 1], t == 1)
        p0 = 16*H
        H += 1
        if t <= 14:
            n = uidx[("K", t+1)]
            assert consumed[n] == H
            qk(H, n, vSb[(t+1) & 1])
            H += 1
        add(16*H - 1, [check(t)])
        spread(p0 + 1, 16*H - 2, softmax(vSb[t & 1], t & 1))
    n = uidx[("V", 15)]
    assert consumed[n] == H and H == 45
    pv(H, n, Pb[1], False)
    L0, L1 = vL, vL + 1
    fin = [f"v_permlane32_swap_b32 v{L0}, v{L1}", f"v_add_f32 v{L0}, v{L0}, v{L1}", f"v_mov_b32 v{L1}, v{L0}",
           f"v_permlane16_swap_b32 v{L0}, v{L1}", f"v_add_f32 v{L0}, v{L0}, v{L1}", f"v_rcp_f32 v{vAl}, v{L0}",
           f"v_mov_b32 v{vAl+1}, v{vAl}", f"v_permlane32_swap_b32 v{vAl}, v{vAl+1}"]
    ON = OPT["onorm"]
    for k, s in enumerate(fin): add((45*16 + k//2) if ON else (47*16 - 12 + k), s)
    p = 16*H + (4 if ON else 3)
    for s in range(8):
        t = []
        R = [vO + 16*s, vO + 16*s + 8]
        if ON:
            for u, r in enumerate(R): t += [f"v_mul_f32 v{r+j}, v{r+j}, v{vAl+u}" for j in range(8)]
        for r in R: t += [f"v_cvt_pk_bf16_f32 v{r+j}, v{r+2*j}, v{r+2*j+1}" for j in range(4)]
        w = 5 if ON else 3
        assert p >= 16*H + 2*s + 3 and p + w - 1 <= 16*H + 16 + 4*s - 1
        spread(p, p + w - 1, t)
        p += w
    H += 1
    def epilogue(acc, so, q, j):
        u = q & 1
        g = [] if ON else [f"v_mul_f32 v{acc+r}, v{acc+r}, v{vAl+u}" for r in range(8)]
        dst = vO + 8*(4*j + q) + 4 if j < OPT["hold"] else acc
        g += [f"v_cvt_pk_bf16_f32 v{dst+jj}, v{acc+2*jj}, v{acc+2*jj+1}" for jj in range(4)]
        offs = f" offset:{q*1024}" if q else ""
        near = 4*j + q >= 28 - 4*OPT["LM"] - OPT["LQ"]
        st = (f"buffer_store_dwordx4 {q4(dst)}, v{vSt}, s[{sG}:{sG+3}], s{so} offen{offs} {OPT['lm_pol'] if near else OPT['st_pol']}", f"st{j}")
        if OPT["noval"]: g = []
        if j < OPT["hold"]: held.append(st)
        elif not OPT["nost"]: g.append(st)
        return g
    held = []
    NS = OPT["NS"]
    SN = OPT["SN"]
    pubs = [int(x) for x in OPT["pub"].split(",")]
    assert pubs[-1] == 7 - NS
    far = []
    def flagst(a, tag):
        st = f"buffer_store_dword v{vFv}, v{vFl}, s[{sFl}:{sFl+3}], 0 offen "
        if not OPT["near"]: return a.e(st + OPT["fl_pol"], tag)
        k = len(far)
        far.append(st + "sc1")
        a.e("s_cmp_lg_u32 s100, s101")
        a.e(f"s_cbranch_scc1 L_far{k}")
        a.e(st, tag)
        a.lab(f"L_bk{k}")
    def publish(cnt):
        def f(a):
            a.wait_vm({f"st{j}" for j in range(min(cnt, 7 - SN))} | {"sen"})
            if IOD:
                a.e(f"s_or_b32 s44, s{sSel}, {(cnt << FSH) | (63 if OPT['fc'] else 0)}")
                a.e(f"v_mov_b32 v{vFv}, s44")
            else: a.e(f"v_mov_b32 v{vFv}, {cnt}")
            flagst(a, "pub")
        return f
    late_pubs = []
    hpos = lambda k: OPT["HP"] + (OPT["HE"] - OPT["HP"])*k/(4*OPT["hold"] - 1)
    for j in range(7):
        so = 8 + j if j else sNP0
        so2 = 9 + j
        A = vAcc + 32*(j & 1)
        for hf in range(2):
            n = uidx[("O", 2*j+hf)]
            assert consumed[n] == H
            order = [(nn, s4) for nn in range(4) for s4 in range(4)]
            if j == 0: order = [(nn, s4) for s4 in range(4) for nn in range(4)]
            for (nn, s4) in order:
                s = 4*hf + s4
                mf = []
                for u in range(2):
                    acc = acc_of(A, nn, u)
                    mf.append(f"{MF} {q4(acc)}, a[{{b}}:{{b3}}], {q4(vO + 16*s + 8*u)}, {'0' if s == 0 else q4(acc)}")
                items.append(Item(H, mf, tr_reads("O", nn, n, s4*4096, s4*4096 + 2048)))
            H += 1
        pend = 16*H
        g0 = epilogue(A, so, 0, j) + epilogue(A + 8, so, 1, j)
        g1 = epilogue(A + 16, so, 2, j) + epilogue(A + 24, so, 3, j)
        if j < 6:
            spread(pend - 7 if j else pend + 1, pend + 8, g0)
            spread(pend + 9, pend + 23, g1)
            if IOD:
                add(pend - 10, [[f"s_add_u32 s{so2}, s{so}, 4096", f"s_and_b32 s3, s{so2}, 8192", f"s_add_u32 s{so2}, s{so2}, s3"]])
                add(pend - 8, [[f"s_cmp_eq_u32 s{so2}, {HOLE}", f"s_cselect_b32 s{so2}, 0, s{so2}"]])
            else: add(43*16 + 8 + 2*j if OPT["LM"] or OPT["LQ"] else pend - 8, [[f"s_add_u32 s{so2}, s{so}, 4096", f"s_cmp_eq_u32 s{so2}, 28672", f"s_cselect_b32 s{so2}, 0, s{so2}"]])
        else:
            spread(pend - 7, pend - 1, g0)
            tail_epi = g1
        if 4*j + 3 >= 28 - 4*OPT["LM"] - OPT["LQ"]:
            assert not IOD and not OPT["nB"] > OPT["nA"]
            add(max(44*16 + 8 + j, int(pend - 8 - 16*OPT["PT"])), [(f"buffer_load_dword a{144 + j}, v63, s[{sG}:{sG+3}], s{so} offen", "pf")])
        if j + 1 in pubs:
            pp = pend + 25 + 16*OPT["PUBD"]
            if OPT["hold"]: pp = max(pp, int(16*(hpos(4*min(j + 1, OPT["hold"]) - 1) + OPT["PUBD"])) + 1)
            if j == 6 and OPT["HNT"]: pp = OPT["HNT"]
            if pp < 960 - 2: add(pp, [publish(j + 1)])
            else: late_pubs.append(j + 1)
    for k, st in enumerate(held):
        assert 16*hpos(k) > 16*(48 + 2*(k//4)) + (9 if k % 4 < 2 else 24)
        add(int(16*hpos(k)), [st])
    N = len(items)
    assert N == 960
    for p in range(N):
        if p % 16 == 0: items[p].first = True
    p = int(16*OPT["CLR"])
    for j in range(7 - NS, 7):
        add(p, [[f"s_add_u32 s44, s{sNP0}, {j*4096}", "s_cmp_ge_u32 s44, 28672", "s_cselect_b32 s45, 28672, 0", "s_sub_u32 s44, s44, s45"]])
        for q in range(4):
            offs = f" offset:{q*1024}" if q else ""
            add(p + 1 + q*OPT["CLS"], [(f"buffer_store_dwordx4 {q4(vE + 8) if OPT['CLR'] < 14 else q4(aSen, 'a')}, v{vSt}, s[{sG}:{sG+3}], s44 offen{offs} {OPT['st_pol']}", "sen")])
        p += 4*OPT["CLS"]
    assert p < 53*16
    if SN:
        assert IOD and not NP and p > psel + 1 and p > 15*16
        spread(p - 6, p - 1, [f"v_accvgpr_write_b32 a{aSen+r}, -1" for r in range(4)])
        for j in range(7 - SN, 7):
            add(p - 1, [[f"s_add_u32 s{sStB}, s{sStA}, {j*4096}", f"s_cmp_ge_u32 s{sStB}, 28672", "s_cselect_b32 s45, 28672, 0"]])
            add(p, [[f"s_sub_u32 s{sStB}, s{sStB}, s45", f"s_and_b32 s45, s{sStB}, 0x6000", f"s_add_u32 s{sStB}, s{sStB}, s45"]])
            for q in range(4):
                offs = f" offset:{q*1024}" if q else ""
                add(p + 1 + q*OPT["CLS"], [(f"buffer_store_dwordx4 {q4(aSen, 'a')}, v{vSt}, s[{sG}:{sG+3}], s{sStB} offen{offs} {OPT['st_pol']}", "sen")])
            p += 4*OPT["CLS"]
        assert OPT["CLS"] >= 3 and p <= 16*(60 - 2*SN)
    if NS == 0: pass
    elif OPT["CLR"] >= 14: spread(int(16*OPT["CLR"]) - 5, int(16*OPT["CLR"]) - 1, [f"v_accvgpr_write_b32 a{aSen+r}, -1" for r in range(4)])
    else: assert p < 15*16 and not OPT["late"]
    if OPT["wow"] >= 0:
        add(int(16*OPT["wow"]), [(f"buffer_load_dword a145, v63, s[{sWo}:{sWo+3}], 0 offen", "pf")])
    if OPT["TA"] >= 0:
        nt = OPT["TN"] or 17 - OPT["T0"]
        for k in range(nt):
            pos = int(round(16*(OPT["TA"] + (OPT["TB"] - OPT["TA"])*k/(nt - 1))))
            add(pos, [[f"s_max_i32 s{sTmp2}, s{sPfo}, 0", f"s_min_i32 s{sTmp2}, s{sTmp2}, {15*16384}",
                       (f"buffer_load_dword a144, v{vPf}, s[{sPf}:{sPf+3}], s{sTmp2} offen {OPT['t_pol']}", "pf")] +
                       ([(f"buffer_load_dword a145, v{vPf}, s[{sPf}:{sPf+3}], s{sTmp2} offen offset:64 {OPT['t_pol']}", "pf")] if OPT["TH"] else []) + [
                       f"s_add_u32 s{sPfo}, s{sPfo}, 16384"]])
    def lead(a):
        a.wait_vm({"clr"})
        a.e(f"buffer_store_dword v{vFv}, v{vDbA}, s[{sDb}:{sDb+3}], 0 offen sc1", "sig")
    add(int(16*OPT["SIG"] + 0.5), [lead])
    if OPT["near"]: add(int(16*OPT["CHKL"] + 0.5), [(f"buffer_load_dwordx4 a[148:151], v{vDbV}, s[{sDb}:{sDb+3}], 0 offen sc1", "chk")])
    else: add(int(16*OPT["CHKL"] + 0.5), [(f"buffer_load_dword v{vF}, v{vDbV}, s[{sDb}:{sDb+3}], 0 offen sc1", "chk")])
    def chk(a):
        a.wait_vm({"chk"})
        if OPT["near"]:
            a.e(f"v_accvgpr_read_b32 v{vT0}, a149")
            a.e(f"v_accvgpr_read_b32 v{vF}, a148")
            a.e(f"v_readfirstlane_b32 s100, v{vT0}")
            if OPT["tst"] == 1 and OPT["thr2"].count(",") < 2:
                a.e(f"s_lshl_b32 s{sStamp+6}, s{sSel}, 18"); a.e(f"s_or_b32 s{sStamp+6}, s{sStamp+6}, s100")
        a.e(f"v_cmp_eq_u32 vcc, 0, v{vF}")
        a.e("s_cbranch_vccz L_chk_ok")
        a.e(f"s_call_b64 s[{sRet}:{sRet+1}], L_chk_wait")
        a.lab("L_chk_ok")
    add(int(16*OPT["CHKH"]), [chk])
    if OPT["FT"] >= 0:
        assert OPT["FT"] > OPT["CHKH"]
        add(int(16*OPT["FT"]), [(f"buffer_load_dword a152, v{vFp}, s[{sFl}:{sFl+3}], 0 offen sc1", "pf")])
    selst = [0]
    FCH = [int(x) for x in OPT["fcH"].split(",")] if OPT["fc"] else []
    if IOD:
        def selpub(a, v=0):
            if v:
                a.e(f"s_or_b32 s44, s{sSel}, {v}")
                a.e(f"v_mov_b32 v{vFv}, s44")
            else: a.e(f"v_mov_b32 v{vFv}, s{sSel}")
            flagst(a, "sel")
            selst[0] = 1
        if OPT["fc"]:
            for Hh in range(OPT["fc0"], OPT["fc1"] + 1, OPT["fcP"]):
                pp = 16*Hh - OPT["D"] + 1
                assert pp > int(16*OPT["CHKH"]) and pp > psel + 1
                f = lambda a, Hh=Hh: selpub(a, Hh)
                f.cost = 3
                add(pp, [f])
            for k, Hh in enumerate(FCH):
                add(int(16*(Hh - OPT["fcL"])) - OPT["D"], [(f"buffer_load_dword v{62 + (k & 1)}, v{vFp}, s[{sFl}:{sFl+3}], 0 offen {OPT['fp_pol']}", f"fc{k}")])
                assert (Hh - OPT["fcL"])*16 - OPT["D"] > int(16*OPT["CHKH"])
                assert k < 2 or Hh - OPT["fcL"] > FCH[k-2]
        else: add(int(16*OPT["CHKH"]) + 1, [selpub])
        for x in pubs:
            for y in pubs: assert x | y == max(x, y)
    vD = 192
    def dreg(j, k):
        return q4(16*j + 4*k, "a") if j < 7 - NS - SN else q4(vO + 16*(j - (7 - NS - SN)) + 4*k)
    tsetup = [f"s_mov_b32 s8, s{sNP0}"]
    tsetup_b = [f"s_lshr_b32 s{16+j}, s{8+j}, 5" for j in range(7)]
    if IOD: tsetup_b = [x for j in range(7) for x in (f"s_lshr_b32 s{16+j}, s{8+j}, 6", f"s_and_b32 s3, s{16+j}, 0x40", f"s_add_u32 s{16+j}, s{16+j}, s3")]
    tsetup += [f"v_add_u32 v{vKr+k}, {k*4*(65536 if IOD else 114688)}, v{vRd}" for k in range(1, 4)]
    def ld1(j, k):
        return (f"buffer_load_dwordx4 {dreg(j, k)}, v{vKr+k if k else vRd}, s[{sG}:{sG+3}], s{8+j} offen {OPT['ld_pol']}", f"r{j}")
    vFA, vFB, vNx = 62, 63, 59
    def poll(r, tag):
        if OPT["fpat"]:
            def f(a):
                a.e(f"v_mov_b32 v{r}, 0")
                a.e(f"buffer_atomic_or v{r}, v{vFp}, s[{sFl}:{sFl+3}], 0 offen sc0", tag)
            f.cost = 2
            return f
        return (f"buffer_load_dword v{r}, v{vFp}, s[{sFl}:{sFl+3}], 0 offen {OPT['fp_pol']}", tag)
    if OPT["t2"]:
        assert NS == 0
        spread(866, 900, tsetup)
        nA, nB = OPT["nA"], OPT["nB"]
        if nA:
            add(OPT["spA"], [poll(vFA, "pA")])
            wa = lambda a: a.wait_vm({"pA"})
            wa.cost = 1
            add(OPT["spL"] - 1, [wa])
            L = [ld1(j, k) for j in range(nA) for k in range(4)]
            for i, x in enumerate(L): add(OPT["spL"] + (i*(OPT["spE"] - OPT["spL"]))//len(L), [x])
        if nB > nA: add(OPT["spB"], [poll(vFB, "pB")])
        def pc(a):
            assert not IOD or selst[0] == 2 or OPT["nodma"]
            a.e(poll(vNx, "pC"))
        pc.cost = 1
        add(OPT["spC"], [pc])
        assert not IOD or nA == nB == 0
    elif OPT["early"]:
        add(960 - 40, [(f"buffer_load_dword v{vF}, v{vFp}, s[{sFl}:{sFl+3}], 0 offen {OPT['fp_pol']}", "poll")])
    if OPT["stamps"]:
        add(14*16 - 1, [lambda a: stamp(a, 3)])
        add(46*16 - 1, [lambda a: stamp(a, 4)])

    if OPT["org"]:
        add(int(16*OPT["orgH"]), [(f"buffer_load_dword v{vF}, off, s[{sDb}:{sDb+3}], 0 offset:64 sc1", "org")])
        def org(a):
            a.wait_vm({"org"})
            a.e(f"v_readfirstlane_b32 s74, v{vF}")
            a.e("s_not_b32 s74, s74")
            a.e("s_sub_u32 s75, s100, s74")
            a.e("s_cmp_lt_u32 s75, 300")
            a.e("s_cselect_b32 s100, s74, s100")
        org.cost = 5
        add(16*14 - OPT["D"] + 1, [org])
        assert min(PACE) >= 15
    if OPT["ad"]:
        h0 = min(PACE)
        assert max(pos for (pos, m) in iss if units[m][0] == "X") < 16*3
        add(16*4, [[f"s_add_u32 s{sX}, s{sWsP}, {FLAGS_OFF + (1 << 20)}", f"s_addc_u32 s{sX+1}, s{sWsP+1}, 0", f"s_mov_b32 s{sX+2}, 4096"]])
        add(16*4 + 1, [(f"buffer_store_dwordx4 v[4:7], v3, s[{sX}:{sX+3}], 0 offen sc1", "pf")])
        for k, Hh in enumerate(range(h0, max(PACE), OPT["adS"])):
            pe = 16*Hh - OPT["D"]
            assert (k + 1 + OPT["adW"])*128 <= 4096
            if Hh < OPT["adE"]:
                add(pe + 1, [[f"s_sub_u32 s77, s72, {PACE[Hh] + int(round(100*OPT['adm']))}", "v_mov_b32 v2, s77",
                              (f"buffer_store_dword v2, v1, s[{sX}:{sX+3}], 0 offen offset:{(k+1)*128} sc1", "pf")]])
            if k: add(pe + OPT["adR"], [f"s_load_dwordx8 s[64:71], s[{sX}:{sX+1}], {k*128}"])
        for Hh in range(h0 + OPT["adS"] + OPT["adD"], max(PACE) + 1, OPT["adD"]):
            for q in range(3):
                add(16*Hh - OPT["D"] - 6 + q, [[f"s_max_u32 s78, s{64+3*q}, s{78 if q else 65}", f"s_max_u32 s78, s78, s{66+2*q+(q>0)-(q>1)*0}"] if q == 0 else
                                                [f"s_max_u32 s78, s78, s{65+2*q}", f"s_max_u32 s78, s78, s{66+2*q}"]])
            add(16*Hh - OPT["D"] - 3, [["s_max_u32 s78, s78, s71", "s_sub_u32 s75, s78, s99", f"s_cmp_lt_u32 s75, {OPT['adL']}", "s_cselect_b32 s100, s78, s100"]])
    for Hh in PACE:
        add(16*Hh - OPT["D"] - OPT["pcs"], ["s_memrealtime s[72:73]"])
    D, WEV = OPT["D"], OPT["wev"]
    window = {"K": 0, "V": 1, "O": 2}
    uses = defaultdict(list)
    for i, it in enumerate(items):
        for r in it.reads: uses[r[2]].append((i, r[4]))
    soft_dma = []
    kvq = []
    soft_up = []
    soft_adr = []
    log = []
    cur = []
    def put(s): cur.append(s)
    def set_window(g, w):
        if window[g] == w: return
        base, cnt = GROUPS[g]
        d = (w - window[g]) * 65536
        window[g] = w
        soft_adr.extend((g, k, f"v_add_u32 v{base+k}, {d & 0xffffffff}, v{base+k}") for k in range(cnt))
    def flush_adr(g, k):
        rest = []
        for (gg, kk, s) in soft_adr:
            if gg == g and kk == k: put(s)
            else: rest.append((gg, kk, s))
        soft_adr[:] = rest
    upos = {g: 0 for g in GROUPS}
    rp = [0]
    hbar = [-1]
    issued = set(m for (pos, m) in iss[:ip[0]])
    pend = list(iss[ip[0]:])
    upq = []
    unparked = set()
    areas = []
    if NP:
        areas.append([144, 0, 10000])
        if OPT["pkq"]: areas += [[aQ + 32, 0, lim[0][0] - 2], [aQ + 48, 0, lim[2][0] - 2]]
        areas += [[aX + 16*c, 16*(min(7 + c, 13) + 1) + 1 if c < 5 else 14*16 + 1, 10000] for c in range(7)]
        if NS and 14 <= OPT["CLR"] < 44: areas = [x for x in areas if x[0] != aSen]
        areas = areas[:NP]
    area_of = {}
    cls = lambda m: "P" if units[m][0] in "XW" else units[m][0]
    def next_unit(p, force=None):
        seen = set()
        for k, (pos, m) in enumerate(pend):
            c = cls(m)
            if c in seen: continue
            seen.add(c)
            if force is not None:
                if c != cls(force): continue
            elif pos > p: break
            elif (kvq if isfine(m) else soft_dma): continue
            ok = alloc(m, hbar[0], p)
            if not ok and c in "KV":
                fr = [x for x in areas if x[1] <= p and x[2] > p + 64 and (x[2] == 10000 or units[m][1] < 4)]
                if fr:
                    x = min(fr, key=lambda x: x[2])
                    parked[m] = x[0]; area_of[m] = x; x[1] = 10000; upq.append(m); ok = True
            assert ok or force is None, ("no slot", m, p)
            if not ok: continue
            pend.pop(k)
            issued.add(m)
            log.append((p, "iss", units[m], slot_of.get(m, f"a{parked.get(m)}")))
            if isfine(m): kvq.extend((p + jj*kvstep[m], g) for jj, g in enumerate(dma(m)))
            else: soft_dma.extend(dma(m))
            return True
        return False
    def next_unpark(p, force=None):
        for m in upq:
            if force is not None and m != force: continue
            due = min(16*(needed[m] - OPT["UPD"]) - D, area_of[m][2] - 10)
            if force is None and (p < due or soft_dma_has(m)): continue
            if not alloc(m, hbar[0], p):
                assert force is None and p < area_of[m][2] - 5, ("no slot (unpark)", m, p)
                continue
            upq.remove(m)
            s = slot_of[m]
            log.append((p, "unp", units[m], s))
            for jj in range(4):
                pk = parked[m] + 4*jj
                ins = []
                if jj == 0: ins.append(lambda a, m=m: a.wait_vm({f"u{m}"}))
                ins.append((f"ds_write_b128 v{vUp + s//4}, a[{pk}:{pk+3}] offset:{(s%4)*16384 + jj*1024}", None, f"w{m}"))
                soft_up.append(ins)
            area_of[m][1] = p + 24
            unparked.add(m)
            return True
        return False
    def soft_dma_has(m):
        return any(isinstance(s, tuple) and s[1] == f"u{m}" for g in soft_dma + [x[1] for x in kvq] for s in g)
    def issue(i, p):
        it = items[i]
        if it.first:
            Hh = it.H
            for n in HS[Hh]:
                while n not in issued: next_unit(p, n)
                if soft_dma_has(n):
                    for g in soft_dma: put(g)
                    soft_dma.clear()
                    for x in kvq: put(x[1])
                    kvq.clear()
                if n in parked:
                    if n not in unparked: next_unpark(p, n)
                    for g in soft_up: put(g)
                    soft_up.clear()
            def ev(a, Hh=Hh):
                a.c(f"event H={Hh} needs {[units[n] for n in HS[Hh]]}")
                if OPT["trace"]:
                    if Hh > 0:
                        if OPT["trace"] < 3: a.e(f"v_writelane_b32 v{vTr}, s{sTr+4*((Hh-1)&1)}, {Hh-1}")
                        a.e(f"v_writelane_b32 v{vTr+1}, s{sTr+2+4*((Hh-1)&1)}, {Hh-1}")
                    if OPT["trace"] < 3: a.e(f"{'s_memtime' if OPT['trace'] == 2 else 's_memrealtime'} s[{sTr+4*(Hh&1)}:{sTr+1+4*(Hh&1)}]")
                if Hh in PACE:
                    a.e("s_sub_u32 s74, s72, s100")
                    if PACE2:
                        a.e(f"s_mul_i32 s75, s79, {(PACE2[Hh] - PACE[Hh])//OPT['clm']}")
                        a.e(f"s_add_u32 s75, s75, {PACE[Hh]}")
                        a.e("s_cmp_ge_u32 s74, s75")
                        a.e(f"s_cbranch_scc1 L_pc{Hh}")
                    else:
                        a.e(f"s_cmp_ge_u32 s74, {PACE[Hh]}")
                        a.e(f"s_cbranch_scc1 L_pc{Hh}")
                        a.e(f"s_mov_b32 s75, {PACE[Hh]}")
                    a.e(f"s_call_b64 s[{sRet}:{sRet+1}], L_pace")
                    a.lab(f"L_pc{Hh}")
                if IOD and Hh in PRH:
                    ri = PRH.index(Hh)
                    if OPT["prst"]:
                        a.e(f"s_cmp_lg_u32 s{sW}, {ri & 3}"); a.e(f"s_cbranch_scc1 L_npr{Hh}")
                        ri >>= 2
                        a.e("s_waitcnt lgkmcnt(0)")
                    else:
                        a.e("s_waitcnt lgkmcnt(0)"); a.ldsq = []
                    for k in range(2*NPR): a.e(f"s_mov_b32 s{66+k}, s78")
                    for k in range(NPR):
                        q = ri*NPR + k
                        o = q*OPT["prs"]
                        o = HOLE + 4096 - OPT["prs"] - (o % 8192) - (o // 8192)*16384
                        assert o >= 0 and not HOLE - 256 < o < HOLE + 1280
                        ab = [f"s_load_dword s{66+2*k+x}, s[64:65], {o + x*8192}" for x in range(2)]
                        for x in (ab if q % 2 == 0 else ab[::-1]): a.e(x)
                    a.e(f"s_waitcnt lgkmcnt({NPR if OPT['prk'] < 0 else OPT['prk']})")
                    for k in range(NPR):
                        a.e(f"s_cmp_eq_u32 s{66+2*k}, s78"); a.e("s_addc_u32 s79, s79, 0")
                        a.e(f"s_cmp_eq_u32 s{67+2*k}, s78"); a.e("s_subb_u32 s79, s79, 0")
                    if OPT["prst"]: a.lab(f"L_npr{Hh}")
                    if Hh == max(PRH):
                        a.e("s_cmp_gt_i32 s79, 0")
                        a.e(f"s_cselect_b32 s{sSel}, 0x2000, 0")
                        if IOD == 2: a.e(f"s_mov_b32 s{sStamp+3}, s79")
                if Hh in FCH:
                    k = FCH.index(Hh)
                    a.wait_vm({f"fc{k}"})
                    a.e(f"v_and_or_b32 v{vF}, v{62 + (k & 1)}, 63, v{vDV}")
                    a.e(f"v_cmp_gt_u32 vcc, {max(0, int(Hh - OPT['fcL'] - OPT['fcA']))}, v{vF}")
                    a.e(f"s_cbranch_vccz L_fc{Hh}")
                    a.e(f"s_mov_b32 s45, {Hh - OPT['fcB']}")
                    a.e(f"s_call_b64 s[{sRet}:{sRet+1}], L_prog")
                    a.lab(f"L_fc{Hh}")
                if LK.get(Hh, 0) > 0:
                    n0 = max(HS[Hh])
                    idx = [i for i, t in enumerate(a.vmq) if t[0] == "u" and int(t[1:]) <= n0 + (LK[Hh] + 3)//4 and units[int(t[1:])][0] in "KV"]
                    cut = (-LK[Hh]) % 4
                    last = [i for i in idx if int(a.vmq[i][1:]) == n0 + (LK[Hh] + 3)//4]
                    tot = lkq.get(n0 + (LK[Hh] + 3)//4, 0)
                    keep = max(0, 4 - cut - tot)
                    idx = [i for i in idx if i not in last[keep:]]
                    if idx:
                        m = min(max(idx), len(a.vmq) - 1 - OPT["lkm"])
                        if m >= 0:
                            for t in a.vmq[:m + 1]:
                                if t[0] == "u": lkq[int(t[1:])] = lkq.get(int(t[1:]), 0) + 1
                            a.e(f"s_waitcnt vmcnt({len(a.vmq) - 1 - m})")
                            lklog.append((Hh, len(a.vmq) - 1 - m))
                            a.vmq = a.vmq[m + 1:]
                a.wait_vm({f"u{n}" for n in HS[Hh] if n not in parked})
                a.wait_lds({f"w{n}" for n in HS[Hh]})
                if selst[0] == 1 and "sel" not in a.vmq: selst[0] = 2
                if not OPT["nobar"]: a.e("s_barrier")
                if OPT["trace"]:
                    a.e(f"s_memrealtime s[{sTr+2+4*(Hh&1)}:{sTr+3+4*(Hh&1)}]")
                if Hh == 0: stamp(a, 2)
            ev.cost = 2 + (3 if Hh in FCH else 0) + (2 if OPT["trace"] == 3 else 4 if OPT["trace"] else 0) + ((5 if PACE2 else 3) if Hh in PACE else 0)
            put(ev)
            hbar[0] = Hh
        b = aFr(i)
        for (op, dst, g, ridx, n, inoff) in it.reads:
            slot = slot_of[n]
            if g in "WX":
                put((f"{op} {dst.format(b=b, b1=b+1, b2=b+2, b3=b+3)}, v{GROUPS[g][0]+GROUPS[g][1]*(slot//4)+ridx} offset:{(slot % 4)*16384 + inoff}", None, i))
                continue
            set_window(g, slot // 4)
            flush_adr(g, ridx)
            imm = (slot % 4)*16384 + inoff
            put((f"{op} {dst.format(b=b, b1=b+1, b2=b+2, b3=b+3)}, v{GROUPS[g][0]+ridx} offset:{imm}", None, i))
            upos[g] += 1
            if upos[g] < len(uses[g]):
                ni, nn = uses[g][upos[g]]
                if nn != n and nn in slot_of and ni > i + 2:
                    set_window(g, slot_of[nn]//4)
    def adv(limit, p):
        while rp[0] < N and rp[0] <= limit:
            issue(rp[0], p); rp[0] += 1
    def emit(s):
        if isinstance(s, list):
            for x in s: e(x)
        else: e(s)
    loads_out = {}
    lkq = {}
    lklog = []
    est = [0]
    adv(D - 1, -1)
    for s in cur: emit(s)
    for p in range(N):
        cur.clear()
        if p % WEV == 0: a.wait_lds(set(range(p, p + WEV)))
        b = aFr(p)
        adv(p + D, p)
        SR = list(cur); cur.clear()
        SF = list(fill.get(p, []))
        if not soft_up: next_unpark(p)
        while next_unit(p): pass
        sp = OPT["dsp1"] if p < OPT["dspH"]*16 else OPT["dsp"]
        if kvq and kvq[0][0] <= p and len(soft_dma) % 4 == 0: put(kvq.pop(0)[1])
        elif soft_dma and (p - OPT["dph"]) % sp == 0: put(soft_dma.pop(0))
        if soft_up and (p % OPT["usp"] == 0 or p < 15*16): put(soft_up.pop(0))
        SM = list(cur)
        if soft_adr: SR.append(soft_adr.pop(0)[2])
        wt = 1 if (p + 1) % WEV == 0 else 0
        tot = cost(SR) + cost(SF) + cost(SM) + wt
        loads_out[p] = tot
        evi = [k for k, x in enumerate(SR) if callable(x)]
        a2 = [k for k, x in enumerate(SF) if getattr(x, "after2", False)]
        best = None
        for kr in range(len(SR) + 1):
            for kf in range((a2[0] if a2 else len(SF)) + 1):
                for km in range(len(SM) + 1):
                    if km and evi and kr <= evi[-1]: continue
                    c1 = cost(SR[:kr]) + cost(SF[:kf]) + cost(SM[:km])
                    key = (max(2, c1) + max(2, tot - c1), abs(2*c1 - tot), -kr)
                    if best is None or key < best[0]: best = (key, kr, kf, km)
        _, kr, kf, km = best
        est[0] += best[0][0]*4 + 16
        if p % 16 == 15: est.append(est[0]); est[0] = 0
        e(items[p].mf[0].format(b=b, b3=b+3))
        for s in SR[:kr] + SF[:kf] + SM[:km]: emit(s)
        e(items[p].mf[1].format(b=b, b3=b+3))
        for s in SR[kr:] + SF[kf:] + SM[km:]: emit(s)
    assert not soft_dma and not soft_up and not pend and not upq and not kvq
    if BASE is None: return loads_out
    sys.stderr.write(f"est cycles: {' '.join(map(str, est[1:]))} total {sum(est)}\n")
    if lklog: sys.stderr.write(f"lk waits: {lklog}\n")
    for s in tail_epi: e(s)
    if OPT["verbose"]:
        for (p, w, u, s) in log:
            sys.stderr.write(f"  {p/16:6.2f} {w} {u} slot {s} (need {needed[uidx[u]]})\n")
    stamp(a, 5)
    if OPT["tst"] == 2: e("s_memtime s[66:67]")
    def loads(j):
        for k in range(4): e(ld1(j, k))
    def red(j):
        d = vD + 4*j
        for k in range(4):
            e(f"{MF} {q4(d)}, {q4(vSel)}, {dreg(j, k)}, {'0' if k == 0 else q4(d)}")
    def fin(j):
        d = vD + 4*j
        e(f"v_cvt_pk_bf16_f32 v{d}, v{d}, v{d+1}")
        e(f"v_cvt_pk_bf16_f32 v{d+1}, v{d+2}, v{d+3}")
        e(f"buffer_store_dwordx2 v[{d}:{d+1}], v{vRo}, s[{sOut}:{sOut+3}], s{16+j} offen {OPT['out_pol']}")
    if OPT["t2"]:
        if nB > nA:
            a.wait_vm({"pB"})
            for j in range(nA, nB): loads(j)
        nb = None
        for c in late_pubs:
            publish(c)(a)
            if nb is not None: nb += 1
            if c == OPT["pD"]: e(poll(vNx - 1, "pD")); nb = 0
        if OPT["HNT"] and nb is None: e(poll(vNx - 1, "pD")); nb = 0
        for x in tsetup_b: e(x)
        a.wait_vm({"pC"})
        e("s_barrier")
        stamp(a, 6)
        e(f"v_{'or_b32' if IOD else 'max_u32'} v{vF}, v{vNx}, v{vDV}")
        for (r, lo, hi) in ((vFA, 0, nA), (vFB, nA, nB)):
            if hi == lo: continue
            e(f"v_cmp_gt_u32 vcc, {hi}, v{r}")
            e(f"s_cbranch_vccz L_sv{hi}")
            e(f"v_cmp_gt_u32 vcc, {hi}, v{vF}")
            e(f"s_cbranch_vccz L_sr{hi}")
            e(f"s_mov_b32 s45, {hi}")
            e(f"s_call_b64 s[{sRet}:{sRet+1}], L_poll")
            a.lab(f"L_sr{hi}")
            for j in range(lo, hi): loads(j)
            a.lab(f"L_sv{hi}")
        ths = [int(x) for x in OPT["thr2"].split(",")]
        prev, done, cur = nB, 0, vNx - 1
        for hi in ths:
            e(f"v_cmp_gt_u32 vcc, {hi << FSH}, v{vF}")
            e(f"s_cbranch_vccz L_go{hi}")
            if nb is not None:
                e(f"s_waitcnt vmcnt({nb})")
                e(f"v_{'or3_b32' if IOD else 'max3_u32'} v{vF}, v{cur}, v{vDV}, v{vF}")
                e(f"v_cmp_gt_u32 vcc, {hi << FSH}, v{vF}")
                e(f"s_cbranch_vccz L_go{hi}")
            e(f"s_mov_b32 s45, {hi << FSH}")
            e(f"s_call_b64 s[{sRet}:{sRet+1}], L_poll")
            a.lab(f"L_go{hi}")
            if IOD and hi == ths[0]:
                e(f"v_and_b32 v{vT0}, 0x2000, v{vF}")
                e("s_nop 1")
                for k in range(4):
                    r = vKr + k if k else vRd
                    e(f"v_add_u32_dpp v{r}, v{vT0}, v{r} quad_perm:[{k},{k},{k},{k}] row_mask:0xf bank_mask:0xf")
            if hi in ths[-3:]: stamp(a, 1 + ths[-3:].index(hi), True)
            cur ^= 1
            if hi < 7: e(poll(cur, "pn"))
            for j in range(prev, hi): loads(j)
            nb = 4*(hi - prev)
            if OPT["prog"] and (hi == 7 or OPT["prog"] > 1) and prev > done:
                e(f"s_waitcnt vmcnt({nb + (1 if hi < 7 else 0)})")
                for j in range(done, prev): red(j)
                for j in range(done, prev): fin(j)
                nb += prev - done
                last_fin = prev - done
                done = prev
            else: last_fin = 0
            prev = hi
        if SN:
            assert done <= 7 - SN
            if OPT["stamps"]: e(f"s_mov_b32 s{sStamp+3}, 0")
            e(f"s_waitcnt vmcnt({last_fin + 4*SN})")
            for j in range(done, 7 - SN): red(j)
            e(f"s_waitcnt vmcnt({last_fin})")
            stamp(a, 4, True)
            a.lab("L_sen")
            R = list(range(vO, vO + 16*SN))
            T = [vT0, vT0 + 1, vT0 + 2]
            for k in range(3): e(f"v_max3_u32 v{T[k]}, v{R[3*k]}, v{R[3*k+1]}, v{R[3*k+2]}")
            R = R[9:]
            k = 0
            while len(R) >= 2:
                e(f"v_max3_u32 v{T[k]}, v{T[k]}, v{R[0]}, v{R[1]}"); R = R[2:]; k = (k + 1) % 3
            if R: e(f"v_max_u32 v{T[k]}, v{T[k]}, v{R[0]}")
            e(f"v_max3_u32 v{vT0}, v{T[0]}, v{T[1]}, v{T[2]}")
            e(f"v_cmp_eq_u32 vcc, -1, v{vT0}")
            e("s_cbranch_vccz L_sok")
            e(f"s_sub_u32 s{sSpin}, s{sSpin}, 1")
            e("s_cbranch_scc1 L_sok")
            if OPT["stamps"]: e(f"s_add_u32 s{sStamp+3}, s{sStamp+3}, 1")
            for j in range(7 - SN, 7): loads(j)
            e("s_waitcnt vmcnt(0)")
            e("s_branch L_sen")
            a.lab("L_sok")
            for j in range(7 - SN, 7): red(j)
            for j in range(done, 7): fin(j)
        else:
            e(f"s_waitcnt vmcnt({last_fin})")
            stamp(a, 4, True)
            for j in range(done, 7): red(j)
            for j in range(done, 7): fin(j)
    else:
      for x in tsetup + tsetup_b: emit(x)
      if OPT["early"]: a.wait_vm({"poll"})
      else: e(f"v_mov_b32 v{vF}, 0")
      for c in late_pubs: publish(c)(a)
      stamp(a, 6)
      prev = 0
      for hi in pubs:
          e(f"v_cmp_gt_u32 vcc, {hi}, v{vF}")
          e(f"s_cbranch_vccz L_go{hi}")
          e(f"s_mov_b32 s45, {hi}")
          e(f"s_call_b64 s[{sRet}:{sRet+1}], L_poll")
          a.lab(f"L_go{hi}")
          if hi in pubs[-3:]: stamp(a, 1 + pubs[-3:].index(hi), True)
          for j in range(prev, hi): loads(j)
          prev = hi
      for j in range(7 - NS, 7): loads(j)
      e(f"s_waitcnt vmcnt({4*NS})")
      stamp(a, 4, True)
      for j in range(7 - NS): red(j)
      for j in range(7 - NS): fin(j)
      e(f"s_waitcnt vmcnt({7 - NS})")
      for j in range(7 - NS, 7):
          a.lab(f"L_sen{j}")
          r = vO + 16*(j - (7 - NS))
          e(f"v_max3_u32 v{vT0}, v{r}, v{r+1}, v{r+2}")
          e(f"v_max3_u32 v{vT0+1}, v{r+3}, v{r+4}, v{r+5}")
          for k in range(6, 16, 4):
              e(f"v_max3_u32 v{vT0}, v{vT0}, v{r+k}, v{r+k+1}")
              if k + 2 < 16: e(f"v_max3_u32 v{vT0+1}, v{vT0+1}, v{r+k+2}, v{r+k+3}")
          e(f"v_max_u32 v{vT0}, v{vT0}, v{vT0+1}")
          e(f"v_cmp_eq_u32 vcc, -1, v{vT0}")
          e(f"s_cbranch_vccz L_sok{j}")
          e(f"s_sub_u32 s{sSpin}, s{sSpin}, 1")
          e(f"s_cbranch_scc1 L_sto{j}")
          for jj in range(j, 7): loads(jj)
          e("s_waitcnt vmcnt(0)")
          e(f"s_branch L_sen{j}")
          a.lab(f"L_sto{j}")
          e(f"s_mov_b32 s{sSpin}, 0")
          a.lab(f"L_sok{j}")
          red(j); fin(j)
    if OPT["diag"]:
        e("v_mov_b32 v8, 128")
        e(f"buffer_load_dword v5, v8, s[{sDb}:{sDb+3}], 0 offen sc1")
        e("s_waitcnt vmcnt(0)")
        e("v_readfirstlane_b32 s3, v5")
        e("s_bcnt1_i32_b32 s3, s3")
        e("s_cmp_le_u32 s3, 1")
        e("s_cbranch_scc1 L_diag_ok")
        e("s_mov_b32 s3, 30")
        a.lab("L_diag_l")
        e("s_sleep 64")
        e("s_sub_u32 s3, s3, 1")
        e("s_cmp_gt_u32 s3, 0")
        e("s_cbranch_scc1 L_diag_l")
        a.lab("L_diag_ok")
    if OPT["stamps"]:
        e("s_waitcnt vmcnt(0)")
        stamp(a, 7)
        if OPT["tst"] == 2: e("s_memtime s[64:65]")
        e("s_waitcnt lgkmcnt(0)")
        if OPT["tst"] == 2: e(f"s_sub_u32 s{sStamp+6}, s64, s66")
        if OPT["dly"] >= 0:
            if OPT["dwg"] >= 0:
                e(f"s_cmp_lg_u32 s2, {OPT['dwg']}"); e("s_cbranch_scc1 L_dly_done")
            e(f"s_sub_u32 s44, s{sStamp+2*OPT['dly']}, s{sStamp}")
            e(f"s_mul_i32 s44, s44, {OPT['dk']}")
            e("s_min_u32 s44, s44, 100000")
            e("s_mov_b32 s45, 200000")
            a.lab("L_dly")
            e("s_memrealtime s[46:47]")
            e("s_sub_u32 s45, s45, 1")
            e("s_cbranch_scc1 L_dly_done")
            e("s_waitcnt lgkmcnt(0)")
            e(f"s_sub_u32 s46, s46, s{sStamp+14}")
            e("s_cmp_lt_u32 s46, s44")
            e("s_cbranch_scc1 L_dly")
            a.lab("L_dly_done")
        e(f"s_add_u32 s32, s{sWsP}, 0x4000000"); e(f"s_addc_u32 s33, s{sWsP+1}, 0"); e("s_mov_b32 s34, 0x100000"); e("s_mov_b32 s35, 0x00020000")
        e("s_lshl_b32 s3, s2, 6")
        e("v_mov_b32 v1, s3")
        for k in range(8):
            e(f"v_mov_b32 v{2+k}, s{sStamp+2*k}")
        if OPT["trace"]:
            e(f"v_writelane_b32 v{vTr}, s{sTr+4}, 59")
            e(f"v_writelane_b32 v{vTr+1}, s{sTr+6}, 59")
            e("s_lshl_b32 s3, s2, 11")
            e("s_add_u32 s3, s3, 0x10000")
            e("v_lshlrev_b32 v10, 3, v0")
            e("v_add_u32 v10, s3, v10")
            e(f"buffer_store_dwordx2 v[{vTr}:{vTr+1}], v10, s[32:35], 0 offen")
        if IOD == 2 or SN:
            e("s_lshl_b32 s3, s2, 4"); e(f"s_lshl2_add_u32 s3, s{sW}, s3"); e("s_add_u32 s3, s3, 0xF0000")
            e("v_mov_b32 v10, s3"); e(f"v_mov_b32 v11, s{sStamp+3}")
            e("buffer_store_dword v11, v10, s[32:35], 0 offen")
        e("v_cmp_eq_u32 vcc, 0, v0")
        e("s_and_saveexec_b64 s[36:37], vcc")
        e("s_cbranch_execz L_k1_done")
        e("buffer_store_dwordx4 v[2:5], v1, s[32:35], 0 offen")
        e("buffer_store_dwordx4 v[6:9], v1, s[32:35], 0 offen offset:16")
        e("s_waitcnt vmcnt(0)")
    a.lab("L_k1_done")
    e("s_endpgm")
    for k, st in enumerate(far):
        a.lab(f"L_far{k}")
        e(st)
        e(f"s_branch L_bk{k}")
    a.lab("L_poll")
    if OPT["PP"]:
        assert IOD
        PP = OPT["PP"]
        pl = lambda k: f"buffer_load_dword v{vE+k}, v{vFp}, s[{sFl}:{sFl+3}], 0 offen {OPT['fp_pol']}"
        for k in range(PP - 1):
            e(pl(k)); e(f"s_sleep {OPT['PPS']}")
        a.lab("L_pp")
        for k in range(PP):
            e(pl((k + PP - 1) % PP))
            e(f"s_waitcnt vmcnt({PP - 1})")
            e(f"v_or3_b32 v{vF}, v{vE+k}, v{vDV}, v{vF}")
            e(f"v_cmp_gt_u32 vcc, s45, v{vF}")
            e("s_cbranch_vccz L_poll_ret")
            e(f"s_sleep {OPT['PPS']}")
        e(f"s_sub_u32 s{sSpin}, s{sSpin}, 1")
        e("s_cbranch_scc0 L_pp")
        e("s_branch L_poll_to")
    e(poll(vF, None))
    e(f"s_sub_u32 s{sSpin}, s{sSpin}, 1")
    e("s_cbranch_scc1 L_poll_to")
    e("s_waitcnt vmcnt(0)")
    if OPT["t2"]: e(f"v_{'or_b32' if IOD else 'max_u32'} v{vF}, v{vF}, v{vDV}")
    e(f"v_cmp_gt_u32 vcc, s45, v{vF}")
    e("s_cbranch_vccz L_poll_ret")
    if OPT["sleep"]: e(f"s_sleep {OPT['sleep']}")
    e("s_branch L_poll")
    a.lab("L_poll_to")
    e(f"s_mov_b32 s{sSpin}, 0")
    e("s_waitcnt vmcnt(0)")
    a.lab("L_poll_ret")
    e(f"s_setpc_b64 s[{sRet}:{sRet+1}]")
    if OPT["fc"]:
        a.lab("L_prog")
        e(f"buffer_load_dword v{vF}, v{vFp}, s[{sFl}:{sFl+3}], 0 offen {OPT['fp_pol']}")
        e(f"s_sub_u32 s{sSpin}, s{sSpin}, 1")
        e("s_cbranch_scc1 L_poll_to")
        e("s_waitcnt vmcnt(0)")
        e(f"v_and_or_b32 v{vF}, v{vF}, 63, v{vDV}")
        e(f"v_cmp_gt_u32 vcc, s45, v{vF}")
        e("s_cbranch_vccz L_poll_ret")
        if OPT["fcs"]: e(f"s_sleep {OPT['fcs']}")
        e("s_branch L_prog")
    if PACE:
        a.lab("L_pace")
        e("s_mov_b32 s76, 400")
        a.lab("L_pace_l")
        e("s_memrealtime s[72:73]")
        e("s_sub_u32 s76, s76, 1")
        e("s_cbranch_scc1 L_pace_r")
        e("s_sleep 1" if OPT["ad"] else "s_waitcnt lgkmcnt(0)")
        e("s_sub_u32 s74, s72, s100")
        e("s_cmp_lt_u32 s74, s75")
        e("s_cbranch_scc1 L_pace_l")
        a.lab("L_pace_r")
        e(f"s_setpc_b64 s[{sRet}:{sRet+1}]")
    a.lab("L_chk_wait")
    e(f"buffer_load_dword v{vF}, v{vDbV}, s[{sDb}:{sDb+3}], 0 offen sc1")
    e(f"s_sub_u32 s{sSpin}, s{sSpin}, 1")
    e("s_cbranch_scc1 L_poll_to")
    e("s_waitcnt vmcnt(0)")
    e(f"v_cmp_eq_u32 vcc, 0, v{vF}")
    e("s_cbranch_vccz L_poll_ret")
    e("s_sleep 4")
    e("s_branch L_chk_wait")
    for (nm, par, first) in (("L_fix0", 0, True), ("L_fixp0", 0, False), ("L_fixp1", 1, False)):
        S, S2 = vSb[par], vSb[par ^ 1]
        Lo = vL + 2*par
        a.lab(nm)
        e("s_nop 7")
        for u in range(2):
            T, T2, r = vT0 + u, vT0 + 2, S + 8*u
            e(f"v_max3_f32 v{T}, v{r}, v{r+1}, v{r+2}")
            e(f"v_max3_f32 v{T}, v{T}, v{r+3}, v{r+4}")
            e(f"v_max3_f32 v{T}, v{T}, v{r+5}, v{r+6}")
            e(f"v_max_f32 v{T}, v{T}, v{r+7}")
            e(f"v_mov_b32 v{T2}, v{T}")
            e(f"v_permlane32_swap_b32 v{T}, v{T2}")
            e(f"v_max_f32 v{T}, v{T}, v{T2}")
            e(f"v_mov_b32 v{T2}, v{T}")
            e(f"v_permlane16_swap_b32 v{T}, v{T2}")
            e(f"v_max_f32 v{T}, v{T}, v{T2}")
            if not first:
                e(f"v_max_f32 v{T}, 0, v{T}")
                if OPT["sms"]:
                    e(f"v_mul_f32 v{vAl+u}, s{sC}, v{T}")
                    e(f"v_exp_f32 v{vAl+u}, -v{vAl+u}")
                else: e(f"v_exp_f32 v{vAl+u}, -v{T}")
            for k in range(8):
                e(f"v_sub_f32 v{r+k}, v{r+k}, v{T}")
                e(f"v_sub_f32 v{S2+8*u+k}, v{S2+8*u+k}, v{T}")
            for k in range(4): e(f"v_sub_f32 v{vNM+4*u+k}, v{vNM+4*u+k}, v{T}")
            if not first: e(f"v_mul_f32 v{Lo+u}, v{Lo+u}, v{vAl+u}")
        for s in softmax(S, par): e(s)
        if not first:
            for r in range(128):
                e(f"v_mul_f32 v{vO+r}, v{vO+r}, v{vAl + ((r >> 3) & 1)}")
        e("s_nop 3")
        e(f"s_setpc_b64 s[{sRet}:{sRet+1}]")
    a.lab("L_k1_end")
    lines = "\n".join(a.L).split("\n")
    lines, npad = pad_hazards(lines)
    sys.stderr.write(f"k1: {len(lines)} lines, {npad} hazard pads\n")
    return "\n".join(lines) + "\n"

def desc(name, vgpr, acc, sgpr=102):
    return f""".p2align 6
.amdhsa_kernel {name}
  .amdhsa_next_free_vgpr {vgpr}
  .amdhsa_next_free_sgpr {sgpr}
  .amdhsa_accum_offset {acc}
  .amdhsa_group_segment_fixed_size 0
  .amdhsa_kernarg_size 104
  .amdhsa_user_sgpr_count 2
  .amdhsa_user_sgpr_kernarg_segment_ptr 1
  .amdhsa_system_sgpr_workgroup_id_x 1
.end_amdhsa_kernel
"""

def main():
    ref = open(f"cdna_kernels/{NAME}.s.ref").read().splitlines()
    hdr = [l for l in ref if l.startswith(";") and "@launch" not in l and "Override launch" not in l and "grid=ceil" not in l]
    out = "\n".join(hdr) + "\n"
    if OPT["lst"]:
        out += f"; @launch kernel={K1} grid=(256,1,1) block=(256,1,1) lds=163840\n"
    else:
        out += f"; @launch grid=(256,1,1) block=(256,1,1) lds=163840\n"
    out += '.amdgcn_target "amdgcn-amd-amdhsa--gfx950"\n.text\n'
    out += gen_k1(gen_k1(None))
    out += '.section .rodata,"a"\n'
    out += desc(K1, 512, 256)
    if PG: out = pages(out)
    open(sys.argv[1], "w").write(out)

def pages(out):
    import subprocess, re, os
    ret = {k0 + w: k0 for (h, k0, n) in PG for w in range(n)}
    L = out.split("\n")
    tmp = f"_pg{os.getpid()}"
    t1 = next(i for i, x in enumerate(L) if x.strip().startswith(".section .rodata"))
    open(tmp + ".s", "w").write("\n".join(L[:t1] + [f"L_pg{k}:" for k in ret] + L[t1:]))
    subprocess.run(["clang", "-x", "assembler", "-target", "amdgcn-amd-amdhsa", "-mcpu=gfx950", "-c", tmp + ".s", "-o", tmp + ".o"], check=True)
    d = subprocess.run(["llvm-objdump", "-d", tmp + ".o"], capture_output=True, text=True).stdout
    S = [4*len(m.group(2).split()) for m in (re.search(r"//\s*([0-9A-F]{12}):((?: [0-9A-F]{8})+)", x) for x in d.split("\n")) if m]
    def isins(x):
        t = x.split(";")[0].strip()
        return bool(t) and not t.endswith(":") and not t.startswith(".")
    t0 = next(i for i, x in enumerate(L) if x.strip() == ".text")
    idx = [i for i in range(t0, t1) if isins(L[i])]
    assert len(S) == len(idx)
    off, todo, res, pos = 0, sorted(ret), [], dict(zip(idx, S))
    for i, x in enumerate(L):
        if i in pos:
            if todo and off >= todo[0]*4096:
                k = todo.pop(0)
                res += [f"L_pg{k}:", f"    s_cbranch_execz L_pgr{ret[k]}"]; off += 4
            off += pos[i]
        res.append(x)
    assert not todo, todo
    return "\n".join(res)

main()
```

```python
import sys, math, struct
from collections import defaultdict
sys.path.insert(0, "gen")
from asmlib import pad_hazards

NAME = "concat_heads__mha_block_cached__gqa_block_cached__near_ridge"
K1 = NAME + "_kernel"

OPT = dict(stamps=0, trace=0, st_pol="sc1", kv_pol="nt", w_pol="", x_pol="", out_pol="", D=6, wev=2, codepf=1,
           L1=4, PR=2.0, KA=8.5, KB=40.0, WO0=34.0, LWO=6, spw=1,
           pub="2,4", PUBD=4, NS=3, CLR=41.0, early=1, nodma=0, thr=1048576.0, tlo=2.0**-30, verbose=0, sleep=1, lst=1,
           X1=13, pfn=0, pfbit=3, pf_pol="", NP=0, PK=3.0, UP=2, j2=1, NB=8, wf=1, onorm=1, n0=4,
           p1slots="8,9,1,2,4,3,5,7,6,0,8,1,9,4,2,5,3,6,7,8,9", late=0, CLS=4, wow=-1.0, OS=1.0, OI=-1, o_pol="", o0_pol="", MF=0, MFE=1, dsp=1, dsp1=1, dph=0, diag=0, TA=-1.0, TB=38.0, T0=0, t_pol="", TS=7, KS="", park=0, pkq=1, UPD=1.0, wcost=2, usp=1, dly=-1, dk=10, dwg=-1, tst=0, t2=0, spA=905, spL=946, nA=2, spB=944, nB=3, spC=957, thr2="4,5,6,7", prog=1, pD=6, FS=2, spE=959, hold=0, HP=54.0, HE=58.0, pace="", pcs=8, org=0, orgH=6.5, ad=0, adm=0.3, adS=2, adD=1, adM=31, adE=42, adL=800, adW=4, adR=2, pace2="", clsh=2, clm=1, mp=4, rb=1, rh=2, ld_pol="sc1", fl_pol="sc1", fp_pol="sc1", iod=0, iodf=-1, prp=45, npr=3, prw=1, fl2=1, prH="", prs=256, prk=-1, prst=0, prn=0, prH0=18, prLW=4, prNW=4, prstg=12, prsm=1, pro=-9, lk="", lkm=0, nost=0, nobar=0, noval=0, fc=0, fcP=2, fc0=16, fc1=44, fcH="22,26,30,34,38,42", fcL=5.5, fcA=4, fcB=4, SIG=13.3, CHKL=39.3, CHKH=47.2, fcs=2, TN=0, tw=0, TH=0, rot="", MFI=0, dspH=14.0, fine=-1, MFO=0, n1=0, sms=0, XS="", pfp=0, pfi=0, dyn=0, MFT=0, SN=0, HNT=0, PP=0, PPS=2, pg="", pga=0, MF2=0, MFJ=99, fpat=0, LM=0, PT=4.0, lm_pol="", clr_pol="sc1", FT=-1.0, LQ=0, near=0, rwo=0, t3=0, t3m=99, t4=0, VL=19.0, t4n=64, eA=0, t4p=1, wt="", wt_pol="", wth=0, t5=0, es="", TS0=866, TS1=900, c1=9, psl=0, ft_pol="sc1", dh=-1, eop=-1.0, vt=1, lml_pol="sc1", pt_pol="", MFB=0, MCI=0, MCJ=21, MCB=7, MFA=0, MAJ=99)
VT = lambda: OPT["t4"] and OPT["vt"]
for a in sys.argv[2:]:
    k, v = a.split("=")
    OPT[k] = type(OPT[k])(v) if not isinstance(OPT[k], str) else v.replace("+", " ")

sW, sH, sB, sBLK = 4, 5, 6, 7
sK, sV, sWq, sWo, sX, sG, sFl, sDb, sOut = 8, 12, 16, 20, 24, 28, 32, 36, 40
sWoff = 48
sXoff, sWqoff, sWooff = 49, 50, 51
sStA, sStB = 52, 53
sC, sThr = 54, 55
sNP0, sSpin = 56, 57
sRet = 58
sTmp, sTmp2 = 60, 61
sTr = 68
sWsP = 80
sStamp = 82
sTlo = 98
sPf, sPfo = 72, 76
vPf = 62

vKr, vVr, vWor = 10, 14, 22
vKd, vVd, vWod = 26, 28, 30
vSt = 34
vL = 35
vT0 = 39
vAl = 43
vFl, vFp, vDbA, vDbV, vF, vFv = 45, 46, 47, 48, 49, 50
vDV = 51
vSel = 52
vRd, vRo = 56, 57
vUp = 58
vTr = 60
vSb = (64, 80)
vE, vNM, vP = 96, 112, 120
vWqd, vXd = 96, 100
vWr, vXr = 64, 88
vAcc = 64
vO = 128
aX, aPk, aQ = 0, 112, 160
NB = OPT["NB"]
def aFr(i):
    k = i % NB
    return 224 + 4*k if k < 8 else 112 + 4*(k - 8)
aSen = 0
FLAGS_OFF = 32 << 20
IOD = OPT["iod"]
PBASE = 128 << 20
HOLE = 52*1024
sSel = 99
FSH = 14 if IOD else 0
FS = OPT["FS"]; WS = max(8, FS + 4)
MF = "v_mfma_f32_16x16x32_bf16"

SCALE = math.log2(math.e) / 16.0
def f32hex(x):
    return "0x%08x" % struct.unpack("<I", struct.pack("<f", x))[0]

class Em:
    def __init__(self):
        self.L = []
        self.vmq = []
        self.ldsq = []
    def e(self, s, vm=None, lds=None):
        if isinstance(s, tuple):
            return self.e(*s)
        if callable(s):
            return s(self)
        self.L.append("    " + s)
        if vm is not None: self.vmq.append(vm)
        if lds is not None: self.ldsq.append(lds)
    def lab(self, s): self.L.append(s + ":")
    def c(self, s): self.L.append("    ; " + s)
    def wait_vm(self, tags):
        idx = [i for i, t in enumerate(self.vmq) if t in tags]
        if not idx: return
        n = len(self.vmq) - 1 - max(idx)
        self.e(f"s_waitcnt vmcnt({min(n, 63)})")
        self.vmq = self.vmq[max(idx) + 1:] if n <= 63 else self.vmq[-63:]
    def wait_lds(self, tags):
        idx = [i for i, t in enumerate(self.ldsq) if t in tags]
        if not idx: return
        n = len(self.ldsq) - 1 - max(idx)
        self.e(f"s_waitcnt lgkmcnt({min(n, 15)})")
        self.ldsq = self.ldsq[max(idx) + 1:] if n <= 15 else self.ldsq[-15:]

def stamp(a, idx, tail=False):
    if OPT["tst"] and idx in (1, 2, 3, 4) and not tail: return
    if tail and not OPT["tst"]: return
    if OPT["stamps"]:
        a.e(f"s_memrealtime s[{sStamp+2*idx}:{sStamp+2*idx+1}]")

units = []
for c in range(7): units += [("X", c), ("W", c)]
units += [("W", c) for c in range(7, 14)]
kv = [("K", 0), ("K", 1)]
for t in range(0, 14):
    kv += [("V", t), ("K", t + 2)]
kv += [("V", 14), ("V", 15)]
units += kv
units += [("O", k) for k in range(14)]
NU = len(units)
uidx = {u: n for n, u in enumerate(units)}
HS = [[2*c, 2*c+1] for c in range(7)] + [[uidx[("W", c)]] for c in range(7, 14)]
if OPT["j2"]:
    HS[12] = [uidx[("W", 12)], uidx[("W", 13)]]; HS[13] = []
for n in range(21, NU): HS.append([n])
needed, consumed = {}, {}
for H, us in enumerate(HS):
    for n in us: consumed[n] = H; needed[n] = H
if OPT["j2"]: consumed[uidx[("W", 12)]] = consumed[uidx[("W", 13)]] = 13
parked = {}
NP = OPT["park"]
P1SLOT = [int(x) for x in OPT["p1slots"].split(",")] if OPT["p1slots"] != "auto" else [0]*21
assert len(P1SLOT) == 21
def fixed_slot(n):
    t, i = units[n]
    if t in "XW": return P1SLOT[n]
    if t == "K": return i & 3
    if t == "V": return 4 + (i & 3)
    if t == "O" and i < 2: return 8 + i
    return None
iss = []
for n in range(21):
    if OPT["XS"] and n >= OPT["n0"] + OPT["n1"]:
        kn = [tuple(float(y) for y in x.split(":")) for x in OPT["XS"].split(",")]
        for (i0, h0), (i1, h1) in zip(kn, kn[1:]):
            if i0 <= n <= i1: h = h0 + (h1 - h0)*(n - i0)/(i1 - i0)
        iss.append((max(0, int(round(16*h))), n))
        continue
    iss.append((-2 if n < OPT["n0"] else -1 if n < OPT["n0"] + OPT["n1"] else max(0, int(round(16*(n - OPT["L1"])/OPT["PR"]))), n))
stream = list(range(21, 53))
if OPT["OI"] >= 0:
    stream.insert(OPT["OI"], 53); stream.insert(OPT["OI"] + 2, 54)
for i, n in enumerate(stream):
    if OPT["KS"]:
        kn = [tuple(float(y) for y in x.split(":")) for x in OPT["KS"].split(",")]
        for (i0, h0), (i1, h1) in zip(kn, kn[1:]):
            if i0 <= i <= i1: h = h0 + (h1 - h0)*(i - i0)/(i1 - i0)
    else: h = OPT["KA"] + (OPT["KB"] - OPT["KA"])*i/(len(stream) - 1)
    iss.append((int(round(16*h)), n))
kvpos = [(pos, n) for (pos, n) in iss if units[n][0] in "KV"]
kvstep = {}
for i, (pos, n) in enumerate(kvpos):
    kvstep[n] = (kvpos[i + 1][0] - pos)/4 if i + 1 < len(kvpos) else kvstep[kvpos[i - 1][1]]
def isfine(n): return OPT["fine"] >= 0 and units[n][0] in "KV" and n - 21 >= OPT["fine"]
for k in range(2 if OPT["OI"] >= 0 else 0, 14):
    pos = max(16*(46 + k - OPT["LWO"]), 16*(OPT["WO0"] + OPT["OS"]*k))
    iss.append((int(pos), 53 + k))
iss.sort(key=lambda x: x[0])
if OPT["p1slots"] == "auto":
    kvf = {8: 10**6, 9: 10**6}
    for (pos, n) in kvpos:
        if units[n][1] < 4: kvf[fixed_slot(n)] = pos
    fr = [-100]*10
    for (pos, n) in iss:
        if n >= 21: continue
        rel = 16*consumed[n] + 2 if units[n][0] == "X" else 16*(consumed[n] + 2) - OPT["D"]
        ok = [x for x in range(10) if fr[x] <= pos]
        if not ok: ok = [min(range(10), key=lambda x: fr[x])]
        fit = [x for x in ok if kvf[x] >= rel]
        x = min(fit, key=lambda x: kvf[x]) if fit else max(ok, key=lambda x: kvf[x])
        P1SLOT[n] = x; fr[x] = rel
    sys.stderr.write(f"p1slots={','.join(map(str, P1SLOT))}\n")

PACE = {}
if OPT["pace"]:
    kn = [tuple(float(y) for y in x.split(":")) for x in OPT["pace"].split(",")]
    for (h0, t0), (h1, t1) in zip(kn, kn[1:]):
        for h in range(int(h0), int(h1) + 1): PACE[h] = int(round(100*(t0 + (t1 - t0)*(h - h0)/(h1 - h0))))
    assert OPT["TA"] < 0 and min(PACE) >= 3
PACE2 = {}
if OPT["pace2"]:
    kn = [tuple(float(y) for y in x.split(":")) for x in OPT["pace2"].split(",")]
    for (h0, t0), (h1, t1) in zip(kn, kn[1:]):
        for h in range(int(h0), int(h1) + 1): PACE2[h] = int(round(100*(t0 + (t1 - t0)*(h - h0)/(h1 - h0))))
    assert set(PACE2) == set(PACE) and not OPT["ad"]
LK = {}
if OPT["lk"]:
    kn = [tuple(float(y) for y in x.split(":")) for x in OPT["lk"].split(",")]
    for (h0, t0), (h1, t1) in zip(kn, kn[1:]):
        for h in range(int(h0), int(h1) + 1): LK[h] = int(round(4*(t0 + (t1 - t0)*(h - h0)/(h1 - h0))))
PG = [(float(x.split(":")[0]), int(x.split(":")[1]), int(x.split(":")[2])) for x in OPT["pg"].split(",")] if OPT["pg"] else []
slot_of = {}
def dma(n):
    t, i = units[n]
    g = []
    pk = parked.get(n)
    for jj in range(4):
        ins = []
        sKV = sTmp2 if isfine(n) else sTmp
        if jj and isfine(n) and pk is None: ins.append(f"s_add_u32 m0, s{sWoff}, {slot_of[n]*16384}")
        if jj == 0:
            if pk is None: ins.append(f"s_add_u32 m0, s{sWoff}, {slot_of[n]*16384}")
            if t in "KV": ins.append(f"s_xor_b32 s{sKV}, s77, {i*16384}" if OPT["rot"] else f"s_mov_b32 s{sKV}, {i*16384}")
            elif t == "O" and (i & 1): ins.append(f"s_add_u32 s{sTmp}, s{sWooff}, {128*896}")
            elif t == "W" and i == 7 and OPT["dh"] >= 0: ins += [f"v_xor_b32 v{vWqd+r}, 0x100, v{vWqd+r}" for r in range(4)]
            elif t == "W" and i == 7: ins += [f"s_add_u32 s{sWq}, s{sWq}, 256", f"s_addc_u32 s{sWq+1}, s{sWq+1}, 0"]
        off = f" offset:{jj*1024}" if jj else ""
        dst = "" if pk is None else f"a[{pk+4*jj}:{pk+4*jj+3}], "
        lds = " lds" if pk is None else ""
        if t == "K": ld = f"buffer_load_dwordx4 {dst}v{vKd+(jj&1)}, s[{sK}:{sK+3}], s{sKV} offen{off} {OPT['kv_pol']}{lds}"
        elif t == "V": ld = f"buffer_load_dwordx4 {dst}v{vVd+(jj&1)}, s[{sV}:{sV+3}], s{sKV} offen{off} {OPT['kv_pol']}{lds}"
        elif t == "W": ld = f"buffer_load_dwordx4 v{vWqd+jj}, s[{sWq}:{sWq+3}], s{sWqoff} offen{off} {OPT['w_pol']} lds"
        elif t == "X": ld = f"buffer_load_dwordx4 v{vXd+jj}, s[{sX}:{sX+3}], s{sXoff} offen{off} {OPT['x_pol']} lds"
        elif t == "O":
            so = sTmp if (i & 1) else sWooff
            ld = f"buffer_load_dwordx4 v{vWod+jj}, s[{sWo}:{sWo+3}], s{so} offen{off} {OPT['o0_pol'] if i < 2 else OPT['o_pol']} lds"
        if OPT["MF"] and t in "KV" and jj % OPT["MFE"] == 0 and n - 21 >= OPT["MFI"]:
            def lim(a, jj=jj):
                k = (OPT["MF2"] if n - 21 >= OPT["MFJ"] else OPT["MF"]) - OPT["MFE"]
                if OPT["MFT"]:
                    idx = [x for x, tg in enumerate(a.vmq) if tg[0] == "u" and units[int(tg[1:])][0] in "KV"]
                    if len(idx) <= k: return
                    k = len(a.vmq) - 1 - idx[len(idx) - k - 1]
                if len(a.vmq) > k:
                    a.e(f"s_waitcnt vmcnt({k})")
                    a.vmq = a.vmq[len(a.vmq) - k:]
                if cB or cA:
                    a.e(f"s_bitcmp1_b32 s2, {OPT['MCB']}")
                    a.e(f"s_cbranch_scc{0 if cB else 1} L_mc{n}_{jj}")
                    a.e(f"s_waitcnt vmcnt({(OPT['MFB'] if cB else OPT['MFA']) - OPT['MFE']})")
                    a.lab(f"L_mc{n}_{jj}")
            cB = OPT["MFB"] and OPT["MCI"] <= n - 21 < OPT["MCJ"]
            cA = OPT["MFA"] and n - 21 >= OPT["MAJ"] and not cB
            lim.cost = 3 if cB or cA else 1
            ins.append(lim)
        if not OPT["nodma"]: ins.append((ld, f"u{n}"))
        if jj == 3:
            if t == "W" and i < 13: ins += [f"s_add_u32 s{sWqoff}, s{sWqoff}, {64*8192}", f"s_cmp_eq_u32 s{sWqoff}, {448*8192}", f"s_cselect_b32 s{sWqoff}, 0, s{sWqoff}"]
            if t == "X" and i < 6: ins += [f"s_add_u32 s{sXoff}, s{sXoff}, 128", f"s_cmp_eq_u32 s{sXoff}, 896", f"s_cselect_b32 s{sXoff}, 0, s{sXoff}"]
            if t == "O" and (i & 1) and i < 13: ins += [f"s_add_u32 s{sWooff}, s{sWooff}, 128", f"s_cmp_eq_u32 s{sWooff}, 896", f"s_cselect_b32 s{sWooff}, 0, s{sWooff}"]
        g.append(ins)
    return g

GROUPS = {"K": (vKr, 4), "V": (vVr, 8), "O": (vWor, 4), "W": (vWr, 8), "X": (vXr, 2)}

class Item:
    def __init__(self, H, mf, reads):
        self.H = H; self.mf = mf; self.reads = reads
        self.first = False

def tr_reads(grp, ridx, n, off0, off1):
    return [("ds_read_b64_tr_b16", "a[{b}:{b1}]", grp, ridx, n, off0), ("ds_read_b64_tr_b16", "a[{b2}:{b3}]", grp, ridx, n, off1)]

def acc_of(base, T, u): return base + 16*(T >> 1) + 8*u + 4*(T & 1)
def q4(r, k="v"): return f"{k}[{r}:{r+3}]"

def cost(s):
    if isinstance(s, list): return sum(cost(x) for x in s)
    if callable(s): return getattr(s, "cost", 2)
    if isinstance(s, tuple): s = s[0]
    if s.startswith("ds_write"): return OPT["wcost"]
    return 2 if s.startswith(("v_exp", "v_rcp")) else 1

def gen_k1(BASE):
    a = Em()
    e = a.e
    slot_of.clear(); parked.clear()
    slot_free_at = [-10]*10
    slot_free_pos = [-10]*10
    last_slot = {"O": 8}
    def alloc(n, Hbar, p=0):
        t = units[n][0]
        s = fixed_slot(n)
        if OPT["dyn"] and t in "KVO":
            res = {P1SLOT[m] for m in range(21) if m not in slot_of}
            fr = [x for x in range(10) if slot_free_at[x] <= Hbar and slot_free_pos[x] <= p and x not in res]
            if not fr: return False
            home = {"K": 0, "V": 1, "O": last_slot["O"]//4}[t]
            fr.sort(key=lambda x: (x//4 != home, x//4 != 2, x))
            slot_of[n] = fr[0]; last_slot[t] = fr[0]
            slot_free_at[fr[0]] = consumed[n] + 2
            return True
        if s is not None and slot_free_pos[s] > p: return False
        if t in "KV":
            if units[n][1] >= 4 and uidx[(t, units[n][1] - 4)] not in slot_of: return False
            if any(P1SLOT[m] == s and m not in slot_of for m in range(21)): return False
        if s is None:
            pend = {fixed_slot(m) for m in range(NU) if m not in slot_of}
            fr = [s for s in range(10) if slot_free_at[s] <= Hbar and s not in pend]
            if not fr: return False
            same = [s for s in fr if s // 4 == last_slot[t] // 4]
            s = (same or fr)[0]
        elif slot_free_at[s] > Hbar: return False
        slot_of[n] = s; last_slot[t] = s
        if t == "X": slot_free_pos[s] = 16*consumed[n] + 2
        else: slot_free_at[s] = consumed[n] + 2
        return True

    a.L.append(f".globl {K1}\n" + (".p2align 12\n" if OPT["pg"] or OPT["pga"] else "") + f".p2align 8\n.type {K1},@function\n{K1}:")
    e("s_cmp_ge_u32 s2, 256")
    e("s_cbranch_scc1 L_k1_done")
    stamp(a, 0)
    if OPT["pace"]: e("s_memrealtime s[100:101]")
    e("s_and_b32 s3, s2, 7")
    e(f"s_lshr_b32 s{sBLK}, s3, 2")
    e(f"s_mul_i32 s{sTmp}, s{sBLK}, 40")
    e(f"s_add_u32 s44, s0, s{sTmp}")
    e("s_addc_u32 s45, s1, 0")
    e("s_load_dwordx2 s[64:65], s[44:45], 0")
    e("s_load_dwordx4 s[72:75], s[44:45], 24")
    e("s_load_dwordx4 s[68:71], s[44:45], 8")
    e("s_load_dwordx4 s[76:79], s[0:1], 80")
    e(f"s_load_dwordx2 s[{sWsP}:{sWsP+1}], s[0:1], 96")
    e("v_lshrrev_b32 v1, 6, v0")
    e("v_and_b32 v2, 63, v0")
    e(f"v_readfirstlane_b32 s{sW}, v1")
    if OPT["mp"] == 4:
        e("s_and_b32 s3, s3, 3")
        e("s_lshl_b32 s3, s3, 2")
        e(f"s_lshr_b32 s{sB}, s2, 3")
        e(f"s_and_b32 s{sH}, s{sB}, 3")
        e(f"s_lshl_b32 s{sTmp}, s{sH}, 1")
        e(f"s_add_u32 s{sH}, s{sH}, s3")
        e(f"s_lshr_b32 s{sB}, s{sB}, 2")
        e(f"s_add_u32 s{sTmp}, s{sTmp}, s{sB}")
        for _ in range(2):
            e(f"s_cmp_ge_u32 s{sTmp}, 7"); e(f"s_cselect_b32 s3, 7, 0"); e(f"s_sub_u32 s{sTmp}, s{sTmp}, s3")
    else:
        if OPT["mp"] == 8:
            e(f"s_bfe_u32 s{sB}, s2, 0x10001"); e(f"s_lshl_b32 s{sB}, s{sB}, 2"); e("s_lshr_b32 s3, s2, 6"); e(f"s_add_u32 s{sB}, s{sB}, s3")
            e(f"s_and_b32 s{sH}, s2, 1"); e(f"s_lshl_b32 s{sH}, s{sH}, 3"); e("s_bfe_u32 s3, s2, 0x30003"); e(f"s_add_u32 s{sH}, s{sH}, s3")
        else:
            e(f"s_and_b32 s{sB}, s2, 3"); e(f"s_lshl_b32 s{sB}, s{sB}, 1"); e("s_lshr_b32 s3, s2, 7"); e(f"s_add_u32 s{sB}, s{sB}, s3")
            e(f"s_bfe_u32 s{sH}, s2, 0x40003")
        assert 7*OPT["rb"] + 15*OPT["rh"] < 85
        e(f"s_mul_i32 s{sTmp}, s{sB}, {OPT['rb']}"); e(f"s_mul_i32 s3, s{sH}, {OPT['rh']}"); e(f"s_add_u32 s{sTmp}, s{sTmp}, s3")
        e(f"s_mul_i32 s3, s{sTmp}, 37"); e("s_lshr_b32 s3, s3, 8"); e("s_mul_i32 s3, s3, 7"); e(f"s_sub_u32 s{sTmp}, s{sTmp}, s3")
    e(f"s_lshl_b32 s{sXoff}, s{sTmp}, 7")
    e(f"s_lshl_b32 s{sWqoff}, s{sTmp}, 19")
    e("v_and_b32 v3, 15, v2")
    e("v_lshrrev_b32 v4, 4, v2")
    e(f"s_lshl_b32 s{sWoff}, s{sW}, 12")
    e("v_lshrrev_b32 v5, 3, v2")
    e("v_mul_u32_u24 v5, 896, v5")
    e(f"s_mul_i32 s3, s{sW}, {32*896}")
    e("v_and_b32 v6, 7, v2")
    e(f"v_add_u32 v{vWod}, s3, v5")
    e("v_xor_b32 v6, v6, v4")
    e(f"v_lshl_add_u32 v{vXd}, v6, 4, v{vWod}")
    e(f"v_xor_b32 v5, 64, v{vXd}")
    e(f"v_add_u32 v{vXd+1}, 6144, v5")
    e(f"v_add_u32 v{vXd+2}, {2*6144}, v{vXd}")
    e(f"v_add_u32 v{vXd+3}, {3*6144}, v5")
    e(f"s_lshl_b32 s3, s{sW}, 17")
    e(f"s_lshl_b32 s{sTmp}, s{sH}, 9")
    e(f"s_add_u32 s3, s3, s{sTmp}")
    if OPT["dh"] >= 0:
        assert not OPT["spw"]
        e(f"s_bfe_u32 s46, s2, {0x10000 + OPT['dh']}"); e("s_lshl_b32 s46, s46, 8"); e("s_add_u32 s3, s3, s46")
    e("v_lshlrev_b32 v6, 1, v4")
    e("v_xor_b32 v6, v6, v3")
    e("v_lshlrev_b32 v6, 4, v6")
    e("v_lshl_add_u32 v6, v4, 13, v6")
    e(f"v_add_u32 v{vWqd}, s3, v6")
    e(f"v_xor_b32 v7, 0x80, v{vWqd}")
    e(f"v_add_u32 v{vWqd+1}, {32768-1024}, v{vWqd}")
    e(f"v_add_u32 v{vWqd+2}, {2*(32768-1024)}, v7")
    e(f"v_add_u32 v{vWqd+3}, {3*(32768-1024)}, v7")
    for s, sz in ((sX, 114688), (sWq, 448*8192), (sK, 262144), (sV, 262144)):
        e(f"s_mov_b32 s{s+2}, {sz}"); e(f"s_mov_b32 s{s+3}, 0x00020000")
    e(f"s_mul_i32 s46, s{sB}, 114688")
    e(f"s_lshl_b32 s47, s{sB}, 4")
    e(f"s_add_u32 s47, s47, s{sH}")
    e(f"s_lshl_b32 s47, s47, 18")
    if OPT["spw"]:
        e("v_lshrrev_b32 v8, 2, v0")
        e("v_lshlrev_b32 v8, 13, v8")
        e("v_and_b32 v9, 3, v0")
        e("v_lshl_add_u32 v8, v9, 6, v8")
        e(f"v_add_u32 v8, s{sTmp}, v8")
    e("s_waitcnt lgkmcnt(0)")
    e(f"s_add_u32 s{sX}, s64, s46"); e(f"s_addc_u32 s{sX+1}, s65, 0")
    e(f"s_mov_b32 s{sWq}, s72"); e(f"s_mov_b32 s{sWq+1}, s73")
    e(f"s_add_u32 s{sK}, s68, s47"); e(f"s_addc_u32 s{sK+1}, s69, 0")
    e(f"s_add_u32 s{sV}, s70, s47"); e(f"s_addc_u32 s{sV+1}, s71, 0")
    def touch0():
        if OPT["pfn"]:
            if OPT["pfbit"] >= 0:
                e(f"s_bitcmp1_b32 s2, {OPT['pfbit']}")
                e("s_cbranch_scc0 L_nopf")
            elif OPT["pfbit"] == -2:
                e("s_lshr_b32 s3, s2, 2"); e("s_xor_b32 s3, s3, s2"); e("s_bitcmp1_b32 s3, 3")
                e("s_cbranch_scc0 L_nopf")
            e("v_lshlrev_b32 v63, 7, v2")
            e(f"s_and_b32 s3, s{sW}, 1"); e("s_lshl_b32 s3, s3, 13")
            e("v_add_u32 v63, s3, v63")
            e(f"s_cmp_ge_u32 s{sW}, 2")
            e("s_cbranch_scc1 L_pf_hi")
            for part in range(2):
                for k in range(part, OPT["pfn"], 2):
                    t, i = units[21 + OPT["pfi"] + k]
                    sr = sK if t == "K" else sV
                    e(f"s_mov_b32 s{sTmp2}, {i*16384}")
                    e(f"buffer_load_dword a{aQ+2+k//2}, v63, s[{sr}:{sr+3}], s{sTmp2} offen {OPT['pf_pol']}", "pf" if part == 0 and OPT["pfbit"] == -1 and OPT["pfn"] % 2 == 0 else None)
                if part == 0:
                    e("s_branch L_nopf")
                    a.lab("L_pf_hi")
            a.lab("L_nopf")
    if OPT["pfp"] == 0: touch0()
    ip = [0]
    while iss[ip[0]][0] < -1:
        m = iss[ip[0]][1]; ip[0] += 1
        assert alloc(m, 0)
        if m == 1 and OPT["spw"]:
            e(f"buffer_load_dword a{aQ+1}, v8, s[{sWq}:{sWq+3}], s{sWqoff} offen offset:256 {OPT['w_pol']}", "pf")
        for g in dma(m):
            for s in g: e(s)
    if OPT["pfp"] == 1: touch0()
    if OPT["tw"] & 1:
        e(f"s_load_dword s66, s[{sK}:{sK+1}], 0")
        e(f"s_load_dword s67, s[{sV}:{sV+1}], 0")
    if OPT["tw"] & 2:
        e(f"buffer_load_dword a{aQ+1}, off, s[{sK}:{sK+3}], 0", "pf")
        e(f"buffer_load_dword a{aQ+2}, off, s[{sV}:{sV+3}], 0", "pf")
    if OPT["codepf"]:
        e("s_getpc_b64 s[62:63]")
        a.lab("L_pc")
        e("s_lshr_b32 s3, s2, 3")
        e("s_lshl_b32 s3, s3, 12")
        e("v_lshlrev_b32 v5, 4, v0")
        e("v_add_u32 v5, s3, v5")
        e("v_min_u32 v5, L_k1_end-L_pc-8, v5")
        e(f"global_load_dword a{aQ}, v5, s[62:63]", "pf")
    if IOD:
        e(f"s_lshl_b32 s3, s{sBLK}, 3"); e(f"s_add_u32 s3, s3, s{sB}"); e("s_lshl_b32 s3, s3, 22"); e(f"s_add_u32 s3, s3, {PBASE}")
        e(f"s_add_u32 s{sG}, s{sWsP}, s3"); e(f"s_addc_u32 s{sG+1}, s{sWsP+1}, 0")
        e(f"s_lshl_b32 s3, s{sW}, 4"); e(f"s_add_u32 s3, s3, s{sH}"); e("s_lshl_b32 s47, s3, 16")
        e(f"s_add_u32 s64, s{sG}, s47"); e(f"s_addc_u32 s65, s{sG+1}, 0")
        if OPT["prw"] and OPT["iodf"] < 0: e(f"s_load_dword s{sSel}, s[64:65], {HOLE + 1024}")
        if OPT["prw"] > 1 and OPT["iodf"] < 0: e(f"s_load_dword s66, s[64:65], {HOLE + 1024 + 8192}")
    e("v_bfe_u32 v6, v2, 2, 2")
    e("v_and_b32 v7, 3, v2")
    e("v_bfe_u32 v5, v2, 2, 3")
    e("v_lshl_add_u32 v8, v4, 3, v6")
    e("v_lshlrev_b32 v9, 5, v5")
    e("v_lshl_add_u32 v9, v7, 3, v9")
    e("v_lshl_add_u32 v9, v8, 8, v9")
    e("v_lshl_add_u32 v8, v8, 8, v9")
    e(f"v_add_u32 v{vVr}, 0x10000, v8")
    for w in (2, 0, 1):
        e(f"v_add_u32 v{vWr+8*w}, {w*65536}, v9")
        for T in range(1, 8): e(f"v_xor_b32 v{vWr+8*w+T}, {T<<5}, v{vWr+8*w}")
    e("v_lshrrev_b32 v5, 1, v3"); e("v_xor_b32 v5, v5, v4"); e("v_lshlrev_b32 v5, 4, v5")
    e("v_lshl_add_u32 v5, v3, 7, v5")
    e(f"v_add_u32 v{vXr}, s{sWoff}, v5")
    e(f"v_xor_b32 v{vXr+1}, 64, v{vXr}")
    for w in (2, 1):
        e(f"v_add_u32 v{vXr+2*w}, {w*65536}, v{vXr}"); e(f"v_add_u32 v{vXr+2*w+1}, {w*65536}, v{vXr+1}")
    for s, sz in ((sWo, 229376), (sG, (4 << 20) if IOD else 16*114688), (sFl, (4 << 20) if IOD else (4 << WS)), (sDb, 256), (sOut, 128*1792)):
        e(f"s_mov_b32 s{s+2}, {sz}"); e(f"s_mov_b32 s{s+3}, 0x00020000")
    if OPT["rwo"] == 0: e(f"s_cmp_eq_u32 s{sB}, 7"); e(f"s_cselect_b32 s3, 0, s{sB}")
    elif OPT["rwo"] == 1: e(f"s_and_b32 s3, s{sB}, 6")
    elif OPT["rwo"] == 2: e(f"s_lshr_b32 s3, s{sB}, 1")
    elif OPT["rwo"] == 3: e(f"s_mul_i32 s3, s{sBLK}, 3")
    elif OPT["rwo"] == 4: e(f"s_and_b32 s3, s{sB}, 1")
    e(f"s_lshl_b32 s{sWooff}, s3, 7")
    if IOD:
        e(f"s_lshl_b32 s{sStA}, s3, 12"); e("s_lshr_b32 s3, s3, 1"); e("s_lshl_b32 s3, s3, 13"); e(f"s_add_u32 s{sNP0}, s{sStA}, s3")
    else:
        e(f"s_lshl_b32 s{sStA}, s3, 12")
        e(f"s_mov_b32 s{sNP0}, s{sStA}")
    e(f"s_mul_i32 s3, s{sH}, 229376")
    e(f"s_add_u32 s{sWo}, s74, s3"); e(f"s_addc_u32 s{sWo+1}, s75, 0")
    e(f"s_lshl_b32 s46, s{sBLK}, 3")
    e(f"s_add_u32 s46, s46, s{sB}")
    if IOD:
        e(f"s_mov_b32 s{sFl}, s{sG}"); e(f"s_mov_b32 s{sFl+1}, s{sG+1}")
    else:
        e(f"s_mul_i32 s3, s46, {16*114688}")
        e(f"s_add_u32 s{sG}, s{sWsP}, s3"); e(f"s_addc_u32 s{sG+1}, s{sWsP+1}, 0")
        e(f"s_lshl_b32 s3, s46, {WS + 2}")
        e(f"s_add_u32 s3, s3, {FLAGS_OFF}")
        e(f"s_add_u32 s{sFl}, s{sWsP}, s3"); e(f"s_addc_u32 s{sFl+1}, s{sWsP+1}, 0")
    e(f"s_mov_b32 s{sDb}, s78"); e(f"s_mov_b32 s{sDb+1}, s79")
    e(f"s_mul_i32 s3, s{sB}, {128*1792}")
    e(f"s_add_u32 s{sOut}, s76, s3"); e(f"s_addc_u32 s{sOut+1}, s77, 0")
    e(f"s_mov_b32 s{sC}, {f32hex(SCALE)}")
    e(f"s_mov_b32 s{sThr}, {f32hex(OPT['thr'])}")
    e(f"s_mov_b32 s{sTlo}, {f32hex(OPT['tlo'])}")
    e(f"s_mov_b32 s{sSpin}, 0x8000")
    if OPT["rot"]:
        rm, rs, rk = [int(x) for x in OPT["rot"].split(",")]
        e(f"s_mul_i32 s77, s2, {rm}"); e(f"s_lshr_b32 s77, s77, {rs}"); e(f"s_and_b32 s77, s77, {rk}"); e("s_lshl_b32 s77, s77, 14")
    if OPT["TA"] >= 0:
        e(f"s_cmp_ge_u32 s{sW}, 2")
        e(f"s_cselect_b32 s{sPf}, s{sV}, s{sK}"); e(f"s_cselect_b32 s{sPf+1}, s{sV+1}, s{sK+1}")
        e(f"s_cselect_b32 s{sPfo}, {OPT['T0']-1}, {OPT['T0']}"); e(f"s_lshl_b32 s{sPfo}, s{sPfo}, 14")
        e(f"s_mov_b32 s{sPf+2}, 262144"); e(f"s_mov_b32 s{sPf+3}, 0x00020000")
        e(f"s_and_b32 s3, s{sW}, 1"); e("s_lshl_b32 s3, s3, 13")
        e(f"v_lshl_add_u32 v{vPf}, v2, 7, s3")
    if OPT["diag"]:
        e("s_getreg_b32 s3, hwreg(HW_REG_XCC_ID, 0, 4)")
        e("s_sub_u32 s3, s3, s2"); e("s_and_b32 s3, s3, 7"); e("s_lshl_b32 s3, 1, s3")
        e("v_mov_b32 v5, s3"); e("v_lshlrev_b32 v8, 12, v0"); e("v_add_u32 v8, 128, v8")
        e(f"buffer_atomic_or v5, v8, s[{sDb}:{sDb+3}], 0 offen sc1", "pf")
    if OPT["org"]:
        e("v_not_b32 v5, s100"); e("v_lshlrev_b32 v8, 12, v0")
        e(f"buffer_atomic_umax v5, v8, s[{sDb}:{sDb+3}], 0 offen offset:64 sc1", "pf")
    stamp(a, 1)
    late = []
    l = late.append
    l("v_lshrrev_b32 v5, 5, v2"); l("v_and_b32 v9, 31, v2")
    l("v_lshlrev_b32 v8, 9, v5"); l(f"v_add_u32 v8, s{sWoff}, v8")
    l(f"s_lshl_b32 s3, s{sW}, 2")
    if OPT["dh"] >= 0: l(f"s_bfe_u32 s44, s2, {0x10000 + OPT['dh']}"); l("s_lshl_b32 s44, s44, 4"); l("s_add_u32 s3, s3, s44")
    l("v_xor_b32 v1, v9, v5"); l("v_xor_b32 v1, s3, v1")
    l(f"v_lshl_add_u32 v{vKd}, v1, 4, v8")
    l(f"v_xor_b32 v{vKd+1}, 32, v{vKd}")
    l(f"s_and_b32 s3, s{sW}, 1"); l("s_lshl_b32 s3, s3, 3")
    l("v_lshlrev_b32 v5, 1, v5"); l("v_xor_b32 v1, v9, v5"); l("v_xor_b32 v1, s3, v1")
    l(f"v_lshl_add_u32 v{vVd}, v1, 4, v8")
    l(f"v_xor_b32 v{vVd+1}, 64, v{vVd}")
    if not IOD: l(f"s_mul_i32 s3, s{sW}, 28672"); l(f"s_mul_i32 s44, s{sH}, 114688"); l("s_add_u32 s3, s3, s44")
    l("v_lshl_add_u32 v5, v3, 2, v4")
    l(f"v_lshl_add_u32 v{vSt}, v5, 4, {'s47' if IOD else 's3'}")
    if OPT["LM"] or OPT["LQ"]:
        assert not VT()
        l(f"v_lshl_add_u32 v1, v2, 6, {'s47' if IOD else 's3'}")
    for T in range(1, 8): l(f"v_xor_b32 v{vVr+T}, {T<<5}, v{vVr}")
    if OPT["CLR"] < 14:
        for r in range(4): l(f"v_mov_b32 v{vE+8+r}, -1")
    if OPT["wow"] >= 0:
        l(f"s_mul_i32 s3, s{sB}, 28672"); l(f"v_lshl_add_u32 v63, v0, 7, s3")
    if OPT["wt"]:
        assert not OPT["t4"] and OPT["wow"] < 0 and not OPT["LM"] and not OPT["LQ"]
        if OPT["wth"]:
            l("s_lshr_b32 s3, s2, 7"); l("s_lshl_b32 s3, s3, 7"); l("v_and_b32 v63, 127, v0"); l("v_add_u32 v63, s3, v63")
            l("v_mul_u32_u24 v63, 896, v63"); l("v_lshrrev_b32 v5, 7, v0"); l("v_lshl_add_u32 v63, v5, 24, v63")
        else: l("v_mul_u32_u24 v63, 896, v0")
        l(f"s_mov_b32 s78, s{sWooff}")
    if OPT["t4"]:
        assert IOD and OPT["near"] and OPT["t2"] and OPT["NS"] == 0 and not OPT["late"] and not OPT["ad"] and not OPT["fl2"]
        NSET = 2 if OPT["eA"] else 1
        l(f"s_lshl_b32 s3, s{sW}, 8"); l(f"s_add_u32 s3, s3, s{sH}"); l(f"s_add_u32 s3, s3, {HOLE}")
        l("v_lshl_add_u32 v5, v7, 6, s3")
        if OPT["t5"]:
            NSET = OPT["t5"]
            assert NSET in (4, 8, 16) and not OPT["eA"]
            l("v_lshrrev_b32 v8, 2, v2")
            l(f"v_lshl_add_u32 v{vFl}, v8, 16, v5")
            if NSET < 16:
                l(f"v_lshrrev_b32 v8, {NSET.bit_length() + 1}, v2"); l(f"v_lshl_add_u32 v{vFl}, v8, 22, v{vFl}")
        else:
            if NSET == 2:
                l("v_bfe_u32 v8, v2, 2, 1"); l("v_lshl_add_u32 v5, v8, 10, v5")
            l(f"v_lshrrev_b32 v8, {1 + NSET}, v2")
            l(f"v_lshl_add_u32 v{vFl}, v8, 22, v5")
        l(f"s_lshl_b32 s78, s{sH}, 6"); l(f"s_add_u32 s78, s78, {HOLE}")
        l(f"v_mov_b32 v{vFp}, s78")
        if OPT["t5"]:
            l(f"v_and_b32 v62, {NSET - 1}, v2")
        l(f"s_lshl_b32 s3, s{sW}, 4"); l(f"s_add_u32 s3, s3, s{sH}"); l(f"s_add_u32 s3, s3, {HOLE + 3840}")
        l("v_lshl_add_u32 v63, v2, 22, s3")
        if OPT["t5"]: l("v_lshlrev_b32 v5, 6, v3"); l("v_lshl_add_u32 v5, v4, 16, v5")
        else: l("v_lshrrev_b32 v5, 2, v2"); l("v_lshlrev_b32 v5, 6, v5"); l("v_lshl_add_u32 v5, v7, 2, v5")
        l([f"s_or_b32 s3, s{sH}, s{sW}", "s_cmp_eq_u32 s3, 0", "s_cselect_b32 s45, 0, 0x400000"])
        l(f"s_add_u32 s3, s45, {HOLE}")
        l(f"v_mov_b32 v{vL}, 0"); l(f"v_mov_b32 v{vL+1}, 0")
        l("v_add_u32 v5, s3, v5")
        if OPT["t5"]:
            for r in range(4): l(f"v_mov_b32 v{vNM+r}, 0")
            for k in range(NSET//4): l([f"s_mov_b32 s3, {k << 18}", (f"buffer_store_dwordx4 {q4(vNM)}, v5, s[{sFl}:{sFl+3}], s3 offen {OPT['clr_pol']}", "clr")])
        else:
            for k in range(NSET): l((f"buffer_store_dword v{vL}, v5, s[{sFl}:{sFl+3}], 0 offen offset:{1024*k} {OPT['clr_pol']}", "clr"))
    elif IOD:
        assert OPT["t2"] and OPT["NS"] == 0 and not OPT["late"] and not OPT["ad"]
        assert FS <= 7
        l(f"s_lshl_b32 s3, s{sW}, 20"); l(f"s_lshl_b32 s44, s{sH}, {FS}"); l("s_add_u32 s3, s3, s44"); l(f"s_add_u32 s3, s3, {HOLE}")
        l("v_and_b32 v5, 1, v2"); l("v_lshrrev_b32 v8, 1, v2")
        if not OPT["fl2"]: l("v_mov_b32 v8, v2")
        l("v_lshlrev_b32 v8, 22, v8"); l("v_lshl_add_u32 v5, v5, 13, v8")
        l(f"v_add_u32 v{vFl}, s3, v5")
        l("v_lshl_add_u32 v5, v7, 2, v4")
        l(f"s_lshr_b32 s3, s{sH}, 2"); l(f"s_lshl_b32 s3, s3, 20"); l(f"s_add_u32 s3, s3, {HOLE}")
        l(f"v_lshl_add_u32 v{vFp}, v5, {FS}, s3")
        l(f"v_mov_b32 v8, {7 << FSH}")
        l(f"v_cmp_eq_u32 vcc, s{sH}, v5"); l("s_nop 0"); l(f"v_cndmask_b32 v{vDV}, 0, v8, vcc")
        l(f"v_lshlrev_b32 v5, {FS}, v3"); l(f"v_lshl_add_u32 v5, v4, 20, v5")
        l([f"s_or_b32 s3, s{sH}, s{sW}", "s_cmp_eq_u32 s3, 0", "s_cselect_b32 s45, 0, 0x400000"])
        l(f"s_add_u32 s3, s45, {HOLE}"); l(f"s_add_u32 s44, s45, {HOLE + 8192}")
        l(f"v_mov_b32 v{vL}, 0"); l(f"v_mov_b32 v{vL+1}, 0")
        l("v_add_u32 v8, s44, v5"); l("v_add_u32 v5, s3, v5")
        l((f"buffer_store_dword v{vL}, v5, s[{sFl}:{sFl+3}], 0 offen {OPT['clr_pol']}", "clr"))
        l((f"buffer_store_dword v{vL}, v8, s[{sFl}:{sFl+3}], 0 offen {OPT['clr_pol']}", "clr"))
    else:
        l(f"s_lshl_b32 s3, s{sW}, {WS}"); l(f"s_lshl_b32 s44, s{sH}, {FS}"); l("s_add_u32 s3, s3, s44")
        l(f"v_lshl_add_u32 v{vFl}, v2, 16, s3")
        l(f"v_lshlrev_b32 v5, {FS}, v3")
        l(f"s_lshr_b32 s3, s{sH}, 2"); l(f"s_lshl_b32 s3, s3, {WS}")
        l(f"v_add_u32 v{vFp}, s3, v5")
        if OPT["t2"]:
            l(f"v_cmp_eq_u32 vcc, s{sH}, v3"); l("s_nop 0"); l(f"v_cndmask_b32 v{vDV}, 0, 7, vcc")
        if OPT["fpat"]:
            l(f"v_lshl_add_u32 v{vFp}, v4, 16, v{vFp}")
            l("v_cmp_lt_u32 vcc, 0, v4"); l("s_nop 0"); l(f"v_cndmask_b32 v{vDV}, v{vDV}, 7, vcc")
        l(f"v_lshl_add_u32 v5, v4, {WS}, v5")
        l([f"s_or_b32 s3, s{sH}, s{sW}", "s_cmp_eq_u32 s3, 0", "s_cselect_b32 s45, 0, 0x10000"])
        l("v_add_u32 v5, s45, v5")
        l(f"v_mov_b32 v{vL}, 0"); l(f"v_mov_b32 v{vL+1}, 0")
        l((f"buffer_store_dword v{vL}, v5, s[{sFl}:{sFl+3}], 0 offen {OPT['clr_pol']}", "clr"))
    l(f"s_lshl_b32 s44, s46, {4 if OPT['near'] else 2}"); l("s_add_u32 s45, s45, s44")
    if OPT["near"]:
        assert not OPT["pace"]
        l("s_getreg_b32 s100, hwreg(HW_REG_XCC_ID, 0, 4)")
        l("s_mul_i32 s101, s100, s100"); l("s_lshl_b32 s101, s101, 8"); l("s_add_u32 s101, s101, s100")
        l("s_lshl_b32 s101, s101, 8"); l("s_add_u32 s101, s101, 1")
        l("v_mov_b32 v5, s101"); l("v_lshl_add_u32 v8, v0, 12, s44")
        l((f"buffer_atomic_add v5, v8, s[{sDb}:{sDb+3}], 0 offen offset:4 sc1", "pf"))
        l("s_lshl_b32 s101, s101, 4")
    l(f"v_lshl_add_u32 v{vDbA}, v2, 12, s45")
    l(f"v_mov_b32 v{vDbV}, s44")
    l(f"v_mov_b32 v{vFv}, 1")
    l("v_lshrrev_b32 v5, 1, v4"); l("v_and_b32 v8, 1, v4"); l("v_lshl_add_u32 v5, v8, 1, v5")
    l("v_xor_b32 v5, v5, v3"); l("v_lshlrev_b32 v5, 4, v5")
    l("v_lshl_add_u32 v8, v6, 3, v7")
    l(f"v_lshl_add_u32 v{vKr}, v8, 9, v5")
    for s in range(1, 4): l(f"v_xor_b32 v{vKr+s}, {s<<6}, v{vKr}")
    l("v_lshrrev_b32 v5, 2, v2"); l("v_lshlrev_b32 v5, 7, v5")
    l("v_bfe_u32 v8, v2, 3, 2"); l("v_lshl_add_u32 v5, v8, 5, v5")
    l("v_lshl_add_u32 v5, v7, 3, v5")
    l(f"v_add_u32 v{vWor}, 0x20000, v5")
    for n in range(1, 4): l(f"v_xor_b32 v{vWor+n}, {n<<5}, v{vWor}")
    l("v_and_b32 v8, 7, v2"); l("v_lshlrev_b32 v9, 1, v4"); l("v_xor_b32 v8, v8, v9")
    l(f"v_lshl_add_u32 v{vWod}, v8, 4, v{vWod}")
    for jj in range(1, 4): l(f"v_add_u32 v{vWod+jj}, {jj*(7168-1024)}, v{vWod}")
    for r in range(8): l(f"v_mov_b32 v{vNM+r}, 0")
    if NP:
        l(f"v_lshl_add_u32 v{vUp}, v2, 4, s{sWoff}"); l(f"v_add_u32 v{vUp+1}, 0x10000, v{vUp}")
    l(f"s_lshr_b32 s44, s{sH}, 2"); l(f"s_mul_i32 s3, s44, {(1 << 20) if IOD else 28672}")
    l(f"s_and_b32 s45, s{sH}, 3"); l("s_lshl_b32 s45, s45, 10"); l("s_add_u32 s3, s3, s45")
    l(f"s_lshl_b32 s45, s{sW}, 8"); l("s_add_u32 s3, s3, s45")
    l(f"v_mul_u32_u24 v5, {65536 if IOD else 114688}, v4"); l("v_lshl_add_u32 v5, v3, 4, v5")
    l(f"v_add_u32 v{vRd}, s3, v5")
    l("s_lshl_b32 s3, s44, 5"); l(f"s_and_b32 s45, s{sH}, 1"); l("s_lshl_b32 s45, s45, 4"); l("s_add_u32 s3, s3, s45")
    l(f"s_lshl_b32 s45, s{sW}, 2"); l("s_add_u32 s3, s3, s45"); l("s_mul_i32 s3, s3, 1792")
    l(f"s_mul_i32 s45, s{sBLK}, 896"); l("s_add_u32 s3, s3, s45")
    l(f"s_and_b32 s45, s{sH}, 2"); l("s_lshl_b32 s45, s45, 5"); l("s_add_u32 s3, s3, s45")
    l("v_mul_u32_u24 v5, 1792, v6"); l("v_lshl_add_u32 v5, v7, 3, v5")
    l("v_and_b32 v8, 1, v4"); l("v_lshl_add_u32 v5, v8, 5, v5")
    l("v_lshrrev_b32 v8, 1, v4"); l("v_lshl_add_u32 v5, v8, 24, v5")
    l(f"v_add_u32 v{vRo}, s3, v5")
    l("v_and_b32 v5, 1, v2"); l("v_lshlrev_b32 v5, 4, v5"); l("v_mov_b32 v8, 0x3f80"); l("v_lshlrev_b32 v5, v5, v8")
    l("v_bfe_u32 v8, v2, 1, 2")
    for r in range(4):
        l(f"v_cmp_eq_u32 vcc, {r}, v8"); l("s_nop 0"); l(f"v_cndmask_b32 v{vSel+r}, 0, v5, vcc")

    if OPT["ad"]:
        assert not OPT["late"]
        l("s_lshr_b32 s3, s2, 3"); l(f"s_and_b32 s3, s3, {OPT['adM']}"); l("s_lshl_b32 s3, s3, 16")
        l("s_and_b32 s44, s2, 7"); l("s_lshl_b32 s44, s44, 2"); l("s_add_u32 s3, s3, s44")
        l("v_lshl_add_u32 v1, v0, 7, s3")
        l(f"v_cmp_le_u32 vcc, {OPT['adW']}, v0"); l("v_mov_b32 v3, 0x10000"); l("v_cndmask_b32 v3, 0, v3, vcc")
        l("v_add_u32 v1, v1, v3")
        l("s_lshl_b32 s3, s2, 16"); l("v_lshl_add_u32 v3, v0, 4, s3")
        l("s_mov_b32 s99, s100")
        for r in range(4): l(f"v_mov_b32 v{4+r}, 0")
        for r in range(8): l(f"s_mov_b32 s{64+r}, 0")
        assert not OPT["trace"]
    if PACE2: l(f"s_lshr_b32 s79, s{sB}, {OPT['clsh']}"); l(f"s_and_b32 s79, s79, {OPT['clm']}")
    if IOD:
        NPR = OPT["npr"]
        if OPT["iodf"] >= 0:
            l(f"s_lshr_b32 s3, s{sW}, 1"); l(f"s_xor_b32 s3, s3, s{sBLK}"); l(f"s_xor_b32 s3, s3, {OPT['iodf']}"); l(f"s_lshl_b32 s{sSel}, s3, 13")
        elif OPT["prn"]:
            assert not PACE2 and OPT["prNW"] <= 4 and not OPT["prw"]
            l("v_and_b32 v5, 1, v2"); l("v_bfe_u32 v8, v2, 1, 2"); l("v_lshrrev_b32 v9, 3, v2")
            l("v_lshlrev_b32 v5, 13, v5"); l("v_lshl_add_u32 v5, v8, 9, v5"); l("v_lshl_add_u32 v5, v9, 22, v5")
            l(f"s_add_u32 s3, s47, {HOLE + 2048}"); l("v_add_u32 v5, s3, v5")
            l((f"buffer_store_dword v{vL}, v5, s[{sG}:{sG+3}], 0 offen sc1", "pf"))
            l("s_mov_b32 s66, 0"); l("s_mov_b32 s67, 0"); l("s_mov_b32 s79, 0")
        elif OPT["prH"]:
            l("s_mov_b32 s78, 0x9e3779b9"); l("s_mov_b32 s79, 0")
            assert not OPT["trace"] and not PACE2
        else:
            pr = ["s_mov_b32 s47, 0x9e3779b9"] + [f"s_mov_b32 s{66+k}, s47" for k in range(2*NPR)]
            if OPT["prw"]: pr.append("s_waitcnt lgkmcnt(0)")
            for k in range(NPR):
                ab = [f"s_load_dword s{66+2*k+x}, s[64:65], {HOLE + 2048 + (2*k+x)*256 + x*8192}" for x in range(2)]
                pr += ab if k % 2 == 0 else ab[::-1]
            k0 = len(late) - OPT["prp"]
            assert k0 > [i for i, x in enumerate(late) if "s47" in str(x)][-1]
            late[k0:k0] = pr
            l("s_mov_b32 s3, 0")
            l(f"s_waitcnt lgkmcnt({NPR})")
            for k in range(NPR):
                l(f"s_cmp_eq_u32 s{66+2*k}, s47"); l("s_addc_u32 s3, s3, 0")
                l(f"s_cmp_eq_u32 s{67+2*k}, s47"); l("s_subb_u32 s3, s3, 0")
            l("s_cmp_gt_i32 s3, 0")
            l(f"s_cselect_b32 s{sSel}, 0x2000, 0")
            if IOD == 2: l(f"s_mov_b32 s{sStamp+3}, s3")
    defer = []
    if OPT["eop"] >= 0:
        import re as _re
        fr = list(range(104, 112)) + list(range(120, 128))
        for i, x in enumerate(late):
            y = x[-1] if isinstance(x, list) else x
            if isinstance(y, tuple) and ("buffer_store" in y[0] or "buffer_atomic" in y[0]):
                t = y[0]; mv = []
                for r in ("v5", "v8"):
                    if _re.search(rf"\b{r},", t):
                        n = fr.pop(0); mv.append(f"v_mov_b32 v{n}, {r}"); t = _re.sub(rf"\b{r},", f"v{n},", t)
                defer.append((x[:-1] if isinstance(x, list) else []) + [(t, y[1])])
                late[i] = mv
    items = []
    fill = defaultdict(list)
    def add(p, ins):
        fill[p].extend(ins if isinstance(ins, list) else [ins])
    load = defaultdict(float, BASE or {})
    def spread(p0, p1, ins):
        n = p1 - p0 + 1
        if not OPT["wf"]:
            for k, s in enumerate(ins): add(p0 + (k*n)//len(ins), [s])
            return
        if BASE is None: return
        tot = cost(ins)
        lo, hi = 0.0, 100.0
        for _ in range(40):
            L = (lo + hi)/2
            if sum(max(0.0, L - load[p]) for p in range(p0, p1 + 1)) >= tot: hi = L
            else: lo = L
        k, bud = 0, 1e-6
        for p in range(p0, p1 + 1):
            bud += max(0.0, hi - load[p])
            while k < len(ins) and (bud >= cost(ins[k])/2 or p == p1):
                add(p, [ins[k]]); load[p] += cost(ins[k]); bud -= cost(ins[k]); k += 1
    if OPT["late"]: spread(0, 16*6, late)
    else:
        for s in late:
            for x in (s if isinstance(s, list) else [s]): e(x)
    if OPT["pfp"] == 2: touch0()
    while iss[ip[0]][0] < 0:
        m = iss[ip[0]][1]; ip[0] += 1
        assert alloc(m, 0)
        for g in dma(m):
            for s in g: e(s)
    if OPT["pfp"] == 3: touch0()
    def visit(k0, n):
        def f(a):
            a.e("s_mov_b64 exec, 0")
            for w in range(1, n):
                a.e(f"s_cmp_eq_u32 s{sW}, {w}"); a.e(f"s_cbranch_scc1 L_pg{k0+w}")
            a.e(f"s_branch L_pg{k0}")
            a.lab(f"L_pgr{k0}")
            a.e("s_mov_b64 exec, -1")
            a.e("s_nop 3")
        f.cost = 8
        return f
    for i, x in enumerate(defer): add(int(16*OPT["eop"]) + 2*i, [x])
    assert not defer or (OPT["eop"] + 1 < OPT["prH0"] + OPT["pro"]/16 and OPT["eop"] + 2 < OPT["SIG"] and OPT["eop"] < 12)
    for x in PG:
        if x[0] < 0: visit(x[1], x[2])(a)
        else: add(int(16*x[0]), [visit(x[1], x[2])])
    if IOD:
        PRH = [int(x) for x in OPT["prH"].split(",")] if OPT["prH"] else []
        psel = 16*max(PRH) if PRH else 20
        if OPT["prn"]:
            for k in range(OPT["prNW"]):
                p0 = 16*(OPT["prH0"] + OPT["prLW"]*k) + OPT["pro"]
                for w in range(4):
                    def race(a, k=k, w=w):
                        a.e(f"s_cmp_lg_u32 s{sW}, {w}"); a.e(f"s_cbranch_scc1 L_npr{k}_{w}")
                        a.e("s_mov_b64 s[66:67], -1")
                        for x in range(2): a.e(f"s_load_dword s{66+x}, s[64:65], {HOLE + 2048 + k*512 + (x ^ (k & 1))*8192}")
                        a.lab(f"L_npr{k}_{w}")
                    race.cost = 3
                    add(p0 + w*OPT["prstg"], [race])
                for p in range(p0 + 4, p0 + 16*OPT["prLW"], OPT["prsm"]):
                    add(p, [["s_cmp_lg_u32 s66, s67", f"s_{'addc' if k & 1 else 'subb'}_u32 s79, s79, 0"]])
            psel = p0 + 16*OPT["prLW"] + 1
            if VT(): add(psel, [[f"v_mov_b32 v{vDV}, s79", (f"buffer_store_byte v{vDV}, v63, s[{sFl}:{sFl+3}], 0 offen sc1", "pf")]])
            else: add(psel - 1, [["s_cmp_gt_i32 s79, 0", f"s_cselect_b32 s{sSel}, 0x2000, 0"] + ([f"s_mov_b32 s{sStamp+3}, s79"] if IOD == 2 else [])])
        if not VT(): add(psel, [[f"v_add_u32 v{vSt}, s{sSel}, v{vSt}"]])
        if OPT["LM"] or OPT["LQ"]: add(psel + 2, [[f"v_add_u32 v1, s{sSel}, v1"]])
        if OPT["t4"] and not VT(): add(psel + 1, [[f"s_lshr_b32 s44, s{sSel}, 6", f"v_mov_b32 v{vDV}, s44"]])
        if OPT["fl2"]: add(psel + 1, [[f"s_lshr_b32 s44, s{sH}, 2", f"s_xor_b32 s44, s44, s{sW}", "s_lshl_b32 s44, s44, 12", f"s_xor_b32 s44, s44, s{sSel}", "s_and_b32 s44, s44, 0x2000", f"v_add_u32 v{vFp}, s44, v{vFp}"]])
    def p1item(H, i, T, kap):
        half, c = i // 7, i % 7
        n = uidx[("W", i)]
        mf = []
        for u in range(2):
            acc = acc_of(vO, 8*half + T, u)
            cin = "0" if (c == 0 and kap == 0) else q4(acc)
            mf.append(f"{MF} {q4(acc)}, a[{{b}}:{{b3}}], {q4(aX + 16*c + 8*kap + 4*u, 'a')}, {cin}")
        rd = tr_reads("W", T, n, kap*8192, kap*8192 + 1024)
        if i < 7 and T == 0:
            rd = [("ds_read_b128", q4(aX + 16*c + 8*kap + 4*u, "a"), "X", kap, uidx[("X", c)], u*2048) for u in range(2)] + rd
        items.append(Item(H, mf, rd))
    done_at = {}
    for H in range(14):
        if OPT["j2"] and H >= 12:
            for T in range(4*(H-12), 4*(H-12)+4):
                for i in (12, 13):
                    for kap in range(2): p1item(H, i, T, kap)
                done_at[4 + T//2] = len(items) - 1
        else:
            for T in range(8):
                for kap in range(2): p1item(H, H, T, kap)
                if H % 7 == 6: done_at[4*(H//7) + T//2] = len(items) - 1
    def qconv(s):
        t = []
        R = [vO + 16*s, vO + 16*s + 8]
        for r in R:
            for j in range(0 if OPT["sms"] else 8): t.append(f"v_mul_f32 v{r+j}, s{sC}, v{r+j}")
        for r in R:
            for j in range(4): t.append(f"v_cvt_pk_bf16_f32 v{r+j}, v{r+2*j}, v{r+2*j+1}")
        for r in R:
            t += [f"v_permlane16_swap_b32 v{r}, v{r+2}", f"v_permlane16_swap_b32 v{r+1}, v{r+3}"]
        for u, r in enumerate(R):
            for j in range(4): t.append(f"v_accvgpr_write_b32 a{aQ+8*s+4*u+j}, v{r+j}")
        return t
    t = []
    for s in range(4): t += qconv(s)
    spread(7*16 + 2, 12*16 + 6, t)
    if OPT["j2"]:
        lim = [(done_at[4]+2, done_at[4]+12), (done_at[4]+13, done_at[6]+1), (done_at[6]+2, done_at[6]+11), (done_at[6]+12, 14*16+12)]
    else:
        lim = [(13*16+5+6*k, 13*16+10+6*k) for k in range(4)]
    for k, (p0, p1) in enumerate(lim):
        assert p0 >= done_at[4+k] + 2 and p1 < 14*16 + 2*(4+k) - 1, (k, p0, p1)
        spread(p0, p1, qconv(4 + k))

    def qk(H, n, S):
        for f in range(16):
            s, ee = f >> 1, f & 1
            mf = []
            for u in range(2):
                acc = S + 8*u + 4*ee
                cin = q4(vNM + 4*u) if s == 0 else q4(acc)
                mf.append(f"{MF} {q4(acc)}, a[{{b}}:{{b3}}], {q4(aQ + 8*s + 4*u, 'a')}, {cin}")
            items.append(Item(H, mf, [("ds_read_b128", "a[{b}:{b3}]", "K", s & 3, n, (s >> 2)*256 + ee*2048)]))
    def pv(H, n, P, first):
        for T in range(16):
            mf = []
            for u in range(2):
                acc = acc_of(vO, T, u)
                mf.append(f"{MF} {q4(acc)}, a[{{b}}:{{b3}}], {q4(P + 4*u)}, {'0' if first else q4(acc)}")
            o = (T >> 3)*256
            items.append(Item(H, mf, tr_reads("V", T & 7, n, o, o + 2048)))
    EORD = [0, 1, 2, 3, 8, 9, 10, 11, 4, 5, 6, 7, 12, 13, 14, 15]
    Pb = (vP, vE + 8)
    def softmax(S, par):
        Lo, Ln, P = vL + 2*par, vL + 2*(par ^ 1), Pb[par]
        L = []
        seen = set()
        def addk(i):
            u = EORD[i] >> 3
            src = Ln + u if u in seen else Lo + u
            seen.add(u)
            return f"v_add_f32 v{Ln+u}, v{src}, v{vE+(i&7)}"
        cv = lambda i: f"v_cvt_pk_bf16_f32 v{P+EORD[i]//2}, v{vE+(i&7)}, v{vE+((i+1)&7)}"
        if OPT["sms"]: L.append(f"v_mul_f32 v{vE}, s{sC}, v{S+EORD[0]}")
        for i, k in enumerate(EORD):
            if OPT["sms"]:
                if i < 15: L.append(f"v_mul_f32 v{vE+((i+1)&7)}, s{sC}, v{S+EORD[i+1]}")
                L.append(f"v_exp_f32 v{vE+(i&7)}, v{vE+(i&7)}")
            else: L.append(f"v_exp_f32 v{vE+(i&7)}, v{S+k}")
            if i >= 1: L.append(addk(i-1))
            if i >= 2 and i % 2 == 0: L.append(cv(i-2))
        L += [addk(15), cv(14)]
        return L
    lblc = [0]
    def check(t):
        lblc[0] += 1
        k = lblc[0]
        Ln = vL + 2*((t & 1) ^ 1)
        nm = "L_fix0" if t == 0 else f"L_fixp{t & 1}"
        def f(a):
            a.e(f"v_max_f32 v{vT0}, v{Ln}, v{Ln+1}")
            if t == 0:
                a.e(f"v_min_f32 v{vT0+1}, v{Ln}, v{Ln+1}")
                a.e(f"v_cmp_lt_f32 vcc, s{sThr}, v{vT0}")
                a.e(f"v_cmp_gt_f32 s[44:45], s{sTlo}, v{vT0+1}")
                a.e("s_or_b64 s[44:45], s[44:45], vcc")
                a.e(f"s_cbranch_scc0 L_nm{k}")
            else:
                a.e(f"v_cmp_lt_f32 vcc, s{sThr}, v{vT0}")
                a.e(f"s_cbranch_vccz L_nm{k}")
            a.e(f"s_call_b64 s[{sRet}:{sRet+1}], {nm}")
            a.lab(f"L_nm{k}")
        f.after2 = (t == 15)
        f.cost = 3
        return f
    H = 14
    qk(H, 21, vSb[0]); H += 1
    qk(H, 22, vSb[1])
    add(16*H + 15, [check(0)])
    spread(16*H + 1, 16*H + 14, softmax(vSb[0], 0))
    H += 1
    for t in range(1, 16):
        n = uidx[("V", t-1)]
        assert consumed[n] == H
        pv(H, n, Pb[(t-1) & 1], t == 1)
        p0 = 16*H
        H += 1
        if t <= 14:
            n = uidx[("K", t+1)]
            assert consumed[n] == H
            qk(H, n, vSb[(t+1) & 1])
            H += 1
        add(16*H - 1, [check(t)])
        spread(p0 + 1, 16*H - 2, softmax(vSb[t & 1], t & 1))
    n = uidx[("V", 15)]
    assert consumed[n] == H and H == 45
    pv(H, n, Pb[1], False)
    L0, L1 = vL, vL + 1
    fin = [f"v_permlane32_swap_b32 v{L0}, v{L1}", f"v_add_f32 v{L0}, v{L0}, v{L1}", f"v_mov_b32 v{L1}, v{L0}",
           f"v_permlane16_swap_b32 v{L0}, v{L1}", f"v_add_f32 v{L0}, v{L0}, v{L1}", f"v_rcp_f32 v{vAl}, v{L0}",
           f"v_mov_b32 v{vAl+1}, v{vAl}", f"v_permlane32_swap_b32 v{vAl}, v{vAl+1}"]
    ON = OPT["onorm"]
    for k, s in enumerate(fin): add((45*16 + k//2) if ON else (47*16 - 12 + k), s)
    p = 16*H + (4 if ON else 3)
    for s in range(8):
        t = []
        R = [vO + 16*s, vO + 16*s + 8]
        if ON:
            for u, r in enumerate(R): t += [f"v_mul_f32 v{r+j}, v{r+j}, v{vAl+u}" for j in range(8)]
        for r in R: t += [f"v_cvt_pk_bf16_f32 v{r+j}, v{r+2*j}, v{r+2*j+1}" for j in range(4)]
        w = 5 if ON else 3
        assert p >= 16*H + 2*s + 3 and p + w - 1 <= 16*H + 16 + 4*s - 1
        spread(p, p + w - 1, t)
        p += w
    H += 1
    def epilogue(acc, so, q, j):
        u = q & 1
        g = [] if ON else [f"v_mul_f32 v{acc+r}, v{acc+r}, v{vAl+u}" for r in range(8)]
        dst = vO + 8*(4*j + q) + 4 if j < OPT["hold"] else acc
        g += [f"v_cvt_pk_bf16_f32 v{dst+jj}, v{acc+2*jj}, v{acc+2*jj+1}" for jj in range(4)]
        offs = f" offset:{q*1024}" if q else ""
        near = 4*j + q >= 28 - 4*OPT["LM"] - OPT["LQ"]
        st = (f"buffer_store_dwordx4 {q4(dst)}, v{vSt}, s[{sG}:{sG+3}], s{so} offen{offs} {OPT['lm_pol'] if near else OPT['st_pol']}", f"st{j}")
        if near and OPT["near"]:
            def st(a, x=st):
                k = len(far)
                far.append(x[0].replace(" " + OPT["lm_pol"], " ") + " sc1")
                a.e("s_cmp_lg_u32 s100, s101")
                a.e(f"s_cbranch_scc1 L_far{k}")
                a.e(*x)
                a.lab(f"L_bk{k}")
            st.cost = 3
        if OPT["noval"]: g = []
        if j < OPT["hold"]: held.append(st)
        elif not OPT["nost"]: g.append(st)
        return g
    held = []
    NS = OPT["NS"]
    SN = OPT["SN"]
    pubs = [int(x) for x in OPT["pub"].split(",")]
    assert pubs[-1] == 7 - NS
    far = []
    def flagst(a, tag):
        st = f"buffer_store_{'byte' if OPT['t4'] else 'dword'} v{vFv}, v{vFl}, s[{sFl}:{sFl+3}], 0 offen "
        if not OPT["near"]: return a.e(st + OPT["fl_pol"], tag)
        k = len(far)
        far.append(st + "sc1")
        a.e("s_cmp_lg_u32 s100, s101")
        a.e(f"s_cbranch_scc1 L_far{k}")
        a.e(st, tag)
        a.lab(f"L_bk{k}")
    def publish(cnt):
        def f(a):
            a.wait_vm({f"st{j}" for j in range(min(cnt, 7 - SN))} | {"sen"})
            if VT(): a.e(f"v_mov_b32 v{vFv}, {(1 << cnt) - 1}")
            elif OPT["t4"]: a.e(f"v_or_b32 v{vFv}, {(1 << cnt) - 1}, v{vDV}")
            elif IOD:
                a.e(f"s_or_b32 s44, s{sSel}, {(cnt << FSH) | (63 if OPT['fc'] else 0)}")
                a.e(f"v_mov_b32 v{vFv}, s44")
            else: a.e(f"v_mov_b32 v{vFv}, {cnt}")
            flagst(a, "pub")
        return f
    late_pubs = []
    hpos = lambda k: OPT["HP"] + (OPT["HE"] - OPT["HP"])*k/(4*OPT["hold"] - 1)
    for j in range(7):
        so = 8 + j if j else sNP0
        so2 = 9 + j
        A = vAcc + 32*(j & 1)
        for hf in range(2):
            n = uidx[("O", 2*j+hf)]
            assert consumed[n] == H
            order = [(nn, s4) for nn in range(4) for s4 in range(4)]
            if j == 0: order = [(nn, s4) for s4 in range(4) for nn in range(4)]
            for (nn, s4) in order:
                s = 4*hf + s4
                mf = []
                for u in range(2):
                    acc = acc_of(A, nn, u)
                    mf.append(f"{MF} {q4(acc)}, a[{{b}}:{{b3}}], {q4(vO + 16*s + 8*u)}, {'0' if s == 0 else q4(acc)}")
                items.append(Item(H, mf, tr_reads("O", nn, n, s4*4096, s4*4096 + 2048)))
            H += 1
        pend = 16*H
        g0 = epilogue(A, so, 0, j) + epilogue(A + 8, so, 1, j)
        g1 = epilogue(A + 16, so, 2, j) + epilogue(A + 24, so, 3, j)
        if j < 6:
            spread(pend - 7 if j else pend + 1, pend + 8, g0)
            spread(pend + 9, pend + 23, g1)
            if IOD:
                pq = 46*16 + 4*j if OPT["LM"] or OPT["LQ"] else pend - 10
                add(pq, [[f"s_add_u32 s{so2}, s{so}, 4096", f"s_and_b32 s3, s{so2}, 8192", f"s_add_u32 s{so2}, s{so2}, s3"]])
                add(pq + 2, [[f"s_cmp_eq_u32 s{so2}, {HOLE}", f"s_cselect_b32 s{so2}, 0, s{so2}"]])
            else: add(43*16 + 8 + 2*j if OPT["LM"] or OPT["LQ"] else pend - 8, [[f"s_add_u32 s{so2}, s{so}, 4096", f"s_cmp_eq_u32 s{so2}, 28672", f"s_cselect_b32 s{so2}, 0, s{so2}"]])
        else:
            spread(pend - 7, pend - 1, g0)
            tail_epi = g1
        if 4*j + 3 >= 28 - 4*OPT["LM"] - OPT["LQ"]:
            add(max((48 if IOD else 44)*16 + 8 + j, int(pend - 8 - 16*OPT["PT"])), [(f"buffer_load_dword a{153 + j}, v1, s[{sG}:{sG+3}], s{so} offen {OPT['pt_pol']}", "pf")])
        if j + 1 in pubs:
            pp = pend + 25 + 16*OPT["PUBD"]
            if OPT["hold"]: pp = max(pp, int(16*(hpos(4*min(j + 1, OPT["hold"]) - 1) + OPT["PUBD"])) + 1)
            if j == 6 and OPT["HNT"]: pp = OPT["HNT"]
            if pp < 960 - 2: add(pp, [publish(j + 1)])
            else: late_pubs.append(j + 1)
    for k, st in enumerate(held):
        assert 16*hpos(k) > 16*(48 + 2*(k//4)) + (9 if k % 4 < 2 else 24)
        add(int(16*hpos(k)), [st])
    N = len(items)
    assert N == 960
    for p in range(N):
        if p % 16 == 0: items[p].first = True
    p = int(16*OPT["CLR"])
    for j in range(7 - NS, 7):
        add(p, [[f"s_add_u32 s44, s{sNP0}, {j*4096}", "s_cmp_ge_u32 s44, 28672", "s_cselect_b32 s45, 28672, 0", "s_sub_u32 s44, s44, s45"]])
        for q in range(4):
            offs = f" offset:{q*1024}" if q else ""
            add(p + 1 + q*OPT["CLS"], [(f"buffer_store_dwordx4 {q4(vE + 8) if OPT['CLR'] < 14 else q4(aSen, 'a')}, v{vSt}, s[{sG}:{sG+3}], s44 offen{offs} {OPT['st_pol']}", "sen")])
        p += 4*OPT["CLS"]
    assert p < 53*16
    if SN:
        assert IOD and not NP and p > psel + 1 and p > 15*16
        spread(p - 6, p - 1, [f"v_accvgpr_write_b32 a{aSen+r}, -1" for r in range(4)])
        for j in range(7 - SN, 7):
            add(p - 1, [[f"s_add_u32 s{sStB}, s{sStA}, {j*4096}", f"s_cmp_ge_u32 s{sStB}, 28672", "s_cselect_b32 s45, 28672, 0"]])
            add(p, [[f"s_sub_u32 s{sStB}, s{sStB}, s45", f"s_and_b32 s45, s{sStB}, 0x6000", f"s_add_u32 s{sStB}, s{sStB}, s45"]])
            for q in range(4):
                offs = f" offset:{q*1024}" if q else ""
                add(p + 1 + q*OPT["CLS"], [(f"buffer_store_dwordx4 {q4(aSen, 'a')}, v{vSt}, s[{sG}:{sG+3}], s{sStB} offen{offs} {OPT['st_pol']}", "sen")])
            p += 4*OPT["CLS"]
        assert OPT["CLS"] >= 3 and p <= 16*(60 - 2*SN)
    if NS == 0: pass
    elif OPT["CLR"] >= 14: spread(int(16*OPT["CLR"]) - 5, int(16*OPT["CLR"]) - 1, [f"v_accvgpr_write_b32 a{aSen+r}, -1" for r in range(4)])
    else: assert p < 15*16 and not OPT["late"]
    if OPT["wow"] >= 0:
        add(int(16*OPT["wow"]), [(f"buffer_load_dword a145, v63, s[{sWo}:{sWo+3}], 0 offen", "pf")])
    if OPT["wt"]:
        h0, h1, j0, j1 = [float(x) for x in OPT["wt"].split(":")]
        for j in range(int(j1)):
            nx = ["s_add_u32 s78, s78, 128", "s_cmp_eq_u32 s78, 896", "s_cselect_b32 s78, 0, s78"]
            if j < j0: add(int(16*h0) - 8 + j, [nx])
            else: add(int(16*(h0 + (h1 - h0)*(j - j0)/max(1, j1 - j0 - 1))), [[(f"buffer_load_dword a145, v63, s[{sWo}:{sWo+3}], s78 offen {OPT['wt_pol']}", "pf")] + nx])
    if OPT["TA"] >= 0:
        nt = OPT["TN"] or 17 - OPT["T0"]
        for k in range(nt):
            pos = int(round(16*(OPT["TA"] + (OPT["TB"] - OPT["TA"])*k/(nt - 1))))
            add(pos, [[f"s_max_i32 s{sTmp2}, s{sPfo}, 0", f"s_min_i32 s{sTmp2}, s{sTmp2}, {15*16384}",
                       (f"buffer_load_dword a144, v{vPf}, s[{sPf}:{sPf+3}], s{sTmp2} offen {OPT['t_pol']}", "pf")] +
                       ([(f"buffer_load_dword a145, v{vPf}, s[{sPf}:{sPf+3}], s{sTmp2} offen offset:64 {OPT['t_pol']}", "pf")] if OPT["TH"] else []) + [
                       f"s_add_u32 s{sPfo}, s{sPfo}, 16384"]])
    if VT():
        assert psel + 32 < 16*OPT["VL"] < 16*OPT["SIG"] - 32
        add(int(16*OPT["VL"]), [[f"s_mov_b32 s44, {HOLE + 3840}", (f"buffer_load_sbyte v{vDV}, v2, s[{sFl}:{sFl+3}], s44 offen sc1", "vote")]])
    def lead(a):
        a.wait_vm({"clr", "vote"})
        if VT():
            a.e(f"s_or_b32 s3, s{sH}, s{sW}")
            a.e("s_cbranch_scc1 L_nolead")
            a.e(f"v_cmp_lt_i32 s[44:45], 0, v{vDV}")
            a.e(f"v_cmp_gt_i32 vcc, 0, v{vDV}")
            a.e("s_bcnt1_i32_b32 s44, s44"); a.e("s_bcnt1_i32_b32 s45, s45")
            a.e("s_bcnt1_i32_b32 s3, vcc_lo"); a.e("s_cmp_gt_u32 s44, s3"); a.e("s_cselect_b32 s44, 0x2001, 1")
            a.e("s_bcnt1_i32_b32 s3, vcc_hi"); a.e("s_cmp_gt_u32 s45, s3"); a.e("s_cselect_b32 s45, 0x4000, 0")
            a.e("s_or_b32 s44, s44, s45")
            if OPT["iodf"] >= 0:
                a.e(f"s_cmp_eq_u32 s{sBLK}, {OPT['iodf']}"); a.e("s_cselect_b32 s44, 0x4001, 0x2001")
            a.e(f"v_mov_b32 v{vFv}, s44")
            a.lab("L_nolead")
        a.e(f"buffer_store_dword v{vFv}, v{vDbA}, s[{sDb}:{sDb+3}], 0 offen sc1", "sig")
    add(int(16*OPT["SIG"] + 0.5), [lead])
    if OPT["near"]: add(int(16*OPT["CHKL"] + 0.5), [(f"buffer_load_dwordx4 a[148:151], v{vDbV}, s[{sDb}:{sDb+3}], 0 offen sc1", "chk")])
    else: add(int(16*OPT["CHKL"] + 0.5), [(f"buffer_load_dword v{vF}, v{vDbV}, s[{sDb}:{sDb+3}], 0 offen sc1", "chk")])
    def chk(a):
        a.wait_vm({"chk"})
        if OPT["near"]:
            a.e(f"v_accvgpr_read_b32 v{vT0}, a149")
            a.e(f"v_accvgpr_read_b32 v{vF}, a148")
            a.e(f"v_readfirstlane_b32 s100, v{vT0}")
            if OPT["tst"] == 1 and OPT["thr2"].count(",") < 2:
                a.e(f"s_lshl_b32 s{sStamp+6}, s{sSel}, 18"); a.e(f"s_or_b32 s{sStamp+6}, s{sStamp+6}, s100")
        a.e(f"v_cmp_eq_u32 vcc, 0, v{vF}")
        a.e("s_cbranch_vccz L_chk_ok")
        a.e(f"s_call_b64 s[{sRet}:{sRet+1}], L_chk_wait")
        a.lab("L_chk_ok")
        if VT():
            a.e(f"v_readfirstlane_b32 s44, v{vF}")
            a.e(f"s_lshr_b32 s3, s{sW}, 1"); a.e("s_lshr_b32 s3, s44, s3"); a.e(f"s_and_b32 s{sSel}, s3, 0x2000")
            a.e(f"v_add_u32 v{vSt}, s{sSel}, v{vSt}")
            a.e(f"s_lshr_b32 s3, s{sH}, 3"); a.e("s_lshr_b32 s3, s44, s3"); a.e("s_and_b32 s3, s3, 0x2000")
            a.e(f"v_add_u32 v{vRd}, s3, v{vRd}")
        if OPT["t4"]:
            a.e("s_cmp_eq_u32 s100, s101"); a.e("s_cselect_b32 s78, s78, 0x7ff00000")
            if OPT["t5"]: a.e("v_lshl_add_u32 v62, v62, 16, s78")
            if OPT["tst"] == 1 and OPT["thr2"].count(",") < 2:
                a.e(f"s_lshl_b32 s{sStamp+6}, s{sSel}, 18"); a.e(f"s_or_b32 s{sStamp+6}, s{sStamp+6}, s100")
    chk.cost = 12 if VT() else 5 if OPT["t4"] else 2
    add(int(16*OPT["CHKH"]), [chk])
    if OPT["FT"] >= 0:
        assert OPT["FT"] > OPT["CHKH"]
        add(int(16*OPT["FT"]), [(f"buffer_load_dword a152, v{62 if OPT['t5'] else vFp}, s[{sFl}:{sFl+3}], 0 offen {OPT['ft_pol']}", "pf")])
        assert OPT["t5"] or OPT["ft_pol"] == "sc1"
        if OPT["eA"]: add(int(16*OPT["FT"]) + 1, [(f"buffer_load_dword a153, v{vFp}, s[{sFl}:{sFl+3}], 0 offen offset:1024 sc1", "pf")])
    selst = [0]
    FCH = [int(x) for x in OPT["fcH"].split(",")] if OPT["fc"] else []
    if IOD:
        def selpub(a, v=0):
            if v:
                a.e(f"s_or_b32 s44, s{sSel}, {v}")
                a.e(f"v_mov_b32 v{vFv}, s44")
            else: a.e(f"v_mov_b32 v{vFv}, s{sSel}")
            flagst(a, "sel")
            selst[0] = 1
        if OPT["fc"]:
            for Hh in range(OPT["fc0"], OPT["fc1"] + 1, OPT["fcP"]):
                pp = 16*Hh - OPT["D"] + 1
                assert pp > int(16*OPT["CHKH"]) and pp > psel + 1
                f = lambda a, Hh=Hh: selpub(a, Hh)
                f.cost = 3
                add(pp, [f])
            for k, Hh in enumerate(FCH):
                add(int(16*(Hh - OPT["fcL"])) - OPT["D"], [(f"buffer_load_dword v{62 + (k & 1)}, v{vFp}, s[{sFl}:{sFl+3}], 0 offen {OPT['fp_pol']}", f"fc{k}")])
                assert (Hh - OPT["fcL"])*16 - OPT["D"] > int(16*OPT["CHKH"])
                assert k < 2 or Hh - OPT["fcL"] > FCH[k-2]
        elif not OPT["t3"] and not OPT["t4"]: add(int(16*OPT["CHKH"]) + 1, [selpub])
        for x in pubs:
            for y in pubs: assert x | y == max(x, y) or OPT["t3"] or OPT["t4"]
    vD = 192
    def dreg(j, k):
        return q4(16*j + 4*k, "a") if j < 7 - NS - SN else q4(vO + 16*(j - (7 - NS - SN)) + 4*k)
    tsetup = [f"s_mov_b32 s8, s{sNP0}"]
    tsetup_b = [f"s_lshr_b32 s{16+j}, s{8+j}, 5" for j in range(7)]
    if IOD: tsetup_b = [x for j in range(7) for x in (f"s_lshr_b32 s{16+j}, s{8+j}, 6", f"s_and_b32 s3, s{16+j}, 0x40", f"s_add_u32 s{16+j}, s{16+j}, s3")]
    tsetup += [f"v_add_u32 v{vKr+k}, {k*4*(65536 if IOD else 114688)}, v{vRd}" for k in range(1, 4)]
    NV = OPT["t5"] and not OPT["vt"]
    if NV: tsetup += [f"v_lshl_add_u32 v{vVr+4}, v4, 3, 7"]
    adrs = [x for k in range(4) for x in (f"v_bfe_u32 v{vVr+k}, s{64+k}, v{vVr+4}, 1", f"v_lshl_add_u32 v{vVr+k}, v{vVr+k}, 13, v{vKr+k if k else vRd}")] if NV else []
    def ld1(j, k):
        return (f"buffer_load_dwordx4 {dreg(j, k)}, v{vVr+k if NV else vKr+k if k else vRd}, s[{sG}:{sG+3}], s{8+j} offen {OPT['lml_pol'] if j >= 7 - OPT['LM'] else OPT['ld_pol']}", f"r{j}")
    vFA, vFB, vNx = 62, 63, 59
    def poll(r, tag):
        if OPT["fpat"]:
            def f(a):
                a.e(f"v_mov_b32 v{r}, 0")
                a.e(f"buffer_atomic_or v{r}, v{vFp}, s[{sFl}:{sFl+3}], 0 offen sc0", tag)
            f.cost = 2
            return f
        return (f"buffer_load_dword v{r}, v{vFp}, s[{sFl}:{sFl+3}], 0 offen {OPT['fp_pol']}", tag)
    if OPT["t2"]:
        assert NS == 0
        spread(OPT["TS0"], OPT["TS1"], tsetup)
        nA, nB = OPT["nA"], OPT["nB"]
        if nA:
            add(OPT["spA"], [poll(vFA, "pA")])
            wa = lambda a: a.wait_vm({"pA"})
            wa.cost = 1
            add(OPT["spL"] - 1, [wa])
            L = [ld1(j, k) for j in range(nA) for k in range(4)]
            for i, x in enumerate(L): add(OPT["spL"] + (i*(OPT["spE"] - OPT["spL"]))//len(L), [x])
        if nB > nA: add(OPT["spB"], [poll(vFB, "pB")])
        def pc(a):
            assert not IOD or selst[0] == 2 or OPT["nodma"] or OPT["t3"]
            a.e(poll(vNx, "pC"))
        pc.cost = 1
        spoll = f"s_buffer_load_dwordx4 s[64:67], s[{sFl}:{sFl+3}], s78"
        sred = ["s_and_b64 s[64:65], s[64:65], s[66:67]", "s_and_b32 s64, s64, s65"]
        tmask = lambda c: 0x01010101 << (c - 1)
        if OPT["t5"]:
            ES = [tuple(int(y) for y in x.split(":")) for x in OPT["es"].split(",")] if OPT["es"] else []
            nxs = "s_add_u32 s78, s78, 0x10000"
            add(OPT["spC"], [[spoll, nxs]])
            add(OPT["TS0"], ["s_mov_b32 s79, 0"])
            lo = lend = 0
            for (hi, pp, l0, l1) in ES:
                assert hi in pubs and hi not in late_pubs and l0 > OPT["TS1"] + 3 and pp < l0 - 4 and l0 <= OPT["spC"] and not NP
                add(pp, [["s_mov_b64 s[64:65], 0", "s_mov_b64 s[66:67], 0", spoll, nxs]])
                add(l0 - 4, [["s_and_b64 s[76:77], s[64:65], s[66:67]", "s_and_b32 s76, s76, s77", f"s_and_b32 s76, s76, {tmask(hi)}"]])
                add(l0 - 3, [[f"s_cmp_eq_u32 s76, {tmask(hi)}", f"s_cselect_b32 s76, {lo}, 99", "s_cmp_eq_u32 s79, s76", f"s_cselect_b32 s79, {hi}, s79", "s_cselect_b32 s76, 0, 0x800000"]])
                for k in range(4):
                    if NV: add(l0 - 2 + k//2, adrs[2*k:2*k+2] + [f"v_or_b32 v{vVr+k}, s76, v{vVr+k}"])
                    else: add(l0 - 2 + k//2, [f"v_add_u32 v{vVr+k}, s76, v{vKr+k if k else vRd}"])
                L = [(ld1(j, k)[0].replace(f", v{vKr+k if k else vRd}, ", f", v{vVr+k}, "), f"r{j}") for j in range(lo, hi) for k in range(4)]
                for i, x in enumerate(L): add(l0 + (i*(l1 - l0))//len(L), [x])
                assert l0 - 2 > lend
                lend = l0 + ((len(L) - 1)*(l1 - l0))//len(L)
                lo = hi
        elif OPT["t4"]:
            add(OPT["spC"], [spoll])
            if OPT["eA"]:
                add(OPT["spA"], [["s_mov_b64 s[64:65], 0", "s_mov_b64 s[66:67], 0", "s_add_u32 s3, s78, 1024", spoll.replace("s78", "s3")]])
                add(OPT["spL"] - 1, [["s_and_b64 s[76:77], s[64:65], s[66:67]", "s_and_b32 s79, s76, s77"]])
                L = [ld1(j, k) for j in range(OPT["eA"]) for k in range(4)]
                for i, x in enumerate(L): add(OPT["spL"] + (i*(OPT["spE"] - OPT["spL"]))//len(L), [x])
                assert OPT["spL"] > 901 and not NP
        else: add(OPT["spC"], [pc])
        assert not IOD or nA == nB == 0
    elif OPT["early"]:
        add(960 - 40, [(f"buffer_load_dword v{vF}, v{vFp}, s[{sFl}:{sFl+3}], 0 offen {OPT['fp_pol']}", "poll")])
    if OPT["stamps"]:
        add(14*16 - 1, [lambda a: stamp(a, 3)])
        add(46*16 - 1, [lambda a: stamp(a, 4)])

    if OPT["org"]:
        add(int(16*OPT["orgH"]), [(f"buffer_load_dword v{vF}, off, s[{sDb}:{sDb+3}], 0 offset:64 sc1", "org")])
        def org(a):
            a.wait_vm({"org"})
            a.e(f"v_readfirstlane_b32 s74, v{vF}")
            a.e("s_not_b32 s74, s74")
            a.e("s_sub_u32 s75, s100, s74")
            a.e("s_cmp_lt_u32 s75, 300")
            a.e("s_cselect_b32 s100, s74, s100")
        org.cost = 5
        add(16*14 - OPT["D"] + 1, [org])
        assert min(PACE) >= 15
    if OPT["ad"]:
        h0 = min(PACE)
        assert max(pos for (pos, m) in iss if units[m][0] == "X") < 16*3
        add(16*4, [[f"s_add_u32 s{sX}, s{sWsP}, {FLAGS_OFF + (1 << 20)}", f"s_addc_u32 s{sX+1}, s{sWsP+1}, 0", f"s_mov_b32 s{sX+2}, 4096"]])
        add(16*4 + 1, [(f"buffer_store_dwordx4 v[4:7], v3, s[{sX}:{sX+3}], 0 offen sc1", "pf")])
        for k, Hh in enumerate(range(h0, max(PACE), OPT["adS"])):
            pe = 16*Hh - OPT["D"]
            assert (k + 1 + OPT["adW"])*128 <= 4096
            if Hh < OPT["adE"]:
                add(pe + 1, [[f"s_sub_u32 s77, s72, {PACE[Hh] + int(round(100*OPT['adm']))}", "v_mov_b32 v2, s77",
                              (f"buffer_store_dword v2, v1, s[{sX}:{sX+3}], 0 offen offset:{(k+1)*128} sc1", "pf")]])
            if k: add(pe + OPT["adR"], [f"s_load_dwordx8 s[64:71], s[{sX}:{sX+1}], {k*128}"])
        for Hh in range(h0 + OPT["adS"] + OPT["adD"], max(PACE) + 1, OPT["adD"]):
            for q in range(3):
                add(16*Hh - OPT["D"] - 6 + q, [[f"s_max_u32 s78, s{64+3*q}, s{78 if q else 65}", f"s_max_u32 s78, s78, s{66+2*q+(q>0)-(q>1)*0}"] if q == 0 else
                                                [f"s_max_u32 s78, s78, s{65+2*q}", f"s_max_u32 s78, s78, s{66+2*q}"]])
            add(16*Hh - OPT["D"] - 3, [["s_max_u32 s78, s78, s71", "s_sub_u32 s75, s78, s99", f"s_cmp_lt_u32 s75, {OPT['adL']}", "s_cselect_b32 s100, s78, s100"]])
    for Hh in PACE:
        add(16*Hh - OPT["D"] - OPT["pcs"], ["s_memrealtime s[72:73]"])
    D, WEV = OPT["D"], OPT["wev"]
    window = {"K": 0, "V": 1, "O": 2}
    uses = defaultdict(list)
    for i, it in enumerate(items):
        for r in it.reads: uses[r[2]].append((i, r[4]))
    soft_dma = []
    kvq = []
    soft_up = []
    soft_adr = []
    log = []
    cur = []
    def put(s): cur.append(s)
    def set_window(g, w):
        if window[g] == w: return
        base, cnt = GROUPS[g]
        d = (w - window[g]) * 65536
        window[g] = w
        soft_adr.extend((g, k, f"v_add_u32 v{base+k}, {d & 0xffffffff}, v{base+k}") for k in range(cnt))
    def flush_adr(g, k):
        rest = []
        for (gg, kk, s) in soft_adr:
            if gg == g and kk == k: put(s)
            else: rest.append((gg, kk, s))
        soft_adr[:] = rest
    upos = {g: 0 for g in GROUPS}
    rp = [0]
    hbar = [-1]
    issued = set(m for (pos, m) in iss[:ip[0]])
    pend = list(iss[ip[0]:])
    upq = []
    unparked = set()
    areas = []
    if NP:
        areas.append([144, 0, 10000])
        if OPT["pkq"]: areas += [[aQ + 32, 0, lim[0][0] - 2], [aQ + 48, 0, lim[2][0] - 2]]
        areas += [[aX + 16*c, 16*(min(7 + c, 13) + 1) + 1 if c < 5 else 14*16 + 1, 10000] for c in range(7)]
        if NS and 14 <= OPT["CLR"] < 44: areas = [x for x in areas if x[0] != aSen]
        areas = areas[:NP]
    area_of = {}
    cls = lambda m: "P" if units[m][0] in "XW" else units[m][0]
    def next_unit(p, force=None):
        seen = set()
        for k, (pos, m) in enumerate(pend):
            c = cls(m)
            if c in seen: continue
            seen.add(c)
            if force is not None:
                if c != cls(force): continue
            elif pos > p: break
            elif (kvq if isfine(m) else soft_dma): continue
            ok = alloc(m, hbar[0], p)
            if not ok and c in "KV":
                fr = [x for x in areas if x[1] <= p and x[2] > p + 64 and (x[2] == 10000 or units[m][1] < 4)]
                if fr:
                    x = min(fr, key=lambda x: x[2])
                    parked[m] = x[0]; area_of[m] = x; x[1] = 10000; upq.append(m); ok = True
            assert ok or force is None, ("no slot", m, p)
            if not ok: continue
            pend.pop(k)
            issued.add(m)
            log.append((p, "iss", units[m], slot_of.get(m, f"a{parked.get(m)}")))
            if isfine(m): kvq.extend((p + jj*kvstep[m], g) for jj, g in enumerate(dma(m)))
            else: soft_dma.extend(dma(m))
            return True
        return False
    def next_unpark(p, force=None):
        for m in upq:
            if force is not None and m != force: continue
            due = min(16*(needed[m] - OPT["UPD"]) - D, area_of[m][2] - 10)
            if force is None and (p < due or soft_dma_has(m)): continue
            if not alloc(m, hbar[0], p):
                assert force is None and p < area_of[m][2] - 5, ("no slot (unpark)", m, p)
                continue
            upq.remove(m)
            s = slot_of[m]
            log.append((p, "unp", units[m], s))
            for jj in range(4):
                pk = parked[m] + 4*jj
                ins = []
                if jj == 0: ins.append(lambda a, m=m: a.wait_vm({f"u{m}"}))
                ins.append((f"ds_write_b128 v{vUp + s//4}, a[{pk}:{pk+3}] offset:{(s%4)*16384 + jj*1024}", None, f"w{m}"))
                soft_up.append(ins)
            area_of[m][1] = p + 24
            unparked.add(m)
            return True
        return False
    def soft_dma_has(m):
        return any(isinstance(s, tuple) and s[1] == f"u{m}" for g in soft_dma + [x[1] for x in kvq] for s in g)
    def issue(i, p):
        it = items[i]
        if it.first:
            Hh = it.H
            for n in HS[Hh]:
                while n not in issued: next_unit(p, n)
                if soft_dma_has(n):
                    for g in soft_dma: put(g)
                    soft_dma.clear()
                    for x in kvq: put(x[1])
                    kvq.clear()
                if n in parked:
                    if n not in unparked: next_unpark(p, n)
                    for g in soft_up: put(g)
                    soft_up.clear()
            def ev(a, Hh=Hh):
                a.c(f"event H={Hh} needs {[units[n] for n in HS[Hh]]}")
                if OPT["trace"]:
                    if Hh > 0:
                        if OPT["trace"] < 3: a.e(f"v_writelane_b32 v{vTr}, s{sTr+4*((Hh-1)&1)}, {Hh-1}")
                        a.e(f"v_writelane_b32 v{vTr+1}, s{sTr+2+4*((Hh-1)&1)}, {Hh-1}")
                    if OPT["trace"] < 3: a.e(f"{'s_memtime' if OPT['trace'] == 2 else 's_memrealtime'} s[{sTr+4*(Hh&1)}:{sTr+1+4*(Hh&1)}]")
                if Hh in PACE:
                    a.e("s_sub_u32 s74, s72, s100")
                    if PACE2:
                        a.e(f"s_mul_i32 s75, s79, {(PACE2[Hh] - PACE[Hh])//OPT['clm']}")
                        a.e(f"s_add_u32 s75, s75, {PACE[Hh]}")
                        a.e("s_cmp_ge_u32 s74, s75")
                        a.e(f"s_cbranch_scc1 L_pc{Hh}")
                    else:
                        a.e(f"s_cmp_ge_u32 s74, {PACE[Hh]}")
                        a.e(f"s_cbranch_scc1 L_pc{Hh}")
                        a.e(f"s_mov_b32 s75, {PACE[Hh]}")
                    a.e(f"s_call_b64 s[{sRet}:{sRet+1}], L_pace")
                    a.lab(f"L_pc{Hh}")
                if IOD and Hh in PRH:
                    ri = PRH.index(Hh)
                    if OPT["prst"]:
                        a.e(f"s_cmp_lg_u32 s{sW}, {ri & 3}"); a.e(f"s_cbranch_scc1 L_npr{Hh}")
                        ri >>= 2
                        a.e("s_waitcnt lgkmcnt(0)")
                    else:
                        a.e("s_waitcnt lgkmcnt(0)"); a.ldsq = []
                    for k in range(2*NPR): a.e(f"s_mov_b32 s{66+k}, s78")
                    for k in range(NPR):
                        q = ri*NPR + k
                        o = q*OPT["prs"]
                        o = HOLE + 4096 - OPT["prs"] - (o % 8192) - (o // 8192)*16384
                        assert o >= 0 and not HOLE - 256 < o < HOLE + 1280
                        ab = [f"s_load_dword s{66+2*k+x}, s[64:65], {o + x*8192}" for x in range(2)]
                        for x in (ab if q % 2 == 0 else ab[::-1]): a.e(x)
                    a.e(f"s_waitcnt lgkmcnt({NPR if OPT['prk'] < 0 else OPT['prk']})")
                    for k in range(NPR):
                        a.e(f"s_cmp_eq_u32 s{66+2*k}, s78"); a.e("s_addc_u32 s79, s79, 0")
                        a.e(f"s_cmp_eq_u32 s{67+2*k}, s78"); a.e("s_subb_u32 s79, s79, 0")
                    if OPT["prst"]: a.lab(f"L_npr{Hh}")
                    if Hh == max(PRH):
                        a.e("s_cmp_gt_i32 s79, 0")
                        a.e(f"s_cselect_b32 s{sSel}, 0x2000, 0")
                        if IOD == 2: a.e(f"s_mov_b32 s{sStamp+3}, s79")
                if Hh in FCH:
                    k = FCH.index(Hh)
                    a.wait_vm({f"fc{k}"})
                    a.e(f"v_and_or_b32 v{vF}, v{62 + (k & 1)}, 63, v{vDV}")
                    a.e(f"v_cmp_gt_u32 vcc, {max(0, int(Hh - OPT['fcL'] - OPT['fcA']))}, v{vF}")
                    a.e(f"s_cbranch_vccz L_fc{Hh}")
                    a.e(f"s_mov_b32 s45, {Hh - OPT['fcB']}")
                    a.e(f"s_call_b64 s[{sRet}:{sRet+1}], L_prog")
                    a.lab(f"L_fc{Hh}")
                if LK.get(Hh, 0) > 0:
                    n0 = max(HS[Hh])
                    idx = [i for i, t in enumerate(a.vmq) if t[0] == "u" and int(t[1:]) <= n0 + (LK[Hh] + 3)//4 and units[int(t[1:])][0] in "KV"]
                    cut = (-LK[Hh]) % 4
                    last = [i for i in idx if int(a.vmq[i][1:]) == n0 + (LK[Hh] + 3)//4]
                    tot = lkq.get(n0 + (LK[Hh] + 3)//4, 0)
                    keep = max(0, 4 - cut - tot)
                    idx = [i for i in idx if i not in last[keep:]]
                    if idx:
                        m = min(max(idx), len(a.vmq) - 1 - OPT["lkm"])
                        if m >= 0:
                            for t in a.vmq[:m + 1]:
                                if t[0] == "u": lkq[int(t[1:])] = lkq.get(int(t[1:]), 0) + 1
                            a.e(f"s_waitcnt vmcnt({len(a.vmq) - 1 - m})")
                            lklog.append((Hh, len(a.vmq) - 1 - m))
                            a.vmq = a.vmq[m + 1:]
                a.wait_vm({f"u{n}" for n in HS[Hh] if n not in parked})
                a.wait_lds({f"w{n}" for n in HS[Hh]})
                if selst[0] == 1 and "sel" not in a.vmq: selst[0] = 2
                if not OPT["nobar"]: a.e("s_barrier")
                if OPT["trace"]:
                    a.e(f"s_memrealtime s[{sTr+2+4*(Hh&1)}:{sTr+3+4*(Hh&1)}]")
                if Hh == 0: stamp(a, 2)
            ev.cost = 2 + (3 if Hh in FCH else 0) + (2 if OPT["trace"] == 3 else 4 if OPT["trace"] else 0) + ((5 if PACE2 else 3) if Hh in PACE else 0)
            put(ev)
            hbar[0] = Hh
        b = aFr(i)
        for (op, dst, g, ridx, n, inoff) in it.reads:
            slot = slot_of[n]
            if g in "WX":
                put((f"{op} {dst.format(b=b, b1=b+1, b2=b+2, b3=b+3)}, v{GROUPS[g][0]+GROUPS[g][1]*(slot//4)+ridx} offset:{(slot % 4)*16384 + inoff}", None, i))
                continue
            set_window(g, slot // 4)
            flush_adr(g, ridx)
            imm = (slot % 4)*16384 + inoff
            put((f"{op} {dst.format(b=b, b1=b+1, b2=b+2, b3=b+3)}, v{GROUPS[g][0]+ridx} offset:{imm}", None, i))
            upos[g] += 1
            if upos[g] < len(uses[g]):
                ni, nn = uses[g][upos[g]]
                if nn != n and nn in slot_of and ni > i + 2:
                    set_window(g, slot_of[nn]//4)
    def adv(limit, p):
        while rp[0] < N and rp[0] <= limit:
            issue(rp[0], p); rp[0] += 1
    def emit(s):
        if isinstance(s, list):
            for x in s: e(x)
        else: e(s)
    loads_out = {}
    lkq = {}
    lklog = []
    est = [0]
    adv(D - 1, -1)
    for s in cur: emit(s)
    for p in range(N):
        cur.clear()
        if p % WEV == 0: a.wait_lds(set(range(p, p + WEV)))
        b = aFr(p)
        adv(p + D, p)
        SR = list(cur); cur.clear()
        SF = list(fill.get(p, []))
        if not soft_up: next_unpark(p)
        while next_unit(p): pass
        sp = OPT["dsp1"] if p < OPT["dspH"]*16 else OPT["dsp"]
        if kvq and kvq[0][0] <= p and len(soft_dma) % 4 == 0: put(kvq.pop(0)[1])
        elif soft_dma and (p - OPT["dph"]) % sp == 0: put(soft_dma.pop(0))
        if soft_up and (p % OPT["usp"] == 0 or p < 15*16): put(soft_up.pop(0))
        SM = list(cur)
        if soft_adr: SR.append(soft_adr.pop(0)[2])
        wt = 1 if (p + 1) % WEV == 0 else 0
        tot = cost(SR) + cost(SF) + cost(SM) + wt
        loads_out[p] = tot
        evi = [k for k, x in enumerate(SR) if callable(x)]
        a2 = [k for k, x in enumerate(SF) if getattr(x, "after2", False)]
        best = None
        for kr in range(len(SR) + 1):
            for kf in range((a2[0] if a2 else len(SF)) + 1):
                for km in range(len(SM) + 1):
                    if km and evi and kr <= evi[-1]: continue
                    c1 = cost(SR[:kr]) + cost(SF[:kf]) + cost(SM[:km])
                    key = (max(2, c1) + max(2, tot - c1), abs(2*c1 - tot), -kr)
                    if best is None or key < best[0]: best = (key, kr, kf, km)
        _, kr, kf, km = best
        est[0] += best[0][0]*4 + 16
        if p % 16 == 15: est.append(est[0]); est[0] = 0
        e(items[p].mf[0].format(b=b, b3=b+3))
        for s in SR[:kr] + SF[:kf] + SM[:km]: emit(s)
        e(items[p].mf[1].format(b=b, b3=b+3))
        for s in SR[kr:] + SF[kf:] + SM[km:]: emit(s)
    assert not soft_dma and not soft_up and not pend and not upq and not kvq
    if BASE is None: return loads_out
    sys.stderr.write(f"est cycles: {' '.join(map(str, est[1:]))} total {sum(est)}\n")
    if lklog: sys.stderr.write(f"lk waits: {lklog}\n")
    for s in tail_epi: e(s)
    if OPT["verbose"]:
        for (p, w, u, s) in log:
            sys.stderr.write(f"  {p/16:6.2f} {w} {u} slot {s} (need {needed[uidx[u]]})\n")
    stamp(a, 5)
    if OPT["tst"] == 2: e("s_memtime s[72:73]")
    def loads(j):
        for k in range(4): e(ld1(j, k))
    def red(j):
        d = vD + 4*j
        for k in range(4):
            e(f"{MF} {q4(d)}, {q4(vSel)}, {dreg(j, k)}, {'0' if k == 0 else q4(d)}")
    def fin(j):
        d = vD + 4*j
        e(f"v_cvt_pk_bf16_f32 v{d}, v{d}, v{d+1}")
        e(f"v_cvt_pk_bf16_f32 v{d+1}, v{d+2}, v{d+3}")
        e(f"buffer_store_dwordx2 v[{d}:{d+1}], v{vRo}, s[{sOut}:{sOut+3}], s{16+j} offen {OPT['out_pol']}")
    sfold = ["s_lshr_b32 s3, s64, 16", "s_and_b32 s64, s64, s3", "s_lshr_b32 s3, s64, 8", "s_and_b32 s64, s64, s3"]
    if OPT["t5"]:
        E = ES[-1][0] if ES else 0
        J1 = min(max(x for x in pubs if x not in late_pubs), OPT["c1"])
        for x in tsetup_b: e(x)
        e("s_waitcnt lgkmcnt(0)")
        for x in adrs + sred + sfold: e(x)
        q0 = list(a.vmq)
        def pubcode(last):
            for c in late_pubs: publish(c)(a)
            if last: stamp(a, 6)
            elif OPT["stamps"]: stamp(a, 6)
        if E:
            e(f"s_cmp_lg_u32 s79, {E}")
            e("s_cbranch_scc1 L_p0x")
        snap = {}
        for j in range(E, max(E, J1)):
            snap[j] = list(a.vmq)
            e(f"s_bitcmp1_b32 s64, {j}")
            e(f"s_cbranch_scc0 L_pub{j}")
            loads(j)
        pubcode(True)
        e(f"s_branch L_c{max(E, J1)}")
        for j, q in snap.items():
            a.lab(f"L_pub{j}")
            a.vmq = list(q)
            pubcode(False)
            e(f"s_branch L_w{j}")
        if E:
            a.lab("L_p0x")
            a.vmq = list(q0)
            pubcode(False)
            for (hi, _, _, _) in ES[:-1]:
                e(f"s_cmp_eq_u32 s79, {hi}")
                e(f"s_cbranch_scc1 L_c{hi}")
            e("s_branch L_c0")
        a.vmq = []
        for j in range(7):
            a.lab(f"L_w{j}")
            e(f"s_call_b64 s[{sRet}:{sRet+1}], L_sp")
            a.lab(f"L_c{j}")
            e(f"s_bitcmp1_b32 s64, {j}")
            e(f"s_cbranch_scc0 L_w{j}")
            if j in (4, 6): stamp(a, 1 + (j == 6), True)
            loads(j)
            if j < 6: e(f"s_branch L_c{j+1}")
        if OPT["tst"] == 1: e(f"s_lshl_b32 s{sStamp+6}, s79, 24"); e(f"s_or_b32 s{sStamp+6}, s{sStamp+6}, s78")
        for j in range(7):
            a.wait_vm({f"r{j}"})
            if j == 6: stamp(a, 4, True)
            red(j)
            if j: fin(j - 1); a.vmq.append("fin")
        fin(6)
    elif OPT["t4"]:
        ths = [int(x) for x in OPT["thr2"].split(",")]
        assert ths[0] in pubs and ths[0] not in late_pubs and all(x in pubs for x in ths) and OPT["eA"] <= ths[0]
        eA = OPT["eA"]
        assert eA == 0 or eA in pubs
        prev, done = eA, 0
        lp = list(late_pubs)
        for hi in ths:
            if hi == ths[0]:
                e("s_waitcnt lgkmcnt(0)")
                for x in sred: e(x)
            e(f"s_mov_b32 s45, {tmask(hi)}")
            e("s_and_b32 s3, s64, s45"); e("s_cmp_eq_u32 s3, s45")
            e(f"s_cbranch_scc1 L_go{hi}")
            e(f"s_call_b64 s[{sRet}:{sRet+1}], L_poll")
            a.lab(f"L_go{hi}")
            if hi in ths[-3:]: stamp(a, 1 + ths[-3:].index(hi), True)
            if hi == ths[0] and eA:
                e(f"s_and_b32 s3, s79, {tmask(eA)}"); e(f"s_cmp_eq_u32 s3, {tmask(eA)}")
                e("s_cbranch_scc1 L_eok")
                q = list(a.vmq)
                for j in range(eA): loads(j)
                a.vmq = q
                a.lab("L_eok")
                assert hi > eA
            nxt = ths[ths.index(hi) + 1] if hi < 7 else 0
            n = 0
            for j in range(prev, hi):
                for k in range(4):
                    if n == OPT["t3m"] and len(lp) > 1: publish(lp.pop(0))(a)
                    e(ld1(j, k)); n += 1
            if hi == ths[0]:
                for x in tsetup_b: e(x)
            while lp and lp[0] <= nxt:
                publish(lp.pop(0))(a)
                if not lp: stamp(a, 6)
            if prev > done and hi != ths[0] and (hi == 7 or OPT["prog"] > 1):
                a.wait_vm({f"r{j}" for j in range(done, prev)})
                for j in range(done, prev): red(j)
                for j in range(done, prev): fin(j); a.vmq.append("fin")
                done = prev
            prev = hi
        assert not lp
        for j in range(done, 7):
            a.wait_vm({f"r{j}"} if OPT["t4p"] else {f"r{x}" for x in range(7)})
            if j == 6: stamp(a, 4, True)
            red(j)
            if j > done: fin(j - 1); a.vmq.append("fin")
        fin(6)
    elif OPT["t3"]:
        assert IOD and not SN and not OPT["PP"]
        ths = [int(x) for x in OPT["thr2"].split(",")]
        assert ths[0] in pubs and ths[0] not in late_pubs and all(x in pubs for x in ths)
        for x in tsetup_b: e(x)
        a.wait_vm({"pC"})
        e(f"v_mov_b32 v{vF}, v{vNx}")
        prev, done, cur, pend_poll = 0, 0, vNx - 1, False
        lp = list(late_pubs)
        for hi in ths:
            e(f"v_cmp_gt_u32 vcc, {hi << FSH}, v{vF}")
            e(f"s_cbranch_vccz L_go{hi}")
            if pend_poll:
                q = list(a.vmq)
                a.wait_vm({"pn"})
                a.vmq = q
                e(f"v_cmp_gt_u32 vcc, {hi << FSH}, v{cur}")
                e(f"v_mov_b32 v{vF}, v{cur}")
                e(f"s_cbranch_vccz L_go{hi}")
            e(f"s_mov_b32 s45, {hi << FSH}")
            e(f"s_call_b64 s[{sRet}:{sRet+1}], L_poll")
            a.lab(f"L_go{hi}")
            if hi == ths[0]:
                e(f"v_and_b32 v{vT0}, 0x2000, v{vF}")
                e("s_nop 1")
                for k in range(4):
                    r = vKr + k if k else vRd
                    e(f"v_add_u32_dpp v{r}, v{vT0}, v{r} quad_perm:[{k},{k},{k},{k}] row_mask:0xf bank_mask:0xf")
            if hi in ths[-3:]: stamp(a, 1 + ths[-3:].index(hi), True)
            a.vmq = [("old" if t == "pn" else t) for t in a.vmq]
            nxt = ths[ths.index(hi) + 1] if hi < 7 else 0
            n = 0
            for j in range(prev, hi):
                for k in range(4):
                    if n == OPT["t3m"] and len(lp) > 1: publish(lp.pop(0))(a)
                    e(ld1(j, k)); n += 1
            while lp and lp[0] <= nxt:
                publish(lp.pop(0))(a)
                if not lp: stamp(a, 6)
            if hi < 7:
                cur ^= 1
                e(poll(cur, "pn")); pend_poll = True
            if prev > done and (hi == 7 or OPT["prog"] > 1):
                a.wait_vm({f"r{j}" for j in range(done, prev)})
                for j in range(done, prev): red(j)
                for j in range(done, prev): fin(j); a.vmq.append("fin")
                done = prev
            prev = hi
        assert not lp
        a.wait_vm({f"r{j}" for j in range(done, 7)})
        stamp(a, 4, True)
        for j in range(done, 7): red(j)
        for j in range(done, 7): fin(j)
    elif OPT["t2"]:
        if nB > nA:
            a.wait_vm({"pB"})
            for j in range(nA, nB): loads(j)
        nb = None
        for c in late_pubs:
            publish(c)(a)
            if nb is not None: nb += 1
            if c == OPT["pD"]: e(poll(vNx - 1, "pD")); nb = 0
        if OPT["HNT"] and nb is None: e(poll(vNx - 1, "pD")); nb = 0
        for x in tsetup_b: e(x)
        a.wait_vm({"pC"})
        e("s_barrier")
        stamp(a, 6)
        e(f"v_{'or_b32' if IOD else 'max_u32'} v{vF}, v{vNx}, v{vDV}")
        for (r, lo, hi) in ((vFA, 0, nA), (vFB, nA, nB)):
            if hi == lo: continue
            e(f"v_cmp_gt_u32 vcc, {hi}, v{r}")
            e(f"s_cbranch_vccz L_sv{hi}")
            e(f"v_cmp_gt_u32 vcc, {hi}, v{vF}")
            e(f"s_cbranch_vccz L_sr{hi}")
            e(f"s_mov_b32 s45, {hi}")
            e(f"s_call_b64 s[{sRet}:{sRet+1}], L_poll")
            a.lab(f"L_sr{hi}")
            for j in range(lo, hi): loads(j)
            a.lab(f"L_sv{hi}")
        ths = [int(x) for x in OPT["thr2"].split(",")]
        prev, done, cur = nB, 0, vNx - 1
        for hi in ths:
            e(f"v_cmp_gt_u32 vcc, {hi << FSH}, v{vF}")
            e(f"s_cbranch_vccz L_go{hi}")
            if nb is not None:
                e(f"s_waitcnt vmcnt({nb})")
                e(f"v_{'or3_b32' if IOD else 'max3_u32'} v{vF}, v{cur}, v{vDV}, v{vF}")
                e(f"v_cmp_gt_u32 vcc, {hi << FSH}, v{vF}")
                e(f"s_cbranch_vccz L_go{hi}")
            e(f"s_mov_b32 s45, {hi << FSH}")
            e(f"s_call_b64 s[{sRet}:{sRet+1}], L_poll")
            a.lab(f"L_go{hi}")
            if IOD and hi == ths[0]:
                e(f"v_and_b32 v{vT0}, 0x2000, v{vF}")
                e("s_nop 1")
                for k in range(4):
                    r = vKr + k if k else vRd
                    e(f"v_add_u32_dpp v{r}, v{vT0}, v{r} quad_perm:[{k},{k},{k},{k}] row_mask:0xf bank_mask:0xf")
            if hi in ths[-3:]: stamp(a, 1 + ths[-3:].index(hi), True)
            cur ^= 1
            if hi < 7: e(poll(cur, "pn"))
            for j in range(prev, hi): loads(j)
            nb = 4*(hi - prev)
            if OPT["prog"] and (hi == 7 or OPT["prog"] > 1) and prev > done:
                e(f"s_waitcnt vmcnt({nb + (1 if hi < 7 else 0)})")
                for j in range(done, prev): red(j)
                for j in range(done, prev): fin(j)
                nb += prev - done
                last_fin = prev - done
                done = prev
            else: last_fin = 0
            prev = hi
        if SN:
            assert done <= 7 - SN
            if OPT["stamps"]: e(f"s_mov_b32 s{sStamp+3}, 0")
            e(f"s_waitcnt vmcnt({last_fin + 4*SN})")
            for j in range(done, 7 - SN): red(j)
            e(f"s_waitcnt vmcnt({last_fin})")
            stamp(a, 4, True)
            a.lab("L_sen")
            R = list(range(vO, vO + 16*SN))
            T = [vT0, vT0 + 1, vT0 + 2]
            for k in range(3): e(f"v_max3_u32 v{T[k]}, v{R[3*k]}, v{R[3*k+1]}, v{R[3*k+2]}")
            R = R[9:]
            k = 0
            while len(R) >= 2:
                e(f"v_max3_u32 v{T[k]}, v{T[k]}, v{R[0]}, v{R[1]}"); R = R[2:]; k = (k + 1) % 3
            if R: e(f"v_max_u32 v{T[k]}, v{T[k]}, v{R[0]}")
            e(f"v_max3_u32 v{vT0}, v{T[0]}, v{T[1]}, v{T[2]}")
            e(f"v_cmp_eq_u32 vcc, -1, v{vT0}")
            e("s_cbranch_vccz L_sok")
            e(f"s_sub_u32 s{sSpin}, s{sSpin}, 1")
            e("s_cbranch_scc1 L_sok")
            if OPT["stamps"]: e(f"s_add_u32 s{sStamp+3}, s{sStamp+3}, 1")
            for j in range(7 - SN, 7): loads(j)
            e("s_waitcnt vmcnt(0)")
            e("s_branch L_sen")
            a.lab("L_sok")
            for j in range(7 - SN, 7): red(j)
            for j in range(done, 7): fin(j)
        else:
            e(f"s_waitcnt vmcnt({last_fin})")
            stamp(a, 4, True)
            for j in range(done, 7): red(j)
            for j in range(done, 7): fin(j)
    else:
      for x in tsetup + tsetup_b: emit(x)
      if OPT["early"]: a.wait_vm({"poll"})
      else: e(f"v_mov_b32 v{vF}, 0")
      for c in late_pubs: publish(c)(a)
      stamp(a, 6)
      prev = 0
      for hi in pubs:
          e(f"v_cmp_gt_u32 vcc, {hi}, v{vF}")
          e(f"s_cbranch_vccz L_go{hi}")
          e(f"s_mov_b32 s45, {hi}")
          e(f"s_call_b64 s[{sRet}:{sRet+1}], L_poll")
          a.lab(f"L_go{hi}")
          if hi in pubs[-3:]: stamp(a, 1 + pubs[-3:].index(hi), True)
          for j in range(prev, hi): loads(j)
          prev = hi
      for j in range(7 - NS, 7): loads(j)
      e(f"s_waitcnt vmcnt({4*NS})")
      stamp(a, 4, True)
      for j in range(7 - NS): red(j)
      for j in range(7 - NS): fin(j)
      e(f"s_waitcnt vmcnt({7 - NS})")
      for j in range(7 - NS, 7):
          a.lab(f"L_sen{j}")
          r = vO + 16*(j - (7 - NS))
          e(f"v_max3_u32 v{vT0}, v{r}, v{r+1}, v{r+2}")
          e(f"v_max3_u32 v{vT0+1}, v{r+3}, v{r+4}, v{r+5}")
          for k in range(6, 16, 4):
              e(f"v_max3_u32 v{vT0}, v{vT0}, v{r+k}, v{r+k+1}")
              if k + 2 < 16: e(f"v_max3_u32 v{vT0+1}, v{vT0+1}, v{r+k+2}, v{r+k+3}")
          e(f"v_max_u32 v{vT0}, v{vT0}, v{vT0+1}")
          e(f"v_cmp_eq_u32 vcc, -1, v{vT0}")
          e(f"s_cbranch_vccz L_sok{j}")
          e(f"s_sub_u32 s{sSpin}, s{sSpin}, 1")
          e(f"s_cbranch_scc1 L_sto{j}")
          for jj in range(j, 7): loads(jj)
          e("s_waitcnt vmcnt(0)")
          e(f"s_branch L_sen{j}")
          a.lab(f"L_sto{j}")
          e(f"s_mov_b32 s{sSpin}, 0")
          a.lab(f"L_sok{j}")
          red(j); fin(j)
    if OPT["diag"]:
        e("v_mov_b32 v8, 128")
        e(f"buffer_load_dword v5, v8, s[{sDb}:{sDb+3}], 0 offen sc1")
        e("s_waitcnt vmcnt(0)")
        e("v_readfirstlane_b32 s3, v5")
        e("s_bcnt1_i32_b32 s3, s3")
        e("s_cmp_le_u32 s3, 1")
        e("s_cbranch_scc1 L_diag_ok")
        e("s_mov_b32 s3, 30")
        a.lab("L_diag_l")
        e("s_sleep 64")
        e("s_sub_u32 s3, s3, 1")
        e("s_cmp_gt_u32 s3, 0")
        e("s_cbranch_scc1 L_diag_l")
        a.lab("L_diag_ok")
    if OPT["stamps"]:
        e("s_waitcnt vmcnt(0)")
        stamp(a, 7)
        if OPT["tst"] == 2: e("s_memtime s[74:75]")
        e("s_waitcnt lgkmcnt(0)")
        if OPT["tst"] == 2: e(f"s_sub_u32 s{sStamp+6}, s74, s72")
        if OPT["dly"] >= 0:
            if OPT["dwg"] >= 0:
                e(f"s_cmp_lg_u32 s2, {OPT['dwg']}"); e("s_cbranch_scc1 L_dly_done")
            e(f"s_sub_u32 s44, s{sStamp+2*OPT['dly']}, s{sStamp}")
            e(f"s_mul_i32 s44, s44, {OPT['dk']}")
            e("s_min_u32 s44, s44, 100000")
            e("s_mov_b32 s45, 200000")
            a.lab("L_dly")
            e("s_memrealtime s[46:47]")
            e("s_sub_u32 s45, s45, 1")
            e("s_cbranch_scc1 L_dly_done")
            e("s_waitcnt lgkmcnt(0)")
            e(f"s_sub_u32 s46, s46, s{sStamp+14}")
            e("s_cmp_lt_u32 s46, s44")
            e("s_cbranch_scc1 L_dly")
            a.lab("L_dly_done")
        e(f"s_add_u32 s32, s{sWsP}, 0x4000000"); e(f"s_addc_u32 s33, s{sWsP+1}, 0"); e("s_mov_b32 s34, 0x100000"); e("s_mov_b32 s35, 0x00020000")
        e("s_lshl_b32 s3, s2, 6")
        e("v_mov_b32 v1, s3")
        for k in range(8):
            e(f"v_mov_b32 v{2+k}, s{sStamp+2*k}")
        if OPT["trace"]:
            e(f"v_writelane_b32 v{vTr}, s{sTr+4}, 59")
            e(f"v_writelane_b32 v{vTr+1}, s{sTr+6}, 59")
            e("s_lshl_b32 s3, s2, 11")
            e("s_add_u32 s3, s3, 0x10000")
            e("v_lshlrev_b32 v10, 3, v0")
            e("v_add_u32 v10, s3, v10")
            e(f"buffer_store_dwordx2 v[{vTr}:{vTr+1}], v10, s[32:35], 0 offen")
        if IOD == 2 or SN:
            e("s_lshl_b32 s3, s2, 4"); e(f"s_lshl2_add_u32 s3, s{sW}, s3"); e("s_add_u32 s3, s3, 0xF0000")
            e("v_mov_b32 v10, s3"); e(f"v_mov_b32 v11, s{sStamp+3}")
            e("buffer_store_dword v11, v10, s[32:35], 0 offen")
        e("v_cmp_eq_u32 vcc, 0, v0")
        e("s_and_saveexec_b64 s[36:37], vcc")
        e("s_cbranch_execz L_k1_done")
        e("buffer_store_dwordx4 v[2:5], v1, s[32:35], 0 offen")
        e("buffer_store_dwordx4 v[6:9], v1, s[32:35], 0 offen offset:16")
        e("s_waitcnt vmcnt(0)")
    a.lab("L_k1_done")
    e("s_endpgm")
    for k, st in enumerate(far):
        a.lab(f"L_far{k}")
        e(st)
        e(f"s_branch L_bk{k}")
    if OPT["t5"]:
        a.lab("L_sp")
        e(f"s_cmp_lt_u32 s78, {OPT['t5'] << 16}")
        e("s_cbranch_scc0 L_sp_v")
        if OPT["psl"]: e(f"s_sleep {OPT['psl']}")
        e(spoll); e(nxs)
        e("s_waitcnt lgkmcnt(0)")
        for x in adrs + sred + sfold: e(x)
        e(f"s_setpc_b64 s[{sRet}:{sRet+1}]")
        a.lab("L_sp_v")
        e(f"buffer_load_dwordx4 {q4(vE)}, v{vFp}, s[{sFl}:{sFl+3}], 0 offen sc1")
        e("s_waitcnt vmcnt(0)")
        for k in range(4): e(f"v_readfirstlane_b32 s{64+k}, v{vE+k}")
        for x in adrs + sred + sfold: e(x)
        e(f"s_sub_u32 s{sSpin}, s{sSpin}, 1")
        e("s_cselect_b32 s64, -1, s64")
        e(f"s_cselect_b32 s{sSpin}, 0, s{sSpin}")
        e(f"s_setpc_b64 s[{sRet}:{sRet+1}]")
    a.lab("L_poll")
    if OPT["t4"]:
        e(f"buffer_load_dwordx4 {q4(vE)}, v{vFp}, s[{sFl}:{sFl+3}], 0 offen sc1")
        e(f"s_sub_u32 s{sSpin}, s{sSpin}, 1")
        e("s_cbranch_scc1 L_poll_to")
        e("s_waitcnt vmcnt(0)")
        e(f"v_and_b32 v{vE}, v{vE}, v{vE+1}"); e(f"v_and_b32 v{vE+2}, v{vE+2}, v{vE+3}")
        e(f"v_and_b32 v{vE}, v{vE}, v{vE+2}")
        e(f"v_readfirstlane_b32 s64, v{vE}")
        e("s_and_b32 s3, s64, s45"); e("s_cmp_eq_u32 s3, s45")
        e("s_cbranch_scc1 L_poll_ret")
        if OPT["sleep"]: e(f"s_sleep {OPT['sleep']}")
        e("s_branch L_poll")
    if OPT["PP"]:
        assert IOD
        PP = OPT["PP"]
        pl = lambda k: f"buffer_load_dword v{vE+k}, v{vFp}, s[{sFl}:{sFl+3}], 0 offen {OPT['fp_pol']}"
        for k in range(PP - 1):
            e(pl(k)); e(f"s_sleep {OPT['PPS']}")
        a.lab("L_pp")
        for k in range(PP):
            e(pl((k + PP - 1) % PP))
            e(f"s_waitcnt vmcnt({PP - 1})")
            e(f"v_or3_b32 v{vF}, v{vE+k}, v{vDV}, v{vF}")
            e(f"v_cmp_gt_u32 vcc, s45, v{vF}")
            e("s_cbranch_vccz L_poll_ret")
            e(f"s_sleep {OPT['PPS']}")
        e(f"s_sub_u32 s{sSpin}, s{sSpin}, 1")
        e("s_cbranch_scc0 L_pp")
        e("s_branch L_poll_to")
    e(poll(vF, None))
    e(f"s_sub_u32 s{sSpin}, s{sSpin}, 1")
    e("s_cbranch_scc1 L_poll_to")
    e("s_waitcnt vmcnt(0)")
    if OPT["t2"] and not OPT["t3"]: e(f"v_{'or_b32' if IOD else 'max_u32'} v{vF}, v{vF}, v{vDV}")
    e(f"v_cmp_gt_u32 vcc, s45, v{vF}")
    e("s_cbranch_vccz L_poll_ret")
    if OPT["sleep"]: e(f"s_sleep {OPT['sleep']}")
    e("s_branch L_poll")
    a.lab("L_poll_to")
    e(f"s_mov_b32 s{sSpin}, 0")
    e("s_waitcnt vmcnt(0)")
    a.lab("L_poll_ret")
    e(f"s_setpc_b64 s[{sRet}:{sRet+1}]")
    if OPT["fc"]:
        a.lab("L_prog")
        e(f"buffer_load_dword v{vF}, v{vFp}, s[{sFl}:{sFl+3}], 0 offen {OPT['fp_pol']}")
        e(f"s_sub_u32 s{sSpin}, s{sSpin}, 1")
        e("s_cbranch_scc1 L_poll_to")
        e("s_waitcnt vmcnt(0)")
        e(f"v_and_or_b32 v{vF}, v{vF}, 63, v{vDV}")
        e(f"v_cmp_gt_u32 vcc, s45, v{vF}")
        e("s_cbranch_vccz L_poll_ret")
        if OPT["fcs"]: e(f"s_sleep {OPT['fcs']}")
        e("s_branch L_prog")
    if PACE:
        a.lab("L_pace")
        e("s_mov_b32 s76, 400")
        a.lab("L_pace_l")
        e("s_memrealtime s[72:73]")
        e("s_sub_u32 s76, s76, 1")
        e("s_cbranch_scc1 L_pace_r")
        e("s_sleep 1" if OPT["ad"] else "s_waitcnt lgkmcnt(0)")
        e("s_sub_u32 s74, s72, s100")
        e("s_cmp_lt_u32 s74, s75")
        e("s_cbranch_scc1 L_pace_l")
        a.lab("L_pace_r")
        e(f"s_setpc_b64 s[{sRet}:{sRet+1}]")
    a.lab("L_chk_wait")
    e(f"buffer_load_dword v{vF}, v{vDbV}, s[{sDb}:{sDb+3}], 0 offen sc1")
    e(f"s_sub_u32 s{sSpin}, s{sSpin}, 1")
    e("s_cbranch_scc1 L_poll_to")
    e("s_waitcnt vmcnt(0)")
    e(f"v_cmp_eq_u32 vcc, 0, v{vF}")
    e("s_cbranch_vccz L_poll_ret")
    e("s_sleep 4")
    e("s_branch L_chk_wait")
    for (nm, par, first) in (("L_fix0", 0, True), ("L_fixp0", 0, False), ("L_fixp1", 1, False)):
        S, S2 = vSb[par], vSb[par ^ 1]
        Lo = vL + 2*par
        a.lab(nm)
        e("s_nop 7")
        for u in range(2):
            T, T2, r = vT0 + u, vT0 + 2, S + 8*u
            e(f"v_max3_f32 v{T}, v{r}, v{r+1}, v{r+2}")
            e(f"v_max3_f32 v{T}, v{T}, v{r+3}, v{r+4}")
            e(f"v_max3_f32 v{T}, v{T}, v{r+5}, v{r+6}")
            e(f"v_max_f32 v{T}, v{T}, v{r+7}")
            e(f"v_mov_b32 v{T2}, v{T}")
            e(f"v_permlane32_swap_b32 v{T}, v{T2}")
            e(f"v_max_f32 v{T}, v{T}, v{T2}")
            e(f"v_mov_b32 v{T2}, v{T}")
            e(f"v_permlane16_swap_b32 v{T}, v{T2}")
            e(f"v_max_f32 v{T}, v{T}, v{T2}")
            if not first:
                e(f"v_max_f32 v{T}, 0, v{T}")
                if OPT["sms"]:
                    e(f"v_mul_f32 v{vAl+u}, s{sC}, v{T}")
                    e(f"v_exp_f32 v{vAl+u}, -v{vAl+u}")
                else: e(f"v_exp_f32 v{vAl+u}, -v{T}")
            for k in range(8):
                e(f"v_sub_f32 v{r+k}, v{r+k}, v{T}")
                e(f"v_sub_f32 v{S2+8*u+k}, v{S2+8*u+k}, v{T}")
            for k in range(4): e(f"v_sub_f32 v{vNM+4*u+k}, v{vNM+4*u+k}, v{T}")
            if not first: e(f"v_mul_f32 v{Lo+u}, v{Lo+u}, v{vAl+u}")
        for s in softmax(S, par): e(s)
        if not first:
            for r in range(128):
                e(f"v_mul_f32 v{vO+r}, v{vO+r}, v{vAl + ((r >> 3) & 1)}")
        e("s_nop 3")
        e(f"s_setpc_b64 s[{sRet}:{sRet+1}]")
    a.lab("L_k1_end")
    lines = "\n".join(a.L).split("\n")
    lines, npad = pad_hazards(lines)
    sys.stderr.write(f"k1: {len(lines)} lines, {npad} hazard pads\n")
    return "\n".join(lines) + "\n"

def desc(name, vgpr, acc, sgpr=102):
    return f""".p2align 6
.amdhsa_kernel {name}
  .amdhsa_next_free_vgpr {vgpr}
  .amdhsa_next_free_sgpr {sgpr}
  .amdhsa_accum_offset {acc}
  .amdhsa_group_segment_fixed_size 0
  .amdhsa_kernarg_size 104
  .amdhsa_user_sgpr_count 2
  .amdhsa_user_sgpr_kernarg_segment_ptr 1
  .amdhsa_system_sgpr_workgroup_id_x 1
.end_amdhsa_kernel
"""

def main():
    ref = open(f"cdna_kernels/{NAME}.s.ref").read().splitlines()
    hdr = [l for l in ref if l.startswith(";") and "@launch" not in l and "Override launch" not in l and "grid=ceil" not in l]
    out = "\n".join(hdr) + "\n"
    if OPT["lst"]:
        out += f"; @launch kernel={K1} grid=(256,1,1) block=(256,1,1) lds=163840\n"
    else:
        out += f"; @launch grid=(256,1,1) block=(256,1,1) lds=163840\n"
    out += '.amdgcn_target "amdgcn-amd-amdhsa--gfx950"\n.text\n'
    out += gen_k1(gen_k1(None))
    out += '.section .rodata,"a"\n'
    out += desc(K1, 512, 256)
    if PG: out = pages(out)
    open(sys.argv[1], "w").write(out)

def pages(out):
    import subprocess, re, os
    ret = {k0 + w: k0 for (h, k0, n) in PG for w in range(n)}
    L = out.split("\n")
    tmp = f"_pg{os.getpid()}"
    t1 = next(i for i, x in enumerate(L) if x.strip().startswith(".section .rodata"))
    open(tmp + ".s", "w").write("\n".join(L[:t1] + [f"L_pg{k}:" for k in ret] + L[t1:]))
    subprocess.run(["clang", "-x", "assembler", "-target", "amdgcn-amd-amdhsa", "-mcpu=gfx950", "-c", tmp + ".s", "-o", tmp + ".o"], check=True)
    d = subprocess.run(["llvm-objdump", "-d", tmp + ".o"], capture_output=True, text=True).stdout
    S = [4*len(m.group(2).split()) for m in (re.search(r"//\s*([0-9A-F]{12}):((?: [0-9A-F]{8})+)", x) for x in d.split("\n")) if m]
    def isins(x):
        t = x.split(";")[0].strip()
        return bool(t) and not t.endswith(":") and not t.startswith(".")
    t0 = next(i for i, x in enumerate(L) if x.strip() == ".text")
    idx = [i for i in range(t0, t1) if isins(L[i])]
    assert len(S) == len(idx)
    off, todo, res, pos = 0, sorted(ret), [], dict(zip(idx, S))
    for i, x in enumerate(L):
        if i in pos:
            if todo and off >= todo[0]*4096:
                k = todo.pop(0)
                res += [f"L_pg{k}:", f"    s_cbranch_execz L_pgr{ret[k]}"]; off += 4
            off += pos[i]
        res.append(x)
    assert not todo, todo
    return "\n".join(res)

main()
```

```python
import sys, math, struct
from collections import defaultdict
sys.path.insert(0, "gen")
from asmlib import pad_hazards

NAME = "concat_heads__mha_block_cached__gqa_block_cached__near_ridge"
K1 = NAME + "_kernel"

OPT = dict(stamps=0, trace=0, st_pol="sc1", kv_pol="nt", w_pol="", x_pol="", out_pol="", D=6, wev=2, codepf=1,
           L1=4, PR=2.0, KA=8.5, KB=40.0, WO0=34.0, LWO=6, spw=1,
           pub="2,4", PUBD=4, NS=3, CLR=41.0, early=1, nodma=0, thr=1048576.0, tlo=2.0**-30, verbose=0, sleep=1, lst=1,
           X1=13, pfn=0, pfbit=3, pf_pol="", NP=0, PK=3.0, UP=2, j2=1, NB=8, wf=1, onorm=1, n0=4,
           p1slots="8,9,1,2,4,3,5,7,6,0,8,1,9,4,2,5,3,6,7,8,9", late=0, CLS=4, wow=-1.0, OS=1.0, OI=-1, o_pol="", o0_pol="", MF=0, MFE=1, dsp=1, dsp1=1, dph=0, diag=0, TA=-1.0, TB=38.0, T0=0, t_pol="", TS=7, KS="", park=0, pkq=1, UPD=1.0, wcost=2, usp=1, dly=-1, dk=10, dwg=-1, tst=0, t2=0, spA=905, spL=946, nA=2, spB=944, nB=3, spC=957, thr2="4,5,6,7", prog=1, pD=6, FS=2, spE=959, hold=0, HP=54.0, HE=58.0, pace="", pcs=8, org=0, orgH=6.5, ad=0, adm=0.3, adS=2, adD=1, adM=31, adE=42, adL=800, adW=4, adR=2, pace2="", clsh=2, clm=1, mp=4, rb=1, rh=2, ld_pol="sc1", fl_pol="sc1", fp_pol="sc1", iod=0, iodf=-1, prp=45, npr=3, prw=1, fl2=1, prH="", prs=256, prk=-1, prst=0, prn=0, prH0=18, prLW=4, prNW=4, prstg=12, prsm=1, pro=-9, lk="", lkm=0, nost=0, nobar=0, noval=0, fc=0, fcP=2, fc0=16, fc1=44, fcH="22,26,30,34,38,42", fcL=5.5, fcA=4, fcB=4, SIG=13.3, CHKL=39.3, CHKH=47.2, fcs=2, TN=0, tw=0, TH=0, rot="", MFI=0, dspH=14.0, fine=-1, MFO=0, n1=0, sms=0, XS="", pfp=0, pfi=0, dyn=0, MFT=0, SN=0, HNT=0, PP=0, PPS=2, pg="", pga=0, MF2=0, MFJ=99, fpat=0, LM=0, PT=4.0, lm_pol="", clr_pol="sc1", FT=-1.0, LQ=0, near=0, rwo=0, t3=0, t3m=99, t4=0, VL=19.0, t4n=64, eA=0, t4p=1, wt="", wt_pol="", wth=0, t5=0, es="", TS0=866, TS1=900, c1=9, psl=0, ft_pol="sc1", dh=-1, eop=-1.0, vt=1, lml_pol="sc1", pt_pol="", MFB=0, MCI=0, MCJ=21, MCB=7, MFA=0, MAJ=99)
VT = lambda: OPT["t4"] and OPT["vt"]
for a in sys.argv[2:]:
    k, v = a.split("=")
    OPT[k] = type(OPT[k])(v) if not isinstance(OPT[k], str) else v.replace("+", " ")

sW, sH, sB, sBLK = 4, 5, 6, 7
sK, sV, sWq, sWo, sX, sG, sFl, sDb, sOut = 8, 12, 16, 20, 24, 28, 32, 36, 40
sWoff = 48
sXoff, sWqoff, sWooff = 49, 50, 51
sStA, sStB = 52, 53
sC, sThr = 54, 55
sNP0, sSpin = 56, 57
sRet = 58
sTmp, sTmp2 = 60, 61
sTr = 68
sWsP = 80
sStamp = 82
sTlo = 98
sPf, sPfo = 72, 76
vPf = 62

vKr, vVr, vWor = 10, 14, 22
vKd, vVd, vWod = 26, 28, 30
vSt = 34
vL = 35
vT0 = 39
vAl = 43
vFl, vFp, vDbA, vDbV, vF, vFv = 45, 46, 47, 48, 49, 50
vDV = 51
vSel = 52
vRd, vRo = 56, 57
vUp = 58
vTr = 60
vSb = (64, 80)
vE, vNM, vP = 96, 112, 120
vWqd, vXd = 96, 100
vWr, vXr = 64, 88
vAcc = 64
vO = 128
aX, aPk, aQ = 0, 112, 160
NB = OPT["NB"]
def aFr(i):
    k = i % NB
    return 224 + 4*k if k < 8 else 112 + 4*(k - 8)
aSen = 0
FLAGS_OFF = 32 << 20
IOD = OPT["iod"]
PBASE = 128 << 20
HOLE = 52*1024
sSel = 99
FSH = 14 if IOD else 0
FS = OPT["FS"]; WS = max(8, FS + 4)
MF = "v_mfma_f32_16x16x32_bf16"

SCALE = math.log2(math.e) / 16.0
def f32hex(x):
    return "0x%08x" % struct.unpack("<I", struct.pack("<f", x))[0]

class Em:
    def __init__(self):
        self.L = []
        self.vmq = []
        self.ldsq = []
    def e(self, s, vm=None, lds=None):
        if isinstance(s, tuple):
            return self.e(*s)
        if callable(s):
            return s(self)
        self.L.append("    " + s)
        if vm is not None: self.vmq.append(vm)
        if lds is not None: self.ldsq.append(lds)
    def lab(self, s): self.L.append(s + ":")
    def c(self, s): self.L.append("    ; " + s)
    def wait_vm(self, tags):
        idx = [i for i, t in enumerate(self.vmq) if t in tags]
        if not idx: return
        n = len(self.vmq) - 1 - max(idx)
        self.e(f"s_waitcnt vmcnt({min(n, 63)})")
        self.vmq = self.vmq[max(idx) + 1:] if n <= 63 else self.vmq[-63:]
    def wait_lds(self, tags):
        idx = [i for i, t in enumerate(self.ldsq) if t in tags]
        if not idx: return
        n = len(self.ldsq) - 1 - max(idx)
        self.e(f"s_waitcnt lgkmcnt({min(n, 15)})")
        self.ldsq = self.ldsq[max(idx) + 1:] if n <= 15 else self.ldsq[-15:]

def stamp(a, idx, tail=False):
    if OPT["tst"] and idx in (1, 2, 3, 4) and not tail: return
    if tail and not OPT["tst"]: return
    if OPT["stamps"]:
        a.e(f"s_memrealtime s[{sStamp+2*idx}:{sStamp+2*idx+1}]")

units = []
for c in range(7): units += [("X", c), ("W", c)]
units += [("W", c) for c in range(7, 14)]
kv = [("K", 0), ("K", 1)]
for t in range(0, 14):
    kv += [("V", t), ("K", t + 2)]
kv += [("V", 14), ("V", 15)]
units += kv
units += [("O", k) for k in range(14)]
NU = len(units)
uidx = {u: n for n, u in enumerate(units)}
HS = [[2*c, 2*c+1] for c in range(7)] + [[uidx[("W", c)]] for c in range(7, 14)]
if OPT["j2"]:
    HS[12] = [uidx[("W", 12)], uidx[("W", 13)]]; HS[13] = []
for n in range(21, NU): HS.append([n])
needed, consumed = {}, {}
for H, us in enumerate(HS):
    for n in us: consumed[n] = H; needed[n] = H
if OPT["j2"]: consumed[uidx[("W", 12)]] = consumed[uidx[("W", 13)]] = 13
parked = {}
NP = OPT["park"]
P1SLOT = [int(x) for x in OPT["p1slots"].split(",")] if OPT["p1slots"] != "auto" else [0]*21
assert len(P1SLOT) == 21
def fixed_slot(n):
    t, i = units[n]
    if t in "XW": return P1SLOT[n]
    if t == "K": return i & 3
    if t == "V": return 4 + (i & 3)
    if t == "O" and i < 2: return 8 + i
    return None
iss = []
for n in range(21):
    if OPT["XS"] and n >= OPT["n0"] + OPT["n1"]:
        kn = [tuple(float(y) for y in x.split(":")) for x in OPT["XS"].split(",")]
        for (i0, h0), (i1, h1) in zip(kn, kn[1:]):
            if i0 <= n <= i1: h = h0 + (h1 - h0)*(n - i0)/(i1 - i0)
        iss.append((max(0, int(round(16*h))), n))
        continue
    iss.append((-2 if n < OPT["n0"] else -1 if n < OPT["n0"] + OPT["n1"] else max(0, int(round(16*(n - OPT["L1"])/OPT["PR"]))), n))
stream = list(range(21, 53))
if OPT["OI"] >= 0:
    stream.insert(OPT["OI"], 53); stream.insert(OPT["OI"] + 2, 54)
for i, n in enumerate(stream):
    if OPT["KS"]:
        kn = [tuple(float(y) for y in x.split(":")) for x in OPT["KS"].split(",")]
        for (i0, h0), (i1, h1) in zip(kn, kn[1:]):
            if i0 <= i <= i1: h = h0 + (h1 - h0)*(i - i0)/(i1 - i0)
    else: h = OPT["KA"] + (OPT["KB"] - OPT["KA"])*i/(len(stream) - 1)
    iss.append((int(round(16*h)), n))
kvpos = [(pos, n) for (pos, n) in iss if units[n][0] in "KV"]
kvstep = {}
for i, (pos, n) in enumerate(kvpos):
    kvstep[n] = (kvpos[i + 1][0] - pos)/4 if i + 1 < len(kvpos) else kvstep[kvpos[i - 1][1]]
def isfine(n): return OPT["fine"] >= 0 and units[n][0] in "KV" and n - 21 >= OPT["fine"]
for k in range(2 if OPT["OI"] >= 0 else 0, 14):
    pos = max(16*(46 + k - OPT["LWO"]), 16*(OPT["WO0"] + OPT["OS"]*k))
    iss.append((int(pos), 53 + k))
iss.sort(key=lambda x: x[0])
if OPT["p1slots"] == "auto":
    kvf = {8: 10**6, 9: 10**6}
    for (pos, n) in kvpos:
        if units[n][1] < 4: kvf[fixed_slot(n)] = pos
    fr = [-100]*10
    for (pos, n) in iss:
        if n >= 21: continue
        rel = 16*consumed[n] + 2 if units[n][0] == "X" else 16*(consumed[n] + 2) - OPT["D"]
        ok = [x for x in range(10) if fr[x] <= pos]
        if not ok: ok = [min(range(10), key=lambda x: fr[x])]
        fit = [x for x in ok if kvf[x] >= rel]
        x = min(fit, key=lambda x: kvf[x]) if fit else max(ok, key=lambda x: kvf[x])
        P1SLOT[n] = x; fr[x] = rel
    sys.stderr.write(f"p1slots={','.join(map(str, P1SLOT))}\n")

PACE = {}
if OPT["pace"]:
    kn = [tuple(float(y) for y in x.split(":")) for x in OPT["pace"].split(",")]
    for (h0, t0), (h1, t1) in zip(kn, kn[1:]):
        for h in range(int(h0), int(h1) + 1): PACE[h] = int(round(100*(t0 + (t1 - t0)*(h - h0)/(h1 - h0))))
    assert OPT["TA"] < 0 and min(PACE) >= 3
PACE2 = {}
if OPT["pace2"]:
    kn = [tuple(float(y) for y in x.split(":")) for x in OPT["pace2"].split(",")]
    for (h0, t0), (h1, t1) in zip(kn, kn[1:]):
        for h in range(int(h0), int(h1) + 1): PACE2[h] = int(round(100*(t0 + (t1 - t0)*(h - h0)/(h1 - h0))))
    assert set(PACE2) == set(PACE) and not OPT["ad"]
LK = {}
if OPT["lk"]:
    kn = [tuple(float(y) for y in x.split(":")) for x in OPT["lk"].split(",")]
    for (h0, t0), (h1, t1) in zip(kn, kn[1:]):
        for h in range(int(h0), int(h1) + 1): LK[h] = int(round(4*(t0 + (t1 - t0)*(h - h0)/(h1 - h0))))
PG = [(float(x.split(":")[0]), int(x.split(":")[1]), int(x.split(":")[2])) for x in OPT["pg"].split(",")] if OPT["pg"] else []
slot_of = {}
def dma(n):
    t, i = units[n]
    g = []
    pk = parked.get(n)
    for jj in range(4):
        ins = []
        sKV = sTmp2 if isfine(n) else sTmp
        if jj and isfine(n) and pk is None: ins.append(f"s_add_u32 m0, s{sWoff}, {slot_of[n]*16384}")
        if jj == 0:
            if pk is None: ins.append(f"s_add_u32 m0, s{sWoff}, {slot_of[n]*16384}")
            if t in "KV": ins.append(f"s_xor_b32 s{sKV}, s77, {i*16384}" if OPT["rot"] else f"s_mov_b32 s{sKV}, {i*16384}")
            elif t == "O" and (i & 1): ins.append(f"s_add_u32 s{sTmp}, s{sWooff}, {128*896}")
            elif t == "W" and i == 7 and OPT["dh"] >= 0: ins += [f"v_xor_b32 v{vWqd+r}, 0x100, v{vWqd+r}" for r in range(4)]
            elif t == "W" and i == 7: ins += [f"s_add_u32 s{sWq}, s{sWq}, 256", f"s_addc_u32 s{sWq+1}, s{sWq+1}, 0"]
        off = f" offset:{jj*1024}" if jj else ""
        dst = "" if pk is None else f"a[{pk+4*jj}:{pk+4*jj+3}], "
        lds = " lds" if pk is None else ""
        if t == "K": ld = f"buffer_load_dwordx4 {dst}v{vKd+(jj&1)}, s[{sK}:{sK+3}], s{sKV} offen{off} {OPT['kv_pol']}{lds}"
        elif t == "V": ld = f"buffer_load_dwordx4 {dst}v{vVd+(jj&1)}, s[{sV}:{sV+3}], s{sKV} offen{off} {OPT['kv_pol']}{lds}"
        elif t == "W": ld = f"buffer_load_dwordx4 v{vWqd+jj}, s[{sWq}:{sWq+3}], s{sWqoff} offen{off} {OPT['w_pol']} lds"
        elif t == "X": ld = f"buffer_load_dwordx4 v{vXd+jj}, s[{sX}:{sX+3}], s{sXoff} offen{off} {OPT['x_pol']} lds"
        elif t == "O":
            so = sTmp if (i & 1) else sWooff
            ld = f"buffer_load_dwordx4 v{vWod+jj}, s[{sWo}:{sWo+3}], s{so} offen{off} {OPT['o0_pol'] if i < 2 else OPT['o_pol']} lds"
        if OPT["MF"] and t in "KV" and jj % OPT["MFE"] == 0 and n - 21 >= OPT["MFI"]:
            def lim(a, jj=jj):
                k = (OPT["MF2"] if n - 21 >= OPT["MFJ"] else OPT["MF"]) - OPT["MFE"]
                if OPT["MFT"]:
                    idx = [x for x, tg in enumerate(a.vmq) if tg[0] == "u" and units[int(tg[1:])][0] in "KV"]
                    if len(idx) <= k: return
                    k = len(a.vmq) - 1 - idx[len(idx) - k - 1]
                if len(a.vmq) > k:
                    a.e(f"s_waitcnt vmcnt({k})")
                    a.vmq = a.vmq[len(a.vmq) - k:]
                if cB or cA:
                    a.e(f"s_bitcmp1_b32 s2, {OPT['MCB']}")
                    a.e(f"s_cbranch_scc{0 if cB else 1} L_mc{n}_{jj}")
                    a.e(f"s_waitcnt vmcnt({(OPT['MFB'] if cB else OPT['MFA']) - OPT['MFE']})")
                    a.lab(f"L_mc{n}_{jj}")
            cB = OPT["MFB"] and OPT["MCI"] <= n - 21 < OPT["MCJ"]
            cA = OPT["MFA"] and n - 21 >= OPT["MAJ"] and not cB
            lim.cost = 3 if cB or cA else 1
            ins.append(lim)
        if not OPT["nodma"]: ins.append((ld, f"u{n}"))
        if jj == 3:
            if t == "W" and i < 13: ins += [f"s_add_u32 s{sWqoff}, s{sWqoff}, {64*8192}", f"s_cmp_eq_u32 s{sWqoff}, {448*8192}", f"s_cselect_b32 s{sWqoff}, 0, s{sWqoff}"]
            if t == "X" and i < 6: ins += [f"s_add_u32 s{sXoff}, s{sXoff}, 128", f"s_cmp_eq_u32 s{sXoff}, 896", f"s_cselect_b32 s{sXoff}, 0, s{sXoff}"]
            if t == "O" and (i & 1) and i < 13: ins += [f"s_add_u32 s{sWooff}, s{sWooff}, 128", f"s_cmp_eq_u32 s{sWooff}, 896", f"s_cselect_b32 s{sWooff}, 0, s{sWooff}"]
        g.append(ins)
    return g

GROUPS = {"K": (vKr, 4), "V": (vVr, 8), "O": (vWor, 4), "W": (vWr, 8), "X": (vXr, 2)}

class Item:
    def __init__(self, H, mf, reads):
        self.H = H; self.mf = mf; self.reads = reads
        self.first = False

def tr_reads(grp, ridx, n, off0, off1):
    return [("ds_read_b64_tr_b16", "a[{b}:{b1}]", grp, ridx, n, off0), ("ds_read_b64_tr_b16", "a[{b2}:{b3}]", grp, ridx, n, off1)]

def acc_of(base, T, u): return base + 16*(T >> 1) + 8*u + 4*(T & 1)
def q4(r, k="v"): return f"{k}[{r}:{r+3}]"

def cost(s):
    if isinstance(s, list): return sum(cost(x) for x in s)
    if callable(s): return getattr(s, "cost", 2)
    if isinstance(s, tuple): s = s[0]
    if s.startswith("ds_write"): return OPT["wcost"]
    return 2 if s.startswith(("v_exp", "v_rcp")) else 1

def gen_k1(BASE):
    a = Em()
    e = a.e
    slot_of.clear(); parked.clear()
    slot_free_at = [-10]*10
    slot_free_pos = [-10]*10
    last_slot = {"O": 8}
    def alloc(n, Hbar, p=0):
        t = units[n][0]
        s = fixed_slot(n)
        if OPT["dyn"] and t in "KVO":
            res = {P1SLOT[m] for m in range(21) if m not in slot_of}
            fr = [x for x in range(10) if slot_free_at[x] <= Hbar and slot_free_pos[x] <= p and x not in res]
            if not fr: return False
            home = {"K": 0, "V": 1, "O": last_slot["O"]//4}[t]
            fr.sort(key=lambda x: (x//4 != home, x//4 != 2, x))
            slot_of[n] = fr[0]; last_slot[t] = fr[0]
            slot_free_at[fr[0]] = consumed[n] + 2
            return True
        if s is not None and slot_free_pos[s] > p: return False
        if t in "KV":
            if units[n][1] >= 4 and uidx[(t, units[n][1] - 4)] not in slot_of: return False
            if any(P1SLOT[m] == s and m not in slot_of for m in range(21)): return False
        if s is None:
            pend = {fixed_slot(m) for m in range(NU) if m not in slot_of}
            fr = [s for s in range(10) if slot_free_at[s] <= Hbar and s not in pend]
            if not fr: return False
            same = [s for s in fr if s // 4 == last_slot[t] // 4]
            s = (same or fr)[0]
        elif slot_free_at[s] > Hbar: return False
        slot_of[n] = s; last_slot[t] = s
        if t == "X": slot_free_pos[s] = 16*consumed[n] + 2
        else: slot_free_at[s] = consumed[n] + 2
        return True

    a.L.append(f".globl {K1}\n" + (".p2align 12\n" if OPT["pg"] or OPT["pga"] else "") + f".p2align 8\n.type {K1},@function\n{K1}:")
    e("s_cmp_ge_u32 s2, 256")
    e("s_cbranch_scc1 L_k1_done")
    stamp(a, 0)
    if OPT["pace"]: e("s_memrealtime s[100:101]")
    e("s_and_b32 s3, s2, 7")
    e(f"s_lshr_b32 s{sBLK}, s3, 2")
    e(f"s_mul_i32 s{sTmp}, s{sBLK}, 40")
    e(f"s_add_u32 s44, s0, s{sTmp}")
    e("s_addc_u32 s45, s1, 0")
    e("s_load_dwordx2 s[64:65], s[44:45], 0")
    e("s_load_dwordx4 s[72:75], s[44:45], 24")
    e("s_load_dwordx4 s[68:71], s[44:45], 8")
    e("s_load_dwordx4 s[76:79], s[0:1], 80")
    e(f"s_load_dwordx2 s[{sWsP}:{sWsP+1}], s[0:1], 96")
    e("v_lshrrev_b32 v1, 6, v0")
    e("v_and_b32 v2, 63, v0")
    e(f"v_readfirstlane_b32 s{sW}, v1")
    if OPT["mp"] == 4:
        e("s_and_b32 s3, s3, 3")
        e("s_lshl_b32 s3, s3, 2")
        e(f"s_lshr_b32 s{sB}, s2, 3")
        e(f"s_and_b32 s{sH}, s{sB}, 3")
        e(f"s_lshl_b32 s{sTmp}, s{sH}, 1")
        e(f"s_add_u32 s{sH}, s{sH}, s3")
        e(f"s_lshr_b32 s{sB}, s{sB}, 2")
        e(f"s_add_u32 s{sTmp}, s{sTmp}, s{sB}")
        for _ in range(2):
            e(f"s_cmp_ge_u32 s{sTmp}, 7"); e(f"s_cselect_b32 s3, 7, 0"); e(f"s_sub_u32 s{sTmp}, s{sTmp}, s3")
    else:
        if OPT["mp"] == 8:
            e(f"s_bfe_u32 s{sB}, s2, 0x10001"); e(f"s_lshl_b32 s{sB}, s{sB}, 2"); e("s_lshr_b32 s3, s2, 6"); e(f"s_add_u32 s{sB}, s{sB}, s3")
            e(f"s_and_b32 s{sH}, s2, 1"); e(f"s_lshl_b32 s{sH}, s{sH}, 3"); e("s_bfe_u32 s3, s2, 0x30003"); e(f"s_add_u32 s{sH}, s{sH}, s3")
        else:
            e(f"s_and_b32 s{sB}, s2, 3"); e(f"s_lshl_b32 s{sB}, s{sB}, 1"); e("s_lshr_b32 s3, s2, 7"); e(f"s_add_u32 s{sB}, s{sB}, s3")
            e(f"s_bfe_u32 s{sH}, s2, 0x40003")
        assert 7*OPT["rb"] + 15*OPT["rh"] < 85
        e(f"s_mul_i32 s{sTmp}, s{sB}, {OPT['rb']}"); e(f"s_mul_i32 s3, s{sH}, {OPT['rh']}"); e(f"s_add_u32 s{sTmp}, s{sTmp}, s3")
        e(f"s_mul_i32 s3, s{sTmp}, 37"); e("s_lshr_b32 s3, s3, 8"); e("s_mul_i32 s3, s3, 7"); e(f"s_sub_u32 s{sTmp}, s{sTmp}, s3")
    e(f"s_lshl_b32 s{sXoff}, s{sTmp}, 7")
    e(f"s_lshl_b32 s{sWqoff}, s{sTmp}, 19")
    e("v_and_b32 v3, 15, v2")
    e("v_lshrrev_b32 v4, 4, v2")
    e(f"s_lshl_b32 s{sWoff}, s{sW}, 12")
    e("v_lshrrev_b32 v5, 3, v2")
    e("v_mul_u32_u24 v5, 896, v5")
    e(f"s_mul_i32 s3, s{sW}, {32*896}")
    e("v_and_b32 v6, 7, v2")
    e(f"v_add_u32 v{vWod}, s3, v5")
    e("v_xor_b32 v6, v6, v4")
    e(f"v_lshl_add_u32 v{vXd}, v6, 4, v{vWod}")
    e(f"v_xor_b32 v5, 64, v{vXd}")
    e(f"v_add_u32 v{vXd+1}, 6144, v5")
    e(f"v_add_u32 v{vXd+2}, {2*6144}, v{vXd}")
    e(f"v_add_u32 v{vXd+3}, {3*6144}, v5")
    e(f"s_lshl_b32 s3, s{sW}, 17")
    e(f"s_lshl_b32 s{sTmp}, s{sH}, 9")
    e(f"s_add_u32 s3, s3, s{sTmp}")
    if OPT["dh"] >= 0:
        assert not OPT["spw"]
        e(f"s_bfe_u32 s46, s2, {0x10000 + OPT['dh']}"); e("s_lshl_b32 s46, s46, 8"); e("s_add_u32 s3, s3, s46")
    e("v_lshlrev_b32 v6, 1, v4")
    e("v_xor_b32 v6, v6, v3")
    e("v_lshlrev_b32 v6, 4, v6")
    e("v_lshl_add_u32 v6, v4, 13, v6")
    e(f"v_add_u32 v{vWqd}, s3, v6")
    e(f"v_xor_b32 v7, 0x80, v{vWqd}")
    e(f"v_add_u32 v{vWqd+1}, {32768-1024}, v{vWqd}")
    e(f"v_add_u32 v{vWqd+2}, {2*(32768-1024)}, v7")
    e(f"v_add_u32 v{vWqd+3}, {3*(32768-1024)}, v7")
    for s, sz in ((sX, 114688), (sWq, 448*8192), (sK, 262144), (sV, 262144)):
        e(f"s_mov_b32 s{s+2}, {sz}"); e(f"s_mov_b32 s{s+3}, 0x00020000")
    e(f"s_mul_i32 s46, s{sB}, 114688")
    e(f"s_lshl_b32 s47, s{sB}, 4")
    e(f"s_add_u32 s47, s47, s{sH}")
    e(f"s_lshl_b32 s47, s47, 18")
    if OPT["spw"]:
        e("v_lshrrev_b32 v8, 2, v0")
        e("v_lshlrev_b32 v8, 13, v8")
        e("v_and_b32 v9, 3, v0")
        e("v_lshl_add_u32 v8, v9, 6, v8")
        e(f"v_add_u32 v8, s{sTmp}, v8")
    e("s_waitcnt lgkmcnt(0)")
    e(f"s_add_u32 s{sX}, s64, s46"); e(f"s_addc_u32 s{sX+1}, s65, 0")
    e(f"s_mov_b32 s{sWq}, s72"); e(f"s_mov_b32 s{sWq+1}, s73")
    e(f"s_add_u32 s{sK}, s68, s47"); e(f"s_addc_u32 s{sK+1}, s69, 0")
    e(f"s_add_u32 s{sV}, s70, s47"); e(f"s_addc_u32 s{sV+1}, s71, 0")
    def touch0():
        if OPT["pfn"]:
            if OPT["pfbit"] >= 0:
                e(f"s_bitcmp1_b32 s2, {OPT['pfbit']}")
                e("s_cbranch_scc0 L_nopf")
            elif OPT["pfbit"] == -2:
                e("s_lshr_b32 s3, s2, 2"); e("s_xor_b32 s3, s3, s2"); e("s_bitcmp1_b32 s3, 3")
                e("s_cbranch_scc0 L_nopf")
            e("v_lshlrev_b32 v63, 7, v2")
            e(f"s_and_b32 s3, s{sW}, 1"); e("s_lshl_b32 s3, s3, 13")
            e("v_add_u32 v63, s3, v63")
            e(f"s_cmp_ge_u32 s{sW}, 2")
            e("s_cbranch_scc1 L_pf_hi")
            for part in range(2):
                for k in range(part, OPT["pfn"], 2):
                    t, i = units[21 + OPT["pfi"] + k]
                    sr = sK if t == "K" else sV
                    e(f"s_mov_b32 s{sTmp2}, {i*16384}")
                    e(f"buffer_load_dword a{aQ+2+k//2}, v63, s[{sr}:{sr+3}], s{sTmp2} offen {OPT['pf_pol']}", "pf" if part == 0 and OPT["pfbit"] == -1 and OPT["pfn"] % 2 == 0 else None)
                if part == 0:
                    e("s_branch L_nopf")
                    a.lab("L_pf_hi")
            a.lab("L_nopf")
    if OPT["pfp"] == 0: touch0()
    ip = [0]
    while iss[ip[0]][0] < -1:
        m = iss[ip[0]][1]; ip[0] += 1
        assert alloc(m, 0)
        if m == 1 and OPT["spw"]:
            e(f"buffer_load_dword a{aQ+1}, v8, s[{sWq}:{sWq+3}], s{sWqoff} offen offset:256 {OPT['w_pol']}", "pf")
        for g in dma(m):
            for s in g: e(s)
    if OPT["pfp"] == 1: touch0()
    if OPT["tw"] & 1:
        e(f"s_load_dword s66, s[{sK}:{sK+1}], 0")
        e(f"s_load_dword s67, s[{sV}:{sV+1}], 0")
    if OPT["tw"] & 2:
        e(f"buffer_load_dword a{aQ+1}, off, s[{sK}:{sK+3}], 0", "pf")
        e(f"buffer_load_dword a{aQ+2}, off, s[{sV}:{sV+3}], 0", "pf")
    if OPT["codepf"]:
        e("s_getpc_b64 s[62:63]")
        a.lab("L_pc")
        e("s_lshr_b32 s3, s2, 3")
        e("s_lshl_b32 s3, s3, 12")
        e("v_lshlrev_b32 v5, 4, v0")
        e("v_add_u32 v5, s3, v5")
        e("v_min_u32 v5, L_k1_end-L_pc-8, v5")
        e(f"global_load_dword a{aQ}, v5, s[62:63]", "pf")
    if IOD:
        e(f"s_lshl_b32 s3, s{sBLK}, 3"); e(f"s_add_u32 s3, s3, s{sB}"); e("s_lshl_b32 s3, s3, 22"); e(f"s_add_u32 s3, s3, {PBASE}")
        e(f"s_add_u32 s{sG}, s{sWsP}, s3"); e(f"s_addc_u32 s{sG+1}, s{sWsP+1}, 0")
        e(f"s_lshl_b32 s3, s{sW}, 4"); e(f"s_add_u32 s3, s3, s{sH}"); e("s_lshl_b32 s47, s3, 16")
        e(f"s_add_u32 s64, s{sG}, s47"); e(f"s_addc_u32 s65, s{sG+1}, 0")
        if OPT["prw"] and OPT["iodf"] < 0: e(f"s_load_dword s{sSel}, s[64:65], {HOLE + 1024}")
        if OPT["prw"] > 1 and OPT["iodf"] < 0: e(f"s_load_dword s66, s[64:65], {HOLE + 1024 + 8192}")
    e("v_bfe_u32 v6, v2, 2, 2")
    e("v_and_b32 v7, 3, v2")
    e("v_bfe_u32 v5, v2, 2, 3")
    e("v_lshl_add_u32 v8, v4, 3, v6")
    e("v_lshlrev_b32 v9, 5, v5")
    e("v_lshl_add_u32 v9, v7, 3, v9")
    e("v_lshl_add_u32 v9, v8, 8, v9")
    e("v_lshl_add_u32 v8, v8, 8, v9")
    e(f"v_add_u32 v{vVr}, 0x10000, v8")
    for w in (2, 0, 1):
        e(f"v_add_u32 v{vWr+8*w}, {w*65536}, v9")
        for T in range(1, 8): e(f"v_xor_b32 v{vWr+8*w+T}, {T<<5}, v{vWr+8*w}")
    e("v_lshrrev_b32 v5, 1, v3"); e("v_xor_b32 v5, v5, v4"); e("v_lshlrev_b32 v5, 4, v5")
    e("v_lshl_add_u32 v5, v3, 7, v5")
    e(f"v_add_u32 v{vXr}, s{sWoff}, v5")
    e(f"v_xor_b32 v{vXr+1}, 64, v{vXr}")
    for w in (2, 1):
        e(f"v_add_u32 v{vXr+2*w}, {w*65536}, v{vXr}"); e(f"v_add_u32 v{vXr+2*w+1}, {w*65536}, v{vXr+1}")
    for s, sz in ((sWo, 229376), (sG, (4 << 20) if IOD else 16*114688), (sFl, (4 << 20) if IOD else (4 << WS)), (sDb, 256), (sOut, 128*1792)):
        e(f"s_mov_b32 s{s+2}, {sz}"); e(f"s_mov_b32 s{s+3}, 0x00020000")
    if OPT["rwo"] == 0: e(f"s_cmp_eq_u32 s{sB}, 7"); e(f"s_cselect_b32 s3, 0, s{sB}")
    elif OPT["rwo"] == 1: e(f"s_and_b32 s3, s{sB}, 6")
    elif OPT["rwo"] == 2: e(f"s_lshr_b32 s3, s{sB}, 1")
    elif OPT["rwo"] == 3: e(f"s_mul_i32 s3, s{sBLK}, 3")
    elif OPT["rwo"] == 4: e(f"s_and_b32 s3, s{sB}, 1")
    e(f"s_lshl_b32 s{sWooff}, s3, 7")
    if IOD:
        e(f"s_lshl_b32 s{sStA}, s3, 12"); e("s_lshr_b32 s3, s3, 1"); e("s_lshl_b32 s3, s3, 13"); e(f"s_add_u32 s{sNP0}, s{sStA}, s3")
    else:
        e(f"s_lshl_b32 s{sStA}, s3, 12")
        e(f"s_mov_b32 s{sNP0}, s{sStA}")
    e(f"s_mul_i32 s3, s{sH}, 229376")
    e(f"s_add_u32 s{sWo}, s74, s3"); e(f"s_addc_u32 s{sWo+1}, s75, 0")
    e(f"s_lshl_b32 s46, s{sBLK}, 3")
    e(f"s_add_u32 s46, s46, s{sB}")
    if IOD:
        e(f"s_mov_b32 s{sFl}, s{sG}"); e(f"s_mov_b32 s{sFl+1}, s{sG+1}")
    else:
        e(f"s_mul_i32 s3, s46, {16*114688}")
        e(f"s_add_u32 s{sG}, s{sWsP}, s3"); e(f"s_addc_u32 s{sG+1}, s{sWsP+1}, 0")
        e(f"s_lshl_b32 s3, s46, {WS + 2}")
        e(f"s_add_u32 s3, s3, {FLAGS_OFF}")
        e(f"s_add_u32 s{sFl}, s{sWsP}, s3"); e(f"s_addc_u32 s{sFl+1}, s{sWsP+1}, 0")
    e(f"s_mov_b32 s{sDb}, s78"); e(f"s_mov_b32 s{sDb+1}, s79")
    e(f"s_mul_i32 s3, s{sB}, {128*1792}")
    e(f"s_add_u32 s{sOut}, s76, s3"); e(f"s_addc_u32 s{sOut+1}, s77, 0")
    e(f"s_mov_b32 s{sC}, {f32hex(SCALE)}")
    e(f"s_mov_b32 s{sThr}, {f32hex(OPT['thr'])}")
    e(f"s_mov_b32 s{sTlo}, {f32hex(OPT['tlo'])}")
    e(f"s_mov_b32 s{sSpin}, 0x8000")
    if OPT["rot"]:
        rm, rs, rk = [int(x) for x in OPT["rot"].split(",")]
        e(f"s_mul_i32 s77, s2, {rm}"); e(f"s_lshr_b32 s77, s77, {rs}"); e(f"s_and_b32 s77, s77, {rk}"); e("s_lshl_b32 s77, s77, 14")
    if OPT["TA"] >= 0:
        e(f"s_cmp_ge_u32 s{sW}, 2")
        e(f"s_cselect_b32 s{sPf}, s{sV}, s{sK}"); e(f"s_cselect_b32 s{sPf+1}, s{sV+1}, s{sK+1}")
        e(f"s_cselect_b32 s{sPfo}, {OPT['T0']-1}, {OPT['T0']}"); e(f"s_lshl_b32 s{sPfo}, s{sPfo}, 14")
        e(f"s_mov_b32 s{sPf+2}, 262144"); e(f"s_mov_b32 s{sPf+3}, 0x00020000")
        e(f"s_and_b32 s3, s{sW}, 1"); e("s_lshl_b32 s3, s3, 13")
        e(f"v_lshl_add_u32 v{vPf}, v2, 7, s3")
    if OPT["diag"]:
        e("s_getreg_b32 s3, hwreg(HW_REG_XCC_ID, 0, 4)")
        e("s_sub_u32 s3, s3, s2"); e("s_and_b32 s3, s3, 7"); e("s_lshl_b32 s3, 1, s3")
        e("v_mov_b32 v5, s3"); e("v_lshlrev_b32 v8, 12, v0"); e("v_add_u32 v8, 128, v8")
        e(f"buffer_atomic_or v5, v8, s[{sDb}:{sDb+3}], 0 offen sc1", "pf")
    if OPT["org"]:
        e("v_not_b32 v5, s100"); e("v_lshlrev_b32 v8, 12, v0")
        e(f"buffer_atomic_umax v5, v8, s[{sDb}:{sDb+3}], 0 offen offset:64 sc1", "pf")
    stamp(a, 1)
    late = []
    l = late.append
    l("v_lshrrev_b32 v5, 5, v2"); l("v_and_b32 v9, 31, v2")
    l("v_lshlrev_b32 v8, 9, v5"); l(f"v_add_u32 v8, s{sWoff}, v8")
    l(f"s_lshl_b32 s3, s{sW}, 2")
    if OPT["dh"] >= 0: l(f"s_bfe_u32 s44, s2, {0x10000 + OPT['dh']}"); l("s_lshl_b32 s44, s44, 4"); l("s_add_u32 s3, s3, s44")
    l("v_xor_b32 v1, v9, v5"); l("v_xor_b32 v1, s3, v1")
    l(f"v_lshl_add_u32 v{vKd}, v1, 4, v8")
    l(f"v_xor_b32 v{vKd+1}, 32, v{vKd}")
    l(f"s_and_b32 s3, s{sW}, 1"); l("s_lshl_b32 s3, s3, 3")
    l("v_lshlrev_b32 v5, 1, v5"); l("v_xor_b32 v1, v9, v5"); l("v_xor_b32 v1, s3, v1")
    l(f"v_lshl_add_u32 v{vVd}, v1, 4, v8")
    l(f"v_xor_b32 v{vVd+1}, 64, v{vVd}")
    if not IOD: l(f"s_mul_i32 s3, s{sW}, 28672"); l(f"s_mul_i32 s44, s{sH}, 114688"); l("s_add_u32 s3, s3, s44")
    l("v_lshl_add_u32 v5, v3, 2, v4")
    l(f"v_lshl_add_u32 v{vSt}, v5, 4, {'s47' if IOD else 's3'}")
    if OPT["LM"] or OPT["LQ"]:
        assert not VT()
        l(f"v_lshl_add_u32 v1, v2, 6, {'s47' if IOD else 's3'}")
    for T in range(1, 8): l(f"v_xor_b32 v{vVr+T}, {T<<5}, v{vVr}")
    if OPT["CLR"] < 14:
        for r in range(4): l(f"v_mov_b32 v{vE+8+r}, -1")
    if OPT["wow"] >= 0:
        l(f"s_mul_i32 s3, s{sB}, 28672"); l(f"v_lshl_add_u32 v63, v0, 7, s3")
    if OPT["wt"]:
        assert not OPT["t4"] and OPT["wow"] < 0 and not OPT["LM"] and not OPT["LQ"]
        if OPT["wth"]:
            l("s_lshr_b32 s3, s2, 7"); l("s_lshl_b32 s3, s3, 7"); l("v_and_b32 v63, 127, v0"); l("v_add_u32 v63, s3, v63")
            l("v_mul_u32_u24 v63, 896, v63"); l("v_lshrrev_b32 v5, 7, v0"); l("v_lshl_add_u32 v63, v5, 24, v63")
        else: l("v_mul_u32_u24 v63, 896, v0")
        l(f"s_mov_b32 s78, s{sWooff}")
    if OPT["t4"]:
        assert IOD and OPT["near"] and OPT["t2"] and OPT["NS"] == 0 and not OPT["late"] and not OPT["ad"] and not OPT["fl2"]
        NSET = 2 if OPT["eA"] else 1
        l(f"s_lshl_b32 s3, s{sW}, 8"); l(f"s_add_u32 s3, s3, s{sH}"); l(f"s_add_u32 s3, s3, {HOLE}")
        l("v_lshl_add_u32 v5, v7, 6, s3")
        if OPT["t5"]:
            NSET = OPT["t5"]
            assert NSET in (4, 8, 16) and not OPT["eA"]
            l("v_lshrrev_b32 v8, 2, v2")
            l(f"v_lshl_add_u32 v{vFl}, v8, 16, v5")
            if NSET < 16:
                l(f"v_lshrrev_b32 v8, {NSET.bit_length() + 1}, v2"); l(f"v_lshl_add_u32 v{vFl}, v8, 22, v{vFl}")
        else:
            if NSET == 2:
                l("v_bfe_u32 v8, v2, 2, 1"); l("v_lshl_add_u32 v5, v8, 10, v5")
            l(f"v_lshrrev_b32 v8, {1 + NSET}, v2")
            l(f"v_lshl_add_u32 v{vFl}, v8, 22, v5")
        l(f"s_lshl_b32 s78, s{sH}, 6"); l(f"s_add_u32 s78, s78, {HOLE}")
        l(f"v_mov_b32 v{vFp}, s78")
        if OPT["t5"]:
            l(f"v_and_b32 v62, {NSET - 1}, v2")
        l(f"s_lshl_b32 s3, s{sW}, 4"); l(f"s_add_u32 s3, s3, s{sH}"); l(f"s_add_u32 s3, s3, {HOLE + 3840}")
        l("v_lshl_add_u32 v63, v2, 22, s3")
        if OPT["t5"]: l("v_lshlrev_b32 v5, 6, v3"); l("v_lshl_add_u32 v5, v4, 16, v5")
        else: l("v_lshrrev_b32 v5, 2, v2"); l("v_lshlrev_b32 v5, 6, v5"); l("v_lshl_add_u32 v5, v7, 2, v5")
        l([f"s_or_b32 s3, s{sH}, s{sW}", "s_cmp_eq_u32 s3, 0", "s_cselect_b32 s45, 0, 0x400000"])
        l(f"s_add_u32 s3, s45, {HOLE}")
        l(f"v_mov_b32 v{vL}, 0"); l(f"v_mov_b32 v{vL+1}, 0")
        l("v_add_u32 v5, s3, v5")
        if OPT["t5"]:
            for r in range(4): l(f"v_mov_b32 v{vNM+r}, 0")
            for k in range(NSET//4): l([f"s_mov_b32 s3, {k << 18}", (f"buffer_store_dwordx4 {q4(vNM)}, v5, s[{sFl}:{sFl+3}], s3 offen {OPT['clr_pol']}", "clr")])
        else:
            for k in range(NSET): l((f"buffer_store_dword v{vL}, v5, s[{sFl}:{sFl+3}], 0 offen offset:{1024*k} {OPT['clr_pol']}", "clr"))
    elif IOD:
        assert OPT["t2"] and OPT["NS"] == 0 and not OPT["late"] and not OPT["ad"]
        assert FS <= 7
        l(f"s_lshl_b32 s3, s{sW}, 20"); l(f"s_lshl_b32 s44, s{sH}, {FS}"); l("s_add_u32 s3, s3, s44"); l(f"s_add_u32 s3, s3, {HOLE}")
        l("v_and_b32 v5, 1, v2"); l("v_lshrrev_b32 v8, 1, v2")
        if not OPT["fl2"]: l("v_mov_b32 v8, v2")
        l("v_lshlrev_b32 v8, 22, v8"); l("v_lshl_add_u32 v5, v5, 13, v8")
        l(f"v_add_u32 v{vFl}, s3, v5")
        l("v_lshl_add_u32 v5, v7, 2, v4")
        l(f"s_lshr_b32 s3, s{sH}, 2"); l(f"s_lshl_b32 s3, s3, 20"); l(f"s_add_u32 s3, s3, {HOLE}")
        l(f"v_lshl_add_u32 v{vFp}, v5, {FS}, s3")
        l(f"v_mov_b32 v8, {7 << FSH}")
        l(f"v_cmp_eq_u32 vcc, s{sH}, v5"); l("s_nop 0"); l(f"v_cndmask_b32 v{vDV}, 0, v8, vcc")
        l(f"v_lshlrev_b32 v5, {FS}, v3"); l(f"v_lshl_add_u32 v5, v4, 20, v5")
        l([f"s_or_b32 s3, s{sH}, s{sW}", "s_cmp_eq_u32 s3, 0", "s_cselect_b32 s45, 0, 0x400000"])
        l(f"s_add_u32 s3, s45, {HOLE}"); l(f"s_add_u32 s44, s45, {HOLE + 8192}")
        l(f"v_mov_b32 v{vL}, 0"); l(f"v_mov_b32 v{vL+1}, 0")
        l("v_add_u32 v8, s44, v5"); l("v_add_u32 v5, s3, v5")
        l((f"buffer_store_dword v{vL}, v5, s[{sFl}:{sFl+3}], 0 offen {OPT['clr_pol']}", "clr"))
        l((f"buffer_store_dword v{vL}, v8, s[{sFl}:{sFl+3}], 0 offen {OPT['clr_pol']}", "clr"))
    else:
        l(f"s_lshl_b32 s3, s{sW}, {WS}"); l(f"s_lshl_b32 s44, s{sH}, {FS}"); l("s_add_u32 s3, s3, s44")
        l(f"v_lshl_add_u32 v{vFl}, v2, 16, s3")
        l(f"v_lshlrev_b32 v5, {FS}, v3")
        l(f"s_lshr_b32 s3, s{sH}, 2"); l(f"s_lshl_b32 s3, s3, {WS}")
        l(f"v_add_u32 v{vFp}, s3, v5")
        if OPT["t2"]:
            l(f"v_cmp_eq_u32 vcc, s{sH}, v3"); l("s_nop 0"); l(f"v_cndmask_b32 v{vDV}, 0, 7, vcc")
        if OPT["fpat"]:
            l(f"v_lshl_add_u32 v{vFp}, v4, 16, v{vFp}")
            l("v_cmp_lt_u32 vcc, 0, v4"); l("s_nop 0"); l(f"v_cndmask_b32 v{vDV}, v{vDV}, 7, vcc")
        l(f"v_lshl_add_u32 v5, v4, {WS}, v5")
        l([f"s_or_b32 s3, s{sH}, s{sW}", "s_cmp_eq_u32 s3, 0", "s_cselect_b32 s45, 0, 0x10000"])
        l("v_add_u32 v5, s45, v5")
        l(f"v_mov_b32 v{vL}, 0"); l(f"v_mov_b32 v{vL+1}, 0")
        l((f"buffer_store_dword v{vL}, v5, s[{sFl}:{sFl+3}], 0 offen {OPT['clr_pol']}", "clr"))
    l(f"s_lshl_b32 s44, s46, {4 if OPT['near'] else 2}"); l("s_add_u32 s45, s45, s44")
    if OPT["near"]:
        assert not OPT["pace"]
        l("s_getreg_b32 s100, hwreg(HW_REG_XCC_ID, 0, 4)")
        l("s_mul_i32 s101, s100, s100"); l("s_lshl_b32 s101, s101, 8"); l("s_add_u32 s101, s101, s100")
        l("s_lshl_b32 s101, s101, 8"); l("s_add_u32 s101, s101, 1")
        l("v_mov_b32 v5, s101"); l("v_lshl_add_u32 v8, v0, 12, s44")
        l((f"buffer_atomic_add v5, v8, s[{sDb}:{sDb+3}], 0 offen offset:4 sc1", "pf"))
        l("s_lshl_b32 s101, s101, 4")
    l(f"v_lshl_add_u32 v{vDbA}, v2, 12, s45")
    l(f"v_mov_b32 v{vDbV}, s44")
    l(f"v_mov_b32 v{vFv}, 1")
    l("v_lshrrev_b32 v5, 1, v4"); l("v_and_b32 v8, 1, v4"); l("v_lshl_add_u32 v5, v8, 1, v5")
    l("v_xor_b32 v5, v5, v3"); l("v_lshlrev_b32 v5, 4, v5")
    l("v_lshl_add_u32 v8, v6, 3, v7")
    l(f"v_lshl_add_u32 v{vKr}, v8, 9, v5")
    for s in range(1, 4): l(f"v_xor_b32 v{vKr+s}, {s<<6}, v{vKr}")
    l("v_lshrrev_b32 v5, 2, v2"); l("v_lshlrev_b32 v5, 7, v5")
    l("v_bfe_u32 v8, v2, 3, 2"); l("v_lshl_add_u32 v5, v8, 5, v5")
    l("v_lshl_add_u32 v5, v7, 3, v5")
    l(f"v_add_u32 v{vWor}, 0x20000, v5")
    for n in range(1, 4): l(f"v_xor_b32 v{vWor+n}, {n<<5}, v{vWor}")
    l("v_and_b32 v8, 7, v2"); l("v_lshlrev_b32 v9, 1, v4"); l("v_xor_b32 v8, v8, v9")
    l(f"v_lshl_add_u32 v{vWod}, v8, 4, v{vWod}")
    for jj in range(1, 4): l(f"v_add_u32 v{vWod+jj}, {jj*(7168-1024)}, v{vWod}")
    for r in range(8): l(f"v_mov_b32 v{vNM+r}, 0")
    if NP:
        l(f"v_lshl_add_u32 v{vUp}, v2, 4, s{sWoff}"); l(f"v_add_u32 v{vUp+1}, 0x10000, v{vUp}")
    l(f"s_lshr_b32 s44, s{sH}, 2"); l(f"s_mul_i32 s3, s44, {(1 << 20) if IOD else 28672}")
    l(f"s_and_b32 s45, s{sH}, 3"); l("s_lshl_b32 s45, s45, 10"); l("s_add_u32 s3, s3, s45")
    l(f"s_lshl_b32 s45, s{sW}, 8"); l("s_add_u32 s3, s3, s45")
    l(f"v_mul_u32_u24 v5, {65536 if IOD else 114688}, v4"); l("v_lshl_add_u32 v5, v3, 4, v5")
    l(f"v_add_u32 v{vRd}, s3, v5")
    l("s_lshl_b32 s3, s44, 5"); l(f"s_and_b32 s45, s{sH}, 1"); l("s_lshl_b32 s45, s45, 4"); l("s_add_u32 s3, s3, s45")
    l(f"s_lshl_b32 s45, s{sW}, 2"); l("s_add_u32 s3, s3, s45"); l("s_mul_i32 s3, s3, 1792")
    l(f"s_mul_i32 s45, s{sBLK}, 896"); l("s_add_u32 s3, s3, s45")
    l(f"s_and_b32 s45, s{sH}, 2"); l("s_lshl_b32 s45, s45, 5"); l("s_add_u32 s3, s3, s45")
    l("v_mul_u32_u24 v5, 1792, v6"); l("v_lshl_add_u32 v5, v7, 3, v5")
    l("v_and_b32 v8, 1, v4"); l("v_lshl_add_u32 v5, v8, 5, v5")
    l("v_lshrrev_b32 v8, 1, v4"); l("v_lshl_add_u32 v5, v8, 24, v5")
    l(f"v_add_u32 v{vRo}, s3, v5")
    l("v_and_b32 v5, 1, v2"); l("v_lshlrev_b32 v5, 4, v5"); l("v_mov_b32 v8, 0x3f80"); l("v_lshlrev_b32 v5, v5, v8")
    l("v_bfe_u32 v8, v2, 1, 2")
    for r in range(4):
        l(f"v_cmp_eq_u32 vcc, {r}, v8"); l("s_nop 0"); l(f"v_cndmask_b32 v{vSel+r}, 0, v5, vcc")

    if OPT["ad"]:
        assert not OPT["late"]
        l("s_lshr_b32 s3, s2, 3"); l(f"s_and_b32 s3, s3, {OPT['adM']}"); l("s_lshl_b32 s3, s3, 16")
        l("s_and_b32 s44, s2, 7"); l("s_lshl_b32 s44, s44, 2"); l("s_add_u32 s3, s3, s44")
        l("v_lshl_add_u32 v1, v0, 7, s3")
        l(f"v_cmp_le_u32 vcc, {OPT['adW']}, v0"); l("v_mov_b32 v3, 0x10000"); l("v_cndmask_b32 v3, 0, v3, vcc")
        l("v_add_u32 v1, v1, v3")
        l("s_lshl_b32 s3, s2, 16"); l("v_lshl_add_u32 v3, v0, 4, s3")
        l("s_mov_b32 s99, s100")
        for r in range(4): l(f"v_mov_b32 v{4+r}, 0")
        for r in range(8): l(f"s_mov_b32 s{64+r}, 0")
        assert not OPT["trace"]
    if PACE2: l(f"s_lshr_b32 s79, s{sB}, {OPT['clsh']}"); l(f"s_and_b32 s79, s79, {OPT['clm']}")
    if IOD:
        NPR = OPT["npr"]
        if OPT["iodf"] >= 0:
            l(f"s_lshr_b32 s3, s{sW}, 1"); l(f"s_xor_b32 s3, s3, s{sBLK}"); l(f"s_xor_b32 s3, s3, {OPT['iodf']}"); l(f"s_lshl_b32 s{sSel}, s3, 13")
        elif OPT["prn"]:
            assert not PACE2 and OPT["prNW"] <= 4 and not OPT["prw"]
            l("v_and_b32 v5, 1, v2"); l("v_bfe_u32 v8, v2, 1, 2"); l("v_lshrrev_b32 v9, 3, v2")
            l("v_lshlrev_b32 v5, 13, v5"); l("v_lshl_add_u32 v5, v8, 9, v5"); l("v_lshl_add_u32 v5, v9, 22, v5")
            l(f"s_add_u32 s3, s47, {HOLE + 2048}"); l("v_add_u32 v5, s3, v5")
            l((f"buffer_store_dword v{vL}, v5, s[{sG}:{sG+3}], 0 offen sc1", "pf"))
            l("s_mov_b32 s66, 0"); l("s_mov_b32 s67, 0"); l("s_mov_b32 s79, 0")
        elif OPT["prH"]:
            l("s_mov_b32 s78, 0x9e3779b9"); l("s_mov_b32 s79, 0")
            assert not OPT["trace"] and not PACE2
        else:
            pr = ["s_mov_b32 s47, 0x9e3779b9"] + [f"s_mov_b32 s{66+k}, s47" for k in range(2*NPR)]
            if OPT["prw"]: pr.append("s_waitcnt lgkmcnt(0)")
            for k in range(NPR):
                ab = [f"s_load_dword s{66+2*k+x}, s[64:65], {HOLE + 2048 + (2*k+x)*256 + x*8192}" for x in range(2)]
                pr += ab if k % 2 == 0 else ab[::-1]
            k0 = len(late) - OPT["prp"]
            assert k0 > [i for i, x in enumerate(late) if "s47" in str(x)][-1]
            late[k0:k0] = pr
            l("s_mov_b32 s3, 0")
            l(f"s_waitcnt lgkmcnt({NPR})")
            for k in range(NPR):
                l(f"s_cmp_eq_u32 s{66+2*k}, s47"); l("s_addc_u32 s3, s3, 0")
                l(f"s_cmp_eq_u32 s{67+2*k}, s47"); l("s_subb_u32 s3, s3, 0")
            l("s_cmp_gt_i32 s3, 0")
            l(f"s_cselect_b32 s{sSel}, 0x2000, 0")
            if IOD == 2: l(f"s_mov_b32 s{sStamp+3}, s3")
    defer = []
    if OPT["eop"] >= 0:
        import re as _re
        fr = list(range(104, 112)) + list(range(120, 128))
        for i, x in enumerate(late):
            y = x[-1] if isinstance(x, list) else x
            if isinstance(y, tuple) and ("buffer_store" in y[0] or "buffer_atomic" in y[0]):
                t = y[0]; mv = []
                for r in ("v5", "v8"):
                    if _re.search(rf"\b{r},", t):
                        n = fr.pop(0); mv.append(f"v_mov_b32 v{n}, {r}"); t = _re.sub(rf"\b{r},", f"v{n},", t)
                defer.append((x[:-1] if isinstance(x, list) else []) + [(t, y[1])])
                late[i] = mv
    items = []
    fill = defaultdict(list)
    def add(p, ins):
        fill[p].extend(ins if isinstance(ins, list) else [ins])
    load = defaultdict(float, BASE or {})
    def spread(p0, p1, ins):
        n = p1 - p0 + 1
        if not OPT["wf"]:
            for k, s in enumerate(ins): add(p0 + (k*n)//len(ins), [s])
            return
        if BASE is None: return
        tot = cost(ins)
        lo, hi = 0.0, 100.0
        for _ in range(40):
            L = (lo + hi)/2
            if sum(max(0.0, L - load[p]) for p in range(p0, p1 + 1)) >= tot: hi = L
            else: lo = L
        k, bud = 0, 1e-6
        for p in range(p0, p1 + 1):
            bud += max(0.0, hi - load[p])
            while k < len(ins) and (bud >= cost(ins[k])/2 or p == p1):
                add(p, [ins[k]]); load[p] += cost(ins[k]); bud -= cost(ins[k]); k += 1
    if OPT["late"]: spread(0, 16*6, late)
    else:
        for s in late:
            for x in (s if isinstance(s, list) else [s]): e(x)
    if OPT["pfp"] == 2: touch0()
    while iss[ip[0]][0] < 0:
        m = iss[ip[0]][1]; ip[0] += 1
        assert alloc(m, 0)
        for g in dma(m):
            for s in g: e(s)
    if OPT["pfp"] == 3: touch0()
    def visit(k0, n):
        def f(a):
            a.e("s_mov_b64 exec, 0")
            for w in range(1, n):
                a.e(f"s_cmp_eq_u32 s{sW}, {w}"); a.e(f"s_cbranch_scc1 L_pg{k0+w}")
            a.e(f"s_branch L_pg{k0}")
            a.lab(f"L_pgr{k0}")
            a.e("s_mov_b64 exec, -1")
            a.e("s_nop 3")
        f.cost = 8
        return f
    for i, x in enumerate(defer): add(int(16*OPT["eop"]) + 2*i, [x])
    assert not defer or (OPT["eop"] + 1 < OPT["prH0"] + OPT["pro"]/16 and OPT["eop"] + 2 < OPT["SIG"] and OPT["eop"] < 12)
    for x in PG:
        if x[0] < 0: visit(x[1], x[2])(a)
        else: add(int(16*x[0]), [visit(x[1], x[2])])
    if IOD:
        PRH = [int(x) for x in OPT["prH"].split(",")] if OPT["prH"] else []
        psel = 16*max(PRH) if PRH else 20
        if OPT["prn"]:
            for k in range(OPT["prNW"]):
                p0 = 16*(OPT["prH0"] + OPT["prLW"]*k) + OPT["pro"]
                for w in range(4):
                    def race(a, k=k, w=w):
                        a.e(f"s_cmp_lg_u32 s{sW}, {w}"); a.e(f"s_cbranch_scc1 L_npr{k}_{w}")
                        a.e("s_mov_b64 s[66:67], -1")
                        for x in range(2): a.e(f"s_load_dword s{66+x}, s[64:65], {HOLE + 2048 + k*512 + (x ^ (k & 1))*8192}")
                        a.lab(f"L_npr{k}_{w}")
                    race.cost = 3
                    add(p0 + w*OPT["prstg"], [race])
                for p in range(p0 + 4, p0 + 16*OPT["prLW"], OPT["prsm"]):
                    add(p, [["s_cmp_lg_u32 s66, s67", f"s_{'addc' if k & 1 else 'subb'}_u32 s79, s79, 0"]])
            psel = p0 + 16*OPT["prLW"] + 1
            if VT(): add(psel, [[f"v_mov_b32 v{vDV}, s79", (f"buffer_store_byte v{vDV}, v63, s[{sFl}:{sFl+3}], 0 offen sc1", "pf")]])
            else: add(psel - 1, [["s_cmp_gt_i32 s79, 0", f"s_cselect_b32 s{sSel}, 0x2000, 0"] + ([f"s_mov_b32 s{sStamp+3}, s79"] if IOD == 2 else [])])
        if not VT(): add(psel, [[f"v_add_u32 v{vSt}, s{sSel}, v{vSt}"]])
        if OPT["LM"] or OPT["LQ"]: add(psel + 2, [[f"v_add_u32 v1, s{sSel}, v1"]])
        if OPT["t4"] and not VT(): add(psel + 1, [[f"s_lshr_b32 s44, s{sSel}, 6", f"v_mov_b32 v{vDV}, s44"]])
        if OPT["fl2"]: add(psel + 1, [[f"s_lshr_b32 s44, s{sH}, 2", f"s_xor_b32 s44, s44, s{sW}", "s_lshl_b32 s44, s44, 12", f"s_xor_b32 s44, s44, s{sSel}", "s_and_b32 s44, s44, 0x2000", f"v_add_u32 v{vFp}, s44, v{vFp}"]])
    def p1item(H, i, T, kap):
        half, c = i // 7, i % 7
        n = uidx[("W", i)]
        mf = []
        for u in range(2):
            acc = acc_of(vO, 8*half + T, u)
            cin = "0" if (c == 0 and kap == 0) else q4(acc)
            mf.append(f"{MF} {q4(acc)}, a[{{b}}:{{b3}}], {q4(aX + 16*c + 8*kap + 4*u, 'a')}, {cin}")
        rd = tr_reads("W", T, n, kap*8192, kap*8192 + 1024)
        if i < 7 and T == 0:
            rd = [("ds_read_b128", q4(aX + 16*c + 8*kap + 4*u, "a"), "X", kap, uidx[("X", c)], u*2048) for u in range(2)] + rd
        items.append(Item(H, mf, rd))
    done_at = {}
    for H in range(14):
        if OPT["j2"] and H >= 12:
            for T in range(4*(H-12), 4*(H-12)+4):
                for i in (12, 13):
                    for kap in range(2): p1item(H, i, T, kap)
                done_at[4 + T//2] = len(items) - 1
        else:
            for T in range(8):
                for kap in range(2): p1item(H, H, T, kap)
                if H % 7 == 6: done_at[4*(H//7) + T//2] = len(items) - 1
    def qconv(s):
        t = []
        R = [vO + 16*s, vO + 16*s + 8]
        for r in R:
            for j in range(0 if OPT["sms"] else 8): t.append(f"v_mul_f32 v{r+j}, s{sC}, v{r+j}")
        for r in R:
            for j in range(4): t.append(f"v_cvt_pk_bf16_f32 v{r+j}, v{r+2*j}, v{r+2*j+1}")
        for r in R:
            t += [f"v_permlane16_swap_b32 v{r}, v{r+2}", f"v_permlane16_swap_b32 v{r+1}, v{r+3}"]
        for u, r in enumerate(R):
            for j in range(4): t.append(f"v_accvgpr_write_b32 a{aQ+8*s+4*u+j}, v{r+j}")
        return t
    t = []
    for s in range(4): t += qconv(s)
    spread(7*16 + 2, 12*16 + 6, t)
    if OPT["j2"]:
        lim = [(done_at[4]+2, done_at[4]+12), (done_at[4]+13, done_at[6]+1), (done_at[6]+2, done_at[6]+11), (done_at[6]+12, 14*16+12)]
    else:
        lim = [(13*16+5+6*k, 13*16+10+6*k) for k in range(4)]
    for k, (p0, p1) in enumerate(lim):
        assert p0 >= done_at[4+k] + 2 and p1 < 14*16 + 2*(4+k) - 1, (k, p0, p1)
        spread(p0, p1, qconv(4 + k))

    def qk(H, n, S):
        for f in range(16):
            s, ee = f >> 1, f & 1
            mf = []
            for u in range(2):
                acc = S + 8*u + 4*ee
                cin = q4(vNM + 4*u) if s == 0 else q4(acc)
                mf.append(f"{MF} {q4(acc)}, a[{{b}}:{{b3}}], {q4(aQ + 8*s + 4*u, 'a')}, {cin}")
            items.append(Item(H, mf, [("ds_read_b128", "a[{b}:{b3}]", "K", s & 3, n, (s >> 2)*256 + ee*2048)]))
    def pv(H, n, P, first):
        for T in range(16):
            mf = []
            for u in range(2):
                acc = acc_of(vO, T, u)
                mf.append(f"{MF} {q4(acc)}, a[{{b}}:{{b3}}], {q4(P + 4*u)}, {'0' if first else q4(acc)}")
            o = (T >> 3)*256
            items.append(Item(H, mf, tr_reads("V", T & 7, n, o, o + 2048)))
    EORD = [0, 1, 2, 3, 8, 9, 10, 11, 4, 5, 6, 7, 12, 13, 14, 15]
    Pb = (vP, vE + 8)
    def softmax(S, par):
        Lo, Ln, P = vL + 2*par, vL + 2*(par ^ 1), Pb[par]
        L = []
        seen = set()
        def addk(i):
            u = EORD[i] >> 3
            src = Ln + u if u in seen else Lo + u
            seen.add(u)
            return f"v_add_f32 v{Ln+u}, v{src}, v{vE+(i&7)}"
        cv = lambda i: f"v_cvt_pk_bf16_f32 v{P+EORD[i]//2}, v{vE+(i&7)}, v{vE+((i+1)&7)}"
        if OPT["sms"]: L.append(f"v_mul_f32 v{vE}, s{sC}, v{S+EORD[0]}")
        for i, k in enumerate(EORD):
            if OPT["sms"]:
                if i < 15: L.append(f"v_mul_f32 v{vE+((i+1)&7)}, s{sC}, v{S+EORD[i+1]}")
                L.append(f"v_exp_f32 v{vE+(i&7)}, v{vE+(i&7)}")
            else: L.append(f"v_exp_f32 v{vE+(i&7)}, v{S+k}")
            if i >= 1: L.append(addk(i-1))
            if i >= 2 and i % 2 == 0: L.append(cv(i-2))
        L += [addk(15), cv(14)]
        return L
    lblc = [0]
    def check(t):
        lblc[0] += 1
        k = lblc[0]
        Ln = vL + 2*((t & 1) ^ 1)
        nm = "L_fix0" if t == 0 else f"L_fixp{t & 1}"
        def f(a):
            a.e(f"v_max_f32 v{vT0}, v{Ln}, v{Ln+1}")
            if t == 0:
                a.e(f"v_min_f32 v{vT0+1}, v{Ln}, v{Ln+1}")
                a.e(f"v_cmp_lt_f32 vcc, s{sThr}, v{vT0}")
                a.e(f"v_cmp_gt_f32 s[44:45], s{sTlo}, v{vT0+1}")
                a.e("s_or_b64 s[44:45], s[44:45], vcc")
                a.e(f"s_cbranch_scc0 L_nm{k}")
            else:
                a.e(f"v_cmp_lt_f32 vcc, s{sThr}, v{vT0}")
                a.e(f"s_cbranch_vccz L_nm{k}")
            a.e(f"s_call_b64 s[{sRet}:{sRet+1}], {nm}")
            a.lab(f"L_nm{k}")
        f.after2 = (t == 15)
        f.cost = 3
        return f
    H = 14
    qk(H, 21, vSb[0]); H += 1
    qk(H, 22, vSb[1])
    add(16*H + 15, [check(0)])
    spread(16*H + 1, 16*H + 14, softmax(vSb[0], 0))
    H += 1
    for t in range(1, 16):
        n = uidx[("V", t-1)]
        assert consumed[n] == H
        pv(H, n, Pb[(t-1) & 1], t == 1)
        p0 = 16*H
        H += 1
        if t <= 14:
            n = uidx[("K", t+1)]
            assert consumed[n] == H
            qk(H, n, vSb[(t+1) & 1])
            H += 1
        add(16*H - 1, [check(t)])
        spread(p0 + 1, 16*H - 2, softmax(vSb[t & 1], t & 1))
    n = uidx[("V", 15)]
    assert consumed[n] == H and H == 45
    pv(H, n, Pb[1], False)
    L0, L1 = vL, vL + 1
    fin = [f"v_permlane32_swap_b32 v{L0}, v{L1}", f"v_add_f32 v{L0}, v{L0}, v{L1}", f"v_mov_b32 v{L1}, v{L0}",
           f"v_permlane16_swap_b32 v{L0}, v{L1}", f"v_add_f32 v{L0}, v{L0}, v{L1}", f"v_rcp_f32 v{vAl}, v{L0}",
           f"v_mov_b32 v{vAl+1}, v{vAl}", f"v_permlane32_swap_b32 v{vAl}, v{vAl+1}"]
    ON = OPT["onorm"]
    for k, s in enumerate(fin): add((45*16 + k//2) if ON else (47*16 - 12 + k), s)
    p = 16*H + (4 if ON else 3)
    for s in range(8):
        t = []
        R = [vO + 16*s, vO + 16*s + 8]
        if ON:
            for u, r in enumerate(R): t += [f"v_mul_f32 v{r+j}, v{r+j}, v{vAl+u}" for j in range(8)]
        for r in R: t += [f"v_cvt_pk_bf16_f32 v{r+j}, v{r+2*j}, v{r+2*j+1}" for j in range(4)]
        w = 5 if ON else 3
        assert p >= 16*H + 2*s + 3 and p + w - 1 <= 16*H + 16 + 4*s - 1
        spread(p, p + w - 1, t)
        p += w
    H += 1
    def epilogue(acc, so, q, j):
        u = q & 1
        g = [] if ON else [f"v_mul_f32 v{acc+r}, v{acc+r}, v{vAl+u}" for r in range(8)]
        dst = vO + 8*(4*j + q) + 4 if j < OPT["hold"] else acc
        g += [f"v_cvt_pk_bf16_f32 v{dst+jj}, v{acc+2*jj}, v{acc+2*jj+1}" for jj in range(4)]
        offs = f" offset:{q*1024}" if q else ""
        near = 4*j + q >= 28 - 4*OPT["LM"] - OPT["LQ"]
        st = (f"buffer_store_dwordx4 {q4(dst)}, v{vSt}, s[{sG}:{sG+3}], s{so} offen{offs} {OPT['lm_pol'] if near else OPT['st_pol']}", f"st{j}")
        if near and OPT["near"]:
            def st(a, x=st):
                k = len(far)
                far.append(x[0].replace(" " + OPT["lm_pol"], " ") + " sc1")
                a.e("s_cmp_lg_u32 s100, s101")
                a.e(f"s_cbranch_scc1 L_far{k}")
                a.e(*x)
                a.lab(f"L_bk{k}")
            st.cost = 3
        if OPT["noval"]: g = []
        if j < OPT["hold"]: held.append(st)
        elif not OPT["nost"]: g.append(st)
        return g
    held = []
    NS = OPT["NS"]
    SN = OPT["SN"]
    pubs = [int(x) for x in OPT["pub"].split(",")]
    assert pubs[-1] == 7 - NS
    far = []
    def flagst(a, tag):
        st = f"buffer_store_{'byte' if OPT['t4'] else 'dword'} v{vFv}, v{vFl}, s[{sFl}:{sFl+3}], 0 offen "
        if not OPT["near"]: return a.e(st + OPT["fl_pol"], tag)
        k = len(far)
        far.append(st + "sc1")
        a.e("s_cmp_lg_u32 s100, s101")
        a.e(f"s_cbranch_scc1 L_far{k}")
        a.e(st, tag)
        a.lab(f"L_bk{k}")
    def publish(cnt):
        def f(a):
            a.wait_vm({f"st{j}" for j in range(min(cnt, 7 - SN))} | {"sen"})
            if VT(): a.e(f"v_mov_b32 v{vFv}, {(1 << cnt) - 1}")
            elif OPT["t4"]: a.e(f"v_or_b32 v{vFv}, {(1 << cnt) - 1}, v{vDV}")
            elif IOD:
                a.e(f"s_or_b32 s44, s{sSel}, {(cnt << FSH) | (63 if OPT['fc'] else 0)}")
                a.e(f"v_mov_b32 v{vFv}, s44")
            else: a.e(f"v_mov_b32 v{vFv}, {cnt}")
            flagst(a, "pub")
        return f
    late_pubs = []
    hpos = lambda k: OPT["HP"] + (OPT["HE"] - OPT["HP"])*k/(4*OPT["hold"] - 1)
    for j in range(7):
        so = 8 + j if j else sNP0
        so2 = 9 + j
        A = vAcc + 32*(j & 1)
        for hf in range(2):
            n = uidx[("O", 2*j+hf)]
            assert consumed[n] == H
            order = [(nn, s4) for nn in range(4) for s4 in range(4)]
            if j == 0: order = [(nn, s4) for s4 in range(4) for nn in range(4)]
            for (nn, s4) in order:
                s = 4*hf + s4
                mf = []
                for u in range(2):
                    acc = acc_of(A, nn, u)
                    mf.append(f"{MF} {q4(acc)}, a[{{b}}:{{b3}}], {q4(vO + 16*s + 8*u)}, {'0' if s == 0 else q4(acc)}")
                items.append(Item(H, mf, tr_reads("O", nn, n, s4*4096, s4*4096 + 2048)))
            H += 1
        pend = 16*H
        g0 = epilogue(A, so, 0, j) + epilogue(A + 8, so, 1, j)
        g1 = epilogue(A + 16, so, 2, j) + epilogue(A + 24, so, 3, j)
        if j < 6:
            spread(pend - 7 if j else pend + 1, pend + 8, g0)
            spread(pend + 9, pend + 23, g1)
            if IOD:
                pq = 46*16 + 4*j if OPT["LM"] or OPT["LQ"] else pend - 10
                add(pq, [[f"s_add_u32 s{so2}, s{so}, 4096", f"s_and_b32 s3, s{so2}, 8192", f"s_add_u32 s{so2}, s{so2}, s3"]])
                add(pq + 2, [[f"s_cmp_eq_u32 s{so2}, {HOLE}", f"s_cselect_b32 s{so2}, 0, s{so2}"]])
            else: add(43*16 + 8 + 2*j if OPT["LM"] or OPT["LQ"] else pend - 8, [[f"s_add_u32 s{so2}, s{so}, 4096", f"s_cmp_eq_u32 s{so2}, 28672", f"s_cselect_b32 s{so2}, 0, s{so2}"]])
        else:
            spread(pend - 7, pend - 1, g0)
            tail_epi = g1
        if 4*j + 3 >= 28 - 4*OPT["LM"] - OPT["LQ"]:
            add(max((48 if IOD else 44)*16 + 8 + j, int(pend - 8 - 16*OPT["PT"])), [(f"buffer_load_dword a{153 + j}, v1, s[{sG}:{sG+3}], s{so} offen {OPT['pt_pol']}", "pf")])
        if j + 1 in pubs:
            pp = pend + 25 + 16*OPT["PUBD"]
            if OPT["hold"]: pp = max(pp, int(16*(hpos(4*min(j + 1, OPT["hold"]) - 1) + OPT["PUBD"])) + 1)
            if j == 6 and OPT["HNT"]: pp = OPT["HNT"]
            if pp < 960 - 2: add(pp, [publish(j + 1)])
            else: late_pubs.append(j + 1)
    for k, st in enumerate(held):
        assert 16*hpos(k) > 16*(48 + 2*(k//4)) + (9 if k % 4 < 2 else 24)
        add(int(16*hpos(k)), [st])
    N = len(items)
    assert N == 960
    for p in range(N):
        if p % 16 == 0: items[p].first = True
    p = int(16*OPT["CLR"])
    for j in range(7 - NS, 7):
        add(p, [[f"s_add_u32 s44, s{sNP0}, {j*4096}", "s_cmp_ge_u32 s44, 28672", "s_cselect_b32 s45, 28672, 0", "s_sub_u32 s44, s44, s45"]])
        for q in range(4):
            offs = f" offset:{q*1024}" if q else ""
            add(p + 1 + q*OPT["CLS"], [(f"buffer_store_dwordx4 {q4(vE + 8) if OPT['CLR'] < 14 else q4(aSen, 'a')}, v{vSt}, s[{sG}:{sG+3}], s44 offen{offs} {OPT['st_pol']}", "sen")])
        p += 4*OPT["CLS"]
    assert p < 53*16
    if SN:
        assert IOD and not NP and p > psel + 1 and p > 15*16
        spread(p - 6, p - 1, [f"v_accvgpr_write_b32 a{aSen+r}, -1" for r in range(4)])
        for j in range(7 - SN, 7):
            add(p - 1, [[f"s_add_u32 s{sStB}, s{sStA}, {j*4096}", f"s_cmp_ge_u32 s{sStB}, 28672", "s_cselect_b32 s45, 28672, 0"]])
            add(p, [[f"s_sub_u32 s{sStB}, s{sStB}, s45", f"s_and_b32 s45, s{sStB}, 0x6000", f"s_add_u32 s{sStB}, s{sStB}, s45"]])
            for q in range(4):
                offs = f" offset:{q*1024}" if q else ""
                add(p + 1 + q*OPT["CLS"], [(f"buffer_store_dwordx4 {q4(aSen, 'a')}, v{vSt}, s[{sG}:{sG+3}], s{sStB} offen{offs} {OPT['st_pol']}", "sen")])
            p += 4*OPT["CLS"]
        assert OPT["CLS"] >= 3 and p <= 16*(60 - 2*SN)
    if NS == 0: pass
    elif OPT["CLR"] >= 14: spread(int(16*OPT["CLR"]) - 5, int(16*OPT["CLR"]) - 1, [f"v_accvgpr_write_b32 a{aSen+r}, -1" for r in range(4)])
    else: assert p < 15*16 and not OPT["late"]
    if OPT["wow"] >= 0:
        add(int(16*OPT["wow"]), [(f"buffer_load_dword a145, v63, s[{sWo}:{sWo+3}], 0 offen", "pf")])
    if OPT["wt"]:
        h0, h1, j0, j1 = [float(x) for x in OPT["wt"].split(":")]
        for j in range(int(j1)):
            nx = ["s_add_u32 s78, s78, 128", "s_cmp_eq_u32 s78, 896", "s_cselect_b32 s78, 0, s78"]
            if j < j0: add(int(16*h0) - 8 + j, [nx])
            else: add(int(16*(h0 + (h1 - h0)*(j - j0)/max(1, j1 - j0 - 1))), [[(f"buffer_load_dword a145, v63, s[{sWo}:{sWo+3}], s78 offen {OPT['wt_pol']}", "pf")] + nx])
    if OPT["TA"] >= 0:
        nt = OPT["TN"] or 17 - OPT["T0"]
        for k in range(nt):
            pos = int(round(16*(OPT["TA"] + (OPT["TB"] - OPT["TA"])*k/(nt - 1))))
            add(pos, [[f"s_max_i32 s{sTmp2}, s{sPfo}, 0", f"s_min_i32 s{sTmp2}, s{sTmp2}, {15*16384}",
                       (f"buffer_load_dword a144, v{vPf}, s[{sPf}:{sPf+3}], s{sTmp2} offen {OPT['t_pol']}", "pf")] +
                       ([(f"buffer_load_dword a145, v{vPf}, s[{sPf}:{sPf+3}], s{sTmp2} offen offset:64 {OPT['t_pol']}", "pf")] if OPT["TH"] else []) + [
                       f"s_add_u32 s{sPfo}, s{sPfo}, 16384"]])
    if VT():
        assert psel + 32 < 16*OPT["VL"] < 16*OPT["SIG"] - 32
        add(int(16*OPT["VL"]), [[f"s_mov_b32 s44, {HOLE + 3840}", (f"buffer_load_sbyte v{vDV}, v2, s[{sFl}:{sFl+3}], s44 offen sc1", "vote")]])
    def lead(a):
        a.wait_vm({"clr", "vote"})
        if VT():
            a.e(f"s_or_b32 s3, s{sH}, s{sW}")
            a.e("s_cbranch_scc1 L_nolead")
            a.e(f"v_cmp_lt_i32 s[44:45], 0, v{vDV}")
            a.e(f"v_cmp_gt_i32 vcc, 0, v{vDV}")
            a.e("s_bcnt1_i32_b32 s44, s44"); a.e("s_bcnt1_i32_b32 s45, s45")
            a.e("s_bcnt1_i32_b32 s3, vcc_lo"); a.e("s_cmp_gt_u32 s44, s3"); a.e("s_cselect_b32 s44, 0x2001, 1")
            a.e("s_bcnt1_i32_b32 s3, vcc_hi"); a.e("s_cmp_gt_u32 s45, s3"); a.e("s_cselect_b32 s45, 0x4000, 0")
            a.e("s_or_b32 s44, s44, s45")
            if OPT["iodf"] >= 0:
                a.e(f"s_cmp_eq_u32 s{sBLK}, {OPT['iodf']}"); a.e("s_cselect_b32 s44, 0x4001, 0x2001")
            a.e(f"v_mov_b32 v{vFv}, s44")
            a.lab("L_nolead")
        a.e(f"buffer_store_dword v{vFv}, v{vDbA}, s[{sDb}:{sDb+3}], 0 offen sc1", "sig")
    add(int(16*OPT["SIG"] + 0.5), [lead])
    if OPT["near"]: add(int(16*OPT["CHKL"] + 0.5), [(f"buffer_load_dwordx4 a[148:151], v{vDbV}, s[{sDb}:{sDb+3}], 0 offen sc1", "chk")])
    else: add(int(16*OPT["CHKL"] + 0.5), [(f"buffer_load_dword v{vF}, v{vDbV}, s[{sDb}:{sDb+3}], 0 offen sc1", "chk")])
    def chk(a):
        a.wait_vm({"chk"})
        if OPT["near"]:
            a.e(f"v_accvgpr_read_b32 v{vT0}, a149")
            a.e(f"v_accvgpr_read_b32 v{vF}, a148")
            a.e(f"v_readfirstlane_b32 s100, v{vT0}")
            if OPT["tst"] == 1 and OPT["thr2"].count(",") < 2:
                a.e(f"s_lshl_b32 s{sStamp+6}, s{sSel}, 18"); a.e(f"s_or_b32 s{sStamp+6}, s{sStamp+6}, s100")
        a.e(f"v_cmp_eq_u32 vcc, 0, v{vF}")
        a.e("s_cbranch_vccz L_chk_ok")
        a.e(f"s_call_b64 s[{sRet}:{sRet+1}], L_chk_wait")
        a.lab("L_chk_ok")
        if VT():
            a.e(f"v_readfirstlane_b32 s44, v{vF}")
            a.e(f"s_lshr_b32 s3, s{sW}, 1"); a.e("s_lshr_b32 s3, s44, s3"); a.e(f"s_and_b32 s{sSel}, s3, 0x2000")
            a.e(f"v_add_u32 v{vSt}, s{sSel}, v{vSt}")
            a.e(f"s_lshr_b32 s3, s{sH}, 3"); a.e("s_lshr_b32 s3, s44, s3"); a.e("s_and_b32 s3, s3, 0x2000")
            a.e(f"v_add_u32 v{vRd}, s3, v{vRd}")
        if OPT["t4"]:
            a.e("s_cmp_eq_u32 s100, s101"); a.e("s_cselect_b32 s78, s78, 0x7ff00000")
            if OPT["t5"]: a.e("v_lshl_add_u32 v62, v62, 16, s78")
            if OPT["tst"] == 1 and OPT["thr2"].count(",") < 2:
                a.e(f"s_lshl_b32 s{sStamp+6}, s{sSel}, 18"); a.e(f"s_or_b32 s{sStamp+6}, s{sStamp+6}, s100")
    chk.cost = 12 if VT() else 5 if OPT["t4"] else 2
    add(int(16*OPT["CHKH"]), [chk])
    if OPT["FT"] >= 0:
        assert OPT["FT"] > OPT["CHKH"]
        add(int(16*OPT["FT"]), [(f"buffer_load_dword a152, v{62 if OPT['t5'] else vFp}, s[{sFl}:{sFl+3}], 0 offen {OPT['ft_pol']}", "pf")])
        assert OPT["t5"] or OPT["ft_pol"] == "sc1"
        if OPT["eA"]: add(int(16*OPT["FT"]) + 1, [(f"buffer_load_dword a153, v{vFp}, s[{sFl}:{sFl+3}], 0 offen offset:1024 sc1", "pf")])
    selst = [0]
    FCH = [int(x) for x in OPT["fcH"].split(",")] if OPT["fc"] else []
    if IOD:
        def selpub(a, v=0):
            if v:
                a.e(f"s_or_b32 s44, s{sSel}, {v}")
                a.e(f"v_mov_b32 v{vFv}, s44")
            else: a.e(f"v_mov_b32 v{vFv}, s{sSel}")
            flagst(a, "sel")
            selst[0] = 1
        if OPT["fc"]:
            for Hh in range(OPT["fc0"], OPT["fc1"] + 1, OPT["fcP"]):
                pp = 16*Hh - OPT["D"] + 1
                assert pp > int(16*OPT["CHKH"]) and pp > psel + 1
                f = lambda a, Hh=Hh: selpub(a, Hh)
                f.cost = 3
                add(pp, [f])
            for k, Hh in enumerate(FCH):
                add(int(16*(Hh - OPT["fcL"])) - OPT["D"], [(f"buffer_load_dword v{62 + (k & 1)}, v{vFp}, s[{sFl}:{sFl+3}], 0 offen {OPT['fp_pol']}", f"fc{k}")])
                assert (Hh - OPT["fcL"])*16 - OPT["D"] > int(16*OPT["CHKH"])
                assert k < 2 or Hh - OPT["fcL"] > FCH[k-2]
        elif not OPT["t3"] and not OPT["t4"]: add(int(16*OPT["CHKH"]) + 1, [selpub])
        for x in pubs:
            for y in pubs: assert x | y == max(x, y) or OPT["t3"] or OPT["t4"]
    vD = 192
    def dreg(j, k):
        return q4(16*j + 4*k, "a") if j < 7 - NS - SN else q4(vO + 16*(j - (7 - NS - SN)) + 4*k)
    tsetup = [f"s_mov_b32 s8, s{sNP0}"]
    tsetup_b = [f"s_lshr_b32 s{16+j}, s{8+j}, 5" for j in range(7)]
    if IOD: tsetup_b = [x for j in range(7) for x in (f"s_lshr_b32 s{16+j}, s{8+j}, 6", f"s_and_b32 s3, s{16+j}, 0x40", f"s_add_u32 s{16+j}, s{16+j}, s3")]
    tsetup += [f"v_add_u32 v{vKr+k}, {k*4*(65536 if IOD else 114688)}, v{vRd}" for k in range(1, 4)]
    NV = OPT["t5"] and not OPT["vt"]
    if NV: tsetup += [f"v_lshl_add_u32 v{vVr+4}, v4, 3, 7"]
    adrs = [x for k in range(4) for x in (f"v_bfe_u32 v{vVr+k}, s{64+k}, v{vVr+4}, 1", f"v_lshl_add_u32 v{vVr+k}, v{vVr+k}, 13, v{vKr+k if k else vRd}")] if NV else []
    def ld1(j, k):
        return (f"buffer_load_dwordx4 {dreg(j, k)}, v{vVr+k if NV else vKr+k if k else vRd}, s[{sG}:{sG+3}], s{8+j} offen {OPT['lml_pol'] if j >= 7 - OPT['LM'] else OPT['ld_pol']}", f"r{j}")
    vFA, vFB, vNx = 62, 63, 59
    def poll(r, tag):
        if OPT["fpat"]:
            def f(a):
                a.e(f"v_mov_b32 v{r}, 0")
                a.e(f"buffer_atomic_or v{r}, v{vFp}, s[{sFl}:{sFl+3}], 0 offen sc0", tag)
            f.cost = 2
            return f
        return (f"buffer_load_dword v{r}, v{vFp}, s[{sFl}:{sFl+3}], 0 offen {OPT['fp_pol']}", tag)
    if OPT["t2"]:
        assert NS == 0
        spread(OPT["TS0"], OPT["TS1"], tsetup)
        nA, nB = OPT["nA"], OPT["nB"]
        if nA:
            add(OPT["spA"], [poll(vFA, "pA")])
            wa = lambda a: a.wait_vm({"pA"})
            wa.cost = 1
            add(OPT["spL"] - 1, [wa])
            L = [ld1(j, k) for j in range(nA) for k in range(4)]
            for i, x in enumerate(L): add(OPT["spL"] + (i*(OPT["spE"] - OPT["spL"]))//len(L), [x])
        if nB > nA: add(OPT["spB"], [poll(vFB, "pB")])
        def pc(a):
            assert not IOD or selst[0] == 2 or OPT["nodma"] or OPT["t3"]
            a.e(poll(vNx, "pC"))
        pc.cost = 1
        spoll = f"s_buffer_load_dwordx4 s[64:67], s[{sFl}:{sFl+3}], s78"
        sred = ["s_and_b64 s[64:65], s[64:65], s[66:67]", "s_and_b32 s64, s64, s65"]
        tmask = lambda c: 0x01010101 << (c - 1)
        if OPT["t5"]:
            ES = [tuple(int(y) for y in x.split(":")) for x in OPT["es"].split(",")] if OPT["es"] else []
            nxs = "s_add_u32 s78, s78, 0x10000"
            add(OPT["spC"], [[spoll, nxs]])
            add(OPT["TS0"], ["s_mov_b32 s79, 0"])
            lo = lend = 0
            for (hi, pp, l0, l1) in ES:
                assert hi in pubs and hi not in late_pubs and l0 > OPT["TS1"] + 3 and pp < l0 - 4 and l0 <= OPT["spC"] and not NP
                add(pp, [["s_mov_b64 s[64:65], 0", "s_mov_b64 s[66:67], 0", spoll, nxs]])
                add(l0 - 4, [["s_and_b64 s[76:77], s[64:65], s[66:67]", "s_and_b32 s76, s76, s77", f"s_and_b32 s76, s76, {tmask(hi)}"]])
                add(l0 - 3, [[f"s_cmp_eq_u32 s76, {tmask(hi)}", f"s_cselect_b32 s76, {lo}, 99", "s_cmp_eq_u32 s79, s76", f"s_cselect_b32 s79, {hi}, s79", "s_cselect_b32 s76, 0, 0x800000"]])
                for k in range(4):
                    if NV: add(l0 - 2 + k//2, adrs[2*k:2*k+2] + [f"v_or_b32 v{vVr+k}, s76, v{vVr+k}"])
                    else: add(l0 - 2 + k//2, [f"v_add_u32 v{vVr+k}, s76, v{vKr+k if k else vRd}"])
                L = [(ld1(j, k)[0].replace(f", v{vKr+k if k else vRd}, ", f", v{vVr+k}, "), f"r{j}") for j in range(lo, hi) for k in range(4)]
                for i, x in enumerate(L): add(l0 + (i*(l1 - l0))//len(L), [x])
                assert l0 - 2 > lend
                lend = l0 + ((len(L) - 1)*(l1 - l0))//len(L)
                lo = hi
        elif OPT["t4"]:
            add(OPT["spC"], [spoll])
            if OPT["eA"]:
                add(OPT["spA"], [["s_mov_b64 s[64:65], 0", "s_mov_b64 s[66:67], 0", "s_add_u32 s3, s78, 1024", spoll.replace("s78", "s3")]])
                add(OPT["spL"] - 1, [["s_and_b64 s[76:77], s[64:65], s[66:67]", "s_and_b32 s79, s76, s77"]])
                L = [ld1(j, k) for j in range(OPT["eA"]) for k in range(4)]
                for i, x in enumerate(L): add(OPT["spL"] + (i*(OPT["spE"] - OPT["spL"]))//len(L), [x])
                assert OPT["spL"] > 901 and not NP
        else: add(OPT["spC"], [pc])
        assert not IOD or nA == nB == 0
    elif OPT["early"]:
        add(960 - 40, [(f"buffer_load_dword v{vF}, v{vFp}, s[{sFl}:{sFl+3}], 0 offen {OPT['fp_pol']}", "poll")])
    if OPT["stamps"]:
        add(14*16 - 1, [lambda a: stamp(a, 3)])
        add(46*16 - 1, [lambda a: stamp(a, 4)])

    if OPT["org"]:
        add(int(16*OPT["orgH"]), [(f"buffer_load_dword v{vF}, off, s[{sDb}:{sDb+3}], 0 offset:64 sc1", "org")])
        def org(a):
            a.wait_vm({"org"})
            a.e(f"v_readfirstlane_b32 s74, v{vF}")
            a.e("s_not_b32 s74, s74")
            a.e("s_sub_u32 s75, s100, s74")
            a.e("s_cmp_lt_u32 s75, 300")
            a.e("s_cselect_b32 s100, s74, s100")
        org.cost = 5
        add(16*14 - OPT["D"] + 1, [org])
        assert min(PACE) >= 15
    if OPT["ad"]:
        h0 = min(PACE)
        assert max(pos for (pos, m) in iss if units[m][0] == "X") < 16*3
        add(16*4, [[f"s_add_u32 s{sX}, s{sWsP}, {FLAGS_OFF + (1 << 20)}", f"s_addc_u32 s{sX+1}, s{sWsP+1}, 0", f"s_mov_b32 s{sX+2}, 4096"]])
        add(16*4 + 1, [(f"buffer_store_dwordx4 v[4:7], v3, s[{sX}:{sX+3}], 0 offen sc1", "pf")])
        for k, Hh in enumerate(range(h0, max(PACE), OPT["adS"])):
            pe = 16*Hh - OPT["D"]
            assert (k + 1 + OPT["adW"])*128 <= 4096
            if Hh < OPT["adE"]:
                add(pe + 1, [[f"s_sub_u32 s77, s72, {PACE[Hh] + int(round(100*OPT['adm']))}", "v_mov_b32 v2, s77",
                              (f"buffer_store_dword v2, v1, s[{sX}:{sX+3}], 0 offen offset:{(k+1)*128} sc1", "pf")]])
            if k: add(pe + OPT["adR"], [f"s_load_dwordx8 s[64:71], s[{sX}:{sX+1}], {k*128}"])
        for Hh in range(h0 + OPT["adS"] + OPT["adD"], max(PACE) + 1, OPT["adD"]):
            for q in range(3):
                add(16*Hh - OPT["D"] - 6 + q, [[f"s_max_u32 s78, s{64+3*q}, s{78 if q else 65}", f"s_max_u32 s78, s78, s{66+2*q+(q>0)-(q>1)*0}"] if q == 0 else
                                                [f"s_max_u32 s78, s78, s{65+2*q}", f"s_max_u32 s78, s78, s{66+2*q}"]])
            add(16*Hh - OPT["D"] - 3, [["s_max_u32 s78, s78, s71", "s_sub_u32 s75, s78, s99", f"s_cmp_lt_u32 s75, {OPT['adL']}", "s_cselect_b32 s100, s78, s100"]])
    for Hh in PACE:
        add(16*Hh - OPT["D"] - OPT["pcs"], ["s_memrealtime s[72:73]"])
    D, WEV = OPT["D"], OPT["wev"]
    window = {"K": 0, "V": 1, "O": 2}
    uses = defaultdict(list)
    for i, it in enumerate(items):
        for r in it.reads: uses[r[2]].append((i, r[4]))
    soft_dma = []
    kvq = []
    soft_up = []
    soft_adr = []
    log = []
    cur = []
    def put(s): cur.append(s)
    def set_window(g, w):
        if window[g] == w: return
        base, cnt = GROUPS[g]
        d = (w - window[g]) * 65536
        window[g] = w
        soft_adr.extend((g, k, f"v_add_u32 v{base+k}, {d & 0xffffffff}, v{base+k}") for k in range(cnt))
    def flush_adr(g, k):
        rest = []
        for (gg, kk, s) in soft_adr:
            if gg == g and kk == k: put(s)
            else: rest.append((gg, kk, s))
        soft_adr[:] = rest
    upos = {g: 0 for g in GROUPS}
    rp = [0]
    hbar = [-1]
    issued = set(m for (pos, m) in iss[:ip[0]])
    pend = list(iss[ip[0]:])
    upq = []
    unparked = set()
    areas = []
    if NP:
        areas.append([144, 0, 10000])
        if OPT["pkq"]: areas += [[aQ + 32, 0, lim[0][0] - 2], [aQ + 48, 0, lim[2][0] - 2]]
        areas += [[aX + 16*c, 16*(min(7 + c, 13) + 1) + 1 if c < 5 else 14*16 + 1, 10000] for c in range(7)]
        if NS and 14 <= OPT["CLR"] < 44: areas = [x for x in areas if x[0] != aSen]
        areas = areas[:NP]
    area_of = {}
    cls = lambda m: "P" if units[m][0] in "XW" else units[m][0]
    def next_unit(p, force=None):
        seen = set()
        for k, (pos, m) in enumerate(pend):
            c = cls(m)
            if c in seen: continue
            seen.add(c)
            if force is not None:
                if c != cls(force): continue
            elif pos > p: break
            elif (kvq if isfine(m) else soft_dma): continue
            ok = alloc(m, hbar[0], p)
            if not ok and c in "KV":
                fr = [x for x in areas if x[1] <= p and x[2] > p + 64 and (x[2] == 10000 or units[m][1] < 4)]
                if fr:
                    x = min(fr, key=lambda x: x[2])
                    parked[m] = x[0]; area_of[m] = x; x[1] = 10000; upq.append(m); ok = True
            assert ok or force is None, ("no slot", m, p)
            if not ok: continue
            pend.pop(k)
            issued.add(m)
            log.append((p, "iss", units[m], slot_of.get(m, f"a{parked.get(m)}")))
            if isfine(m): kvq.extend((p + jj*kvstep[m], g) for jj, g in enumerate(dma(m)))
            else: soft_dma.extend(dma(m))
            return True
        return False
    def next_unpark(p, force=None):
        for m in upq:
            if force is not None and m != force: continue
            due = min(16*(needed[m] - OPT["UPD"]) - D, area_of[m][2] - 10)
            if force is None and (p < due or soft_dma_has(m)): continue
            if not alloc(m, hbar[0], p):
                assert force is None and p < area_of[m][2] - 5, ("no slot (unpark)", m, p)
                continue
            upq.remove(m)
            s = slot_of[m]
            log.append((p, "unp", units[m], s))
            for jj in range(4):
                pk = parked[m] + 4*jj
                ins = []
                if jj == 0: ins.append(lambda a, m=m: a.wait_vm({f"u{m}"}))
                ins.append((f"ds_write_b128 v{vUp + s//4}, a[{pk}:{pk+3}] offset:{(s%4)*16384 + jj*1024}", None, f"w{m}"))
                soft_up.append(ins)
            area_of[m][1] = p + 24
            unparked.add(m)
            return True
        return False
    def soft_dma_has(m):
        return any(isinstance(s, tuple) and s[1] == f"u{m}" for g in soft_dma + [x[1] for x in kvq] for s in g)
    def issue(i, p):
        it = items[i]
        if it.first:
            Hh = it.H
            for n in HS[Hh]:
                while n not in issued: next_unit(p, n)
                if soft_dma_has(n):
                    for g in soft_dma: put(g)
                    soft_dma.clear()
                    for x in kvq: put(x[1])
                    kvq.clear()
                if n in parked:
                    if n not in unparked: next_unpark(p, n)
                    for g in soft_up: put(g)
                    soft_up.clear()
            def ev(a, Hh=Hh):
                a.c(f"event H={Hh} needs {[units[n] for n in HS[Hh]]}")
                if OPT["trace"]:
                    if Hh > 0:
                        if OPT["trace"] < 3: a.e(f"v_writelane_b32 v{vTr}, s{sTr+4*((Hh-1)&1)}, {Hh-1}")
                        a.e(f"v_writelane_b32 v{vTr+1}, s{sTr+2+4*((Hh-1)&1)}, {Hh-1}")
                    if OPT["trace"] < 3: a.e(f"{'s_memtime' if OPT['trace'] == 2 else 's_memrealtime'} s[{sTr+4*(Hh&1)}:{sTr+1+4*(Hh&1)}]")
                if Hh in PACE:
                    a.e("s_sub_u32 s74, s72, s100")
                    if PACE2:
                        a.e(f"s_mul_i32 s75, s79, {(PACE2[Hh] - PACE[Hh])//OPT['clm']}")
                        a.e(f"s_add_u32 s75, s75, {PACE[Hh]}")
                        a.e("s_cmp_ge_u32 s74, s75")
                        a.e(f"s_cbranch_scc1 L_pc{Hh}")
                    else:
                        a.e(f"s_cmp_ge_u32 s74, {PACE[Hh]}")
                        a.e(f"s_cbranch_scc1 L_pc{Hh}")
                        a.e(f"s_mov_b32 s75, {PACE[Hh]}")
                    a.e(f"s_call_b64 s[{sRet}:{sRet+1}], L_pace")
                    a.lab(f"L_pc{Hh}")
                if IOD and Hh in PRH:
                    ri = PRH.index(Hh)
                    if OPT["prst"]:
                        a.e(f"s_cmp_lg_u32 s{sW}, {ri & 3}"); a.e(f"s_cbranch_scc1 L_npr{Hh}")
                        ri >>= 2
                        a.e("s_waitcnt lgkmcnt(0)")
                    else:
                        a.e("s_waitcnt lgkmcnt(0)"); a.ldsq = []
                    for k in range(2*NPR): a.e(f"s_mov_b32 s{66+k}, s78")
                    for k in range(NPR):
                        q = ri*NPR + k
                        o = q*OPT["prs"]
                        o = HOLE + 4096 - OPT["prs"] - (o % 8192) - (o // 8192)*16384
                        assert o >= 0 and not HOLE - 256 < o < HOLE + 1280
                        ab = [f"s_load_dword s{66+2*k+x}, s[64:65], {o + x*8192}" for x in range(2)]
                        for x in (ab if q % 2 == 0 else ab[::-1]): a.e(x)
                    a.e(f"s_waitcnt lgkmcnt({NPR if OPT['prk'] < 0 else OPT['prk']})")
                    for k in range(NPR):
                        a.e(f"s_cmp_eq_u32 s{66+2*k}, s78"); a.e("s_addc_u32 s79, s79, 0")
                        a.e(f"s_cmp_eq_u32 s{67+2*k}, s78"); a.e("s_subb_u32 s79, s79, 0")
                    if OPT["prst"]: a.lab(f"L_npr{Hh}")
                    if Hh == max(PRH):
                        a.e("s_cmp_gt_i32 s79, 0")
                        a.e(f"s_cselect_b32 s{sSel}, 0x2000, 0")
                        if IOD == 2: a.e(f"s_mov_b32 s{sStamp+3}, s79")
                if Hh in FCH:
                    k = FCH.index(Hh)
                    a.wait_vm({f"fc{k}"})
                    a.e(f"v_and_or_b32 v{vF}, v{62 + (k & 1)}, 63, v{vDV}")
                    a.e(f"v_cmp_gt_u32 vcc, {max(0, int(Hh - OPT['fcL'] - OPT['fcA']))}, v{vF}")
                    a.e(f"s_cbranch_vccz L_fc{Hh}")
                    a.e(f"s_mov_b32 s45, {Hh - OPT['fcB']}")
                    a.e(f"s_call_b64 s[{sRet}:{sRet+1}], L_prog")
                    a.lab(f"L_fc{Hh}")
                if LK.get(Hh, 0) > 0:
                    n0 = max(HS[Hh])
                    idx = [i for i, t in enumerate(a.vmq) if t[0] == "u" and int(t[1:]) <= n0 + (LK[Hh] + 3)//4 and units[int(t[1:])][0] in "KV"]
                    cut = (-LK[Hh]) % 4
                    last = [i for i in idx if int(a.vmq[i][1:]) == n0 + (LK[Hh] + 3)//4]
                    tot = lkq.get(n0 + (LK[Hh] + 3)//4, 0)
                    keep = max(0, 4 - cut - tot)
                    idx = [i for i in idx if i not in last[keep:]]
                    if idx:
                        m = min(max(idx), len(a.vmq) - 1 - OPT["lkm"])
                        if m >= 0:
                            for t in a.vmq[:m + 1]:
                                if t[0] == "u": lkq[int(t[1:])] = lkq.get(int(t[1:]), 0) + 1
                            a.e(f"s_waitcnt vmcnt({len(a.vmq) - 1 - m})")
                            lklog.append((Hh, len(a.vmq) - 1 - m))
                            a.vmq = a.vmq[m + 1:]
                a.wait_vm({f"u{n}" for n in HS[Hh] if n not in parked})
                a.wait_lds({f"w{n}" for n in HS[Hh]})
                if selst[0] == 1 and "sel" not in a.vmq: selst[0] = 2
                if not OPT["nobar"]: a.e("s_barrier")
                if OPT["trace"]:
                    a.e(f"s_memrealtime s[{sTr+2+4*(Hh&1)}:{sTr+3+4*(Hh&1)}]")
                if Hh == 0: stamp(a, 2)
            ev.cost = 2 + (3 if Hh in FCH else 0) + (2 if OPT["trace"] == 3 else 4 if OPT["trace"] else 0) + ((5 if PACE2 else 3) if Hh in PACE else 0)
            put(ev)
            hbar[0] = Hh
        b = aFr(i)
        for (op, dst, g, ridx, n, inoff) in it.reads:
            slot = slot_of[n]
            if g in "WX":
                put((f"{op} {dst.format(b=b, b1=b+1, b2=b+2, b3=b+3)}, v{GROUPS[g][0]+GROUPS[g][1]*(slot//4)+ridx} offset:{(slot % 4)*16384 + inoff}", None, i))
                continue
            set_window(g, slot // 4)
            flush_adr(g, ridx)
            imm = (slot % 4)*16384 + inoff
            put((f"{op} {dst.format(b=b, b1=b+1, b2=b+2, b3=b+3)}, v{GROUPS[g][0]+ridx} offset:{imm}", None, i))
            upos[g] += 1
            if upos[g] < len(uses[g]):
                ni, nn = uses[g][upos[g]]
                if nn != n and nn in slot_of and ni > i + 2:
                    set_window(g, slot_of[nn]//4)
    def adv(limit, p):
        while rp[0] < N and rp[0] <= limit:
            issue(rp[0], p); rp[0] += 1
    def emit(s):
        if isinstance(s, list):
            for x in s: e(x)
        else: e(s)
    loads_out = {}
    lkq = {}
    lklog = []
    est = [0]
    adv(D - 1, -1)
    for s in cur: emit(s)
    for p in range(N):
        cur.clear()
        if p % WEV == 0: a.wait_lds(set(range(p, p + WEV)))
        b = aFr(p)
        adv(p + D, p)
        SR = list(cur); cur.clear()
        SF = list(fill.get(p, []))
        if not soft_up: next_unpark(p)
        while next_unit(p): pass
        sp = OPT["dsp1"] if p < OPT["dspH"]*16 else OPT["dsp"]
        if kvq and kvq[0][0] <= p and len(soft_dma) % 4 == 0: put(kvq.pop(0)[1])
        elif soft_dma and (p - OPT["dph"]) % sp == 0: put(soft_dma.pop(0))
        if soft_up and (p % OPT["usp"] == 0 or p < 15*16): put(soft_up.pop(0))
        SM = list(cur)
        if soft_adr: SR.append(soft_adr.pop(0)[2])
        wt = 1 if (p + 1) % WEV == 0 else 0
        tot = cost(SR) + cost(SF) + cost(SM) + wt
        loads_out[p] = tot
        evi = [k for k, x in enumerate(SR) if callable(x)]
        a2 = [k for k, x in enumerate(SF) if getattr(x, "after2", False)]
        best = None
        for kr in range(len(SR) + 1):
            for kf in range((a2[0] if a2 else len(SF)) + 1):
                for km in range(len(SM) + 1):
                    if km and evi and kr <= evi[-1]: continue
                    c1 = cost(SR[:kr]) + cost(SF[:kf]) + cost(SM[:km])
                    key = (max(2, c1) + max(2, tot - c1), abs(2*c1 - tot), -kr)
                    if best is None or key < best[0]: best = (key, kr, kf, km)
        _, kr, kf, km = best
        est[0] += best[0][0]*4 + 16
        if p % 16 == 15: est.append(est[0]); est[0] = 0
        e(items[p].mf[0].format(b=b, b3=b+3))
        for s in SR[:kr] + SF[:kf] + SM[:km]: emit(s)
        e(items[p].mf[1].format(b=b, b3=b+3))
        for s in SR[kr:] + SF[kf:] + SM[km:]: emit(s)
    assert not soft_dma and not soft_up and not pend and not upq and not kvq
    if BASE is None: return loads_out
    sys.stderr.write(f"est cycles: {' '.join(map(str, est[1:]))} total {sum(est)}\n")
    if lklog: sys.stderr.write(f"lk waits: {lklog}\n")
    for s in tail_epi: e(s)
    if OPT["verbose"]:
        for (p, w, u, s) in log:
            sys.stderr.write(f"  {p/16:6.2f} {w} {u} slot {s} (need {needed[uidx[u]]})\n")
    stamp(a, 5)
    if OPT["tst"] == 2: e("s_memtime s[72:73]")
    def loads(j):
        for k in range(4): e(ld1(j, k))
    def red(j):
        d = vD + 4*j
        for k in range(4):
            e(f"{MF} {q4(d)}, {q4(vSel)}, {dreg(j, k)}, {'0' if k == 0 else q4(d)}")
    def fin(j):
        d = vD + 4*j
        e(f"v_cvt_pk_bf16_f32 v{d}, v{d}, v{d+1}")
        e(f"v_cvt_pk_bf16_f32 v{d+1}, v{d+2}, v{d+3}")
        e(f"buffer_store_dwordx2 v[{d}:{d+1}], v{vRo}, s[{sOut}:{sOut+3}], s{16+j} offen {OPT['out_pol']}")
    sfold = ["s_lshr_b32 s3, s64, 16", "s_and_b32 s64, s64, s3", "s_lshr_b32 s3, s64, 8", "s_and_b32 s64, s64, s3"]
    if OPT["t5"]:
        E = ES[-1][0] if ES else 0
        J1 = min(max(x for x in pubs if x not in late_pubs), OPT["c1"])
        for x in tsetup_b: e(x)
        e("s_waitcnt lgkmcnt(0)")
        for x in adrs + sred + sfold: e(x)
        q0 = list(a.vmq)
        def pubcode(last):
            for c in late_pubs: publish(c)(a)
            if last: stamp(a, 6)
            elif OPT["stamps"]: stamp(a, 6)
        if E:
            e(f"s_cmp_lg_u32 s79, {E}")
            e("s_cbranch_scc1 L_p0x")
        snap = {}
        for j in range(E, max(E, J1)):
            snap[j] = list(a.vmq)
            e(f"s_bitcmp1_b32 s64, {j}")
            e(f"s_cbranch_scc0 L_pub{j}")
            loads(j)
        pubcode(True)
        e(f"s_branch L_c{max(E, J1)}")
        for j, q in snap.items():
            a.lab(f"L_pub{j}")
            a.vmq = list(q)
            pubcode(False)
            e(f"s_branch L_w{j}")
        if E:
            a.lab("L_p0x")
            a.vmq = list(q0)
            pubcode(False)
            for (hi, _, _, _) in ES[:-1]:
                e(f"s_cmp_eq_u32 s79, {hi}")
                e(f"s_cbranch_scc1 L_c{hi}")
            e("s_branch L_c0")
        a.vmq = []
        for j in range(7):
            a.lab(f"L_w{j}")
            e(f"s_call_b64 s[{sRet}:{sRet+1}], L_sp")
            a.lab(f"L_c{j}")
            e(f"s_bitcmp1_b32 s64, {j}")
            e(f"s_cbranch_scc0 L_w{j}")
            if j in (4, 6): stamp(a, 1 + (j == 6), True)
            loads(j)
            if j < 6: e(f"s_branch L_c{j+1}")
        if OPT["tst"] == 1: e(f"s_lshl_b32 s{sStamp+6}, s79, 24"); e(f"s_or_b32 s{sStamp+6}, s{sStamp+6}, s78")
        for j in range(7):
            a.wait_vm({f"r{j}"})
            if j == 6: stamp(a, 4, True)
            red(j)
            if j: fin(j - 1); a.vmq.append("fin")
        fin(6)
    elif OPT["t4"]:
        ths = [int(x) for x in OPT["thr2"].split(",")]
        assert ths[0] in pubs and ths[0] not in late_pubs and all(x in pubs for x in ths) and OPT["eA"] <= ths[0]
        eA = OPT["eA"]
        assert eA == 0 or eA in pubs
        prev, done = eA, 0
        lp = list(late_pubs)
        for hi in ths:
            if hi == ths[0]:
                e("s_waitcnt lgkmcnt(0)")
                for x in sred: e(x)
            e(f"s_mov_b32 s45, {tmask(hi)}")
            e("s_and_b32 s3, s64, s45"); e("s_cmp_eq_u32 s3, s45")
            e(f"s_cbranch_scc1 L_go{hi}")
            e(f"s_call_b64 s[{sRet}:{sRet+1}], L_poll")
            a.lab(f"L_go{hi}")
            if hi in ths[-3:]: stamp(a, 1 + ths[-3:].index(hi), True)
            if hi == ths[0] and eA:
                e(f"s_and_b32 s3, s79, {tmask(eA)}"); e(f"s_cmp_eq_u32 s3, {tmask(eA)}")
                e("s_cbranch_scc1 L_eok")
                q = list(a.vmq)
                for j in range(eA): loads(j)
                a.vmq = q
                a.lab("L_eok")
                assert hi > eA
            nxt = ths[ths.index(hi) + 1] if hi < 7 else 0
            n = 0
            for j in range(prev, hi):
                for k in range(4):
                    if n == OPT["t3m"] and len(lp) > 1: publish(lp.pop(0))(a)
                    e(ld1(j, k)); n += 1
            if hi == ths[0]:
                for x in tsetup_b: e(x)
            while lp and lp[0] <= nxt:
                publish(lp.pop(0))(a)
                if not lp: stamp(a, 6)
            if prev > done and hi != ths[0] and (hi == 7 or OPT["prog"] > 1):
                a.wait_vm({f"r{j}" for j in range(done, prev)})
                for j in range(done, prev): red(j)
                for j in range(done, prev): fin(j); a.vmq.append("fin")
                done = prev
            prev = hi
        assert not lp
        for j in range(done, 7):
            a.wait_vm({f"r{j}"} if OPT["t4p"] else {f"r{x}" for x in range(7)})
            if j == 6: stamp(a, 4, True)
            red(j)
            if j > done: fin(j - 1); a.vmq.append("fin")
        fin(6)
    elif OPT["t3"]:
        assert IOD and not SN and not OPT["PP"]
        ths = [int(x) for x in OPT["thr2"].split(",")]
        assert ths[0] in pubs and ths[0] not in late_pubs and all(x in pubs for x in ths)
        for x in tsetup_b: e(x)
        a.wait_vm({"pC"})
        e(f"v_mov_b32 v{vF}, v{vNx}")
        prev, done, cur, pend_poll = 0, 0, vNx - 1, False
        lp = list(late_pubs)
        for hi in ths:
            e(f"v_cmp_gt_u32 vcc, {hi << FSH}, v{vF}")
            e(f"s_cbranch_vccz L_go{hi}")
            if pend_poll:
                q = list(a.vmq)
                a.wait_vm({"pn"})
                a.vmq = q
                e(f"v_cmp_gt_u32 vcc, {hi << FSH}, v{cur}")
                e(f"v_mov_b32 v{vF}, v{cur}")
                e(f"s_cbranch_vccz L_go{hi}")
            e(f"s_mov_b32 s45, {hi << FSH}")
            e(f"s_call_b64 s[{sRet}:{sRet+1}], L_poll")
            a.lab(f"L_go{hi}")
            if hi == ths[0]:
                e(f"v_and_b32 v{vT0}, 0x2000, v{vF}")
                e("s_nop 1")
                for k in range(4):
                    r = vKr + k if k else vRd
                    e(f"v_add_u32_dpp v{r}, v{vT0}, v{r} quad_perm:[{k},{k},{k},{k}] row_mask:0xf bank_mask:0xf")
            if hi in ths[-3:]: stamp(a, 1 + ths[-3:].index(hi), True)
            a.vmq = [("old" if t == "pn" else t) for t in a.vmq]
            nxt = ths[ths.index(hi) + 1] if hi < 7 else 0
            n = 0
            for j in range(prev, hi):
                for k in range(4):
                    if n == OPT["t3m"] and len(lp) > 1: publish(lp.pop(0))(a)
                    e(ld1(j, k)); n += 1
            while lp and lp[0] <= nxt:
                publish(lp.pop(0))(a)
                if not lp: stamp(a, 6)
            if hi < 7:
                cur ^= 1
                e(poll(cur, "pn")); pend_poll = True
            if prev > done and (hi == 7 or OPT["prog"] > 1):
                a.wait_vm({f"r{j}" for j in range(done, prev)})
                for j in range(done, prev): red(j)
                for j in range(done, prev): fin(j); a.vmq.append("fin")
                done = prev
            prev = hi
        assert not lp
        a.wait_vm({f"r{j}" for j in range(done, 7)})
        stamp(a, 4, True)
        for j in range(done, 7): red(j)
        for j in range(done, 7): fin(j)
    elif OPT["t2"]:
        if nB > nA:
            a.wait_vm({"pB"})
            for j in range(nA, nB): loads(j)
        nb = None
        for c in late_pubs:
            publish(c)(a)
            if nb is not None: nb += 1
            if c == OPT["pD"]: e(poll(vNx - 1, "pD")); nb = 0
        if OPT["HNT"] and nb is None: e(poll(vNx - 1, "pD")); nb = 0
        for x in tsetup_b: e(x)
        a.wait_vm({"pC"})
        e("s_barrier")
        stamp(a, 6)
        e(f"v_{'or_b32' if IOD else 'max_u32'} v{vF}, v{vNx}, v{vDV}")
        for (r, lo, hi) in ((vFA, 0, nA), (vFB, nA, nB)):
            if hi == lo: continue
            e(f"v_cmp_gt_u32 vcc, {hi}, v{r}")
            e(f"s_cbranch_vccz L_sv{hi}")
            e(f"v_cmp_gt_u32 vcc, {hi}, v{vF}")
            e(f"s_cbranch_vccz L_sr{hi}")
            e(f"s_mov_b32 s45, {hi}")
            e(f"s_call_b64 s[{sRet}:{sRet+1}], L_poll")
            a.lab(f"L_sr{hi}")
            for j in range(lo, hi): loads(j)
            a.lab(f"L_sv{hi}")
        ths = [int(x) for x in OPT["thr2"].split(",")]
        prev, done, cur = nB, 0, vNx - 1
        for hi in ths:
            e(f"v_cmp_gt_u32 vcc, {hi << FSH}, v{vF}")
            e(f"s_cbranch_vccz L_go{hi}")
            if nb is not None:
                e(f"s_waitcnt vmcnt({nb})")
                e(f"v_{'or3_b32' if IOD else 'max3_u32'} v{vF}, v{cur}, v{vDV}, v{vF}")
                e(f"v_cmp_gt_u32 vcc, {hi << FSH}, v{vF}")
                e(f"s_cbranch_vccz L_go{hi}")
            e(f"s_mov_b32 s45, {hi << FSH}")
            e(f"s_call_b64 s[{sRet}:{sRet+1}], L_poll")
            a.lab(f"L_go{hi}")
            if IOD and hi == ths[0]:
                e(f"v_and_b32 v{vT0}, 0x2000, v{vF}")
                e("s_nop 1")
                for k in range(4):
                    r = vKr + k if k else vRd
                    e(f"v_add_u32_dpp v{r}, v{vT0}, v{r} quad_perm:[{k},{k},{k},{k}] row_mask:0xf bank_mask:0xf")
            if hi in ths[-3:]: stamp(a, 1 + ths[-3:].index(hi), True)
            cur ^= 1
            if hi < 7: e(poll(cur, "pn"))
            for j in range(prev, hi): loads(j)
            nb = 4*(hi - prev)
            if OPT["prog"] and (hi == 7 or OPT["prog"] > 1) and prev > done:
                e(f"s_waitcnt vmcnt({nb + (1 if hi < 7 else 0)})")
                for j in range(done, prev): red(j)
                for j in range(done, prev): fin(j)
                nb += prev - done
                last_fin = prev - done
                done = prev
            else: last_fin = 0
            prev = hi
        if SN:
            assert done <= 7 - SN
            if OPT["stamps"]: e(f"s_mov_b32 s{sStamp+3}, 0")
            e(f"s_waitcnt vmcnt({last_fin + 4*SN})")
            for j in range(done, 7 - SN): red(j)
            e(f"s_waitcnt vmcnt({last_fin})")
            stamp(a, 4, True)
            a.lab("L_sen")
            R = list(range(vO, vO + 16*SN))
            T = [vT0, vT0 + 1, vT0 + 2]
            for k in range(3): e(f"v_max3_u32 v{T[k]}, v{R[3*k]}, v{R[3*k+1]}, v{R[3*k+2]}")
            R = R[9:]
            k = 0
            while len(R) >= 2:
                e(f"v_max3_u32 v{T[k]}, v{T[k]}, v{R[0]}, v{R[1]}"); R = R[2:]; k = (k + 1) % 3
            if R: e(f"v_max_u32 v{T[k]}, v{T[k]}, v{R[0]}")
            e(f"v_max3_u32 v{vT0}, v{T[0]}, v{T[1]}, v{T[2]}")
            e(f"v_cmp_eq_u32 vcc, -1, v{vT0}")
            e("s_cbranch_vccz L_sok")
            e(f"s_sub_u32 s{sSpin}, s{sSpin}, 1")
            e("s_cbranch_scc1 L_sok")
            if OPT["stamps"]: e(f"s_add_u32 s{sStamp+3}, s{sStamp+3}, 1")
            for j in range(7 - SN, 7): loads(j)
            e("s_waitcnt vmcnt(0)")
            e("s_branch L_sen")
            a.lab("L_sok")
            for j in range(7 - SN, 7): red(j)
            for j in range(done, 7): fin(j)
        else:
            e(f"s_waitcnt vmcnt({last_fin})")
            stamp(a, 4, True)
            for j in range(done, 7): red(j)
            for j in range(done, 7): fin(j)
    else:
      for x in tsetup + tsetup_b: emit(x)
      if OPT["early"]: a.wait_vm({"poll"})
      else: e(f"v_mov_b32 v{vF}, 0")
      for c in late_pubs: publish(c)(a)
      stamp(a, 6)
      prev = 0
      for hi in pubs:
          e(f"v_cmp_gt_u32 vcc, {hi}, v{vF}")
          e(f"s_cbranch_vccz L_go{hi}")
          e(f"s_mov_b32 s45, {hi}")
          e(f"s_call_b64 s[{sRet}:{sRet+1}], L_poll")
          a.lab(f"L_go{hi}")
          if hi in pubs[-3:]: stamp(a, 1 + pubs[-3:].index(hi), True)
          for j in range(prev, hi): loads(j)
          prev = hi
      for j in range(7 - NS, 7): loads(j)
      e(f"s_waitcnt vmcnt({4*NS})")
      stamp(a, 4, True)
      for j in range(7 - NS): red(j)
      for j in range(7 - NS): fin(j)
      e(f"s_waitcnt vmcnt({7 - NS})")
      for j in range(7 - NS, 7):
          a.lab(f"L_sen{j}")
          r = vO + 16*(j - (7 - NS))
          e(f"v_max3_u32 v{vT0}, v{r}, v{r+1}, v{r+2}")
          e(f"v_max3_u32 v{vT0+1}, v{r+3}, v{r+4}, v{r+5}")
          for k in range(6, 16, 4):
              e(f"v_max3_u32 v{vT0}, v{vT0}, v{r+k}, v{r+k+1}")
              if k + 2 < 16: e(f"v_max3_u32 v{vT0+1}, v{vT0+1}, v{r+k+2}, v{r+k+3}")
          e(f"v_max_u32 v{vT0}, v{vT0}, v{vT0+1}")
          e(f"v_cmp_eq_u32 vcc, -1, v{vT0}")
          e(f"s_cbranch_vccz L_sok{j}")
          e(f"s_sub_u32 s{sSpin}, s{sSpin}, 1")
          e(f"s_cbranch_scc1 L_sto{j}")
          for jj in range(j, 7): loads(jj)
          e("s_waitcnt vmcnt(0)")
          e(f"s_branch L_sen{j}")
          a.lab(f"L_sto{j}")
          e(f"s_mov_b32 s{sSpin}, 0")
          a.lab(f"L_sok{j}")
          red(j); fin(j)
    if OPT["diag"]:
        e("v_mov_b32 v8, 128")
        e(f"buffer_load_dword v5, v8, s[{sDb}:{sDb+3}], 0 offen sc1")
        e("s_waitcnt vmcnt(0)")
        e("v_readfirstlane_b32 s3, v5")
        e("s_bcnt1_i32_b32 s3, s3")
        e("s_cmp_le_u32 s3, 1")
        e("s_cbranch_scc1 L_diag_ok")
        e("s_mov_b32 s3, 30")
        a.lab("L_diag_l")
        e("s_sleep 64")
        e("s_sub_u32 s3, s3, 1")
        e("s_cmp_gt_u32 s3, 0")
        e("s_cbranch_scc1 L_diag_l")
        a.lab("L_diag_ok")
    if OPT["stamps"]:
        e("s_waitcnt vmcnt(0)")
        stamp(a, 7)
        if OPT["tst"] == 2: e("s_memtime s[74:75]")
        e("s_waitcnt lgkmcnt(0)")
        if OPT["tst"] == 2: e(f"s_sub_u32 s{sStamp+6}, s74, s72")
        if OPT["dly"] >= 0:
            if OPT["dwg"] >= 0:
                e(f"s_cmp_lg_u32 s2, {OPT['dwg']}"); e("s_cbranch_scc1 L_dly_done")
            e(f"s_sub_u32 s44, s{sStamp+2*OPT['dly']}, s{sStamp}")
            e(f"s_mul_i32 s44, s44, {OPT['dk']}")
            e("s_min_u32 s44, s44, 100000")
            e("s_mov_b32 s45, 200000")
            a.lab("L_dly")
            e("s_memrealtime s[46:47]")
            e("s_sub_u32 s45, s45, 1")
            e("s_cbranch_scc1 L_dly_done")
            e("s_waitcnt lgkmcnt(0)")
            e(f"s_sub_u32 s46, s46, s{sStamp+14}")
            e("s_cmp_lt_u32 s46, s44")
            e("s_cbranch_scc1 L_dly")
            a.lab("L_dly_done")
        e(f"s_add_u32 s32, s{sWsP}, 0x4000000"); e(f"s_addc_u32 s33, s{sWsP+1}, 0"); e("s_mov_b32 s34, 0x100000"); e("s_mov_b32 s35, 0x00020000")
        e("s_lshl_b32 s3, s2, 6")
        e("v_mov_b32 v1, s3")
        for k in range(8):
            e(f"v_mov_b32 v{2+k}, s{sStamp+2*k}")
        if OPT["trace"]:
            e(f"v_writelane_b32 v{vTr}, s{sTr+4}, 59")
            e(f"v_writelane_b32 v{vTr+1}, s{sTr+6}, 59")
            e("s_lshl_b32 s3, s2, 11")
            e("s_add_u32 s3, s3, 0x10000")
            e("v_lshlrev_b32 v10, 3, v0")
            e("v_add_u32 v10, s3, v10")
            e(f"buffer_store_dwordx2 v[{vTr}:{vTr+1}], v10, s[32:35], 0 offen")
        if IOD == 2 or SN:
            e("s_lshl_b32 s3, s2, 4"); e(f"s_lshl2_add_u32 s3, s{sW}, s3"); e("s_add_u32 s3, s3, 0xF0000")
            e("v_mov_b32 v10, s3"); e(f"v_mov_b32 v11, s{sStamp+3}")
            e("buffer_store_dword v11, v10, s[32:35], 0 offen")
        e("v_cmp_eq_u32 vcc, 0, v0")
        e("s_and_saveexec_b64 s[36:37], vcc")
        e("s_cbranch_execz L_k1_done")
        e("buffer_store_dwordx4 v[2:5], v1, s[32:35], 0 offen")
        e("buffer_store_dwordx4 v[6:9], v1, s[32:35], 0 offen offset:16")
        e("s_waitcnt vmcnt(0)")
    a.lab("L_k1_done")
    e("s_endpgm")
    for k, st in enumerate(far):
        a.lab(f"L_far{k}")
        e(st)
        e(f"s_branch L_bk{k}")
    if OPT["t5"]:
        a.lab("L_sp")
        e(f"s_cmp_lt_u32 s78, {OPT['t5'] << 16}")
        e("s_cbranch_scc0 L_sp_v")
        if OPT["psl"]: e(f"s_sleep {OPT['psl']}")
        e(spoll); e(nxs)
        e("s_waitcnt lgkmcnt(0)")
        for x in adrs + sred + sfold: e(x)
        e(f"s_setpc_b64 s[{sRet}:{sRet+1}]")
        a.lab("L_sp_v")
        e(f"buffer_load_dwordx4 {q4(vE)}, v{vFp}, s[{sFl}:{sFl+3}], 0 offen sc1")
        e("s_waitcnt vmcnt(0)")
        for k in range(4): e(f"v_readfirstlane_b32 s{64+k}, v{vE+k}")
        for x in adrs + sred + sfold: e(x)
        e(f"s_sub_u32 s{sSpin}, s{sSpin}, 1")
        e("s_cselect_b32 s64, -1, s64")
        e(f"s_cselect_b32 s{sSpin}, 0, s{sSpin}")
        e(f"s_setpc_b64 s[{sRet}:{sRet+1}]")
    a.lab("L_poll")
    if OPT["t4"]:
        e(f"buffer_load_dwordx4 {q4(vE)}, v{vFp}, s[{sFl}:{sFl+3}], 0 offen sc1")
        e(f"s_sub_u32 s{sSpin}, s{sSpin}, 1")
        e("s_cbranch_scc1 L_poll_to")
        e("s_waitcnt vmcnt(0)")
        e(f"v_and_b32 v{vE}, v{vE}, v{vE+1}"); e(f"v_and_b32 v{vE+2}, v{vE+2}, v{vE+3}")
        e(f"v_and_b32 v{vE}, v{vE}, v{vE+2}")
        e(f"v_readfirstlane_b32 s64, v{vE}")
        e("s_and_b32 s3, s64, s45"); e("s_cmp_eq_u32 s3, s45")
        e("s_cbranch_scc1 L_poll_ret")
        if OPT["sleep"]: e(f"s_sleep {OPT['sleep']}")
        e("s_branch L_poll")
    if OPT["PP"]:
        assert IOD
        PP = OPT["PP"]
        pl = lambda k: f"buffer_load_dword v{vE+k}, v{vFp}, s[{sFl}:{sFl+3}], 0 offen {OPT['fp_pol']}"
        for k in range(PP - 1):
            e(pl(k)); e(f"s_sleep {OPT['PPS']}")
        a.lab("L_pp")
        for k in range(PP):
            e(pl((k + PP - 1) % PP))
            e(f"s_waitcnt vmcnt({PP - 1})")
            e(f"v_or3_b32 v{vF}, v{vE+k}, v{vDV}, v{vF}")
            e(f"v_cmp_gt_u32 vcc, s45, v{vF}")
            e("s_cbranch_vccz L_poll_ret")
            e(f"s_sleep {OPT['PPS']}")
        e(f"s_sub_u32 s{sSpin}, s{sSpin}, 1")
        e("s_cbranch_scc0 L_pp")
        e("s_branch L_poll_to")
    e(poll(vF, None))
    e(f"s_sub_u32 s{sSpin}, s{sSpin}, 1")
    e("s_cbranch_scc1 L_poll_to")
    e("s_waitcnt vmcnt(0)")
    if OPT["t2"] and not OPT["t3"]: e(f"v_{'or_b32' if IOD else 'max_u32'} v{vF}, v{vF}, v{vDV}")
    e(f"v_cmp_gt_u32 vcc, s45, v{vF}")
    e("s_cbranch_vccz L_poll_ret")
    if OPT["sleep"]: e(f"s_sleep {OPT['sleep']}")
    e("s_branch L_poll")
    a.lab("L_poll_to")
    e(f"s_mov_b32 s{sSpin}, 0")
    e("s_waitcnt vmcnt(0)")
    a.lab("L_poll_ret")
    e(f"s_setpc_b64 s[{sRet}:{sRet+1}]")
    if OPT["fc"]:
        a.lab("L_prog")
        e(f"buffer_load_dword v{vF}, v{vFp}, s[{sFl}:{sFl+3}], 0 offen {OPT['fp_pol']}")
        e(f"s_sub_u32 s{sSpin}, s{sSpin}, 1")
        e("s_cbranch_scc1 L_poll_to")
        e("s_waitcnt vmcnt(0)")
        e(f"v_and_or_b32 v{vF}, v{vF}, 63, v{vDV}")
        e(f"v_cmp_gt_u32 vcc, s45, v{vF}")
        e("s_cbranch_vccz L_poll_ret")
        if OPT["fcs"]: e(f"s_sleep {OPT['fcs']}")
        e("s_branch L_prog")
    if PACE:
        a.lab("L_pace")
        e("s_mov_b32 s76, 400")
        a.lab("L_pace_l")
        e("s_memrealtime s[72:73]")
        e("s_sub_u32 s76, s76, 1")
        e("s_cbranch_scc1 L_pace_r")
        e("s_sleep 1" if OPT["ad"] else "s_waitcnt lgkmcnt(0)")
        e("s_sub_u32 s74, s72, s100")
        e("s_cmp_lt_u32 s74, s75")
        e("s_cbranch_scc1 L_pace_l")
        a.lab("L_pace_r")
        e(f"s_setpc_b64 s[{sRet}:{sRet+1}]")
    a.lab("L_chk_wait")
    e(f"buffer_load_dword v{vF}, v{vDbV}, s[{sDb}:{sDb+3}], 0 offen sc1")
    e(f"s_sub_u32 s{sSpin}, s{sSpin}, 1")
    e("s_cbranch_scc1 L_poll_to")
    e("s_waitcnt vmcnt(0)")
    e(f"v_cmp_eq_u32 vcc, 0, v{vF}")
    e("s_cbranch_vccz L_poll_ret")
    e("s_sleep 4")
    e("s_branch L_chk_wait")
    for (nm, par, first) in (("L_fix0", 0, True), ("L_fixp0", 0, False), ("L_fixp1", 1, False)):
        S, S2 = vSb[par], vSb[par ^ 1]
        Lo = vL + 2*par
        a.lab(nm)
        e("s_nop 7")
        for u in range(2):
            T, T2, r = vT0 + u, vT0 + 2, S + 8*u
            e(f"v_max3_f32 v{T}, v{r}, v{r+1}, v{r+2}")
            e(f"v_max3_f32 v{T}, v{T}, v{r+3}, v{r+4}")
            e(f"v_max3_f32 v{T}, v{T}, v{r+5}, v{r+6}")
            e(f"v_max_f32 v{T}, v{T}, v{r+7}")
            e(f"v_mov_b32 v{T2}, v{T}")
            e(f"v_permlane32_swap_b32 v{T}, v{T2}")
            e(f"v_max_f32 v{T}, v{T}, v{T2}")
            e(f"v_mov_b32 v{T2}, v{T}")
            e(f"v_permlane16_swap_b32 v{T}, v{T2}")
            e(f"v_max_f32 v{T}, v{T}, v{T2}")
            if not first:
                e(f"v_max_f32 v{T}, 0, v{T}")
                if OPT["sms"]:
                    e(f"v_mul_f32 v{vAl+u}, s{sC}, v{T}")
                    e(f"v_exp_f32 v{vAl+u}, -v{vAl+u}")
                else: e(f"v_exp_f32 v{vAl+u}, -v{T}")
            for k in range(8):
                e(f"v_sub_f32 v{r+k}, v{r+k}, v{T}")
                e(f"v_sub_f32 v{S2+8*u+k}, v{S2+8*u+k}, v{T}")
            for k in range(4): e(f"v_sub_f32 v{vNM+4*u+k}, v{vNM+4*u+k}, v{T}")
            if not first: e(f"v_mul_f32 v{Lo+u}, v{Lo+u}, v{vAl+u}")
        for s in softmax(S, par): e(s)
        if not first:
            for r in range(128):
                e(f"v_mul_f32 v{vO+r}, v{vO+r}, v{vAl + ((r >> 3) & 1)}")
        e("s_nop 3")
        e(f"s_setpc_b64 s[{sRet}:{sRet+1}]")
    a.lab("L_k1_end")
    lines = "\n".join(a.L).split("\n")
    lines, npad = pad_hazards(lines)
    sys.stderr.write(f"k1: {len(lines)} lines, {npad} hazard pads\n")
    return "\n".join(lines) + "\n"

def desc(name, vgpr, acc, sgpr=102):
    return f""".p2align 6
.amdhsa_kernel {name}
  .amdhsa_next_free_vgpr {vgpr}
  .amdhsa_next_free_sgpr {sgpr}
  .amdhsa_accum_offset {acc}
  .amdhsa_group_segment_fixed_size 0
  .amdhsa_kernarg_size 104
  .amdhsa_user_sgpr_count 2
  .amdhsa_user_sgpr_kernarg_segment_ptr 1
  .amdhsa_system_sgpr_workgroup_id_x 1
.end_amdhsa_kernel
"""

def main():
    ref = open(f"cdna_kernels/{NAME}.s.ref").read().splitlines()
    hdr = [l for l in ref if l.startswith(";") and "@launch" not in l and "Override launch" not in l and "grid=ceil" not in l]
    out = "\n".join(hdr) + "\n"
    if OPT["lst"]:
        out += f"; @launch kernel={K1} grid=(256,1,1) block=(256,1,1) lds=163840\n"
    else:
        out += f"; @launch grid=(256,1,1) block=(256,1,1) lds=163840\n"
    out += '.amdgcn_target "amdgcn-amd-amdhsa--gfx950"\n.text\n'
    out += gen_k1(gen_k1(None))
    out += '.section .rodata,"a"\n'
    out += desc(K1, 512, 256)
    if PG: out = pages(out)
    open(sys.argv[1], "w").write(out)

def pages(out):
    import subprocess, re, os
    ret = {k0 + w: k0 for (h, k0, n) in PG for w in range(n)}
    L = out.split("\n")
    tmp = f"_pg{os.getpid()}"
    t1 = next(i for i, x in enumerate(L) if x.strip().startswith(".section .rodata"))
    open(tmp + ".s", "w").write("\n".join(L[:t1] + [f"L_pg{k}:" for k in ret] + L[t1:]))
    subprocess.run(["clang", "-x", "assembler", "-target", "amdgcn-amd-amdhsa", "-mcpu=gfx950", "-c", tmp + ".s", "-o", tmp + ".o"], check=True)
    d = subprocess.run(["llvm-objdump", "-d", tmp + ".o"], capture_output=True, text=True).stdout
    S = [4*len(m.group(2).split()) for m in (re.search(r"//\s*([0-9A-F]{12}):((?: [0-9A-F]{8})+)", x) for x in d.split("\n")) if m]
    def isins(x):
        t = x.split(";")[0].strip()
        return bool(t) and not t.endswith(":") and not t.startswith(".")
    t0 = next(i for i, x in enumerate(L) if x.strip() == ".text")
    idx = [i for i in range(t0, t1) if isins(L[i])]
    assert len(S) == len(idx)
    off, todo, res, pos = 0, sorted(ret), [], dict(zip(idx, S))
    lanes_off = False
    for i, x in enumerate(L):
        if i in pos:
            if x.strip().startswith("s_mov_b64 exec, 0"): lanes_off = True
            if todo and off >= todo[0]*4096 and not lanes_off:
                k = todo.pop(0)
                res += [f"L_pg{k}:", f"    s_cbranch_execz L_pgr{ret[k]}"]; off += 4
            off += pos[i]
            if x.strip().startswith("s_mov_b64 exec, -1"): lanes_off = False
        res.append(x)
    assert not todo, todo
    return "\n".join(res)

main()
```
